```python
import torch

def _softmax(x, axis=-1):
    return torch.softmax(x, dim=axis)
def _gelu(x):
    return torch.nn.functional.gelu(x, approximate="tanh")
def _silu(x):
    return torch.nn.functional.silu(x)
def _sigmoid(x):
    return torch.sigmoid(x)
def _layernorm(x, axis=-1, eps=1e-5):
    m = x.mean(dim=axis, keepdim=True)
    v = x.var(dim=axis, keepdim=True, unbiased=False)
    return (x - m) / torch.sqrt(v + eps)
def _scatter_add(tgt, idx, src, axis=0):
    return tgt.clone().index_add_(axis, idx, src)
def _segment_sum(src, seg, n):
    out = torch.zeros((n,) + src.shape[1:], dtype=src.dtype)
    return out.index_add_(0, seg, src)
def _pad(x, pw):
    flat = tuple(v for pair in reversed(pw) for v in pair)
    return torch.nn.functional.pad(x, flat)

kernel_name = 'gather_scatter__edge_featured_mpnn_mpnn__graph'

def setup_inputs():

    _w = (lambda a: (lambda t: t.to(torch.bfloat16) if t.is_floating_point() else t)(torch.as_tensor(a)))
    N, deg, D, De = 10000, 16, 128, max(4, 1)
    E = N * deg
    H = 2 * D
    return {
        "x": _w((lambda *s: torch.randn(*s, dtype=torch.bfloat16) * 0.05)(N, D)),
        "e_attr": _w((lambda *s: torch.randn(*s, dtype=torch.bfloat16) * 1.6)(E, De)),
        "src": _w((lambda lo, hi, *s: torch.randint(lo, hi, s))(0, N, E).to(torch.int64)),
        "dst": _w((lambda lo, hi, *s: torch.randint(lo, hi, s))(0, N, E).to(torch.int64)),
        "w1": _w((lambda *s: torch.randn(*s, dtype=torch.bfloat16) * 1.6)(2 * D + De, H) * (1.0 / (2 * D + De) ** 0.5)),
        "b1": _w((lambda *s: torch.randn(*s, dtype=torch.bfloat16) * 3.2)(H) * 0.01),
        "w2": _w((lambda *s: torch.randn(*s, dtype=torch.bfloat16) * 0.05)(H, D) * (1.0 / H ** 0.5)),
        "b2": _w((lambda *s: torch.randn(*s, dtype=torch.bfloat16) * 0.1)(D) * 0.01),
    }

def reference(x, e_attr, src, dst, w1, b1, w2, b2):
    N, D = x.shape
    h_src = x[src]
    h_dst = x[dst]
    m_in = torch.concatenate([h_src, h_dst, e_attr], axis=-1)
    h = _silu(m_in @ w1 + b1)
    msg = h @ w2 + b2
    return _segment_sum(msg, dst, N)
```

```python
import sys, struct, math

NAME = "gather_scatter__edge_featured_mpnn_mpnn__graph"
N, E = 10000, 160000

WS_P = 0
WS_Q = 0x500000
WS_SLOT = 0xA00000
WS_W2F = 0xC00000
WS_WE = 0xC10000
WS_END = 0xC11000
TABB = N * 512

NCH = 64
CHE = E // NCH
LOG2E = 1.4426950408889634
CEXP = 48


def f32(x):
    return struct.unpack("<I", struct.pack("<f", x))[0]


class Asm:
    def __init__(self):
        self.l = []

    def __call__(self, s):
        for x in s.split("\n"):
            x = x.strip()
            if x:
                self.l.append(("" if x.endswith(":") else "    ") + x)

    def text(self):
        return "\n".join(self.l) + "\n"


def vr(a, n=1):
    return f"v{a}" if n == 1 else f"v[{a}:{a+n-1}]"


def sr(a, n=1):
    return f"s{a}" if n == 1 else f"s[{a}:{a+n-1}]"


def srd(A, d, base, size, off=None, stride=0):
    if off is None:
        A(f"s_mov_b32 s{d}, s{base}")
        if stride:
            A(f"s_or_b32 s{d+1}, s{base+1}, {stride << 16:#x}")
        else:
            A(f"s_mov_b32 s{d+1}, s{base+1}")
    else:
        A(f"s_add_u32 s{d}, s{base}, {off}")
        A(f"s_addc_u32 s{d+1}, s{base+1}, 0")
        if stride:
            A(f"s_or_b32 s{d+1}, s{d+1}, {stride << 16:#x}")
    A(f"s_mov_b32 s{d+2}, {size}")
    A(f"s_mov_b32 s{d+3}, 0x00020000")


PRE_LDS = 98304
G_WG, B_WG, F_WG = 160, 64, 32


def pre_kernel(A):
    A("pre_kernel:")
    A(f"""
    s_cmp_ge_u32 s2, {G_WG + B_WG + F_WG}
    s_cbranch_scc1 P_end
    s_load_dwordx4 s[4:7], s[0:1], 0
    s_load_dwordx4 s[8:11], s[0:1], 16
    s_load_dwordx4 s[12:15], s[0:1], 32
    s_load_dwordx2 s[16:17], s[0:1], 48
    s_load_dwordx2 s[18:19], s[0:1], 80
    v_lshrrev_b32 v2, 6, v0
    v_and_b32 v1, 63, v0
    v_readfirstlane_b32 s20, v2
    s_cmp_ge_u32 s2, {G_WG + B_WG}
    s_cbranch_scc1 P_fmt
    s_cmp_ge_u32 s2, {G_WG}
    s_cbranch_scc1 P_bin
    """)
    A("""
    s_lshr_b32 s21, s2, 4
    s_lshl_b32 s21, s21, 3
    s_and_b32 s3, s2, 7
    s_add_u32 s21, s21, s3
    s_bfe_u32 s22, s2, 0x10003
    s_cmp_ge_u32 s21, 79
    s_cbranch_scc1 P_end
    s_waitcnt lgkmcnt(0)
    """)
    SW, SX, SB, SO = 24, 28, 32, 36
    srd(A, SW, 12, 260 * 512)
    srd(A, SX, 4, N * 256)
    srd(A, SB, 14, 0)
    A(f"s_lshl_b32 s{SB+2}, s22, 9")
    A(f"s_mul_i32 s3, s22, {WS_Q}")
    srd(A, SO, 18, TABB, off="s3")
    A(f"""
    v_lshrrev_b32 v3, 5, v1          ; h
    v_and_b32 v4, 31, v1             ; n / m
    v_lshlrev_b32 v5, 2, v3
    v_xor_b32 v5, v5, v4
    v_lshlrev_b32 v5, 4, v5
    v_lshl_add_u32 v5, v3, 9, v5
    s_lshl_b32 s23, s20, 13          ; wave*8192
    s_lshl_b32 s3, s22, 16
    s_add_u32 s3, s3, s23
    v_add_u32 v5, s3, v5
    v_xor_b32 v6, 0x80, v5
    s_mov_b32 s40, 4096
    s_mov_b32 m0, s23
    v_lshrrev_b32 v7, 4, v1
    v_and_b32 v8, 15, v1
    v_xor_b32 v8, v8, v7
    v_lshlrev_b32 v8, 4, v8
    v_lshl_add_u32 v8, v7, 8, v8
    s_lshl_b32 s3, s21, 15
    s_lshl_b32 s41, s20, 12
    s_add_u32 s3, s3, s41
    v_add_u32 v8, s3, v8
    v_xor_b32 v9, 0x40, v8
    v_xor_b32 v10, 0x80, v8
    v_xor_b32 v11, 0xc0, v8
    """)
    for ii in range(4):
        A(f"buffer_load_dwordx4 v{5 + (ii & 1)}, s[{SW}:{SW+3}], 0 offen offset:{ii*1024} lds")
    A("s_add_u32 s3, s41, 65536\ns_mov_b32 m0, s3\ns_nop 0")
    for ii in range(4):
        A(f"buffer_load_dwordx4 v{8 + ii}, s[{SX}:{SX+3}], 0 offen offset:{ii*1024} lds")
    A("s_add_u32 s3, s23, 4096\ns_mov_b32 m0, s3\ns_nop 0")
    for ii in range(4):
        A(f"buffer_load_dwordx4 v{5 + (ii & 1)}, s[{SW}:{SW+3}], s40 offen offset:{ii*1024} lds")
    A(f"""
    s_lshr_b32 s42, s20, 2           ; nh
    s_and_b32 s43, s20, 3            ; mt
    s_lshl_b32 s3, s42, 8
    v_lshl_add_u32 v12, v4, 1, s3
    """)
    for t in range(4):
        A(f"buffer_load_ushort v{16+t}, v12, s[{SB}:{SB+3}], 0 offen offset:{t*64}")
    A(f"""
    v_and_b32 v13, 15, v4
    v_xor_b32 v13, v13, v3
    v_lshlrev_b32 v13, 4, v13
    v_lshl_add_u32 v13, v4, 8, v13
    s_lshl_b32 s3, s43, 13
    s_add_u32 s3, s3, 65536
    v_add_u32 v20, s3, v13
    """)
    for s in range(1, 8):
        A(f"v_xor_b32 v{20+s}, {s << 5:#x}, v20")
    A(f"""
    v_bfe_u32 v13, v1, 2, 2          ; r
    v_lshlrev_b32 v14, 9, v13
    v_lshl_add_u32 v14, v3, 12, v14  ; + h*8*512
    v_bfe_u32 v15, v1, 4, 1
    v_lshl_add_u32 v14, v15, 5, v14
    v_and_b32 v15, 3, v1
    v_lshl_add_u32 v14, v15, 3, v14
    s_lshl_b32 s3, s42, 8
    v_add_u32 v14, s3, v14
    v_lshl_add_u32 v28, v13, 6, v14  ; t=0: (0^r)*64
    """)
    for t in range(1, 4):
        A(f"v_xor_b32 v{28+t}, {t << 6:#x}, v28")
    ACC, AF, BF = 64, 32, 128
    A("s_waitcnt vmcnt(0)")
    for t in range(4):
        A(f"v_lshlrev_b32 v{16+t}, 16, v{16+t}")
    A("s_barrier")
    for s in range(8):
        A(f"ds_read_b128 {vr(AF+4*s,4)}, v{20+s}")
        if s == 0:
            for t in range(4):
                for x in range(2):
                    A(f"ds_read_b64_tr_b16 {vr(BF+4*t+2*x,2)}, v{28+t} offset:{x*2048}")
    for t in range(4):
        for r in range(16):
            A(f"v_mov_b32 v{ACC+16*t+r}, v{16+t}")
    for s in range(8):
        b = BF + 16 * (s & 1)
        if s < 7:
            A("s_waitcnt lgkmcnt(0)")
            bn = BF + 16 * ((s + 1) & 1)
            for t in range(4):
                for x in range(2):
                    A(f"ds_read_b64_tr_b16 {vr(bn+4*t+2*x,2)}, v{28+t} offset:{(s+1)*8192+x*2048}")
        else:
            A("s_waitcnt lgkmcnt(0)")
        for t in range(4):
            A(f"v_mfma_f32_32x32x16_bf16 {vr(ACC+16*t,16)}, {vr(AF+4*s,4)}, {vr(b+4*t,4)}, {vr(ACC+16*t,16)}")
    A(f"""
    s_lshl_b32 s3, s21, 16
    s_lshl_b32 s44, s43, 14
    s_add_u32 s3, s3, s44
    s_lshl_b32 s44, s42, 8
    s_add_u32 s3, s3, s44
    v_lshlrev_b32 v12, 3, v4
    v_lshl_add_u32 v12, v3, 11, v12
    v_add_u32 v12, s3, v12
    v_mov_b32 v14, {f32(-LOG2E):#x}
    v_mov_b32 v15, v14
    s_mov_b32 s44, 0
    s_mov_b32 s45, 4096
    s_mov_b32 s46, 8192
    s_mov_b32 s47, 12288
    s_nop 7
    """)
    for r0 in range(0, 16, 2):
        for t in range(4):
            a = ACC + 16 * t + r0
            A(f"v_pk_mul_f32 {vr(a,2)}, {vr(a,2)}, v[14:15]")
        for r in (r0, r0 + 1):
            o = 32 + 2 * r
            A(f"v_cvt_pk_bf16_f32 v{o}, v{ACC+r}, v{ACC+16+r}")
            A(f"v_cvt_pk_bf16_f32 v{o+1}, v{ACC+32+r}, v{ACC+48+r}")
            A(f"buffer_store_dwordx2 {vr(o,2)}, v12, s[{SO}:{SO+3}], s{44 + (r >> 2)} offen offset:{(r & 3)*512}")
    A("s_endpgm")

    SS, SD, SL = 24, 28, 32
    A("P_bin:")
    A(f"""
    s_sub_u32 s21, s2, {G_WG}        ; chunk
    s_mul_i32 s22, s21, {CHE*4}
    s_waitcnt lgkmcnt(0)
    """)
    srd(A, SS, 8, CHE * 4, off="s22")
    srd(A, SD, 10, CHE * 4, off="s22")
    srd(A, SL, 18, 0x200000, off=WS_SLOT)
    A("v_lshlrev_b32 v2, 2, v0\ns_mov_b32 s40, 4096\ns_mov_b32 s41, 8192")
    for k in range(5):
        so = ["0", "0", "s40", "s40", "s41"][k]
        A(f"buffer_load_dword v{10+k}, v2, s[{SD}:{SD+3}], {so} offen offset:{(k & 1)*2048}")
    for k in range(5):
        so = ["0", "0", "s40", "s40", "s41"][k]
        A(f"buffer_load_dword v{15+k}, v2, s[{SS}:{SS+3}], {so} offen offset:{(k & 1)*2048}")
    A("""
    v_lshlrev_b32 v3, 4, v0
    v_mov_b32 v4, -1
    v_mov_b32 v5, -1
    v_mov_b32 v6, -1
    v_mov_b32 v7, -1
    v_mov_b32 v8, 0
    v_mov_b32 v9, 1
    """)
    for q in range(4):
        A(f"ds_write_b128 v3, v[4:7] offset:{q*8192}")
    A("""
    ds_write_b32 v2, v8 offset:32768
    s_waitcnt lgkmcnt(0)
    s_barrier
    s_waitcnt vmcnt(5)
    """)
    for k in range(5):
        A(f"v_mul_u32_u24 v{20+k}, 1677, v{10+k}")
        A(f"v_lshrrev_b32 v{20+k}, 16, v{20+k}")
        A(f"v_lshlrev_b32 v{25+k}, 2, v{20+k}")
        if k == 4:
            A(f"v_cmp_gt_u32 vcc, {CHE - 2048}, v0\ns_and_saveexec_b64 s[42:43], vcc")
        A(f"ds_add_rtn_u32 v{30+k}, v{25+k}, v9 offset:32768")
    A("s_mov_b64 s[44:45], exec\ns_mov_b64 exec, s[42:43]\ns_waitcnt vmcnt(0)")
    for k in range(5):
        A(f"""
        v_and_b32 v{10+k}, 63, v{10+k}
        v_lshl_or_b32 v{15+k}, v{10+k}, 14, v{15+k}
        v_add_u32 v{10+k}, {512*k}, v0
        v_lshl_or_b32 v{15+k}, v{10+k}, 20, v{15+k}
        """)
    for k in range(5):
        if k == 4:
            A("s_mov_b64 exec, s[44:45]")
        A(f"""
        s_waitcnt lgkmcnt({4-k})
        v_add_u32 v35, v{30+k}, v{20+k}
        v_and_b32 v35, 7, v35
        v_lshrrev_b32 v36, 3, v{30+k}
        v_lshl_add_u32 v35, v35, 2, v36
        v_lshlrev_b32 v35, 2, v35
        v_lshl_add_u32 v{25+k}, v{20+k}, 7, v35
        v_cmp_gt_u32 vcc, 32, v{30+k}
        s_and_saveexec_b64 s[46:47], vcc
        ds_write_b32 v{25+k}, v{15+k}
        s_mov_b64 exec, s[46:47]
        """)
    A("""
    s_mov_b64 exec, -1
    s_waitcnt lgkmcnt(0)
    s_barrier
    v_lshrrev_b32 v10, 3, v0
    v_lshlrev_b32 v11, 2, v10
    v_and_b32 v12, 7, v0
    """)
    for q in range(4):
        A(f"ds_read_b128 {vr(16+4*q,4)}, v3 offset:{q*8192}")
        A(f"ds_read_b32 v{32+q}, v11 offset:{32768+q*256}")
    A(f"""
    v_lshlrev_b32 v13, 13, v10
    v_lshl_add_u32 v13, v12, 4, v13
    s_lshl_b32 s3, s21, 7
    v_add_u32 v13, s3, v13
    v_cmp_eq_u32 s[42:43], 7, v12
    v_mov_b32 v14, -2
    s_mov_b32 s44, 0
    s_mov_b32 s45, {64*8192}
    s_mov_b32 s46, {128*8192}
    s_mov_b32 s47, {192*8192}
    """)
    for q in range(4):
        A(f"""
        s_waitcnt lgkmcnt({6-2*q})
        v_cmp_lt_u32 vcc, 32, v{32+q}
        s_and_b64 vcc, vcc, s[42:43]
        s_nop 1
        v_cndmask_b32 v{19+4*q}, v{19+4*q}, v14, vcc
        buffer_store_dwordx4 {vr(16+4*q,4)}, v13, s[{SL}:{SL+3}], s{44+q} offen
        """)
    A("s_endpgm")

    S2, S1, SF = 24, 28, 32
    A("P_fmt:")
    A(f"s_sub_u32 s21, s2, {G_WG + B_WG}\ns_waitcnt lgkmcnt(0)")
    srd(A, S2, 16, 256 * 256)
    srd(A, S1, 12, 260 * 512)
    srd(A, SF, 18, WS_END - WS_W2F, off=WS_W2F)
    A(f"""
    s_lshl_b32 s3, s21, 9
    v_add_u32 v2, s3, v0             ; di
    v_bfe_u32 v3, v2, 10, 1          ; nh
    v_lshlrev_b32 v3, 7, v3
    v_and_b32 v4, 1, v2              ; e2&1 -> t = 2*(e2&1)
    v_lshl_add_u32 v3, v4, 6, v3
    v_bfe_u32 v4, v2, 8, 2           ; s&3
    v_lshl_add_u32 v3, v4, 3, v3
    v_bfe_u32 v4, v2, 6, 1
    v_lshl_add_u32 v3, v4, 2, v3
    v_bfe_u32 v4, v2, 1, 1           ; e2>>1
    v_lshl_add_u32 v3, v4, 1, v3
    v_bfe_u32 v4, v2, 7, 1           ; h = q>>1
    v_add_u32 v3, v3, v4
    v_lshlrev_b32 v3, 8, v3          ; *256 bytes
    v_lshrrev_b32 v4, 11, v2         ; wo
    v_lshl_add_u32 v3, v4, 5, v3
    v_bfe_u32 v4, v2, 2, 4           ; m
    v_lshl_add_u32 v3, v4, 1, v3
    s_mov_b32 s40, 8192
    buffer_load_ushort v5, v3, s[{S2}:{S2+3}], 0 offen
    buffer_load_ushort v6, v3, s[{S2}:{S2+3}], s40 offen
    v_lshlrev_b32 v7, 2, v2
    s_waitcnt vmcnt(0)
    v_lshl_or_b32 v5, v6, 16, v5
    buffer_store_dword v5, v7, s[{SF}:{SF+3}], 0 offen
    s_cmp_lg_u32 s21, 0
    s_cbranch_scc1 P_end
    v_lshrrev_b32 v3, 7, v0          ; f
    v_add_u32 v3, 256, v3
    v_lshlrev_b32 v3, 9, v3
    v_bfe_u32 v4, v0, 6, 1           ; nh
    v_lshl_add_u32 v3, v4, 8, v3
    v_and_b32 v4, 1, v0              ; t = 2*(tid&1)
    v_lshl_add_u32 v3, v4, 7, v3
    v_bfe_u32 v4, v0, 1, 5           ; n
    v_lshl_add_u32 v3, v4, 1, v3
    buffer_load_ushort v5, v3, s[{S1}:{S1+3}], 0 offen
    buffer_load_ushort v6, v3, s[{S1}:{S1+3}], 0 offen offset:64
    v_lshlrev_b32 v7, 2, v0
    v_add_u32 v7, {WS_WE - WS_W2F}, v7
    s_mov_b32 s3, {f32(-LOG2E):#x}
    s_waitcnt vmcnt(0)
    v_lshlrev_b32 v5, 16, v5
    v_lshlrev_b32 v6, 16, v6
    v_mul_f32 v5, s3, v5
    v_mul_f32 v6, s3, v6
    v_cvt_pk_bf16_f32 v8, v5, v6
    v_lshlrev_b32 v9, 16, v8
    v_and_b32 v10, 0xffff0000, v8
    v_sub_f32 v5, v5, v9
    v_sub_f32 v6, v6, v10
    v_cvt_pk_bf16_f32 v9, v5, v6
    buffer_store_dword v8, v7, s[{SF}:{SF+3}], 0 offen
    buffer_store_dword v9, v7, s[{SF}:{SF+3}], 0 offen offset:2048
    P_end:
    s_endpgm
    """)


D = 4
CAP_T = 26
L_RING = 0
L_AQE = 8 * D * 2048
L_AQH = L_AQE + CAP_T * 512
L_AGG = L_AQH + CAP_T * 512
L_LIST = L_AGG + (CAP_T + 1) * 1024
L_CNT = L_LIST + (CAP_T + D + 2) * 128
L_WE = L_CNT + 256
L_Q = L_WE + 4096
MAIN_LDS = L_Q + 48 * 512
ZERO_BYTES = L_LIST - L_AQE
assert MAIN_LDS <= 163840

sP, sWS, sE, sO, sB2, sSRC, sDST, sQ = 8, 12, 16, 20, 24, 28, 32, 36
s_w, s_nb0, s_nn, s_T, s_TmD, s_T0p, s_t, s_g, s_Tend, s_flag, s_slow, s_batch, s_ring, s_sw, s_tot, s_nb4, s_alt = range(40, 57)
s_x = 60

vU = [16, 32]
vT = 48
vN = 64
vDn = 72
vH = 80
vACC = 84
vS0 = 100
vS1 = 116
vPf0, vPf1, vAqe, vAgg, vBq = 132, 136, 140, 144, 148
vSel0, vSel1 = 152, 156
vW2 = 160
vIdx = 192
vC = 196
vaAqe, vaAgg, vaList, vaP0, vaP1, vaB0, vaB1, vH4096, vTend, vBase, vDeg, vChunk8, vLane, vB2 = range(198, 212)
vB2 = 212
NV = 216


def mfma32(A, d, a, b, c):
    cs = "0" if c is None else vr(c, 16)
    A(f"v_mfma_f32_32x32x16_bf16 {vr(d,16)}, {vr(a,4)}, {vr(b,4)}, {cs}")


def main_kernel(A, stamps=False):
    A("main_kernel:")
    A(f"""
    s_cmp_ge_u32 s2, 256
    s_cbranch_scc1 M_end
    s_load_dwordx2 s[4:5], s[0:1], 80
    s_load_dwordx2 s[6:7], s[0:1], 8
    s_load_dwordx4 s[{s_x}:{s_x+3}], s[0:1], 16
    s_load_dwordx4 s[{s_x+4}:{s_x+7}], s[0:1], 56
    v_lshrrev_b32 v2, 6, v0
    v_and_b32 v{vLane}, 63, v0
    v_readfirstlane_b32 s{s_w}, v2
    s_mul_i32 s{s_nb0}, s2, 160069
    s_add_u32 s3, s{s_nb0}, {160069 + 4049}
    s_add_u32 s{s_nb0}, s{s_nb0}, 4049
    s_lshr_b32 s{s_nb0}, s{s_nb0}, 12
    s_lshr_b32 s3, s3, 12
    s_min_u32 s3, s3, {N}
    s_sub_u32 s{s_nn}, s3, s{s_nb0}
    s_lshl_b32 s{s_nb4}, s{s_nb0}, 2
    s_lshl_b32 s3, s3, 8
    s_waitcnt lgkmcnt(0)
    """)
    srd(A, sWS, 4, WS_END)
    A(f"""
    s_lshl_b32 s{s_t}, s2, 13
    s_add_u32 s{s_t}, s{s_t}, {WS_SLOT}
    v_lshlrev_b32 v1, 4, v0
    buffer_load_dwordx4 v[4:7], v1, s[{sWS}:{sWS+3}], s{s_t} offen
    """)
    srd(A, sQ, 4, TABB, off=WS_Q)
    srd(A, sP, 4, N, stride=512)
    srd(A, sE, 6, E * 8)
    srd(A, sSRC, s_x, E * 4)
    srd(A, sDST, s_x + 2, E * 4)
    srd(A, sB2, s_x + 4, 256)
    srd(A, sO, s_x + 6, "s3")
    L = vLane
    A(f"""
    v_lshrrev_b32 v2, 5, v{L}        ; h
    v_and_b32 v3, 31, v{L}           ; m
    v_lshlrev_b32 v8, 2, v2
    v_xor_b32 v8, v8, v3
    v_lshlrev_b32 v8, 4, v8
    v_lshl_add_u32 v8, v2, 9, v8     ; parity 0
    s_and_b32 s{s_x}, s{s_w}, 1
    s_lshl_b32 s{s_x}, s{s_x}, 7
    v_xor_b32 v8, s{s_x}, v8
    s_lshl_b32 s{s_x}, s{s_w}, 10
    s_lshl_b32 s{s_x+1}, s{s_nb0}, 9
    s_add_u32 s{s_x+1}, s{s_x+1}, s{s_x}
    s_add_u32 s{s_x+2}, s{s_x}, {L_Q}
    """)
    for ii in range(3):
        A(f"""
        s_mov_b32 m0, s{s_x+2}
        s_add_u32 s{s_x+2}, s{s_x+2}, 8192
        buffer_load_dwordx4 v8, s[{sQ}:{sQ+3}], s{s_x+1} offen lds
        s_add_u32 s{s_x+1}, s{s_x+1}, 8192
        """)
    A(f"""
    s_and_b32 s{s_x}, s{s_x}, 3072
    s_add_u32 s{s_x+2}, s{s_x}, {L_WE}
    s_mov_b32 m0, s{s_x+2}
    s_add_u32 s{s_x+1}, s{s_x}, {WS_WE}
    buffer_load_dwordx4 v8, s[{sWS}:{sWS+3}], s{s_x+1} offen lds
    """)
    A(f"""
    s_lshl_b32 s{s_ring}, s{s_w}, {int(math.log2(D*2048))}
    v_lshrrev_b32 v9, 4, v3
    v_and_b32 v10, 3, v3
    v_lshl_add_u32 v9, v10, 1, v9
    v_and_b32 v10, 8, v3
    v_add_u32 v9, v9, v10
    v_and_b32 v10, 4, v3
    v_lshl_add_u32 v9, v10, 2, v9    ; sigma
    v_lshlrev_b32 v9, 4, v9
    v_mul_u32_u24 v10, {L_AQH - L_AQE}, v2
    v_add_u32 v9, v9, v10
    v_add_u32 v{vaAqe}, {L_AQE - 4*512}, v9
    v_lshlrev_b32 v9, 4, v{L}
    v_add_u32 v{vaAgg}, {L_AGG - 5*1024}, v9
    v_lshrrev_b32 v9, 2, v{L}
    v_and_b32 v10, 3, v9
    v_lshlrev_b32 v10, 1, v10
    v_and_b32 v11, 8, v9
    v_add_u32 v10, v10, v11
    v_and_b32 v11, 4, v9
    v_lshl_add_u32 v10, v11, 2, v10
    v_lshlrev_b32 v10, 2, v10
    v_add_u32 v{vaList}, {L_LIST - 4*128}, v10
    v_and_b32 v9, 3, v{L}
    v_lshrrev_b32 v10, 4, v{L}
    v_xor_b32 v9, v9, v10
    v_lshlrev_b32 v9, 4, v9
    s_lshl_b32 s{s_x}, s{s_w}, 6
    v_add_u32 v{vIdx+1}, s{s_x}, v9
    v_add_u32 v{vIdx+3}, s{s_x}, v9
    v_bfe_u32 v9, v3, 2, 2
    v_xor_b32 v9, v9, v2
    v_lshlrev_b32 v9, 4, v9
    v_lshl_add_u32 v9, v3, 6, v9
    v_add_u32 v{vaP0}, s{s_ring}, v9
    v_xor_b32 v{vaP1}, 32, v{vaP0}
    v_and_b32 v9, 1, v3
    v_lshlrev_b32 v9, 4, v9
    v_mov_b32 v10, 0x3f80
    v_lshlrev_b32 v9, v9, v10
    v_lshrrev_b32 v10, 1, v3
    v_lshlrev_b32 v11, 2, v2
    v_sub_u32 v10, v10, v11
    """)
    for x in range(4):
        A(f"v_cmp_eq_u32 s[{s_x}:{s_x+1}], {x}, v10\nv_cmp_eq_u32 vcc, {8+x}, v10\ns_nop 0")
        A(f"v_cndmask_b32 v{vSel0+x}, 0, v9, s[{s_x}:{s_x+1}]\nv_cndmask_b32 v{vSel1+x}, 0, v9, vcc")
    A(f"""
    v_lshlrev_b32 v{vH4096}, 12, v2
    v_mov_b32 v{vC}, {f32(2.0**-CEXP):#x}
    v_mov_b32 v{vC+1}, {f32(2.0**-CEXP):#x}
    v_mov_b32 v{vDeg}, 0
    v_lshrrev_b32 v9, 3, v0
    v_mul_u32_u24 v{vChunk8}, {CHE*8}, v9
    s_mov_b32 s{s_slow}, 0
    """)
    for r in range(16):
        A(f"v_mov_b32 v{vS0+r}, 0\nv_mov_b32 v{vS1+r}, 0")
    A("M_batch:")
    A(f"""
    v_mov_b32 v8, 0
    v_mov_b32 v9, 0
    v_mov_b32 v10, 0
    v_mov_b32 v11, 0
    v_mov_b32 v12, -1
    v_mov_b32 v13, -1
    v_lshlrev_b32 v1, 4, v0
    v_lshlrev_b32 v14, 3, v0
    v_lshlrev_b32 v15, 2, v{L}
    v_add_u32 v1, {L_AQE}, v1
    v_add_u32 v14, {L_LIST}, v14
    v_add_u32 v15, {L_CNT}, v15
    ds_write_b32 v15, v8
    """)
    nz = ZERO_BYTES // 8192
    rem = ZERO_BYTES - nz * 8192
    assert (L_CNT - L_LIST) == 4096
    A("ds_write_b64 v14, v[12:13]")
    for q in range(nz):
        A(f"ds_write_b128 v1, v[8:11] offset:{q*8192}")
    if rem:
        A(f"""
        v_cmp_gt_u32 vcc, {rem//16}, v0
        s_and_saveexec_b64 s[{s_x}:{s_x+1}], vcc
        ds_write_b128 v1, v[8:11] offset:{nz*8192}
        s_mov_b64 exec, s[{s_x}:{s_x+1}]
        """)
    A(f"""
    v_bfe_u32 v8, v{L}, 2, 2         ; r
    v_xor_b32 v9, s{s_w}, v8
    v_lshlrev_b32 v9, 6, v9
    v_lshl_add_u32 v9, v8, 9, v9
    v_bfe_u32 v8, v{L}, 4, 1
    v_lshl_add_u32 v9, v8, 5, v9
    v_and_b32 v8, 3, v{L}
    v_lshl_add_u32 v9, v8, 3, v9
    v_add_u32 v9, v9, v{vH4096}      ; L_Q = L_WE + 4096
    v_add_u32 v{vaB0}, {L_WE}, v9
    v_add_u32 v{vaB1}, {L_WE + 2048}, v9
    v_mov_b32 v1, 1
    s_mov_b32 s{s_g}, 0
    s_mov_b32 s{s_flag}, 0
    s_mov_b32 s{s_sw}, 0
    """)
    for r in range(16):
        A(f"v_mov_b32 v{vACC+r}, 0")
    for r in range(4):
        A(f"v_mov_b32 v{vH+r}, 0\nv_mov_b32 v{vAgg+r}, 0")
    vD4, vRk, vEo, vEv = 16, 20, 24, 28
    sM = 72
    A(f"""
    s_waitcnt lgkmcnt(0)
    s_barrier
    s_waitcnt vmcnt(4)
    """)
    A(f"s_mov_b32 s{s_x}, 0xfff00000")
    for j in range(4):
        A(f"v_cmp_gt_u32 s[{sM+2*j}:{sM+2*j+1}], s{s_x}, v{4+j}")
    for j in range(4):
        A(f"""
        s_mov_b64 exec, s[{sM+2*j}:{sM+2*j+1}]
        s_cbranch_execz M_r1_{j}
        v_lshrrev_b32 v{vD4+j}, 12, v{4+j}
        v_subrev_u32 v{vD4+j}, s{s_nb4}, v{vD4+j}
        v_and_b32 v{vD4+j}, 0xfc, v{vD4+j}
        v_add_u32 v8, {L_CNT}, v{vD4+j}
        ds_add_rtn_u32 v{vRk+j}, v8, v1
        v_lshrrev_b32 v{vEo+j}, 20, v{4+j}
        v_lshl_add_u32 v{vEo+j}, v{vEo+j}, 3, v{vChunk8}
        buffer_load_dwordx2 {vr(vEv+2*j,2)}, v{vEo+j}, s[{sE}:{sE+3}], 0 offen
        v_and_b32 v{4+j}, 0x3fff, v{4+j}
        M_r1_{j}:
        """)
        if j == 2:
            A(f"""
            s_mov_b64 exec, -1
            v_cmp_eq_u32 vcc, -2, v7
            s_and_b64 exec, exec, vcc
            s_cbranch_execz M_nomark
            v_mov_b32 v8, {L_CNT + 63*4}
            v_mov_b32 v9, 0x10000
            ds_add_u32 v8, v9
            M_nomark:
            """)
    A(f"""
    s_mov_b64 exec, -1
    s_waitcnt lgkmcnt(0)
    s_barrier
    ds_read_b32 v8, v15
    s_mov_b32 s{s_alt}, 0
    s_waitcnt lgkmcnt(0)
    v_add_u32 v9, 1, v8
    v_and_b32 v9, -2, v9
    v_mov_b32 v10, v9
    s_nop 1
    v_add_u32_dpp v10, v10, v10 row_shr:1 row_mask:0xf bank_mask:0xf bound_ctrl:0
    s_nop 1
    v_add_u32_dpp v10, v10, v10 row_shr:2 row_mask:0xf bank_mask:0xf bound_ctrl:0
    s_nop 1
    v_add_u32_dpp v10, v10, v10 row_shr:4 row_mask:0xf bank_mask:0xf bound_ctrl:0
    s_nop 1
    v_add_u32_dpp v10, v10, v10 row_shr:8 row_mask:0xf bank_mask:0xf bound_ctrl:0
    s_nop 1
    v_add_u32_dpp v10, v10, v10 row_bcast:15 row_mask:0xa bank_mask:0xf
    s_nop 1
    v_add_u32_dpp v10, v10, v10 row_bcast:31 row_mask:0xc bank_mask:0xf
    v_lshlrev_b32 v11, 4, v{L}
    v_add_u32 v11, 16, v11
    v_sub_u32 v{vBase}, v10, v9
    v_readlane_b32 s{s_tot}, v10, 63
    M_derive:
    ds_bpermute_b32 v12, v11, v{vBase}
    """)
    for j in range(4):
        A(f"ds_bpermute_b32 v{36+j}, v{vD4+j}, v{vBase}")
    A(f"""
    s_cmp_gt_u32 s{s_tot}, {CAP_T*32}
    s_cbranch_scc1 M_goslow
    v_readlane_b32 s{s_T0p}, v{vBase}, 32
    s_add_u32 s{s_T}, s{s_tot}, 31
    s_lshr_b32 s{s_T}, s{s_T}, 5
    s_waitcnt lgkmcnt(4)
    v_add_u32 v13, 31, v12
    v_and_b32 v14, -32, v13                ; 32*Tend
    v_lshrrev_b32 v13, 5, v13
    v_mov_b32_dpp v12, v12 row_shl:1 row_mask:0xf bank_mask:0xf bound_ctrl:0
    v_add_u32 v13, -2, v13
    v_cmp_gt_u32 vcc, v14, v12
    v_cmp_ne_u32 s[{s_x}:{s_x+1}], s{s_tot}, v12
    s_and_b32 s{s_x}, s{s_x}, vcc_lo
    s_and_b32 s{s_x}, s{s_x}, 0xff
    s_cbranch_scc1 M_align
    v_mov_b32 v14, 0x7fffffff
    v_cmp_gt_u32 vcc, 9, v{L}
    s_cmp_lt_u32 s{s_T0p}, s{s_tot}
    s_cselect_b32 s{s_x}, 5, 31
    s_cselect_b32 s{s_x+1}, 1, 0x7fffffff
    v_cndmask_b32 v{vTend}, v14, v13, vcc
    s_lshr_b32 s{s_T0p}, s{s_T0p}, s{s_x}
    s_add_u32 s{s_T0p}, s{s_T0p}, s{s_x+1}
    v_add_u32 v{vDeg}, v{vDeg}, v8
    s_sub_i32 s{s_TmD}, s{s_T}, {1 + D}
    v_readlane_b32 s{s_Tend}, v{vTend}, 0
    s_waitcnt lgkmcnt(0)
    """)
    for j in range(4):
        A(f"""
        s_mov_b64 exec, s[{sM+2*j}:{sM+2*j+1}]
        s_cbranch_execz M_r2_{j}
        v_add_u32 v{vRk+j}, v{vRk+j}, v{36+j}
        v_lshlrev_b32 v8, 2, v{vRk+j}
        v_add_u32 v8, {L_LIST}, v8
        ds_write_b32 v8, v{4+j}
        M_r2_{j}:
        """)
    A(f"""
    s_mov_b64 exec, -1
    s_waitcnt lgkmcnt(0)
    s_barrier
    """)
    tI = 48
    for t in range(D):
        for jj in range(2):
            A(f"ds_read_b32 v{tI+4*t+2*jj}, v{vaList} offset:{(4+t)*128+4*jj}")
    for t in range(D):
        for jj in range(2):
            A(f"v_mov_b32 v{tI+4*t+2*jj+1}, v{vIdx+1}")
    A(f"s_mov_b32 s{s_x}, s{s_ring}")
    for t in range(D):
        for jj in range(2):
            i = 2 * t + jj
            A(f"""
            s_mov_b32 m0, s{s_x}
            s_add_u32 s{s_x}, s{s_x}, 1024
            s_waitcnt lgkmcnt({2*D-1-i})
            buffer_load_dwordx4 {vr(tI+2*i,2)}, s[{sP}:{sP+3}], 0 idxen offen lds
            """)
    A(f"v_mov_b32 v1, 0x3f80\ns_waitcnt vmcnt({2*D})")
    for j in range(4):
        A(f"""
        s_mov_b64 exec, s[{sM+2*j}:{sM+2*j+1}]
        s_cbranch_execz M_r3_{j}
        v_lshlrev_b32 v8, 4, v{vRk+j}
        v_add_u32 v8, {L_AQE}, v8
        ds_write2_b64 v8, {vr(vEv+2*j,2)}, {vr(vEv+2*j,2)} offset0:0 offset1:1
        v_bfe_u32 v9, v{vD4+j}, 2, 3
        v_lshl_add_u32 v9, v9, 1, v8
        ds_write_b16 v9, v1 offset:{L_AQH - L_AQE}
        v_and_b32 v9, 0x80, v{vD4+j}
        v_add_u32 v9, v9, v{vD4+j}
        v_and_b32 v10, 14, v{vRk+j}
        v_lshl_add_u32 v9, v9, 2, v10
        v_lshrrev_b32 v10, 4, v{vRk+j}
        v_lshl_add_u32 v9, v10, 9, v9
        v_add_u32 v9, {L_AGG}, v9
        ds_write_b16 v9, v1
        M_r3_{j}:
        """)
    A(f"""
    s_mov_b64 exec, -1
    s_waitcnt lgkmcnt(0)
    s_barrier
    s_cmp_eq_u32 s{s_T}, 0
    s_cbranch_scc1 M_bend
    """)

    ool = Asm()

    def window(tag):
        A(f"s_cmp_ge_i32 s{s_t}, s{s_Tend}\ns_cbranch_scc1 M_adv{tag}\nM_advr{tag}:")
        ool(f"""
        M_adv{tag}:
        s_bitcmp1_b32 s{s_g}, 0
        s_cbranch_scc1 M_advo{tag}
        v_add_u32 v{vaB0}, v{vaB0}, v{vH4096}
        s_add_u32 s{s_g}, s{s_g}, 1
        ds_read_b64_tr_b16 {vr(vBq,2)}, v{vaB0}
        s_branch M_advc{tag}
        M_advo{tag}:
        v_add_u32 v{vaB1}, v{vaB1}, v{vH4096}
        s_add_u32 s{s_g}, s{s_g}, 1
        ds_read_b64_tr_b16 {vr(vBq+2,2)}, v{vaB1}
        M_advc{tag}:
        v_readlane_b32 s{s_Tend}, v{vTend}, s{s_g}
        s_nop 0
        s_cmp_ge_i32 s{s_t}, s{s_Tend}
        s_cbranch_scc1 M_adv{tag}
        s_branch M_advr{tag}
        """)

    def w2load(B):
        B(f"""
        v_lshlrev_b32 v8, 4, v{L}
        s_lshl_b32 s{s_x}, s{s_w}, 13
        s_add_u32 s{s_x}, s{s_x}, {WS_W2F}
        s_add_u32 s{s_x+1}, s{s_x}, 4096
        """)
        for s in range(8):
            B(f"buffer_load_dwordx4 {vr(vW2+4*s,4)}, v8, s[{sWS}:{sWS+3}], s{s_x + (s >> 2)} offen offset:{(s & 3)*1024}")
        B(f"""
        v_lshrrev_b32 v8, 4, v{L}
        v_lshlrev_b32 v8, 3, v8
        s_lshl_b32 s{s_x}, s{s_w}, 5
        buffer_load_dwordx2 {vr(vB2,2)}, v8, s[{sB2}:{sB2+3}], s{s_x} offen
        s_mov_b32 s{s_flag}, 1
        """)

    def dma(p, tag):
        slot = (p + 1) % D
        A(f"""
        s_cmp_lt_i32 s{s_t}, s{s_TmD}
        s_cbranch_scc0 M_nd{tag}
        s_add_u32 m0, s{s_ring}, {slot*2048}
        s_nop 0
        buffer_load_dwordx4 {vr(vIdx,2)}, s[{sP}:{sP+3}], 0 idxen offen lds
        s_add_u32 m0, s{s_ring}, {slot*2048+1024}
        s_nop 0
        buffer_load_dwordx4 {vr(vIdx+2,2)}, s[{sP}:{sP+3}], 0 idxen offen lds
        M_ndr{tag}:
        """)
        ool(f"""
        M_nd{tag}:
        s_cmp_lg_u32 s{s_flag}, 0
        s_cbranch_scc1 M_ndr{tag}
        s_waitcnt vmcnt(0)
        """)
        w2load(ool)
        ool(f"s_branch M_ndr{tag}")

    def vmwait(tag):
        A(f"""
        s_cmp_lg_u32 s{s_flag}, 0
        s_cbranch_scc1 M_nw{tag}
        s_waitcnt vmcnt({2*(D-1)})
        M_nw{tag}:
        """)

    def reads(p, agg=True):
        slot2 = (p + 2) % D
        A(f"ds_read_b128 {vr(vPf0,4)}, v{vaP0} offset:{slot2*2048}")
        A(f"ds_read_b128 {vr(vPf1,4)}, v{vaP1} offset:{slot2*2048}")
        A(f"ds_read_b128 {vr(vAqe,4)}, v{vaAqe} offset:{(p+2)*512}")
        if agg:
            A(f"ds_read_b128 {vr(vAgg,4)}, v{vaAgg} offset:{(p+1)*1024}")
        A(f"ds_read_b32 v{vIdx}, v{vaList} offset:{(p+2+D)*128}")
        A(f"ds_read_b32 v{vIdx+2}, v{vaList} offset:{(p+2+D)*128+4}")

    def switch(tag, off):
        A(f"s_cmp_eq_u32 s{s_t}, s{s_T0p}\ns_cbranch_scc1 M_sw{tag}\nM_swr{tag}:")
        ool(f"M_sw{tag}:\ns_waitcnt lgkmcnt(0)")
        mfma32(ool, vACC, vH, vAgg, vACC)
        ool(f"""
        v_add_u32 v{vaAgg}, 1024, v{vaAgg}
        s_mov_b32 s{s_sw}, 1
        s_nop 3
        ds_read_b128 {vr(vAgg,4)}, v{vaAgg} offset:{off}
        s_nop 7
        """)
        for r in range(16):
            ool(f"v_add_f32 v{vS0+r}, v{vS0+r}, v{vACC+r}")
        for r in range(16):
            ool(f"v_mov_b32 v{vACC+r}, 0")
        ool(f"s_branch M_swr{tag}")

    def bump():
        A(f"""
        v_add_u32 v{vaAqe}, {4*512}, v{vaAqe}
        v_add_u32 v{vaAgg}, {4*1024}, v{vaAgg}
        v_add_u32 v{vaList}, {4*128}, v{vaList}
        """)

    A(f"""
    s_mov_b32 s{s_t}, -2
    ds_read_b64_tr_b16 {vr(vBq,2)}, v{vaB0}
    ds_read_b64_tr_b16 {vr(vBq+2,2)}, v{vaB1}
    """)
    window("a")
    A(f"s_waitcnt vmcnt({2*(D-1)})")
    reads(2, agg=False)
    A(f"s_mov_b32 s{s_t}, -1\ns_waitcnt lgkmcnt(0)")
    mfma32(A, vU[0], vAqe, vBq, None)
    mfma32(A, vU[0], vPf0, vSel0, vU[0])
    mfma32(A, vU[0], vPf1, vSel1, vU[0])
    dma(3, "b")
    window("b")
    vmwait("b")
    reads(3, agg=False)
    bump()
    A(f"s_mov_b32 s{s_t}, 0\ns_nop 7")

    for p in range(4):
        U, Un = vU[p & 1], vU[(p + 1) & 1]
        if p == 0:
            A(".p2align 6")
        A(f"M_it{p}:")
        switch(str(p), p * 1024)
        A("s_waitcnt lgkmcnt(0)")
        mf = [(Un, vAqe, vBq, None), (Un, vPf0, vSel0, Un), (Un, vPf1, vSel1, Un), (vACC, vH, vAgg, vACC)]
        for q in range(4):
            mfma32(A, *mf[q])
            for i in range(4):
                A(f"v_exp_f32 v{vT+4*q+i}, v{U+4*q+i}")
            if q == 0:
                dma(p, str(p))
        for i in (0, 8, 2, 10, 4, 12, 6, 14):
            A(f"v_pk_fma_f32 {vr(vT+i,2)}, {vr(vT+i,2)}, {vr(vC,2)}, {vr(vC,2)} clamp")
        for i in range(0, 8, 2):
            A(f"v_pk_mul_f32 {vr(vDn+i,2)}, {vr(vT+i,2)}, {vr(vT+8+i,2)}")
        window(str(p))
        vmwait(str(p))
        reads(p)
        for i in range(8):
            A(f"v_rcp_f32 v{vDn+i}, v{vDn+i}")
        for i in range(0, 8, 2):
            A(f"v_pk_mul_f32 {vr(vN+i,2)}, {vr(U+i,2)}, {vr(vT+8+i,2)}")
        for i in range(0, 8, 2):
            A(f"v_pk_fma_f32 {vr(vN+i,2)}, {vr(U+8+i,2)}, {vr(vT+i,2)}, {vr(vN+i,2)}")
        for i in range(0, 8, 2):
            A(f"v_pk_mul_f32 {vr(vN+i,2)}, {vr(vN+i,2)}, {vr(vDn+i,2)}")
        A(f"s_add_u32 s{s_t}, s{s_t}, 1")
        for i in range(0, 8, 2):
            A(f"v_cvt_pk_bf16_f32 v{vH+i//2}, v{vN+i}, v{vN+i+1}")
        A(f"s_cmp_eq_u32 s{s_t}, s{s_T}\ns_cbranch_scc1 M_fin{p}")
        if p == 3:
            bump()
            A("s_branch M_it0")
    for p in range(4):
        A(f"M_fin{p}:")
        switch(f"f{p}", (p + 1) * 1024)
        if p < 3:
            A("s_branch M_fin")
    A("M_fin:\ns_waitcnt lgkmcnt(0)")
    mfma32(A, vACC, vH, vAgg, vACC)
    A(f"""
    s_cmp_lg_u32 s{s_sw}, 0
    s_nop 11
    s_cbranch_scc1 M_fin_hi
    """)
    for r in range(16):
        A(f"v_add_f32 v{vS0+r}, v{vS0+r}, v{vACC+r}")
    A("s_branch M_bend\nM_fin_hi:")
    for r in range(16):
        A(f"v_add_f32 v{vS1+r}, v{vS1+r}, v{vACC+r}")
    A(f"""
    M_bend:
    s_cmp_lg_u32 s{s_slow}, 0
    s_cbranch_scc1 M_next
    M_epi:
    s_cmp_lg_u32 s{s_flag}, 0
    s_cbranch_scc1 M_epi2
    """)
    w2load(A)
    K = -math.log(2.0) * 2.0 ** -CEXP
    A(f"""
    M_epi2:
    v_mov_b32 v{vC}, {f32(K):#x}
    v_mov_b32 v{vC+1}, {f32(K):#x}
    v_and_b32 v3, 31, v{L}
    v_lshrrev_b32 v2, 5, v{L}
    v_bfe_u32 v8, v3, 1, 2
    v_lshlrev_b32 v9, 1, v2
    v_xor_b32 v8, v8, v9
    v_lshlrev_b32 v8, 4, v8
    v_lshl_add_u32 v8, v3, 6, v8
    v_add_u32 v8, s{s_ring}, v8
    v_xor_b32 v9, 16, v8
    v_and_b32 v10, 15, v{L}              ; n
    v_lshrrev_b32 v11, 4, v{L}           ; q
    v_lshlrev_b32 v12, 2, v10
    v_add_u32 v13, 64, v12
    v_add_u32 v14, 128, v12
    ds_bpermute_b32 v4, v12, v{vDeg}
    ds_bpermute_b32 v5, v13, v{vDeg}
    ds_bpermute_b32 v6, v14, v{vDeg}
    """)
    for S, o in ((vS0, 16), (vS1, 24)):
        for r in range(0, 16, 2):
            A(f"v_pk_mul_f32 {vr(S+r,2)}, {vr(S+r,2)}, {vr(vC,2)}")
        for r in range(0, 16, 2):
            A(f"v_cvt_pk_bf16_f32 v{o+r//2}, v{S+r}, v{S+r+1}")
    A(f"""
    s_waitcnt vmcnt(0)
    ds_write_b128 v8, v[16:19]
    ds_write_b128 v9, v[20:23]
    ds_write_b128 v8, v[24:27] offset:2048
    ds_write_b128 v9, v[28:31] offset:2048
    v_bfe_u32 v12, v10, 1, 2
    v_xor_b32 v12, v12, v11
    v_lshlrev_b32 v12, 4, v12
    v_lshl_add_u32 v12, v10, 6, v12
    v_lshlrev_b32 v32, 16, v{vB2}
    v_and_b32 v33, 0xffff0000, v{vB2}
    v_lshlrev_b32 v34, 16, v{vB2+1}
    v_and_b32 v35, 0xffff0000, v{vB2+1}
    v_add_u32 v13, s{s_nb0}, v10
    v_lshlrev_b32 v13, 8, v13
    v_lshl_add_u32 v13, v11, 3, v13
    s_lshl_b32 s{s_x}, s{s_w}, 5
    v_add_u32 v13, s{s_x}, v13
    s_waitcnt lgkmcnt(4)
    v_cvt_f32_u32 v4, v4
    v_cvt_f32_u32 v5, v5
    v_cvt_f32_u32 v6, v6
    """)
    O = 36
    for mt in range(3):
        for i in range(4):
            A(f"v_mul_f32 v{O+4*mt+i}, v{4+mt}, v{32+i}")
    A("s_waitcnt lgkmcnt(0)\ns_barrier")
    SFR = 48
    order = [(s, mt) for s in range(8) for mt in range(3)]
    RS = D * 2048
    need_hi = 7 * RS + 2048 > 65535
    assert not need_hi
    AHEAD = 12
    for k in range(AHEAD):
        s, mt = order[k]
        A(f"ds_read_b128 {vr(SFR+4*k,4)}, v12 offset:{s*RS+mt*1024}")
    for k in range(24):
        s, mt = order[k]
        left = min(AHEAD - 1, 23 - k)
        A(f"s_waitcnt lgkmcnt({left})")
        A(f"v_mfma_f32_16x16x32_bf16 {vr(O+4*mt,4)}, {vr(vW2+4*s,4)}, {vr(SFR+4*k,4)}, {vr(O+4*mt,4)}")
        if k + AHEAD < 24:
            s2, mt2 = order[k + AHEAD]
            A(f"ds_read_b128 {vr(SFR+4*(k+AHEAD),4)}, v12 offset:{s2*RS+mt2*1024}")
    A(f"s_mov_b32 s{s_x}, 4096\ns_mov_b32 s{s_x+1}, 8192\ns_nop 5")
    for mt in range(3):
        A(f"""
        v_cvt_pk_bf16_f32 v{16+2*mt}, v{O+4*mt}, v{O+4*mt+1}
        v_cvt_pk_bf16_f32 v{17+2*mt}, v{O+4*mt+2}, v{O+4*mt+3}
        buffer_store_dwordx2 {vr(16+2*mt,2)}, v13, s[{sO}:{sO+3}], {["0", f"s{s_x}", f"s{s_x+1}"][mt]} offen
        """)
    A("M_end:\ns_endpgm")

    A(f"""
    M_align:
    s_waitcnt lgkmcnt(0)
    s_mov_b32 s{s_x+8}, 0
    v_readlane_b32 s{s_x+9}, v{vBase}, 0
    v_mov_b32 v9, v{vBase}
    """)
    for G in range(5):
        A(f"""
        v_readlane_b32 s{s_x}, v{vBase}, {8*G}
        v_readlane_b32 s{s_x+1}, v{vBase}, {8*G+8}
        s_nop 1
        s_sub_u32 s{s_x+9}, s{s_x+8}, s{s_x}
        v_cmp_le_u32 vcc, {8*G}, v{L}
        v_add_u32 v10, s{s_x+9}, v{vBase}
        s_sub_u32 s{s_x+1}, s{s_x+1}, s{s_x}
        s_add_u32 s{s_x+8}, s{s_x+8}, s{s_x+1}
        v_cndmask_b32 v9, v9, v10, vcc
        """)
        if G < 4:
            A(f"s_add_u32 s{s_x+8}, s{s_x+8}, 31\ns_and_b32 s{s_x+8}, s{s_x+8}, -32")
    A(f"""
    s_mov_b32 s{s_tot}, s{s_x+8}
    v_mov_b32 v{vBase}, v9
    s_nop 1
    s_branch M_derive
    """)
    A(f"""
    M_goslow:
    s_mov_b32 s{s_slow}, 1
    s_mov_b32 s{s_batch}, 0
    s_branch M_load
    M_next:
    s_add_u32 s{s_batch}, s{s_batch}, 512
    s_cmp_ge_u32 s{s_batch}, {E}
    s_cbranch_scc1 M_epi
    M_load:
    v_add_u32 v8, s{s_batch}, v0
    v_lshlrev_b32 v9, 2, v8
    s_waitcnt vmcnt(0) lgkmcnt(0)
    buffer_load_dword v10, v9, s[{sDST}:{sDST+3}], 0 offen
    buffer_load_dword v11, v9, s[{sSRC}:{sSRC+3}], 0 offen
    v_lshlrev_b32 v{vChunk8}, 3, v8
    v_mov_b32 v5, -1
    v_mov_b32 v6, -1
    v_mov_b32 v7, -1
    ; restore the table addresses to their loop-entry values
    v_and_b32 v3, 31, v{L}
    v_lshrrev_b32 v2, 5, v{L}
    v_lshrrev_b32 v12, 4, v3
    v_and_b32 v13, 3, v3
    v_lshl_add_u32 v12, v13, 1, v12
    v_and_b32 v13, 8, v3
    v_add_u32 v12, v12, v13
    v_and_b32 v13, 4, v3
    v_lshl_add_u32 v12, v13, 2, v12
    v_lshlrev_b32 v12, 4, v12
    v_mul_u32_u24 v13, {L_AQH - L_AQE}, v2
    v_add_u32 v12, v12, v13
    v_add_u32 v{vaAqe}, {L_AQE - 4*512}, v12
    v_lshlrev_b32 v12, 4, v{L}
    v_add_u32 v{vaAgg}, {L_AGG - 5*1024}, v12
    v_lshrrev_b32 v12, 2, v{L}
    v_and_b32 v13, 3, v12
    v_lshlrev_b32 v13, 1, v13
    v_and_b32 v14, 8, v12
    v_add_u32 v13, v13, v14
    v_and_b32 v14, 4, v12
    v_lshl_add_u32 v13, v14, 2, v13
    v_lshlrev_b32 v13, 2, v13
    v_add_u32 v{vaList}, {L_LIST - 4*128}, v13
    s_waitcnt vmcnt(0)
    v_subrev_u32 v12, s{s_nb0}, v10
    v_cmp_gt_u32 vcc, s{s_nn}, v12
    v_cmp_gt_u32 s[{s_x}:{s_x+1}], {E}, v8
    """.replace(f"v_cmp_gt_u32 s[{s_x}:{s_x+1}], {E}, v8",
                f"s_mov_b32 s{s_x+2}, {E}\nv_cmp_gt_u32 s[{s_x}:{s_x+1}], s{s_x+2}, v8"))
    A(f"""
    v_and_b32 v10, 63, v10
    v_lshl_or_b32 v11, v10, 14, v11
    s_and_b64 vcc, vcc, s[{s_x}:{s_x+1}]
    s_nop 1
    v_cndmask_b32 v4, v5, v11, vcc
    s_barrier
    s_branch M_batch
    """)
    A.l += ool.l


HEAD = f"""; Two launches: pre_kernel (node-level first-layer products P,Q + edge binning by destination + weight
; @launch kernel=pre_kernel grid=(256,1,1) block=(512,1,1) lds={PRE_LDS}
; @launch kernel=main_kernel grid=(256,1,1) block=(512,1,1) lds={MAIN_LDS}
.amdgcn_target "amdgcn-amd-amdhsa--gfx950"
.text
"""


def kd(name, vg):
    return f""".amdhsa_kernel {name}
  .amdhsa_next_free_vgpr {vg}
  .amdhsa_next_free_sgpr 102
  .amdhsa_accum_offset {(vg + 3) // 4 * 4}
  .amdhsa_group_segment_fixed_size 0
  .amdhsa_kernarg_size 88
  .amdhsa_user_sgpr_count 2
  .amdhsa_user_sgpr_kernarg_segment_ptr 1
  .amdhsa_system_sgpr_workgroup_id_x 1
.end_amdhsa_kernel
"""


def build():
    out = HEAD
    A = Asm()
    out += ".globl pre_kernel\n.p2align 8\n.type pre_kernel,@function\n"
    pre_kernel(A)
    out += A.text()
    A = Asm()
    out += ".globl main_kernel\n.p2align 8\n.type main_kernel,@function\n"
    main_kernel(A)
    out += A.text()
    out += '.section .rodata,"a"\n.p2align 6\n' + kd("pre_kernel", 160) + ".p2align 6\n" + kd("main_kernel", NV)
    return out


if __name__ == "__main__":
    path = sys.argv[1] if len(sys.argv) > 1 else f"cdna_kernels/{NAME}.s"
    open(path, "w").write(build())
    print("wrote", path, "main lds", MAIN_LDS)
```

```python
import sys, struct, math

NAME = "gather_scatter__edge_featured_mpnn_mpnn__graph"
KN = NAME + "_kernel"
N, E = 10000, 160000

WS_CNT = 0
WS_W2F = 0x1000
WS_SLOT = 0x11000
WS_P = 0x212000
TABB = N * 512
WS_END = WS_P + TABB
WS_ST = 0x1000000

NCH = 64
CHE = E // NCH
LOG2E = 1.4426950408889634
CEXP = 48
STAMPS = False
OPT = set()


def f32(x):
    return struct.unpack("<I", struct.pack("<f", x))[0]


class Asm:
    def __init__(self):
        self.l = []

    def __call__(self, s):
        for x in s.split("\n"):
            x = x.strip()
            if x:
                self.l.append(("" if x.endswith(":") else "    ") + x)

    def text(self):
        return "\n".join(self.l) + "\n"


def vr(a, n=1):
    return f"v{a}" if n == 1 else f"v[{a}:{a+n-1}]"


def srd(A, d, base, size, off=None):
    if off is None:
        A(f"s_mov_b32 s{d}, s{base}\ns_mov_b32 s{d+1}, s{base+1}")
    else:
        A(f"s_add_u32 s{d}, s{base}, {off}\ns_addc_u32 s{d+1}, s{base+1}, 0")
    A(f"s_mov_b32 s{d+2}, {size}\ns_mov_b32 s{d+3}, 0x00020000")


def S(d):
    return f"s[{d}:{d+3}]"


D = 4
CAP_T = 26
L_RING = 0
L_AQE = 8 * D * 2048
L_AQH = L_AQE + CAP_T * 512
L_AGG = L_AQH + CAP_T * 512
L_LIST = L_AGG + (CAP_T + 1) * 1024
L_CNT = L_LIST + 4096
L_WE = L_CNT + 256
L_Q = L_WE + 4096
LDS_BYTES = L_Q + 48 * 512
ZERO_BYTES = L_LIST - L_AQE
L_XP = L_AQE
L_BT = L_AQE
L_BC = L_BT + 32768
assert L_BC + 2048 <= L_LIST and LDS_BYTES <= 163840
DUMMY = 0x400000

pX, pE, pSRC, pDST, pW1, pB1, pW2, pB2, pOUT, pDBG, pWS = 4, 6, 8, 10, 12, 14, 16, 18, 20, 22, 24
sA, sB, sC, sD, sWS, sP, sE = 28, 32, 36, 40, 44, 48, 52
(s_w, s_nb0, s_nb1, s_nn, s_T, s_T0p, s_t, s_g, s_Tend, s_next, s_oth, s_slow, s_batch, s_ring, s_sw, s_tot,
 s_nb4, s_ringh, s_spin, s_pri) = range(56, 76)
s_w2 = 26
PRIO_NUM = 22
s_x = 76
sM = 86
s_ret = 94

vU = [16, 32]
vT = 48
vH = 64
vACC = 68
vS0 = 84
vS1 = 100
vPf0, vPf1, vAqe, vAgg, vBq, vSel0, vSel1 = 116, 120, 124, 128, 132, 136, 140
vW2 = 144
vOff = 176
(vC, _c1, vB2, _b1, vK0, vK1, vK2, vK3, vaAqe, vaAgg, vaList, vaP0, vaP1, vaB0, vaB1, vH4096, vTend, vBase, vDeg,
 vChunk8, vLane, vDum, vSt, vW2a) = range(228, 252)
NV = 252
vXF = 176
vXP = 160
vWF = 16
vPA = 48
vPO = 148
vXa = 145
vXr = 147
vB1 = 116
vWEr = 128


def mfma32(A, d, a, b, c):
    cs = "0" if c is None else vr(c, 16)
    A(f"v_mfma_f32_32x32x16_bf16 {vr(d,16)}, {vr(a,4)}, {vr(b,4)}, {cs}")


def mfma16(A, d, a, b, c):
    cs = "0" if c is None else vr(c, 4)
    A(f"v_mfma_f32_16x16x32_bf16 {vr(d,4)}, {vr(a,4)}, {vr(b,4)}, {cs}")


def stamp(A, i):
    if STAMPS:
        ins = "s_memtime" if "cyc" in OPT else "s_memrealtime"
        A(f"s_waitcnt lgkmcnt(0)\n{ins} s[96:97]\ns_waitcnt lgkmcnt(0)\nv_writelane_b32 v{vSt}, s96, {i}")


def poll(A, tag, sr, shift, nlanes, want):
    A(f"""
    s_mov_b64 exec, {(1 << nlanes) - 1:#x}
    v_lshlrev_b32 v8, {shift}, v{vLane}
    s_mov_b32 s{s_spin}, 0x400000
    M_poll{tag}:
    buffer_load_dword v9, v8, {S(sr)}, 0 offen sc0 sc1
    s_sub_u32 s{s_spin}, s{s_spin}, 1
    s_cbranch_scc1 M_polld{tag}
    s_waitcnt vmcnt(0)
    v_cmp_ne_u32 vcc, {want}, v9
    s_cbranch_vccz M_polld{tag}
    s_sleep 2
    s_branch M_poll{tag}
    M_polld{tag}:
    s_mov_b64 exec, -1
    """)


def gemm_part(A, init, nmt, xf, vm=None):
    def rd(s):
        for ct in range(2):
            for x in range(2):
                A(f"ds_read_b64_tr_b16 {vr(vWF + 8*s + 4*ct + 2*x, 2)}, v14 offset:{s*2048 + x*256 + ct*8}")
    if vm is None:
        for s in range(4):
            rd(s)
    else:
        A(f"s_waitcnt vmcnt({vm[0]})")
        rd(0)
    for s in range(4):
        if vm is None:
            A(f"s_waitcnt lgkmcnt({12 - 4*s})")
        else:
            A("s_waitcnt lgkmcnt(0)")
        k = 0
        for mt in range(nmt):
            for ct in range(2):
                d = vPA + 8 * mt + 4 * ct
                c = d if s else (None if init is None else init + 4 * ct)
                mfma16(A, d, vWF + 8 * s + 4 * ct, xf + 16 * mt + 4 * s, c)
                k += 1
                if vm is not None and k == 2 and s < 3:
                    A(f"s_waitcnt vmcnt({vm[s+1]})")
                    rd(s + 1)


def gemm_pack(A, nmt, store):
    A("s_nop 4")
    for mt in range(nmt):
        for r in range(0, 8, 2):
            a = vPA + 8 * mt + r
            A(f"v_pk_mul_f32 {vr(a,2)}, {vr(a,2)}, v[12:13]")
        for r in range(0, 8, 2):
            a = vPA + 8 * mt + r
            A(f"v_cvt_pk_bf16_f32 v{vPO + 4*mt + r//2}, v{a}, v{a+1}")
        store(mt)


PROWS = 53


def kernel(A):
    L = vLane
    SC = "sc0 sc1"
    A(f"{KN}:")
    A(f"""
    s_cmp_ge_u32 s2, 256
    s_cbranch_scc1 M_end
    s_load_dwordx16 s[4:19], s[0:1], 0
    s_load_dwordx4 s[20:23], s[0:1], 64
    s_load_dwordx2 s[24:25], s[0:1], 80
    """)
    if STAMPS:
        A(f"v_mov_b32 v{vSt}, 0")
    stamp(A, 0)
    A(f"""
    v_lshrrev_b32 v2, 6, v0
    v_and_b32 v{L}, 63, v0
    v_readfirstlane_b32 s{s_w}, v2
    s_mul_i32 s{s_nb0}, s2, 160069
    s_add_u32 s{s_nb1}, s{s_nb0}, {160069 + 4049}
    s_add_u32 s{s_nb0}, s{s_nb0}, 4049
    s_lshr_b32 s{s_nb0}, s{s_nb0}, 12
    s_lshr_b32 s{s_nb1}, s{s_nb1}, 12
    s_min_u32 s{s_nb1}, s{s_nb1}, {N}
    s_lshl_b32 s{s_ring}, s{s_w}, 13
    v_lshrrev_b32 v7, 4, v{L}
    v_and_b32 v8, 15, v{L}
    v_xor_b32 v8, v8, v7
    s_and_b32 s3, s{s_w}, 1
    s_lshl_b32 s3, s3, 3
    v_xor_b32 v8, s3, v8
    v_lshlrev_b32 v8, 4, v8
    v_lshl_add_u32 v8, v7, 8, v8
    s_lshl_b32 s{s_x}, s{s_w}, 11
    v_add_u32 v{vXa}, s{s_x}, v8
    v_xor_b32 v{vXa+1}, 64, v{vXa}
    v_lshrrev_b32 v10, 2, v{L}
    v_and_b32 v11, 3, v{L}
    v_lshlrev_b32 v11, 4, v11
    v_lshl_add_u32 v10, v10, 9, v11
    s_lshl_b32 s3, s{s_w}, 6
    v_add_u32 v10, s3, v10
    v_lshlrev_b32 v2, 2, v0
    s_cmp_ge_u32 s2, {NCH}
    s_waitcnt lgkmcnt(0)
    s_cbranch_scc1 M_pwg
    """)

    def wdma(base):
        for ii in range(8):
            A(f"""
            s_add_u32 m0, s{s_ring}, {ii*1024}
            s_mov_b32 s{s_x+1}, {base + ii*8192}
            buffer_load_dwordx4 v10, {S(sB)}, s{s_x+1} offen lds
            """)

    def xdma(ldsbase, rowreg):
        A(f"""
        s_add_u32 m0, s{s_x}, {ldsbase}
        s_lshl_b32 s3, s{rowreg}, 8
        buffer_load_dwordx4 v{vXa}, {S(sD)}, s3 offen lds
        buffer_load_dwordx4 v{vXa+1}, {S(sD)}, s3 offen offset:1024 lds
        """)

    def common_addr():
        A(f"""
        v_lshrrev_b32 v3, 4, v{L}        ; q
        v_and_b32 v4, 15, v{L}           ; n
        v_xor_b32 v5, v3, v4
        v_lshlrev_b32 v5, 4, v5
        v_lshl_add_u32 v{vXr}, v4, 8, v5
        v_bfe_u32 v5, v{L}, 2, 2         ; r
        v_lshl_add_u32 v5, v3, 3, v5     ; 8q + r
        v_lshlrev_b32 v5, 6, v5
        v_and_b32 v6, 3, v{L}
        v_lshl_add_u32 v5, v6, 4, v5
        v_add_u32 v14, s{s_ring}, v5
        v_mov_b32 v12, {f32(-LOG2E):#x}
        v_mov_b32 v13, v12
        """)

    def late_loads():
        wdma(128 * 512)
        xdma(L_Q, s_nb0)
        srd(A, sC, pB1, 512)
        srd(A, sD, pB2, 256)
        A(f"""
        v_lshrrev_b32 v3, 4, v{L}
        v_lshlrev_b32 v4, 4, v3
        s_lshl_b32 s3, s{s_w}, 6
        buffer_load_dwordx4 {vr(vB1,4)}, v4, {S(sC)}, s3 offen
        v_lshlrev_b32 v5, 2, v0
        s_mov_b32 s3, {256*512}
        buffer_load_dword v{vWEr}, v5, {S(sB)}, s3 offen
        v_lshlrev_b32 v4, 3, v3
        s_lshl_b32 s3, s{s_w}, 5
        buffer_load_dwordx2 {vr(vB2,2)}, v4, {S(sD)}, s3 offen
        """)
        srd(A, sC, pDBG, 256)

    A(f"s_mul_i32 s3, s2, {CHE*4}")
    srd(A, sC, pDST, CHE * 4, off="s3")
    srd(A, sD, pSRC, CHE * 4, off="s3")
    A(f"s_mov_b32 s{s_x+1}, 4096\ns_mov_b32 s{s_x+2}, 8192")
    vD, vS = 132, 137
    so = ["0", "0", f"s{s_x+1}", f"s{s_x+1}", f"s{s_x+2}"]
    for k in range(5):
        A(f"buffer_load_dword v{vD+k}, v2, {S(sC)}, {so[k]} offen offset:{(k & 1)*2048}")
    for k in range(5):
        A(f"buffer_load_dword v{vS+k}, v2, {S(sD)}, {so[k]} offen offset:{(k & 1)*2048}")
    srd(A, sC, pW2, 256 * 256)
    srd(A, sWS, pWS, WS_END)
    A(f"""
    v_lshlrev_b32 v3, 4, v0
    v_add_u32 v11, {L_BT}, v3
    v_add_u32 v2, {L_BC}, v2
    v_mov_b32 v4, -1
    v_mov_b32 v5, -1
    v_mov_b32 v6, -1
    v_mov_b32 v7, -1
    v_mov_b32 v8, 0
    v_mov_b32 v9, 1
    """)
    for q in range(4):
        A(f"ds_write_b128 v11, v[4:7] offset:{q*8192}")
    A(f"""
    ds_write_b32 v2, v8
    s_lshl_b32 s3, s2, 8
    v_add_u32 v3, s3, v0
    v_bfe_u32 v4, v3, 8, 3           ; s
    v_lshlrev_b32 v4, 5, v4
    v_bfe_u32 v5, v3, 6, 1           ; ab
    v_lshl_add_u32 v4, v5, 4, v4
    v_bfe_u32 v5, v3, 1, 1           ; e>>2
    v_lshl_add_u32 v4, v5, 3, v4
    v_bfe_u32 v5, v3, 7, 1           ; h
    v_lshl_add_u32 v4, v5, 2, v4
    v_and_b32 v5, 1, v3
    v_lshl_add_u32 v4, v5, 1, v4     ; hidden
    v_lshlrev_b32 v4, 8, v4
    v_lshrrev_b32 v5, 11, v3         ; wo
    v_lshl_add_u32 v4, v5, 5, v4
    v_bfe_u32 v5, v3, 2, 4           ; m
    v_lshl_add_u32 v4, v5, 1, v4
    v_lshrrev_b32 v5, 8, v0
    v_lshl_or_b32 v4, v5, 30, v4
    v_lshlrev_b32 v3, 2, v3
    v_lshl_or_b32 v144, v5, 30, v3
    buffer_load_ushort v142, v4, {S(sC)}, 0 offen
    buffer_load_ushort v143, v4, {S(sC)}, 0 offen offset:256
    v_lshlrev_b32 v3, 8, v0
    s_cmp_eq_u32 s2, 0
    s_cselect_b32 s3, 16, 0
    v_cmp_gt_u32 vcc, s3, v0
    v_mov_b32 v4, 0x40000000
    s_nop 0
    v_cndmask_b32 v3, v4, v3, vcc
    buffer_store_dword v8, v3, {S(sWS)}, 0 offen {SC}
    """)
    srd(A, sB, pW1, 260 * 512)
    srd(A, sD, pX, N * 256)
    common_addr()
    stamp(A, 1)
    A(f"""
    s_waitcnt lgkmcnt(0)
    s_barrier
    s_waitcnt vmcnt(8)
    """)
    vb, va, vk = 16, 21, 26
    for k in range(5):
        A(f"v_mul_u32_u24 v{vb+k}, 1677, v{vD+k}")
        A(f"v_lshrrev_b32 v{vb+k}, 16, v{vb+k}")
        A(f"v_lshlrev_b32 v{va+k}, 2, v{vb+k}")
        A(f"v_add_u32 v{va+k}, {L_BC}, v{va+k}")
        if k == 4:
            A(f"v_cmp_gt_u32 vcc, {CHE - 2048}, v0\ns_and_saveexec_b64 s[{s_x+2}:{s_x+3}], vcc")
        A(f"ds_add_rtn_u32 v{vk+k}, v{va+k}, v9")
    A(f"s_mov_b64 s[{s_x+4}:{s_x+5}], exec\ns_mov_b64 exec, s[{s_x+2}:{s_x+3}]\ns_waitcnt vmcnt(3)")
    for k in range(5):
        A(f"""
        v_and_b32 v{vD+k}, 63, v{vD+k}
        v_lshl_or_b32 v{vS+k}, v{vD+k}, 14, v{vS+k}
        v_add_u32 v{vD+k}, {512*k}, v0
        v_lshl_or_b32 v{vS+k}, v{vD+k}, 20, v{vS+k}
        v_lshlrev_b32 v{va+k}, 7, v{vb+k}
        v_add_u32 v{va+k}, {L_BT}, v{va+k}
        """)
    for k in range(5):
        if k == 4:
            A(f"s_mov_b64 exec, s[{s_x+4}:{s_x+5}]")
        A(f"""
        s_waitcnt lgkmcnt({4-k})
        v_add_u32 v4, v{vk+k}, v{vb+k}
        v_and_b32 v4, 7, v4
        v_lshrrev_b32 v5, 3, v{vk+k}
        v_lshl_add_u32 v4, v4, 2, v5
        v_lshl_add_u32 v{va+k}, v4, 2, v{va+k}
        v_cmp_gt_u32 vcc, 32, v{vk+k}
        s_and_saveexec_b64 s[{s_x+6}:{s_x+7}], vcc
        ds_write_b32 v{va+k}, v{vS+k}
        s_mov_b64 exec, s[{s_x+6}:{s_x+7}]
        """)
    A(f"""
    s_mov_b64 exec, -1
    v_lshrrev_b32 v4, 3, v0
    v_lshlrev_b32 v5, 2, v4
    v_add_u32 v5, {L_BC}, v5
    v_and_b32 v6, 7, v0
    v_lshlrev_b32 v7, 13, v4
    v_lshl_add_u32 v7, v6, 4, v7
    s_lshl_b32 s3, s2, 7
    s_add_u32 s3, s3, {WS_SLOT}
    v_add_u32 v7, s3, v7
    v_cmp_eq_u32 s[{s_x+2}:{s_x+3}], 7, v6
    v_mov_b32 v8, -2
    s_mov_b32 s{s_x+4}, 0
    s_mov_b32 s{s_x+5}, {64*8192}
    s_mov_b32 s{s_x+6}, {128*8192}
    s_mov_b32 s{s_x+7}, {192*8192}
    s_waitcnt lgkmcnt(0)
    s_barrier
    """)
    stamp(A, 2)
    for q in range(4):
        A(f"ds_read_b128 {vr(16+4*q,4)}, v11 offset:{q*8192}")
        A(f"ds_read_b32 v{32+q}, v5 offset:{q*256}")
    A(f"s_mov_b32 s3, {WS_W2F}")
    for q in range(4):
        A(f"""
        s_waitcnt lgkmcnt({6-2*q})
        v_cmp_lt_u32 vcc, 32, v{32+q}
        s_and_b64 vcc, vcc, s[{s_x+2}:{s_x+3}]
        s_nop 1
        v_cndmask_b32 v{19+4*q}, v{19+4*q}, v8, vcc
        buffer_store_dwordx4 {vr(16+4*q,4)}, v7, {S(sWS)}, s{s_x+4+q} offen {SC}
        """)
    A(f"""
    s_waitcnt vmcnt(5)
    v_lshl_or_b32 v142, v143, 16, v142
    buffer_store_dword v142, v144, {S(sWS)}, s3 offen {SC}
    """)
    stamp(A, 3)
    late_loads()
    A(f"""
    s_waitcnt vmcnt(13)
    s_barrier
    s_cmp_lg_u32 s{s_w}, 0
    s_cbranch_scc1 M_join
    s_and_b32 s3, s2, 1
    s_lshl_b32 s{s_x+1}, s3, 6
    s_lshl_b32 s3, s3, 2
    s_add_u32 s3, s3, 128
    v_mov_b32 v8, s{s_x+1}
    v_mov_b32 v9, 1
    s_mov_b64 exec, 1
    buffer_atomic_add v9, v8, {S(sC)}, 0 offen sc0 sc1
    v_mov_b32 v8, s3
    s_waitcnt vmcnt(0)
    v_cmp_eq_u32 vcc, {NCH//2 - 1}, v9
    s_cbranch_vccz M_nlast
    buffer_store_dword v9, v8, {S(sC)}, 0 offen {SC}
    M_nlast:
    s_mov_b64 exec, -1
    s_branch M_join
    """)
    A("M_pwg:")
    srd(A, sD, pX, N * 256)
    srd(A, sB, pW1, 260 * 512)
    A(f"s_sub_u32 s{s_t}, s2, {NCH}\ns_mul_i32 s{s_t}, s{s_t}, {PROWS}")
    xdma(L_XP, s_t)
    wdma(0)
    stamp(A, 1)
    srd(A, sWS, pWS, WS_END)
    common_addr()
    A(f"""
    v_add_u32 v15, {L_XP}, v{vXr}
    v_add_u32 v11, s{s_t}, v4
    v_lshlrev_b32 v11, 9, v11
    v_lshl_add_u32 v11, v3, 4, v11
    s_lshl_b32 s3, s{s_w}, 6
    v_add_u32 v11, s3, v11
    s_add_u32 s3, s{s_t}, {PROWS}
    s_min_u32 s3, s3, {N}
    s_lshl_b32 s3, s3, 9
    """)
    srd(A, sA, pWS, "s3", off=WS_P)
    A(f"""
    s_mov_b32 s{s_x+4}, 0
    s_mov_b32 s{s_x+5}, 8192
    s_mov_b32 s{s_x+6}, 16384
    s_mov_b32 s{s_x+7}, 24576
    s_waitcnt vmcnt(8)
    s_barrier
    """)
    stamp(A, 2)
    for s in range(4):
        if s:
            A(f"v_xor_b32 v4, {s << 6:#x}, v15")
        for mt in range(4):
            A(f"ds_read_b128 {vr(vXP + 16*mt + 4*s, 4)}, v{4 if s else 15} offset:{mt*4096}")
    gemm_part(A, None, 4, vXP, vm=[6, 4, 2, 0])
    gemm_pack(A, 4, lambda mt: A(f"buffer_store_dwordx4 {vr(vPO+4*mt,4)}, v11, {S(sA)}, s{s_x+4+mt} offen {SC}"))
    stamp(A, 3)
    late_loads()
    A("s_barrier\nM_join:")
    stamp(A, 4)
    A(f"""
    s_sub_u32 s{s_nn}, s{s_nb1}, s{s_nb0}
    s_lshl_b32 s{s_nb4}, s{s_nb0}, 2
    s_add_u32 s{s_ringh}, s{s_ring}, 4096
    """)
    srd(A, sP, pWS, TABB + 4096, off=WS_P - 4096)
    srd(A, sE, pE, E * 8)
    A(f"""
    v_lshrrev_b32 v2, 5, v{L}        ; h
    v_and_b32 v3, 31, v{L}           ; m
    v_lshrrev_b32 v9, 4, v3
    v_and_b32 v10, 3, v3
    v_lshl_add_u32 v9, v10, 1, v9
    v_and_b32 v10, 8, v3
    v_add_u32 v9, v9, v10
    v_and_b32 v10, 4, v3
    v_lshl_add_u32 v9, v10, 2, v9
    v_lshlrev_b32 v9, 4, v9
    v_mul_u32_u24 v10, {L_AQH - L_AQE}, v2
    v_add_u32 v9, v9, v10
    v_add_u32 v{vaAqe}, {L_AQE}, v9
    v_lshrrev_b32 v9, 2, v{L}
    v_and_b32 v10, 3, v9
    v_lshlrev_b32 v10, 1, v10
    v_and_b32 v11, 8, v9
    v_add_u32 v10, v10, v11
    v_and_b32 v11, 4, v9
    v_lshl_add_u32 v10, v11, 2, v10
    v_lshlrev_b32 v10, 2, v10
    v_add_u32 v{vaList}, {L_LIST}, v10
    v_and_b32 v9, 3, v{L}
    v_lshrrev_b32 v10, 4, v{L}
    v_xor_b32 v9, v9, v10
    v_lshlrev_b32 v9, 4, v9
    s_lshl_b32 s3, s{s_w}, 6
    s_add_u32 s3, s3, 1024
    v_add_u32 v{vK3}, s3, v9
    v_add_u32 v{vK2}, 1024, v{vK3}
    v_add_u32 v{vK1}, 2048, v{vK3}
    v_add_u32 v{vK0}, 3072, v{vK3}
    v_bfe_u32 v9, v3, 2, 2
    v_xor_b32 v9, v9, v2
    v_lshlrev_b32 v9, 4, v9
    v_lshl_add_u32 v9, v3, 6, v9
    v_add_u32 v{vaP0}, s{s_ring}, v9
    v_xor_b32 v{vaP1}, 32, v{vaP0}
    v_and_b32 v9, 1, v3
    v_lshlrev_b32 v9, 4, v9
    v_mov_b32 v10, 0x3f80
    v_lshlrev_b32 v9, v9, v10
    v_lshrrev_b32 v10, 1, v3
    v_lshlrev_b32 v11, 2, v2
    v_sub_u32 v10, v10, v11
    """)
    for x in range(4):
        A(f"v_cmp_eq_u32 s[{s_x}:{s_x+1}], {x}, v10\nv_cmp_eq_u32 vcc, {8+x}, v10\ns_nop 0")
        A(f"v_cndmask_b32 v{vSel0+x}, 0, v9, s[{s_x}:{s_x+1}]\nv_cndmask_b32 v{vSel1+x}, 0, v9, vcc")
    A(f"""
    v_lshlrev_b32 v{vH4096}, 12, v2
    v_mov_b32 v{vC}, {f32(2.0**-CEXP):#x}
    v_mov_b32 v{vC+1}, {f32(2.0**-CEXP):#x}
    v_mov_b32 v{vDeg}, 0
    v_mov_b32 v{vDum}, 0x80000000
    v_lshrrev_b32 v9, 3, v0
    v_mul_u32_u24 v{vChunk8}, {CHE*8}, v9
    s_mov_b32 s{s_slow}, 0
    """)
    for r in range(16):
        A(f"v_mov_b32 v{vS0+r}, 0\nv_mov_b32 v{vS1+r}, 0")
    A("M_batch:")
    A(f"""
    v_mov_b32 v8, 0
    v_mov_b32 v9, 0
    v_mov_b32 v10, 0
    v_mov_b32 v11, 0
    v_mov_b32 v2, {DUMMY}
    v_mov_b32 v3, {DUMMY}
    v_lshlrev_b32 v1, 3, v0
    v_add_u32 v1, {L_LIST}, v1
    ds_write_b64 v1, v[2:3]
    v_lshlrev_b32 v15, 2, v{L}
    v_add_u32 v15, {L_CNT}, v15
    ds_write_b32 v15, v8
    v_lshlrev_b32 v1, 4, v0
    v_add_u32 v1, {L_AQE}, v1
    """)
    nz = ZERO_BYTES // 8192
    rem = ZERO_BYTES - nz * 8192
    for q in range(nz):
        A(f"ds_write_b128 v1, v[8:11] offset:{q*8192}")
    if rem:
        A(f"""
        v_cmp_gt_u32 vcc, {rem//16}, v0
        s_and_saveexec_b64 s[{s_x}:{s_x+1}], vcc
        ds_write_b128 v1, v[8:11] offset:{nz*8192}
        s_mov_b64 exec, s[{s_x}:{s_x+1}]
        """)
    A(f"""
    v_bfe_u32 v8, v{L}, 2, 2         ; r
    v_xor_b32 v9, s{s_w}, v8
    v_lshlrev_b32 v9, 6, v9
    v_lshl_add_u32 v9, v8, 9, v9
    v_bfe_u32 v8, v{L}, 4, 1
    v_lshl_add_u32 v9, v8, 5, v9
    v_and_b32 v8, 3, v{L}
    v_lshl_add_u32 v9, v8, 3, v9
    v_add_u32 v9, v9, v{vH4096}
    v_add_u32 v{vaB0}, {L_WE}, v9
    v_add_u32 v{vaB1}, {L_WE + 2048}, v9
    v_lshlrev_b32 v9, 4, v{L}
    v_add_u32 v{vaAgg}, {L_AGG}, v9
    s_mov_b32 s{s_g}, 0
    s_mov_b32 s{s_sw}, 0
    s_cmp_lg_u32 s{s_slow}, 0
    s_cbranch_scc1 M_slowb
    s_waitcnt vmcnt(0)
    v_lshlrev_b32 v8, 16, v{vWEr}
    v_and_b32 v9, 0xffff0000, v{vWEr}
    v_mul_f32 v8, v12, v8
    v_mul_f32 v9, v12, v9
    v_cvt_pk_bf16_f32 v10, v8, v9
    v_lshrrev_b32 v4, 7, v0          ; f
    v_lshlrev_b32 v5, 16, v10
    v_and_b32 v6, 0xffff0000, v10
    v_sub_f32 v8, v8, v5
    v_sub_f32 v9, v9, v6
    v_cvt_pk_bf16_f32 v11, v8, v9
    v_lshlrev_b32 v5, 2, v0
    v_lshlrev_b32 v4, 6, v4
    v_xor_b32 v5, v5, v4
    v_add_u32 v5, {L_WE}, v5
    ds_write_b32 v5, v10
    ds_write_b32 v5, v11 offset:2048
    """)
    for x in range(4):
        A(f"v_lshlrev_b32 v{vB1+4+2*x}, 16, v{vB1+x}\nv_and_b32 v{vB1+5+2*x}, 0xffff0000, v{vB1+x}")
    A(f"""
    v_add_u32 v15, {L_Q}, v{vXr}
    s_waitcnt lgkmcnt(0)
    s_barrier
    """)
    stamp(A, 5)
    for s in range(4):
        if s:
            A(f"v_xor_b32 v4, {s << 6:#x}, v15")
        for mt in range(3):
            A(f"ds_read_b128 {vr(vXF + 16*mt + 4*s, 4)}, v{4 if s else 15} offset:{mt*4096}")
    A(f"v_lshlrev_b32 v15, 2, v{L}\nv_add_u32 v15, {L_CNT}, v15")
    A(f"""
    s_cmp_lg_u32 s{s_w}, 0
    s_cbranch_scc1 M_w1
    s_mov_b64 exec, 3
    v_lshlrev_b32 v8, 2, v{L}
    s_mov_b32 s{s_spin}, 0x400000
    M_polla:
    buffer_load_dword v9, v8, {S(sC)}, 0 offen offset:128 sc1
    s_sub_u32 s{s_spin}, s{s_spin}, 1
    s_cbranch_scc1 M_pollda
    s_waitcnt vmcnt(0)
    v_cmp_eq_u32 vcc, 0, v9
    s_cbranch_vccz M_pollda
    s_sleep 1
    s_branch M_polla
    M_pollda:
    s_and_b32 s3, s2, 15
    s_lshl_b32 s3, s3, 8
    v_mov_b32 v8, s3
    v_mov_b32 v9, 1
    s_mov_b64 exec, 1
    buffer_atomic_add v9, v8, {S(sWS)}, 0 offen sc1
    s_mov_b64 exec, -1
    M_w1:
    s_waitcnt lgkmcnt(0)
    s_barrier
    """)
    stamp(A, 6)
    A(f"""
    s_lshl_b32 s3, s2, 13
    s_add_u32 s3, s3, {WS_SLOT}
    v_lshlrev_b32 v1, 4, v0
    buffer_load_dwordx4 v[4:7], v1, {S(sWS)}, s3 offen {SC}
    """)
    gemm_part(A, vB1 + 4, 3, vXF)
    A(f"""
    v_and_b32 v8, 15, v{L}           ; n
    v_lshrrev_b32 v9, 4, v{L}        ; q
    v_and_b32 v10, 3, v8
    v_xor_b32 v10, s{s_w}, v10
    v_lshl_add_u32 v9, v10, 2, v9
    v_lshlrev_b32 v9, 4, v9
    v_lshl_add_u32 v9, v8, 9, v9
    v_add_u32 v9, {L_Q}, v9
    """)
    gemm_pack(A, 3, lambda mt: A(f"ds_write_b128 v9, {vr(vPO+4*mt,4)} offset:{mt*8192}"))
    stamp(A, 7)
    A(f"s_waitcnt vmcnt(0)\ns_branch M_recs\nM_slowb:\ns_waitcnt lgkmcnt(0)\ns_barrier\nM_recs:")
    stamp(A, 8)
    vD4, vRk, vEo, vEv = 16, 20, 24, 28
    A(f"s_mov_b32 s{s_x}, 0xfff00000\nv_mov_b32 v1, 1")
    for j in range(4):
        A(f"v_cmp_gt_u32 s[{sM+2*j}:{sM+2*j+1}], s{s_x}, v{4+j}")
    def egather(tag):
        for j in range(4):
            A(f"""
            s_mov_b64 exec, s[{sM+2*j}:{sM+2*j+1}]
            s_cbranch_execz M_eg{tag}_{j}
            buffer_load_dwordx2 {vr(vEv+2*j,2)}, v{vEo+j}, {S(sE)}, 0 offen
            M_eg{tag}_{j}:
            """)
        A("s_mov_b64 exec, -1")

    for j in range(4):
        A(f"""
        v_lshrrev_b32 v{vEo+j}, 20, v{4+j}
        v_lshl_add_u32 v{vEo+j}, v{vEo+j}, 3, v{vChunk8}
        """)
    for j in range(4):
        A(f"""
        s_mov_b64 exec, s[{sM+2*j}:{sM+2*j+1}]
        s_cbranch_execz M_r1_{j}
        v_lshrrev_b32 v{vD4+j}, 12, v{4+j}
        v_subrev_u32 v{vD4+j}, s{s_nb4}, v{vD4+j}
        v_and_b32 v{vD4+j}, 0xfc, v{vD4+j}
        v_add_u32 v8, {L_CNT}, v{vD4+j}
        ds_add_rtn_u32 v{vRk+j}, v8, v1
        v_and_b32 v{4+j}, 0x3fff, v{4+j}
        M_r1_{j}:
        """)
        if j == 2:
            A(f"""
            s_mov_b64 exec, -1
            v_cmp_eq_u32 vcc, -2, v7
            s_and_b64 exec, exec, vcc
            s_cbranch_execz M_nomark
            v_mov_b32 v8, {L_CNT + 63*4}
            v_mov_b32 v9, 0x10000
            ds_add_u32 v8, v9
            M_nomark:
            """)
    A(f"""
    s_mov_b64 exec, -1
    s_cmp_eq_u32 s{s_w}, 0
    s_cbranch_scc1 M_eskip
    """)
    egather("a")
    A("M_eskip:")
    for r in range(16):
        A(f"v_mov_b32 v{vACC+r}, 0")
    for r in range(4):
        A(f"v_mov_b32 v{vH+r}, 0\nv_mov_b32 v{vAgg+r}, 0")
    A(f"""
    v_lshlrev_b32 v40, 8, v{L}
    v_mov_b32 v41, 16
    s_waitcnt lgkmcnt(0)
    s_barrier
    s_cmp_lg_u32 s{s_w}, 0
    s_cbranch_scc1 M_nop1
    s_mov_b64 exec, 0xffff
    buffer_load_dword v41, v40, {S(sWS)}, 0 offen sc0 sc1
    s_mov_b64 exec, -1
    M_nop1:
    ds_read_b32 v8, v15
    v_lshlrev_b32 v11, 4, v{L}
    v_add_u32 v11, 16, v11
    s_waitcnt lgkmcnt(0)
    v_add_u32 v9, 1, v8
    v_and_b32 v9, -2, v9
    v_mov_b32 v10, v9
    s_nop 1
    v_add_u32_dpp v10, v10, v10 row_shr:1 row_mask:0xf bank_mask:0xf bound_ctrl:0
    s_nop 1
    v_add_u32_dpp v10, v10, v10 row_shr:2 row_mask:0xf bank_mask:0xf bound_ctrl:0
    s_nop 1
    v_add_u32_dpp v10, v10, v10 row_shr:4 row_mask:0xf bank_mask:0xf bound_ctrl:0
    s_nop 1
    v_add_u32_dpp v10, v10, v10 row_shr:8 row_mask:0xf bank_mask:0xf bound_ctrl:0
    s_nop 1
    v_add_u32_dpp v10, v10, v10 row_bcast:15 row_mask:0xa bank_mask:0xf
    s_nop 1
    v_add_u32_dpp v10, v10, v10 row_bcast:31 row_mask:0xc bank_mask:0xf
    s_nop 0
    v_sub_u32 v{vBase}, v10, v9
    v_readlane_b32 s{s_tot}, v10, 63
    M_derive:
    """)
    for j in range(4):
        A(f"ds_bpermute_b32 v{36+j}, v{vD4+j}, v{vBase}")
    A(f"""
    ds_bpermute_b32 v12, v11, v{vBase}
    s_cmp_gt_u32 s{s_tot}, {CAP_T*32}
    s_cbranch_scc1 M_goslow
    v_readlane_b32 s{s_T0p}, v{vBase}, 32
    s_add_u32 s{s_T}, s{s_tot}, 31
    s_lshr_b32 s{s_T}, s{s_T}, 5
    s_waitcnt lgkmcnt(0)
    v_add_u32 v13, 31, v12
    v_and_b32 v14, -32, v13                ; 32*Tend
    v_lshrrev_b32 v13, 5, v13
    v_mov_b32_dpp v12, v12 row_shl:1 row_mask:0xf bank_mask:0xf bound_ctrl:0
    v_add_u32 v13, -2, v13
    v_cmp_gt_u32 vcc, v14, v12
    v_cmp_ne_u32 s[{s_x}:{s_x+1}], s{s_tot}, v12
    s_and_b32 s{s_x}, s{s_x}, vcc_lo
    s_and_b32 s{s_x}, s{s_x}, 0xff
    s_cbranch_scc1 M_align
    """)
    for j in range(4):
        A(f"""
        s_mov_b64 exec, s[{sM+2*j}:{sM+2*j+1}]
        s_cbranch_execz M_r2_{j}
        v_add_u32 v{vRk+j}, v{vRk+j}, v{36+j}
        v_lshlrev_b32 v9, 2, v{vRk+j}
        v_add_u32 v9, {L_LIST}, v9
        ds_write_b32 v9, v{4+j}
        M_r2_{j}:
        """)
    A(f"""
    s_mov_b64 exec, -1
    v_mov_b32 v14, 0x7fffffff
    v_cmp_gt_u32 vcc, 9, v{L}
    s_cmp_lt_u32 s{s_T0p}, s{s_tot}
    s_cselect_b32 s{s_x}, 5, 31
    s_cselect_b32 s{s_x+1}, 1, 0x7fffffff
    v_cndmask_b32 v{vTend}, v14, v13, vcc
    s_lshr_b32 s{s_T0p}, s{s_T0p}, s{s_x}
    s_add_u32 s{s_T0p}, s{s_T0p}, s{s_x+1}
    v_add_u32 v{vDeg}, v{vDeg}, v8
    s_sub_u32 s{s_oth}, s{s_T}, 1
    s_min_i32 s{s_oth}, s{s_oth}, s{s_T0p}
    v_readlane_b32 s{s_Tend}, v{vTend}, 0
    v_mov_b32 v1, 0x3f80
    s_mul_i32 s{s_pri}, s{s_T}, {PRIO_NUM}
    s_lshr_b32 s{s_pri}, s{s_pri}, 5
    s_cmp_lt_u32 s{s_w}, 4
    s_cselect_b32 s{s_pri}, 0x7fffffff, s{s_pri}
    s_min_i32 s{s_oth}, s{s_oth}, s{s_pri}
    s_cmp_lg_u32 s{s_w}, 0
    s_cbranch_scc1 M_w2
    s_mov_b32 s{s_spin}, 0x400000
    M_pollb:
    s_waitcnt vmcnt(0)
    v_cmp_ne_u32 vcc, 16, v41
    s_cbranch_vccz M_polldb
    s_sub_u32 s{s_spin}, s{s_spin}, 1
    s_cbranch_scc1 M_polldb
    s_mov_b64 exec, 0xffff
    buffer_load_dword v41, v40, {S(sWS)}, 0 offen sc0 sc1
    s_mov_b64 exec, -1
    s_branch M_pollb
    M_polldb:
    """)
    egather("b")
    A(f"""
    M_w2:
    s_waitcnt lgkmcnt(0)
    s_barrier
    """)
    stamp(A, 9)
    PSC = "sc1" if "psc1" in OPT else ""

    def dma(t, jj):
        r = vOff + 2 * t + jj if t < CAP_T else vDum
        return f"buffer_load_dwordx4 v{r}, {S(sP)}, 0 offen offset:{(t & 1)*2048 + jj*1024} {PSC} lds"

    def m0set(t):
        return f"s_mov_b32 m0, s{s_ring if (t % 4) < 2 else s_ringh}"

    def offs(lo, hi, after=None):
        for t0 in range(lo, hi, 8):
            ts = range(t0, min(t0 + 8, hi))
            for t in ts:
                A(f"ds_read_b64 {vr(vOff+2*t,2)}, v{vaList} offset:{t*128}")
            for i, t in enumerate(ts):
                A(f"s_waitcnt lgkmcnt({len(ts)-1-i})")
                for jj in range(2):
                    A(f"v_lshl_add_u32 v{vOff+2*t+jj}, v{vOff+2*t+jj}, 9, v{vK0 + 2*(t & 1) + jj}")
                if after:
                    after(t)

    def first_dma(t):
        if t < 2:
            A(dma(t, 0) + "\n" + dma(t, 1))
    A(m0set(0))
    offs(0, 6, first_dma)
    A(f"{m0set(2)}\ns_waitcnt vmcnt(4)")
    for j in range(4):
        A(f"""
        s_mov_b64 exec, s[{sM+2*j}:{sM+2*j+1}]
        s_cbranch_execz M_r3_{j}
        v_lshlrev_b32 v8, 4, v{vRk+j}
        v_add_u32 v8, {L_AQE}, v8
        ds_write2_b64 v8, {vr(vEv+2*j,2)}, {vr(vEv+2*j,2)} offset0:0 offset1:1
        v_bfe_u32 v9, v{vD4+j}, 2, 3
        v_lshl_add_u32 v9, v9, 1, v8
        ds_write_b16 v9, v1 offset:{L_AQH - L_AQE}
        v_and_b32 v9, 0x80, v{vD4+j}
        v_add_u32 v9, v9, v{vD4+j}
        v_and_b32 v10, 14, v{vRk+j}
        v_lshl_add_u32 v9, v9, 2, v10
        v_lshrrev_b32 v10, 4, v{vRk+j}
        v_lshl_add_u32 v9, v10, 9, v9
        v_add_u32 v9, {L_AGG}, v9
        ds_write_b16 v9, v1
        M_r3_{j}:
        """)
    A("s_mov_b64 exec, -1")
    A(dma(2, 0) + "\n" + dma(2, 1) + "\n" + dma(3, 0) + "\n" + dma(3, 1))
    stamp(A, 10)
    offs(6, CAP_T)
    A(f"""
    v_lshlrev_b32 v{vW2a}, 4, v{L}
    s_lshl_b32 s{s_w2}, s{s_w}, 13
    s_add_u32 s{s_w2}, s{s_w2}, {WS_W2F}
    s_add_u32 s{s_w2+1}, s{s_w2}, 4096
    s_barrier
    """)
    stamp(A, 11)
    A(f"""
    s_cmp_eq_u32 s{s_T}, 0
    s_cbranch_scc1 M_bend
    ds_read_b64_tr_b16 {vr(vBq,2)}, v{vaB0}
    ds_read_b64_tr_b16 {vr(vBq+2,2)}, v{vaB1}
    ds_read_b128 {vr(vAqe,4)}, v{vaAqe}
    s_cmp_lt_u32 s{s_w}, 4
    s_cbranch_scc1 M_nopri
    s_setprio 1
    M_nopri:
    """)

    def w2load(s):
        return f"buffer_load_dwordx4 {vr(vW2+4*s,4)}, v{vW2a}, {S(sWS)}, s{s_w2 + (s >> 2)} offen offset:{(s & 3)*1024} sc1"

    ool = Asm()

    def advance(B, tag, t, ret):
        B(f"""
        M_adv{tag}:
        s_bitcmp1_b32 s{s_g}, 0
        s_cbranch_scc1 M_advo{tag}
        v_add_u32 v{vaB0}, v{vaB0}, v{vH4096}
        s_add_u32 s{s_g}, s{s_g}, 1
        ds_read_b64_tr_b16 {vr(vBq,2)}, v{vaB0}
        v_readlane_b32 s{s_Tend}, v{vTend}, s{s_g}
        s_branch {ret}
        M_advo{tag}:
        v_add_u32 v{vaB1}, v{vaB1}, v{vH4096}
        s_add_u32 s{s_g}, s{s_g}, 1
        ds_read_b64_tr_b16 {vr(vBq+2,2)}, v{vaB1}
        v_readlane_b32 s{s_Tend}, v{vTend}, s{s_g}
        s_branch {ret}
        """)

    A(f"M_fa:\ns_cmp_le_i32 s{s_Tend}, -2\ns_cbranch_scc1 M_advfa")
    advance(ool, "fa", -2, "M_fa")
    A(f"""
    s_waitcnt vmcnt({2*(D-1)})
    ds_read_b128 {vr(vPf0,4)}, v{vaP0}
    ds_read_b128 {vr(vPf1,4)}, v{vaP1}
    {m0set(D)}
    s_waitcnt lgkmcnt(0)
    """)
    mfma32(A, vU[0], vAqe, vBq, None)
    A(dma(D, 0))
    mfma32(A, vU[0], vPf0, vSel0, vU[0])
    A(dma(D, 1))
    mfma32(A, vU[0], vPf1, vSel1, vU[0])
    A(f"M_fb:\ns_cmp_le_i32 s{s_Tend}, -1\ns_cbranch_scc1 M_advfb")
    advance(ool, "fb", -1, "M_fb")
    A(f"""
    s_waitcnt vmcnt({2*(D-1)})
    ds_read_b128 {vr(vAqe,4)}, v{vaAqe} offset:512
    ds_read_b128 {vr(vPf0,4)}, v{vaP0} offset:2048
    ds_read_b128 {vr(vPf1,4)}, v{vaP1} offset:2048
    s_min_i32 s{s_next}, s{s_Tend}, s{s_oth}
    s_nop 7
    """)
    stamp(A, 12)

    def second_half(B, U, aggread):
        mfma32(B, vACC, vH, vAgg, vACC)
        for i in range(8):
            B(f"v_rcp_f32 v{vT+i}, v{vT+i}")
        for i in range(0, 8, 2):
            B(f"v_pk_mul_f32 {vr(U+i,2)}, {vr(U+i,2)}, {vr(vT+i,2)}")
            if i == 0:
                B(aggread)
        for i in range(0, 8, 2):
            B(f"v_cvt_pk_bf16_f32 v{vH+i//2}, v{U+i}, v{U+i+1}")

    W2T0 = 8
    vmq = ["d"] * (2 * (D + 1))

    def vm_need(t):
        seen = 0
        for i, k in enumerate(vmq):
            if k == "d":
                seen += 1
                if seen == 2 * (t + 1):
                    return len(vmq) - 1 - i

    A(".p2align 3")
    for t in range(CAP_T):
        U, Un = vU[t & 1], vU[(t + 1) & 1]
        tn = t + 1 + D
        s2 = ((t + 2) % D) * 2048
        ex = [f"v_exp_f32 v{vT+i}, v{U+i}" for i in range(16)]
        A(f"s_waitcnt vmcnt({vm_need(t+2)}) lgkmcnt(0)")
        mfma32(A, Un, vAqe, vBq, None)
        A("\n".join(ex[0:4]))
        mfma32(A, Un, vPf0, vSel0, Un)
        A("\n".join(ex[4:8]))
        mfma32(A, Un, vPf1, vSel1, Un)
        A("\n".join(ex[8:16]))
        pk = [f"v_pk_fma_f32 {vr(vT+i,2)}, {vr(vT+i,2)}, {vr(vC,2)}, {vr(vC,2)} clamp" for i in (0, 8, 2, 10, 4, 12, 6, 14)]
        pk += [f"v_pk_mul_f32 {vr(U+i,2)}, {vr(U+i,2)}, {vr(vT+8+i,2)}" for i in range(0, 8, 2)]
        pk += [f"v_pk_fma_f32 {vr(U+i,2)}, {vr(U+8+i,2)}, {vr(vT+i,2)}, {vr(U+i,2)}" for i in range(0, 8, 2)]
        pk += [f"v_pk_mul_f32 {vr(vT+i,2)}, {vr(vT+i,2)}, {vr(vT+8+i,2)}" for i in range(0, 8, 2)]
        oth = []
        if tn % 2 == 0:
            oth.append(m0set(tn))
        oth.append(f"ds_read_b128 {vr(vAqe,4)}, v{vaAqe} offset:{(t+2)*512}")
        oth.append(dma(tn, 0))
        oth.append(f"ds_read_b128 {vr(vPf0,4)}, v{vaP0} offset:{s2}")
        oth.append(dma(tn, 1))
        oth.append(f"ds_read_b128 {vr(vPf1,4)}, v{vaP1} offset:{s2}")
        vmq += ["d", "d"]
        if W2T0 <= t < W2T0 + 8:
            oth.append(w2load(t - W2T0))
            vmq.append("w")
        oth.append(f"s_cmp_le_i32 s{s_next}, {t}")
        if "nodma" in OPT:
            oth = [x for x in oth if " lds" not in x]
        for i, x in enumerate(pk):
            A(x)
            if i % 2 == 0 and oth:
                A(oth.pop(0))
        assert not oth
        A(f"s_cbranch_scc1 M_ev{t}\nM_evr{t}:")
        second_half(A, U, f"ds_read_b128 {vr(vAgg,4)}, v{vaAgg} offset:{t*1024}")
        ool(f"""
        M_ev{t}:
        s_cmp_le_i32 s{s_Tend}, {t}
        s_cbranch_scc0 M_rare{t}
        """)
        advance(ool, str(t), t, f"M_evc{t}")
        ool(f"""
        M_evc{t}:
        s_nop 0
        s_min_i32 s{s_next}, s{s_Tend}, s{s_oth}
        s_cmp_le_i32 s{s_next}, {t}
        s_cbranch_scc1 M_ev{t}
        s_branch M_evr{t}
        M_rare{t}:
        s_movk_i32 s{s_t}, {t}
        s_call_b64 s[{s_ret}:{s_ret+1}], M_rare
        s_cbranch_scc1 M_tail{t & 1}
        s_branch M_evc{t}
        """)
    A("s_branch M_fin")
    for p in range(2):
        A(f"""
        M_tail{p}:
        s_lshl_b32 s3, s{s_t}, 10
        v_add_u32 v8, s3, v{vaAgg}
        """)
        second_half(A, vU[p], f"ds_read_b128 {vr(vAgg,4)}, v8")
        if p == 0:
            A("s_branch M_fin")
    A(f"""
    M_fin:
    s_mov_b32 s{s_t}, s{s_T}
    s_cmp_eq_u32 s{s_T0p}, s{s_T}
    s_cbranch_scc0 M_fin2
    s_call_b64 s[{s_ret}:{s_ret+1}], M_switch
    M_fin2:
    s_waitcnt lgkmcnt(0)
    """)
    mfma32(A, vACC, vH, vAgg, vACC)
    stamp(A, 13)
    A(f"""
    s_cmp_lg_u32 s{s_sw}, 0
    s_nop 11
    s_cbranch_scc1 M_fin_hi
    """)
    for r in range(16):
        A(f"v_add_f32 v{vS0+r}, v{vS0+r}, v{vACC+r}")
    A("s_branch M_bend\nM_fin_hi:")
    for r in range(16):
        A(f"v_add_f32 v{vS1+r}, v{vS1+r}, v{vACC+r}")
    K = -math.log(2.0) * 2.0 ** -CEXP
    A(f"""
    M_bend:
    s_cmp_lg_u32 s{s_slow}, 0
    s_cbranch_scc1 M_next
    M_epi:
    s_setprio 0
    s_cmp_gt_u32 s{s_T}, {W2T0 + 8}
    s_cbranch_scc1 M_epi2
    """)
    for s_ in range(8):
        A(w2load(s_))
    A(f"""
    M_epi2:
    s_lshl_b32 s3, s{s_nb1}, 8
    """)
    srd(A, sA, pOUT, "s3")
    A(f"""
    v_mov_b32 v{vC}, {f32(K):#x}
    v_mov_b32 v{vC+1}, {f32(K):#x}
    v_and_b32 v3, 31, v{L}
    v_lshrrev_b32 v2, 5, v{L}
    v_bfe_u32 v8, v3, 1, 2
    v_lshlrev_b32 v9, 1, v2
    v_xor_b32 v8, v8, v9
    v_lshlrev_b32 v8, 4, v8
    v_lshl_add_u32 v8, v3, 6, v8
    v_add_u32 v8, s{s_ring}, v8
    v_xor_b32 v9, 16, v8
    v_and_b32 v10, 15, v{L}              ; n
    v_lshrrev_b32 v11, 4, v{L}           ; q
    v_lshlrev_b32 v12, 2, v10
    v_add_u32 v13, 64, v12
    v_add_u32 v14, 128, v12
    ds_bpermute_b32 v4, v12, v{vDeg}
    ds_bpermute_b32 v5, v13, v{vDeg}
    ds_bpermute_b32 v6, v14, v{vDeg}
    """)
    for Sx, o in ((vS0, 16), (vS1, 24)):
        for r in range(0, 16, 2):
            A(f"v_pk_mul_f32 {vr(Sx+r,2)}, {vr(Sx+r,2)}, {vr(vC,2)}")
        for r in range(0, 16, 2):
            A(f"v_cvt_pk_bf16_f32 v{o+r//2}, v{Sx+r}, v{Sx+r+1}")
    A(f"""
    s_waitcnt vmcnt(0)
    ds_write_b128 v8, v[16:19]
    ds_write_b128 v9, v[20:23]
    ds_write_b128 v8, v[24:27] offset:2048
    ds_write_b128 v9, v[28:31] offset:2048
    v_bfe_u32 v12, v10, 1, 2
    v_xor_b32 v12, v12, v11
    v_lshlrev_b32 v12, 4, v12
    v_lshl_add_u32 v12, v10, 6, v12
    v_lshlrev_b32 v32, 16, v{vB2}
    v_and_b32 v33, 0xffff0000, v{vB2}
    v_lshlrev_b32 v34, 16, v{vB2+1}
    v_and_b32 v35, 0xffff0000, v{vB2+1}
    v_add_u32 v13, s{s_nb0}, v10
    v_lshlrev_b32 v13, 8, v13
    v_lshl_add_u32 v13, v11, 3, v13
    s_lshl_b32 s{s_x}, s{s_w}, 5
    v_add_u32 v13, s{s_x}, v13
    s_waitcnt lgkmcnt(4)
    v_cvt_f32_u32 v4, v4
    v_cvt_f32_u32 v5, v5
    v_cvt_f32_u32 v6, v6
    """)
    O = 36
    for mt in range(3):
        for i in range(4):
            A(f"v_mul_f32 v{O+4*mt+i}, v{4+mt}, v{32+i}")
    A("s_waitcnt lgkmcnt(0)\ns_barrier")
    stamp(A, 14)
    SFR = 48
    order = [(s, mt) for s in range(8) for mt in range(3)]
    RS = D * 2048
    AHEAD = 12
    for k in range(AHEAD):
        s, mt = order[k]
        A(f"ds_read_b128 {vr(SFR+4*k,4)}, v12 offset:{s*RS+mt*1024}")
    for k in range(24):
        s, mt = order[k]
        A(f"s_waitcnt lgkmcnt({min(AHEAD - 1, 23 - k)})")
        mfma16(A, O + 4 * mt, vW2 + 4 * s, SFR + 4 * k, O + 4 * mt)
        if k + AHEAD < 24:
            s2, mt2 = order[k + AHEAD]
            A(f"ds_read_b128 {vr(SFR+4*(k+AHEAD),4)}, v12 offset:{s2*RS+mt2*1024}")
    A(f"s_mov_b32 s{s_x}, 4096\ns_mov_b32 s{s_x+1}, 8192\ns_nop 5")
    for mt in range(3):
        A(f"""
        v_cvt_pk_bf16_f32 v{16+2*mt}, v{O+4*mt}, v{O+4*mt+1}
        v_cvt_pk_bf16_f32 v{17+2*mt}, v{O+4*mt+2}, v{O+4*mt+3}
        buffer_store_dwordx2 {vr(16+2*mt,2)}, v13, {S(sA)}, {["0", f"s{s_x}", f"s{s_x+1}"][mt]} offen
        """)
    if STAMPS:
        A("s_waitcnt vmcnt(0)")
        stamp(A, 15)
        srd(A, sA, pWS, 0x40000, off=WS_ST)
        A(f"""
        s_lshl_b32 s3, s2, 3
        s_add_u32 s3, s3, s{s_w}
        s_lshl_b32 s3, s3, 6
        v_lshl_add_u32 v1, v{L}, 2, s3
        s_mov_b64 exec, 0xffff
        buffer_store_dword v{vSt}, v1, {S(sA)}, 0 offen
        """)
    A("M_end:\ns_endpgm")

    A(f"""
    M_rare:
    s_cmp_eq_u32 s{s_T0p}, s{s_t}
    s_cbranch_scc1 M_switch
    s_cmp_le_i32 s{s_pri}, s{s_t}
    s_cbranch_scc0 M_rexit
    s_setprio 0
    s_mov_b32 s{s_pri}, 0x7fffffff
    s_sub_u32 s{s_oth}, s{s_T}, 1
    s_min_i32 s{s_oth}, s{s_oth}, s{s_T0p}
    s_cmp_eq_u32 s{s_t}, -1
    s_setpc_b64 s[{s_ret}:{s_ret+1}]
    M_rexit:
    s_cmp_eq_u32 s{s_t}, s{s_t}
    s_setpc_b64 s[{s_ret}:{s_ret+1}]
    """)
    A("M_switch:\ns_waitcnt lgkmcnt(0)")
    mfma32(A, vACC, vH, vAgg, vACC)
    A(f"""
    s_lshl_b32 s3, s{s_t}, 10
    v_add_u32 v8, s3, v{vaAgg}
    v_add_u32 v{vaAgg}, 1024, v{vaAgg}
    s_mov_b32 s{s_sw}, 1
    s_mov_b32 s{s_T0p}, 0x7fffffff
    s_sub_u32 s{s_oth}, s{s_T}, 1
    s_min_i32 s{s_oth}, s{s_oth}, s{s_pri}
    ds_read_b128 {vr(vAgg,4)}, v8
    s_nop 7
    """)
    for r in range(16):
        A(f"v_add_f32 v{vS0+r}, v{vS0+r}, v{vACC+r}")
    for r in range(16):
        A(f"v_mov_b32 v{vACC+r}, 0")
    A(f"s_waitcnt lgkmcnt(0)\ns_cmp_eq_u32 s{s_t}, -1\ns_setpc_b64 s[{s_ret}:{s_ret+1}]")

    A(f"""
    M_align:
    s_mov_b32 s{s_x+8}, 0
    v_mov_b32 v9, v{vBase}
    """)
    for G in range(5):
        A(f"""
        v_readlane_b32 s{s_x}, v{vBase}, {8*G}
        v_readlane_b32 s{s_x+1}, v{vBase}, {8*G+8}
        s_nop 1
        s_sub_u32 s{s_x+9}, s{s_x+8}, s{s_x}
        v_cmp_le_u32 vcc, {8*G}, v{L}
        v_add_u32 v10, s{s_x+9}, v{vBase}
        s_sub_u32 s{s_x+1}, s{s_x+1}, s{s_x}
        s_add_u32 s{s_x+8}, s{s_x+8}, s{s_x+1}
        v_cndmask_b32 v9, v9, v10, vcc
        """)
        if G < 4:
            A(f"s_add_u32 s{s_x+8}, s{s_x+8}, 31\ns_and_b32 s{s_x+8}, s{s_x+8}, -32")
    A(f"""
    s_mov_b32 s{s_tot}, s{s_x+8}
    v_mov_b32 v{vBase}, v9
    s_nop 1
    s_branch M_derive
    """)
    A(f"""
    M_goslow:
    s_mov_b32 s{s_slow}, 1
    s_mov_b32 s{s_batch}, 0
    s_branch M_load
    M_next:
    s_add_u32 s{s_batch}, s{s_batch}, 512
    s_cmp_ge_u32 s{s_batch}, {E}
    s_cbranch_scc1 M_epi
    M_load:
    """)
    srd(A, sA, pDST, E * 4)
    srd(A, sB, pSRC, E * 4)
    A(f"""
    v_add_u32 v8, s{s_batch}, v0
    v_lshlrev_b32 v9, 2, v8
    s_waitcnt vmcnt(0) lgkmcnt(0)
    buffer_load_dword v10, v9, {S(sA)}, 0 offen
    buffer_load_dword v11, v9, {S(sB)}, 0 offen
    v_lshlrev_b32 v{vChunk8}, 3, v8
    v_mov_b32 v5, -1
    v_mov_b32 v6, -1
    v_mov_b32 v7, -1
    s_mov_b32 s{s_x+2}, {E}
    s_waitcnt vmcnt(0)
    v_subrev_u32 v12, s{s_nb0}, v10
    v_cmp_gt_u32 vcc, s{s_nn}, v12
    v_cmp_gt_u32 s[{s_x}:{s_x+1}], s{s_x+2}, v8
    v_and_b32 v10, 63, v10
    v_lshl_or_b32 v11, v10, 14, v11
    s_and_b64 vcc, vcc, s[{s_x}:{s_x+1}]
    s_nop 1
    v_cndmask_b32 v4, v5, v11, vcc
    s_barrier
    s_branch M_batch
    """)
    A.l += ool.l


def build():
    out = f"""; Fused edge-featured MPNN layer, one workgroup per bucket of 39/40 destination nodes.
; @launch grid=(256,1,1) block=(512,1,1) lds={LDS_BYTES}
.amdgcn_target "amdgcn-amd-amdhsa--gfx950"
.text
.globl {KN}
.p2align 8
.type {KN},@function
"""
    A = Asm()
    kernel(A)
    out += A.text()
    out += f""".section .rodata,"a"
.p2align 6
.amdhsa_kernel {KN}
  .amdhsa_next_free_vgpr {NV}
  .amdhsa_next_free_sgpr 102
  .amdhsa_accum_offset {(NV + 3) // 4 * 4}
  .amdhsa_group_segment_fixed_size 0
  .amdhsa_kernarg_size 88
  .amdhsa_user_sgpr_count 2
  .amdhsa_user_sgpr_kernarg_segment_ptr 1
  .amdhsa_system_sgpr_workgroup_id_x 1
.end_amdhsa_kernel
"""
    return out


if __name__ == "__main__":
    for a in list(sys.argv):
        if a.startswith("-o"):
            OPT.update(a[2:].split(","))
            sys.argv.remove(a)
    if "--stamps" in sys.argv:
        STAMPS = True
        sys.argv.remove("--stamps")
    path = sys.argv[1] if len(sys.argv) > 1 else f"cdna_kernels/{NAME}.s"
    open(path, "w").write(build())
    print("wrote", path, "lds", LDS_BYTES)
```

```python
import sys, struct, math

NAME = "gather_scatter__edge_featured_mpnn_mpnn__graph"
KN = NAME + "_kernel"
N, E = 10000, 160000

WS_CNT = 0
WS_W2F = 0x1000
WS_SLOT = 0x11000
WS_P = 0x212000
TABB = N * 512
WS_END = WS_P + TABB
WS_ST = 0x1000000

NCH = 64
CHE = E // NCH
PROWS = 53
LOG2E = 1.4426950408889634
CEXP = 48
STAMPS = False
OPT = set()
PRIO_NUM = 22
W2T0 = 8


def f32(x):
    return struct.unpack("<I", struct.pack("<f", x))[0]


class Asm:
    def __init__(self):
        self.l = []

    def __call__(self, s):
        for x in s.split("\n"):
            x = x.strip()
            if x:
                self.l.append(("" if x.endswith(":") else "    ") + x)

    def text(self):
        return "\n".join(self.l) + "\n"


def vr(a, n=1):
    return f"v{a}" if n == 1 else f"v[{a}:{a+n-1}]"


def srd(A, d, base, size, off=None):
    if off is None:
        A(f"s_mov_b32 s{d}, s{base}\ns_mov_b32 s{d+1}, s{base+1}")
    else:
        A(f"s_add_u32 s{d}, s{base}, {off}\ns_addc_u32 s{d+1}, s{base+1}, 0")
    A(f"s_mov_b32 s{d+2}, {size}\ns_mov_b32 s{d+3}, 0x00020000")


def S(d):
    return f"s[{d}:{d+3}]"


D = 4
CAP_T = 26
QS = 576
L_RING = 0
L_AQE = 8 * D * 2048
L_AQH = L_AQE + CAP_T * 512
L_AGG = L_AQH + CAP_T * 512
L_LIST = L_AGG + (CAP_T + 1) * 1024
L_CNT = L_LIST + 4096
L_N0 = L_CNT + 256
L_WE = L_N0 + 256
L_Q = L_WE + 8 * QS
LDS_BYTES = L_Q + 32768
ZERO_BYTES = L_LIST - L_AQE
L_XP = L_Q
L_XQ = L_Q + 16384
L_BT = L_AQE
L_BC = L_BT + 32768
assert L_BC + 2048 <= L_LIST and LDS_BYTES <= 163840 and 48 * QS <= 32768
DUMMY = 0x400000

pX, pE, pSRC, pDST, pW1, pB1, pW2, pB2, pOUT, pDBG, pWS = 4, 6, 8, 10, 12, 14, 16, 18, 20, 22, 24
s_w2 = 26
sA, sB, sC, sD, sWS, sP, sE = 28, 32, 36, 40, 44, 48, 52
(s_w, s_nb0, s_nb1, s_nn, s_T, s_T0p, s_t, s_next, s_slow, s_batch, s_ring, s_sw, s_tot,
 s_nb4, s_ringh, s_spin, s_pri, s_alt, s_xw) = range(56, 75)
s_x = 76
sM = 86
s_ret = 94
sG = 96

vU = [16, 32]
vT = 48
vH = 64
vACC = 68
vS0 = 84
vS1 = 100
vPf0, vPf1, vAqe, vAgg, vBq, vSel0, vSel1 = 116, 120, 124, 128, 132, 136, 140
vBa = 144
vOff = 176
vW2 = 176
(vC, _c1, vB2, _b1, vK0, vK1, vK2, vK3, vaAqe, vaAgg, vaList, vaP0, vaP1, vaB, vBmul, vBase, vDeg,
 vChunk8, vLane, vDum, vSt, vW2a, vaCnt) = range(228, 251)
NV = 252
vXF = 176
vXP = 160
vWF = 16
vPA = 48
vPO = 148
vXa = 145
vXr = 147
vB1 = 116
vWEr = 128
vF0 = 129
vPc, vPca = 130, 131


def mfma32(A, d, a, b, c):
    cs = "0" if c is None else vr(c, 16)
    A(f"v_mfma_f32_32x32x16_bf16 {vr(d,16)}, {vr(a,4)}, {vr(b,4)}, {cs}")


def mfma16(A, d, a, b, c):
    cs = "0" if c is None else vr(c, 4)
    A(f"v_mfma_f32_16x16x32_bf16 {vr(d,4)}, {vr(a,4)}, {vr(b,4)}, {cs}")


SPIN = None


def stamp(A, i):
    if SPIN is not None:
        if i == 0:
            A("s_memrealtime s[100:101]\ns_waitcnt lgkmcnt(0)\ns_mov_b32 s75, s100")
        elif i == SPIN[0]:
            u = len(A.l)
            A(f"M_spin{u}:\ns_memrealtime s[100:101]\ns_waitcnt lgkmcnt(0)\ns_sub_u32 s100, s100, s75\ns_cmp_lt_u32 s100, {int(SPIN[1]*100)}\ns_cbranch_scc1 M_spin{u}")
    if STAMPS:
        ins = "s_memtime" if "cyc" in OPT else "s_memrealtime"
        A(f"s_waitcnt lgkmcnt(0)\n{ins} s[100:101]\ns_waitcnt lgkmcnt(0)\nv_writelane_b32 v{vSt}, s100, {i}")


def gemm_part(A, init, nmt, xf, vm=None):
    def rd(s):
        for ct in range(2):
            for x in range(2):
                A(f"ds_read_b64_tr_b16 {vr(vWF + 8*s + 4*ct + 2*x, 2)}, v14 offset:{s*2048 + x*256 + ct*8}")
    if vm is None:
        for s in range(4):
            rd(s)
    else:
        A(f"s_waitcnt vmcnt({vm[0]})")
        rd(0)
    for s in range(4):
        if vm is None:
            A(f"s_waitcnt lgkmcnt({12 - 4*s})")
        else:
            A("s_waitcnt lgkmcnt(0)")
        k = 0
        for mt in range(nmt):
            for ct in range(2):
                d = vPA + 8 * mt + 4 * ct
                c = d if s else (None if init is None else init + 4 * ct)
                mfma16(A, d, vWF + 8 * s + 4 * ct, xf + 16 * mt + 4 * s, c)
                k += 1
                if vm is not None and k == 2 and s < 3:
                    A(f"s_waitcnt vmcnt({vm[s+1]})")
                    rd(s + 1)


def gemm_pack(A, nmt, store):
    A("s_nop 4")
    for mt in range(nmt):
        for r in range(0, 8, 2):
            a = vPA + 8 * mt + r
            A(f"v_pk_mul_f32 {vr(a,2)}, {vr(a,2)}, v[12:13]")
        for r in range(0, 8, 2):
            a = vPA + 8 * mt + r
            A(f"v_cvt_pk_bf16_f32 v{vPO + 4*mt + r//2}, v{a}, v{a+1}")
        store(mt)


def kernel(A):
    L = vLane
    SC = "sc0 sc1"
    A(f"{KN}:")
    A(f"""
    s_cmp_ge_u32 s2, 256
    s_cbranch_scc1 M_end
    s_load_dwordx16 s[4:19], s[0:1], 0
    s_load_dwordx4 s[20:23], s[0:1], 64
    s_load_dwordx2 s[24:25], s[0:1], 80
    """)
    if STAMPS:
        A(f"v_mov_b32 v{vSt}, 0")
    stamp(A, 0)
    A(f"""
    v_lshrrev_b32 v2, 6, v0
    v_and_b32 v{L}, 63, v0
    v_readfirstlane_b32 s{s_w}, v2
    v_lshrrev_b32 v7, 4, v{L}
    v_and_b32 v8, 15, v{L}
    v_xor_b32 v8, v8, v7
    s_lshl_b32 s{s_ring}, s{s_w}, 13
    s_and_b32 s3, s{s_w}, 1
    s_lshl_b32 s3, s3, 3
    v_xor_b32 v8, s3, v8
    v_lshlrev_b32 v8, 4, v8
    v_lshl_add_u32 v8, v7, 8, v8
    s_lshl_b32 s{s_xw}, s{s_w}, 11
    v_add_u32 v{vXa}, s{s_xw}, v8
    v_xor_b32 v{vXa+1}, 64, v{vXa}
    v_lshrrev_b32 v10, 2, v{L}
    v_and_b32 v11, 3, v{L}
    v_lshlrev_b32 v11, 4, v11
    v_lshl_add_u32 v10, v10, 9, v11
    s_lshl_b32 s3, s{s_w}, 6
    v_add_u32 v10, s3, v10
    v_lshlrev_b32 v2, 2, v0
    s_cmp_ge_u32 s2, {NCH}
    s_waitcnt lgkmcnt(0)
    s_cbranch_scc1 M_pwg
    """)

    def wdma(base):
        for ii in range(8):
            A(f"""
            s_add_u32 m0, s{s_ring}, {ii*1024}
            s_mov_b32 s{s_x+1}, {base + ii*8192}
            buffer_load_dwordx4 v10, {S(sB)}, s{s_x+1} offen lds
            """)

    def xdma(ldsbase, rowreg):
        A(f"""
        s_add_u32 m0, s{s_xw}, {ldsbase}
        s_lshl_b32 s3, s{rowreg}, 8
        buffer_load_dwordx4 v{vXa}, {S(sD)}, s3 offen lds
        buffer_load_dwordx4 v{vXa+1}, {S(sD)}, s3 offen offset:1024 lds
        """)

    def consts():
        srd(A, sG, pDBG, 256)
        srd(A, sP, pWS, TABB + 4096, off=WS_P - 4096)
        srd(A, sE, pE, E * 8)
        A(f"""
        s_mul_i32 s{s_nb0}, s2, 160069
        s_add_u32 s{s_nb1}, s{s_nb0}, {160069 + 4049}
        s_add_u32 s{s_nb0}, s{s_nb0}, 4049
        s_lshr_b32 s{s_nb0}, s{s_nb0}, 12
        s_lshr_b32 s{s_nb1}, s{s_nb1}, 12
        s_min_u32 s{s_nb1}, s{s_nb1}, {N}
        s_sub_u32 s{s_nn}, s{s_nb1}, s{s_nb0}
        s_lshl_b32 s{s_nb4}, s{s_nb0}, 2
        s_add_u32 s{s_ringh}, s{s_ring}, 4096
        s_mov_b32 s{s_slow}, 0
        s_lshl_b32 s{s_w2}, s{s_w}, 13
        s_add_u32 s{s_w2}, s{s_w2}, {WS_W2F}
        s_add_u32 s{s_w2+1}, s{s_w2}, 4096
        v_lshrrev_b32 v3, 4, v{L}        ; q
        v_and_b32 v4, 15, v{L}           ; n
        v_xor_b32 v5, v3, v4
        v_lshlrev_b32 v5, 4, v5
        v_lshl_add_u32 v{vXr}, v4, 8, v5
        v_bfe_u32 v5, v{L}, 2, 2         ; r
        v_lshl_add_u32 v6, v3, 3, v5     ; 8q + r
        v_lshlrev_b32 v6, 6, v6
        v_and_b32 v7, 3, v{L}            ; c
        v_lshl_add_u32 v6, v7, 4, v6
        v_add_u32 v14, s{s_ring}, v6
        v_mov_b32 v12, {f32(-LOG2E):#x}
        v_mov_b32 v13, v12
        v_xor_b32 v9, v7, v3
        v_lshlrev_b32 v9, 4, v9
        s_lshl_b32 s3, s{s_w}, 6
        s_add_u32 s{s_x}, s3, 1024
        v_add_u32 v{vK3}, s{s_x}, v9
        v_add_u32 v{vK2}, 1024, v{vK3}
        v_add_u32 v{vK1}, 2048, v{vK3}
        v_add_u32 v{vK0}, 3072, v{vK3}
        v_lshrrev_b32 v1, 5, v{L}        ; h
        v_mul_u32_u24 v5, {QS}, v5
        v_and_b32 v3, 1, v3
        v_lshl_add_u32 v5, v3, 5, v5
        v_lshl_add_u32 v5, v7, 3, v5
        s_add_u32 s3, s3, {L_WE}
        v_add_u32 v5, s3, v5
        v_mul_u32_u24 v6, {8*QS}, v1
        v_add_u32 v{vaB}, v5, v6
        v_mul_u32_u24 v{vBmul}, {QS//4}, v1
        v_and_b32 v3, 31, v{L}           ; m
        v_lshrrev_b32 v9, 4, v3
        v_and_b32 v8, 3, v3
        v_lshl_add_u32 v9, v8, 1, v9
        v_and_b32 v8, 8, v3
        v_add_u32 v9, v9, v8
        v_and_b32 v8, 4, v3
        v_lshl_add_u32 v9, v8, 2, v9
        v_lshlrev_b32 v9, 4, v9
        v_mul_u32_u24 v8, {L_AQH - L_AQE}, v1
        v_add_u32 v9, v9, v8
        v_add_u32 v{vaAqe}, {L_AQE}, v9
        v_lshrrev_b32 v9, 2, v{L}
        v_and_b32 v8, 3, v9
        v_lshlrev_b32 v8, 1, v8
        v_and_b32 v11, 8, v9
        v_add_u32 v8, v8, v11
        v_and_b32 v11, 4, v9
        v_lshl_add_u32 v8, v11, 2, v8
        v_lshlrev_b32 v8, 2, v8
        v_add_u32 v{vaList}, {L_LIST}, v8
        v_bfe_u32 v9, v3, 2, 2
        v_xor_b32 v9, v9, v1
        v_lshlrev_b32 v9, 4, v9
        v_lshl_add_u32 v9, v3, 6, v9
        v_add_u32 v{vaP0}, s{s_ring}, v9
        v_xor_b32 v{vaP1}, 32, v{vaP0}
        v_and_b32 v9, 1, v3
        v_lshlrev_b32 v9, 4, v9
        v_mov_b32 v8, 0x3f80
        v_lshlrev_b32 v9, v9, v8
        v_lshrrev_b32 v8, 1, v3
        v_lshlrev_b32 v11, 2, v1
        v_sub_u32 v8, v8, v11
        """)
        for x in range(4):
            A(f"v_cmp_eq_u32 s[{s_x}:{s_x+1}], {x}, v8\nv_cmp_eq_u32 vcc, {8+x}, v8\ns_nop 0")
            A(f"v_cndmask_b32 v{vSel0+x}, 0, v9, s[{s_x}:{s_x+1}]\nv_cndmask_b32 v{vSel1+x}, 0, v9, vcc")
        A(f"""
        v_mov_b32 v{vC}, {f32(2.0**-CEXP):#x}
        v_mov_b32 v{vC+1}, {f32(2.0**-CEXP):#x}
        v_mov_b32 v{vDeg}, 0
        v_mov_b32 v{vDum}, 0x80000000
        v_lshrrev_b32 v9, 3, v0
        v_mul_u32_u24 v{vChunk8}, {CHE*8}, v9
        v_lshlrev_b32 v{vW2a}, 4, v{L}
        v_lshlrev_b32 v9, 2, v{L}
        v_add_u32 v{vaCnt}, {L_CNT}, v9
        v_lshlrev_b32 v{vPca}, 8, v{L}
        v_lshrrev_b32 v9, 4, v{L}
        v_min_u32 v9, 1, v9
        v_lshlrev_b32 v{vPc}, 4, v9
        """)
        for r in range(16):
            A(f"v_mov_b32 v{vS0+r}, 0\nv_mov_b32 v{vS1+r}, 0")

    def zerofill():
        A(f"""
        v_mov_b32 v40, 0
        v_mov_b32 v41, 0
        v_mov_b32 v42, 0
        v_mov_b32 v43, 0
        v_mov_b32 v44, {DUMMY}
        v_mov_b32 v45, {DUMMY}
        v_lshlrev_b32 v1, 3, v0
        v_add_u32 v1, {L_LIST}, v1
        ds_write_b64 v1, v[44:45]
        ds_write_b32 v{vaCnt}, v40
        ds_write_b32 v{vaCnt}, v40 offset:256
        v_lshlrev_b32 v1, 4, v0
        v_add_u32 v1, {L_AQE}, v1
        """)
        nz = ZERO_BYTES // 8192
        rem = ZERO_BYTES - nz * 8192
        for q in range(nz):
            A(f"ds_write_b128 v1, v[40:43] offset:{q*8192}")
        if rem:
            A(f"""
            v_cmp_gt_u32 vcc, {rem//16}, v0
            s_and_saveexec_b64 s[{s_x}:{s_x+1}], vcc
            ds_write_b128 v1, v[40:43] offset:{nz*8192}
            s_mov_b64 exec, s[{s_x}:{s_x+1}]
            """)

    def late_small():
        xdma(L_XQ, s_nb0)
        srd(A, sC, pB1, 512)
        srd(A, sD, pB2, 256)
        A(f"""
        v_lshrrev_b32 v3, 4, v{L}
        v_lshlrev_b32 v4, 4, v3
        s_lshl_b32 s3, s{s_w}, 6
        buffer_load_dwordx4 {vr(vB1,4)}, v4, {S(sC)}, s3 offen
        v_lshlrev_b32 v5, 2, v0
        s_mov_b32 s3, {256*512}
        buffer_load_dword v{vWEr}, v5, {S(sB)}, s3 offen
        v_lshlrev_b32 v4, 3, v3
        s_lshl_b32 s3, s{s_w}, 5
        buffer_load_dwordx2 {vr(vB2,2)}, v4, {S(sD)}, s3 offen
        buffer_load_dword v{vF0}, off, {S(sG)}, 0 offset:136 sc1
        """)

    srd(A, sWS, pWS, WS_END)
    A(f"""
    v_lshlrev_b32 v3, 8, v0
    s_cmp_eq_u32 s2, 0
    s_cselect_b32 s3, 16, 0
    v_cmp_gt_u32 vcc, s3, v0
    v_mov_b32 v4, 0x40000000
    v_mov_b32 v8, 0
    v_cndmask_b32 v3, v4, v3, vcc
    s_mul_i32 s3, s2, {CHE*4}
    buffer_store_dword v8, v3, {S(sWS)}, 0 offen {SC}
    """)
    srd(A, sC, pDST, CHE * 4, off="s3")
    srd(A, sD, pSRC, CHE * 4, off="s3")
    A(f"s_mov_b32 s{s_x+1}, 4096\ns_mov_b32 s{s_x+2}, 8192")
    vD, vS = 164, 169
    so = ["0", "0", f"s{s_x+1}", f"s{s_x+1}", f"s{s_x+2}"]
    for k in range(5):
        A(f"buffer_load_dword v{vD+k}, v2, {S(sC)}, {so[k]} offen offset:{(k & 1)*2048}")
    for k in range(5):
        A(f"buffer_load_dword v{vS+k}, v2, {S(sD)}, {so[k]} offen offset:{(k & 1)*2048}")
    srd(A, sC, pW2, 256 * 256)
    A(f"""
    v_lshlrev_b32 v3, 4, v0
    v_add_u32 v15, {L_BT}, v3
    v_add_u32 v2, {L_BC}, v2
    v_mov_b32 v4, -1
    v_mov_b32 v5, -1
    v_mov_b32 v6, -1
    v_mov_b32 v7, -1
    """)
    for q in range(4):
        A(f"ds_write_b128 v15, v[4:7] offset:{q*8192}")
    A(f"""
    ds_write_b32 v2, v8
    s_lshl_b32 s3, s2, 8
    v_add_u32 v3, s3, v0
    v_bfe_u32 v4, v3, 8, 3           ; s
    v_lshlrev_b32 v4, 5, v4
    v_bfe_u32 v5, v3, 6, 1           ; ab
    v_lshl_add_u32 v4, v5, 4, v4
    v_bfe_u32 v5, v3, 1, 1           ; e>>2
    v_lshl_add_u32 v4, v5, 3, v4
    v_bfe_u32 v5, v3, 7, 1           ; h
    v_lshl_add_u32 v4, v5, 2, v4
    v_and_b32 v5, 1, v3
    v_lshl_add_u32 v4, v5, 1, v4     ; hidden
    v_lshlrev_b32 v4, 8, v4
    v_lshrrev_b32 v5, 11, v3         ; wo
    v_lshl_add_u32 v4, v5, 5, v4
    v_bfe_u32 v5, v3, 2, 4           ; m
    v_lshl_add_u32 v4, v5, 1, v4
    v_lshrrev_b32 v5, 8, v0
    v_lshl_or_b32 v4, v5, 30, v4
    v_lshlrev_b32 v3, 2, v3
    v_lshl_or_b32 v176, v5, 30, v3
    buffer_load_ushort v174, v4, {S(sC)}, 0 offen
    buffer_load_ushort v175, v4, {S(sC)}, 0 offen offset:256
    """)
    srd(A, sB, pW1, 260 * 512)
    srd(A, sD, pX, N * 256)
    consts()
    stamp(A, 1)
    A(f"""
    v_mov_b32 v9, 1
    s_waitcnt lgkmcnt(0)
    s_barrier
    s_waitcnt vmcnt(7)
    """)
    vb, va, vk = 16, 21, 26
    for k in range(5):
        A(f"v_mul_u32_u24 v{vb+k}, 1677, v{vD+k}")
        A(f"v_lshrrev_b32 v{vb+k}, 16, v{vb+k}")
        A(f"v_lshlrev_b32 v{va+k}, 2, v{vb+k}")
        A(f"v_add_u32 v{va+k}, {L_BC}, v{va+k}")
        if k == 4:
            A(f"v_cmp_gt_u32 vcc, {CHE - 2048}, v0\ns_and_saveexec_b64 s[{s_x+2}:{s_x+3}], vcc")
        A(f"ds_add_rtn_u32 v{vk+k}, v{va+k}, v9")
    A(f"""
    s_mov_b64 s[{s_x+4}:{s_x+5}], exec
    s_or_b32 s3, s2, s{s_w}
    s_cbranch_scc1 M_nf0
    s_mov_b64 exec, 1
    buffer_store_dword v9, off, {S(sG)}, 0 offset:136 {SC}
    s_mov_b64 exec, s[{s_x+2}:{s_x+3}]
    s_waitcnt vmcnt(3)
    M_nf0:
    s_mov_b64 exec, s[{s_x+2}:{s_x+3}]
    s_waitcnt vmcnt(2)
    """)
    for k in range(5):
        A(f"""
        v_and_b32 v{vD+k}, 63, v{vD+k}
        v_lshl_or_b32 v{vS+k}, v{vD+k}, 14, v{vS+k}
        v_add_u32 v{vD+k}, {512*k}, v0
        v_lshl_or_b32 v{vS+k}, v{vD+k}, 20, v{vS+k}
        v_lshlrev_b32 v{va+k}, 7, v{vb+k}
        v_add_u32 v{va+k}, {L_BT}, v{va+k}
        """)
    for k in range(5):
        if k == 4:
            A(f"s_mov_b64 exec, s[{s_x+4}:{s_x+5}]")
        A(f"""
        s_waitcnt lgkmcnt({4-k})
        v_add_u32 v4, v{vk+k}, v{vb+k}
        v_and_b32 v4, 7, v4
        v_lshrrev_b32 v5, 3, v{vk+k}
        v_lshl_add_u32 v4, v4, 2, v5
        v_lshl_add_u32 v{va+k}, v4, 2, v{va+k}
        v_cmp_gt_u32 vcc, 32, v{vk+k}
        s_and_saveexec_b64 s[{s_x+6}:{s_x+7}], vcc
        ds_write_b32 v{va+k}, v{vS+k}
        s_mov_b64 exec, s[{s_x+6}:{s_x+7}]
        """)
    A(f"""
    s_mov_b64 exec, -1
    v_lshrrev_b32 v4, 3, v0
    v_lshlrev_b32 v5, 2, v4
    v_add_u32 v5, {L_BC}, v5
    v_and_b32 v6, 7, v0
    v_lshlrev_b32 v7, 13, v4
    v_lshl_add_u32 v7, v6, 4, v7
    s_lshl_b32 s3, s2, 7
    s_add_u32 s3, s3, {WS_SLOT}
    v_add_u32 v7, s3, v7
    v_cmp_eq_u32 s[{s_x+2}:{s_x+3}], 7, v6
    v_mov_b32 v8, -2
    s_mov_b32 s{s_x+4}, 0
    s_mov_b32 s{s_x+5}, {64*8192}
    s_mov_b32 s{s_x+6}, {128*8192}
    s_mov_b32 s{s_x+7}, {192*8192}
    s_waitcnt lgkmcnt(0)
    s_barrier
    """)
    stamp(A, 2)
    for q in range(4):
        A(f"ds_read_b128 {vr(16+4*q,4)}, v15 offset:{q*8192}")
        A(f"ds_read_b32 v{32+q}, v5 offset:{q*256}")
    A(f"s_mov_b32 s3, {WS_W2F}\ns_waitcnt vmcnt(0)\nv_lshl_or_b32 v174, v175, 16, v174")
    for q in range(4):
        A(f"""
        s_waitcnt lgkmcnt({6-2*q})
        v_cmp_lt_u32 vcc, 32, v{32+q}
        s_and_b64 vcc, vcc, s[{s_x+2}:{s_x+3}]
        s_nop 1
        v_cndmask_b32 v{19+4*q}, v{19+4*q}, v8, vcc
        buffer_store_dwordx4 {vr(16+4*q,4)}, v7, {S(sWS)}, s{s_x+4+q} offen {SC}
        """)
    A(f"buffer_store_dword v174, v176, {S(sWS)}, s3 offen {SC}")
    stamp(A, 3)
    A(f"""
    s_waitcnt vmcnt(0)
    s_barrier
    s_cmp_lg_u32 s{s_w}, 0
    s_cbranch_scc1 M_nlast2
    s_and_b32 s3, s2, 1
    s_lshl_b32 s{s_x+1}, s3, 6
    s_lshl_b32 s3, s3, 2
    v_mov_b32 v9, 1
    s_mov_b64 exec, 1
    buffer_atomic_add v9, off, {S(sG)}, s{s_x+1} sc0 sc1
    s_waitcnt vmcnt(0)
    v_cmp_eq_u32 vcc, {NCH//2 - 1}, v9
    s_cbranch_vccz M_nlast
    buffer_store_dword v9, off, {S(sG)}, s3 offset:128 {SC}
    M_nlast:
    s_mov_b64 exec, -1
    M_nlast2:
    """)
    late_small()
    wdma(128 * 512)
    zerofill()
    A("s_branch M_join")
    A("M_pwg:")
    srd(A, sD, pX, N * 256)
    srd(A, sB, pW1, 260 * 512)
    A(f"s_sub_u32 s{s_t}, s2, {NCH}\ns_mul_i32 s{s_t}, s{s_t}, {PROWS}")
    xdma(L_XP, s_t)
    wdma(0)
    stamp(A, 1)
    srd(A, sWS, pWS, WS_END)
    consts()
    zerofill()
    A(f"""
    v_add_u32 v15, {L_XP}, v{vXr}
    v_lshrrev_b32 v3, 4, v{L}
    v_and_b32 v4, 15, v{L}
    v_add_u32 v11, s{s_t}, v4
    v_lshlrev_b32 v11, 9, v11
    v_lshl_add_u32 v11, v3, 4, v11
    s_lshl_b32 s3, s{s_w}, 6
    v_add_u32 v11, s3, v11
    s_add_u32 s3, s{s_t}, {PROWS}
    s_min_u32 s3, s3, {N}
    s_lshl_b32 s3, s3, 9
    """)
    srd(A, sA, pWS, "s3", off=WS_P)
    A(f"""
    s_mov_b32 s{s_x+4}, 0
    s_mov_b32 s{s_x+5}, 8192
    s_mov_b32 s{s_x+6}, 16384
    s_mov_b32 s{s_x+7}, 24576
    s_waitcnt vmcnt(8)
    s_barrier
    """)
    stamp(A, 2)
    for s in range(4):
        if s:
            A(f"v_xor_b32 v4, {s << 6:#x}, v15")
        for mt in range(4):
            A(f"ds_read_b128 {vr(vXP + 16*mt + 4*s, 4)}, v{4 if s else 15} offset:{mt*4096}")
    gemm_part(A, None, 4, vXP, vm=[6, 4, 2, 0])
    gemm_pack(A, 4, lambda mt: A(f"buffer_store_dwordx4 {vr(vPO+4*mt,4)}, v11, {S(sA)}, s{s_x+4+mt} offen {SC}"))
    stamp(A, 3)
    late_small()
    wdma(128 * 512)
    A("M_join:")
    stamp(A, 4)
    A(f"""
    s_waitcnt vmcnt(8)
    v_lshlrev_b32 v8, 16, v{vWEr}
    v_and_b32 v9, 0xffff0000, v{vWEr}
    v_mul_f32 v8, v12, v8
    v_mul_f32 v9, v12, v9
    v_cvt_pk_bf16_f32 v10, v8, v9
    v_lshrrev_b32 v4, 7, v0          ; f
    v_lshlrev_b32 v5, 16, v10
    v_and_b32 v6, 0xffff0000, v10
    v_sub_f32 v8, v8, v5
    v_sub_f32 v9, v9, v6
    v_cvt_pk_bf16_f32 v11, v8, v9
    v_lshlrev_b32 v5, 2, v0
    v_lshl_add_u32 v5, v4, 6, v5
    v_add_u32 v5, {L_WE}, v5
    ds_write_b32 v5, v10
    ds_write_b32 v5, v11 offset:{4*QS}
    """)
    for x in range(4):
        A(f"v_lshlrev_b32 v{vB1+4+2*x}, 16, v{vB1+x}\nv_and_b32 v{vB1+5+2*x}, 0xffff0000, v{vB1+x}")
    A(f"""
    v_add_u32 v15, {L_XQ}, v{vXr}
    s_waitcnt lgkmcnt(0)
    s_barrier
    """)
    stamp(A, 5)
    for s in range(4):
        if s:
            A(f"v_xor_b32 v4, {s << 6:#x}, v15")
        for mt in range(3):
            A(f"ds_read_b128 {vr(vXF + 16*mt + 4*s, 4)}, v{4 if s else 15} offset:{mt*4096}")
    A(f"""
    s_cmp_gt_u32 s{s_w}, 1
    s_cbranch_scc1 M_w1
    s_mov_b32 s{s_spin}, 0x400000
    s_cmp_eq_u32 s{s_w}, 0
    s_cbranch_scc1 M_w0
    s_mov_b64 exec, 1
    M_pollf:
    v_cmp_eq_u32 vcc, 0, v{vF0}
    s_cbranch_vccz M_polldf
    s_sub_u32 s{s_spin}, s{s_spin}, 1
    s_cbranch_scc1 M_polldf
    buffer_load_dword v{vF0}, off, {S(sG)}, 0 offset:136 sc1
    s_waitcnt vmcnt(0)
    s_branch M_pollf
    M_polldf:
    s_and_b32 s3, s2, 15
    s_lshl_b32 s3, s3, 8
    v_mov_b32 v9, 1
    buffer_atomic_add v9, off, {S(sWS)}, s3 sc1
    s_mov_b64 exec, -1
    s_branch M_w1
    M_w0:
    s_mov_b64 exec, 1
    M_polla:
    buffer_load_dwordx2 v[8:9], off, {S(sG)}, 0 offset:128 sc1
    s_sub_u32 s{s_spin}, s{s_spin}, 1
    s_cbranch_scc1 M_pollda
    s_waitcnt vmcnt(0)
    v_min_u32 v8, v8, v9
    v_cmp_eq_u32 vcc, 0, v8
    s_cbranch_vccz M_pollda
    s_sleep 1
    s_branch M_polla
    M_pollda:
    s_mov_b64 exec, -1
    M_w1:
    s_waitcnt lgkmcnt(0)
    s_barrier
    """)
    stamp(A, 6)
    A(f"""
    s_lshl_b32 s3, s2, 13
    s_add_u32 s3, s3, {WS_SLOT}
    v_lshlrev_b32 v1, 4, v0
    buffer_load_dwordx4 v[4:7], v1, {S(sWS)}, s3 offen {SC}
    s_waitcnt vmcnt(1)
    """)
    gemm_part(A, vB1 + 4, 3, vXF)
    A(f"""
    s_cmp_lg_u32 s{s_w}, 0
    s_cbranch_scc1 M_nop1
    s_mov_b64 exec, 0xffff
    buffer_load_dword v{vPc}, v{vPca}, {S(sWS)}, 0 offen sc0 sc1
    s_mov_b64 exec, -1
    M_nop1:
    v_and_b32 v8, 15, v{L}           ; n
    v_lshrrev_b32 v9, 4, v{L}        ; q
    v_lshlrev_b32 v9, 4, v9
    v_mul_u32_u24 v8, {QS}, v8
    s_lshl_b32 s3, s{s_w}, 6
    s_add_u32 s3, s3, {L_Q}
    v_add3_u32 v9, v8, v9, s3
    """)
    gemm_pack(A, 3, lambda mt: A(f"ds_write_b128 v9, {vr(vPO+4*mt,4)} offset:{mt*16*QS}"))
    stamp(A, 7)
    A(f"""
    s_cmp_lg_u32 s{s_w}, 0
    s_cbranch_scc1 M_wv0
    s_waitcnt vmcnt(1)
    s_branch M_recs
    M_wv0:
    s_waitcnt vmcnt(0)
    M_recs:
    """)
    stamp(A, 8)
    vD4, vRk, vEo, vEv, vBs, vTa = 16, 20, 24, 28, 36, 40
    A(f"s_mov_b32 s{s_x}, 0xfff00000\nv_mov_b32 v1, 1")
    for j in range(4):
        A(f"v_cmp_gt_u32 s[{sM+2*j}:{sM+2*j+1}], s{s_x}, v{4+j}")
    for j in range(4):
        A(f"""
        s_mov_b64 exec, s[{sM+2*j}:{sM+2*j+1}]
        s_cbranch_execz M_r1_{j}
        v_lshrrev_b32 v{vD4+j}, 12, v{4+j}
        v_subrev_u32 v{vD4+j}, s{s_nb4}, v{vD4+j}
        v_and_b32 v{vD4+j}, 0xfc, v{vD4+j}
        v_add_u32 v8, {L_CNT}, v{vD4+j}
        ds_add_rtn_u32 v{vRk+j}, v8, v1
        v_lshrrev_b32 v{vEo+j}, 20, v{4+j}
        v_lshl_add_u32 v{vEo+j}, v{vEo+j}, 3, v{vChunk8}
        buffer_load_dwordx2 {vr(vEv+2*j,2)}, v{vEo+j}, {S(sE)}, 0 offen
        v_and_b32 v{4+j}, 0x3fff, v{4+j}
        M_r1_{j}:
        """)
        if j == 2:
            A(f"""
            s_mov_b64 exec, -1
            v_cmp_eq_u32 vcc, -2, v7
            s_and_b64 exec, exec, vcc
            s_cbranch_execz M_nomark
            v_mov_b32 v8, {L_CNT + 63*4}
            v_mov_b32 v9, 0x10000
            ds_add_u32 v8, v9
            M_nomark:
            """)
    A(f"""
    s_mov_b64 exec, -1
    s_mov_b32 s{s_alt}, 0
    s_mov_b32 s{s_sw}, 0
    v_lshlrev_b32 v9, 4, v{L}
    v_add_u32 v{vaAgg}, {L_AGG}, v9
    v_lshlrev_b32 v11, 2, v{L}
    v_add_u32 v11, 32, v11
    s_waitcnt lgkmcnt(0)
    s_barrier
    ds_read_b32 v8, v{vaCnt}
    """)
    for r in range(16):
        A(f"v_mov_b32 v{vACC+r}, 0")
    A(f"""
    s_waitcnt lgkmcnt(0)
    v_add_u32 v9, 1, v8
    v_and_b32 v9, -2, v9
    v_mov_b32 v10, v9
    v_mov_b32 v{vH}, 0
    v_mov_b32 v{vH+1}, 0
    v_add_u32_dpp v10, v10, v10 row_shr:1 row_mask:0xf bank_mask:0xf bound_ctrl:0
    v_mov_b32 v{vH+2}, 0
    v_mov_b32 v{vH+3}, 0
    v_add_u32_dpp v10, v10, v10 row_shr:2 row_mask:0xf bank_mask:0xf bound_ctrl:0
    v_mov_b32 v{vAgg}, 0
    v_mov_b32 v{vAgg+1}, 0
    v_add_u32_dpp v10, v10, v10 row_shr:4 row_mask:0xf bank_mask:0xf bound_ctrl:0
    s_nop 1
    v_add_u32_dpp v10, v10, v10 row_shr:8 row_mask:0xf bank_mask:0xf bound_ctrl:0
    s_nop 1
    v_add_u32_dpp v10, v10, v10 row_bcast:15 row_mask:0xa bank_mask:0xf
    s_nop 1
    v_add_u32_dpp v10, v10, v10 row_bcast:31 row_mask:0xc bank_mask:0xf
    s_nop 0
    v_sub_u32 v{vBase}, v10, v9
    v_readlane_b32 s{s_tot}, v10, 63
    M_derive:
    """)
    for j in range(4):
        A(f"ds_bpermute_b32 v{vBs+j}, v{vD4+j}, v{vBase}")
    A(f"""
    ds_bpermute_b32 v12, v11, v{vBase}
    s_cmp_gt_u32 s{s_tot}, {CAP_T*32}
    s_cbranch_scc1 M_goslow
    v_readlane_b32 s{s_T0p}, v{vBase}, 32
    s_add_u32 s{s_T}, s{s_tot}, 31
    s_lshr_b32 s{s_T}, s{s_T}, 5
    v_add3_u32 v13, v{vBase}, v9, 31
    v_and_b32 v13, -32, v13                ; end of the tile that holds node i's last slot
    s_waitcnt lgkmcnt(0)
    v_cmp_gt_u32 vcc, v13, v12
    v_cmp_ne_u32 s[{s_x}:{s_x+1}], s{s_tot}, v12
    s_andn2_b32 s{s_x+1}, vcc_lo, s{s_alt}
    s_and_b32 s{s_x}, s{s_x}, s{s_x+1}
    s_cbranch_scc1 M_align
    """)
    for j in range(4):
        A(f"""
        s_mov_b64 exec, s[{sM+2*j}:{sM+2*j+1}]
        s_cbranch_execz M_r2_{j}
        v_add_u32 v{vRk+j}, v{vRk+j}, v{vBs+j}
        v_lshlrev_b32 v9, 2, v{vRk+j}
        v_add_u32 v9, {L_LIST}, v9
        ds_write_b32 v9, v{4+j}
        v_lshrrev_b32 v9, 3, v{vRk+j}
        v_and_b32 v10, 31, v{vRk+j}
        v_and_b32 v9, -4, v9
        v_cmp_eq_u32 vcc, 0, v10
        v_add_u32 v{vTa+j}, {L_N0}, v9
        s_and_b64 exec, exec, vcc
        ds_write_b32 v{vTa+j}, v{vD4+j}
        M_r2_{j}:
        """)
    A(f"""
    s_mov_b64 exec, -1
    s_cmp_lt_u32 s{s_T0p}, s{s_tot}
    s_cselect_b32 s{s_x}, 5, 31
    s_cselect_b32 s{s_x+1}, 1, 0x7fffffff
    s_lshr_b32 s{s_T0p}, s{s_T0p}, s{s_x}
    s_add_u32 s{s_T0p}, s{s_T0p}, s{s_x+1}
    v_add_u32 v{vDeg}, v{vDeg}, v8
    s_mul_i32 s{s_pri}, s{s_T}, {PRIO_NUM}
    s_lshr_b32 s{s_pri}, s{s_pri}, 5
    s_cmp_lt_u32 s{s_w}, 4
    s_cselect_b32 s{s_pri}, 0x7fffffff, s{s_pri}
    s_sub_u32 s{s_next}, s{s_T}, 1
    s_min_i32 s{s_next}, s{s_next}, s{s_T0p}
    s_min_i32 s{s_next}, s{s_next}, s{s_pri}
    v_mov_b32 v1, 0x3f80
    v_mov_b32 v14, {L_N0}
    s_cmp_lg_u32 s{s_w}, 0
    s_cbranch_scc1 M_w2
    s_mov_b32 s{s_spin}, 0x400000
    s_waitcnt vmcnt(4)
    M_pollb:
    v_cmp_ne_u32 vcc, 16, v{vPc}
    s_cbranch_vccz M_w2
    s_sub_u32 s{s_spin}, s{s_spin}, 1
    s_cbranch_scc1 M_w2
    s_mov_b64 exec, 0xffff
    buffer_load_dword v{vPc}, v{vPca}, {S(sWS)}, 0 offen sc0 sc1
    s_mov_b64 exec, -1
    s_sleep 1
    s_waitcnt vmcnt(0)
    s_branch M_pollb
    M_w2:
    v_mov_b32 v{vAgg+2}, 0
    v_mov_b32 v{vAgg+3}, 0
    s_waitcnt lgkmcnt(0)
    s_barrier
    """)
    stamp(A, 9)
    PSC = "sc1" if "psc1" in OPT else ""

    def dma(t, jj):
        r = vOff + 2 * t + jj if t < CAP_T else vDum
        return f"buffer_load_dwordx4 v{r}, {S(sP)}, 0 offen offset:{(t & 1)*2048 + jj*1024} {PSC} lds"

    def m0set(t):
        return f"s_mov_b32 m0, s{s_ring if (t % 4) < 2 else s_ringh}"

    def offs(lo, hi, after=None):
        for t0 in range(lo, hi, 8):
            ts = range(t0, min(t0 + 8, hi))
            for t in ts:
                A(f"ds_read_b64 {vr(vOff+2*t,2)}, v{vaList} offset:{t*128}")
            for i, t in enumerate(ts):
                A(f"s_waitcnt lgkmcnt({len(ts)-1-i})")
                for jj in range(2):
                    A(f"v_lshl_add_u32 v{vOff+2*t+jj}, v{vOff+2*t+jj}, 9, v{vK0 + 2*(t & 1) + jj}")
                if after:
                    after(t)

    def first_dma(t):
        if t < 2:
            A(dma(t, 0) + "\n" + dma(t, 1))
    A(m0set(0))
    offs(0, 6, first_dma)
    for j in range(4):
        A(f"ds_read_b32 v{vBs+j}, v{vTa+j}")
    for g in range(7):
        A(f"ds_read_b128 {vr(vBa+4*g,4)}, v14 offset:{16*g}")
    A(f"{m0set(2)}\ns_waitcnt vmcnt(4) lgkmcnt(7)")
    for j in range(4):
        A(f"""
        s_mov_b64 exec, s[{sM+2*j}:{sM+2*j+1}]
        s_cbranch_execz M_r3_{j}
        v_lshlrev_b32 v8, 4, v{vRk+j}
        v_add_u32 v8, {L_AQE}, v8
        ds_write2_b64 v8, {vr(vEv+2*j,2)}, {vr(vEv+2*j,2)} offset0:0 offset1:1
        v_sub_u32 v9, v{vD4+j}, v{vBs+j}
        v_lshrrev_b32 v9, 1, v9
        v_add_u32 v9, v9, v8
        ds_write_b16 v9, v1 offset:{L_AQH - L_AQE}
        v_and_b32 v9, 0x80, v{vD4+j}
        v_add_u32 v9, v9, v{vD4+j}
        v_and_b32 v10, 14, v{vRk+j}
        v_lshl_add_u32 v9, v9, 2, v10
        v_lshrrev_b32 v10, 4, v{vRk+j}
        v_lshl_add_u32 v9, v10, 9, v9
        v_add_u32 v9, {L_AGG}, v9
        ds_write_b16 v9, v1
        M_r3_{j}:
        """)
    A("s_mov_b64 exec, -1")
    A(dma(2, 0) + "\n" + dma(2, 1) + "\n" + dma(3, 0) + "\n" + dma(3, 1))
    A("s_waitcnt lgkmcnt(0)\ns_barrier")
    stamp(A, 10)
    for t in range(CAP_T):
        A(f"v_mad_u32_u24 v{vBa+t}, v{vBa+t}, v{vBmul}, v{vaB}")
    A(f"""
    s_cmp_eq_u32 s{s_T}, 0
    s_cbranch_scc1 M_bend
    """)
    offs(6, CAP_T)
    stamp(A, 11)

    def bread(t):
        r = vBa + min(t, CAP_T - 1)
        return [f"ds_read_b64_tr_b16 {vr(vBq,2)}, v{r}", f"ds_read_b64_tr_b16 {vr(vBq+2,2)}, v{r} offset:{4*QS}"]

    def w2load(s):
        return f"buffer_load_dwordx4 {vr(vW2+4*s,4)}, v{vW2a}, {S(sWS)}, s{s_w2 + (s >> 2)} offen offset:{(s & 3)*1024} sc1"

    A("\n".join(bread(0)))
    A(f"""
    ds_read_b128 {vr(vAqe,4)}, v{vaAqe}
    s_cmp_lt_u32 s{s_w}, 4
    s_cbranch_scc1 M_nopri
    s_setprio 1
    M_nopri:
    s_waitcnt vmcnt({2*(D-1)})
    ds_read_b128 {vr(vPf0,4)}, v{vaP0}
    ds_read_b128 {vr(vPf1,4)}, v{vaP1}
    {m0set(D)}
    s_waitcnt lgkmcnt(0)
    """)
    mfma32(A, vU[0], vAqe, vBq, None)
    A(dma(D, 0))
    mfma32(A, vU[0], vPf0, vSel0, vU[0])
    A(dma(D, 1))
    mfma32(A, vU[0], vPf1, vSel1, vU[0])
    A("\n".join(bread(1)))
    A(f"""
    ds_read_b128 {vr(vAqe,4)}, v{vaAqe} offset:512
    s_waitcnt vmcnt({2*(D-1)})
    ds_read_b128 {vr(vPf0,4)}, v{vaP0} offset:2048
    ds_read_b128 {vr(vPf1,4)}, v{vaP1} offset:2048
    s_nop 7
    """)
    stamp(A, 12)

    def second_half(B, U, aggread):
        mfma32(B, vACC, vH, vAgg, vACC)
        for i in range(8):
            B(f"v_rcp_f32 v{vT+i}, v{vT+i}")
        for i in range(0, 8, 2):
            B(f"v_pk_mul_f32 {vr(U+i,2)}, {vr(U+i,2)}, {vr(vT+i,2)}")
            if i == 0:
                B(aggread)
        for i in range(0, 8, 2):
            B(f"v_cvt_pk_bf16_f32 v{vH+i//2}, v{U+i}, v{U+i+1}")

    vmq = ["d"] * (2 * (D + 1))

    def vm_need(t):
        seen = 0
        for i, k in enumerate(vmq):
            if k == "d":
                seen += 1
                if seen == 2 * (t + 1):
                    return len(vmq) - 1 - i

    ool = Asm()
    A(".p2align 3")
    for t in range(CAP_T):
        U, Un = vU[t & 1], vU[(t + 1) & 1]
        tn = t + 1 + D
        s2 = ((t + 2) % D) * 2048
        ex = [f"v_exp_f32 v{vT+i}, v{U+i}" for i in range(16)]
        if "itst" in OPT:
            A(f"s_memtime s[100:101]")
        A(f"s_waitcnt vmcnt({vm_need(t+2)}) lgkmcnt(0)")
        if "itst" in OPT:
            A(f"v_writelane_b32 v{vSt}, s100, {16+t}")
        mfma32(A, Un, vAqe, vBq, None)
        A("\n".join(ex[0:4]))
        mfma32(A, Un, vPf0, vSel0, Un)
        A("\n".join(ex[4:8]))
        mfma32(A, Un, vPf1, vSel1, Un)
        A("\n".join(ex[8:16]))
        pk = [f"v_pk_fma_f32 {vr(vT+i,2)}, {vr(vT+i,2)}, {vr(vC,2)}, {vr(vC,2)} clamp" for i in (0, 8, 2, 10, 4, 12, 6, 14)]
        pk += [f"v_pk_mul_f32 {vr(U+i,2)}, {vr(U+i,2)}, {vr(vT+8+i,2)}" for i in range(0, 8, 2)]
        pk += [f"v_pk_fma_f32 {vr(U+i,2)}, {vr(U+8+i,2)}, {vr(vT+i,2)}, {vr(U+i,2)}" for i in range(0, 8, 2)]
        pk += [f"v_pk_mul_f32 {vr(vT+i,2)}, {vr(vT+i,2)}, {vr(vT+8+i,2)}" for i in range(0, 8, 2)]
        oth = []
        if tn % 2 == 0:
            oth.append(m0set(tn))
        b0, b1 = bread(t + 2)
        oth += [f"ds_read_b128 {vr(vAqe,4)}, v{vaAqe} offset:{(t+2)*512}", dma(tn, 0),
                f"ds_read_b128 {vr(vPf0,4)}, v{vaP0} offset:{s2}", dma(tn, 1),
                f"ds_read_b128 {vr(vPf1,4)}, v{vaP1} offset:{s2}", b0, b1]
        vmq += ["d", "d"]
        if W2T0 <= t < W2T0 + 8:
            oth.append(w2load(t - W2T0))
            vmq.append("w")
        oth.append(f"s_cmp_le_i32 s{s_next}, {t}")
        if "nodma" in OPT:
            oth = [x for x in oth if " lds" not in x]
        for i, x in enumerate(pk):
            A(x)
            if i % 2 == 0 and oth:
                A(oth.pop(0))
        assert not oth
        A(f"s_cbranch_scc1 M_ev{t}\nM_evr{t}:")
        second_half(A, U, f"ds_read_b128 {vr(vAgg,4)}, v{vaAgg} offset:{t*1024}")
        ool(f"""
        M_ev{t}:
        s_movk_i32 s{s_t}, {t}
        s_call_b64 s[{s_ret}:{s_ret+1}], M_rare
        s_cbranch_scc1 M_tail{t & 1}
        s_branch M_evr{t}
        """)
    A("s_branch M_fin")
    for p in range(2):
        A(f"""
        M_tail{p}:
        s_lshl_b32 s3, s{s_t}, 10
        v_add_u32 v8, s3, v{vaAgg}
        """)
        second_half(A, vU[p], f"ds_read_b128 {vr(vAgg,4)}, v8")
        if p == 0:
            A("s_branch M_fin")
    A(f"""
    M_fin:
    s_mov_b32 s{s_t}, s{s_T}
    s_cmp_eq_u32 s{s_T0p}, s{s_T}
    s_cbranch_scc0 M_fin2
    s_call_b64 s[{s_ret}:{s_ret+1}], M_rare
    M_fin2:
    s_waitcnt lgkmcnt(0)
    """)
    mfma32(A, vACC, vH, vAgg, vACC)
    stamp(A, 13)
    A(f"""
    s_cmp_lg_u32 s{s_sw}, 0
    s_nop 11
    s_cbranch_scc1 M_fin_hi
    """)
    for r in range(16):
        A(f"v_add_f32 v{vS0+r}, v{vS0+r}, v{vACC+r}")
    A("s_branch M_bend\nM_fin_hi:")
    for r in range(16):
        A(f"v_add_f32 v{vS1+r}, v{vS1+r}, v{vACC+r}")
    K = -math.log(2.0) * 2.0 ** -CEXP
    A(f"""
    M_bend:
    s_setprio 0
    s_cmp_lg_u32 s{s_slow}, 0
    s_cbranch_scc1 M_next
    M_epi:
    s_cmp_gt_u32 s{s_T}, {W2T0 + 8}
    s_cbranch_scc1 M_epi2
    """)
    for s_ in range(8):
        A(w2load(s_))
    A(f"""
    M_epi2:
    s_lshl_b32 s3, s{s_nb1}, 8
    """)
    srd(A, sA, pOUT, "s3")
    A(f"""
    v_mov_b32 v{vC}, {f32(K):#x}
    v_mov_b32 v{vC+1}, {f32(K):#x}
    v_and_b32 v3, 31, v{L}
    v_lshrrev_b32 v2, 5, v{L}
    v_bfe_u32 v8, v3, 1, 2
    v_lshlrev_b32 v9, 1, v2
    v_xor_b32 v8, v8, v9
    v_lshlrev_b32 v8, 4, v8
    v_lshl_add_u32 v8, v3, 6, v8
    v_add_u32 v8, s{s_ring}, v8
    v_xor_b32 v9, 16, v8
    v_and_b32 v10, 15, v{L}              ; n
    v_lshrrev_b32 v11, 4, v{L}           ; q
    v_lshlrev_b32 v12, 2, v10
    v_add_u32 v13, 64, v12
    v_add_u32 v14, 128, v12
    ds_bpermute_b32 v4, v12, v{vDeg}
    ds_bpermute_b32 v5, v13, v{vDeg}
    ds_bpermute_b32 v6, v14, v{vDeg}
    """)
    for Sx, o in ((vS0, 16), (vS1, 24)):
        for r in range(0, 16, 2):
            A(f"v_pk_mul_f32 {vr(Sx+r,2)}, {vr(Sx+r,2)}, {vr(vC,2)}")
        for r in range(0, 16, 2):
            A(f"v_cvt_pk_bf16_f32 v{o+r//2}, v{Sx+r}, v{Sx+r+1}")
    A(f"""
    s_waitcnt vmcnt(0)
    ds_write_b128 v8, v[16:19]
    ds_write_b128 v9, v[20:23]
    ds_write_b128 v8, v[24:27] offset:2048
    ds_write_b128 v9, v[28:31] offset:2048
    v_bfe_u32 v12, v10, 1, 2
    v_xor_b32 v12, v12, v11
    v_lshlrev_b32 v12, 4, v12
    v_lshl_add_u32 v12, v10, 6, v12
    v_lshlrev_b32 v32, 16, v{vB2}
    v_and_b32 v33, 0xffff0000, v{vB2}
    v_lshlrev_b32 v34, 16, v{vB2+1}
    v_and_b32 v35, 0xffff0000, v{vB2+1}
    v_add_u32 v13, s{s_nb0}, v10
    v_lshlrev_b32 v13, 8, v13
    v_lshl_add_u32 v13, v11, 3, v13
    s_lshl_b32 s{s_x}, s{s_w}, 5
    v_add_u32 v13, s{s_x}, v13
    s_waitcnt lgkmcnt(4)
    v_cvt_f32_u32 v4, v4
    v_cvt_f32_u32 v5, v5
    v_cvt_f32_u32 v6, v6
    """)
    O = 36
    for mt in range(3):
        for i in range(4):
            A(f"v_mul_f32 v{O+4*mt+i}, v{4+mt}, v{32+i}")
    A("s_waitcnt lgkmcnt(0)\ns_barrier")
    stamp(A, 14)
    SFR = 48
    order = [(s, mt) for s in range(8) for mt in range(3)]
    RS = D * 2048
    AHEAD = 12
    for k in range(AHEAD):
        s, mt = order[k]
        A(f"ds_read_b128 {vr(SFR+4*k,4)}, v12 offset:{s*RS+mt*1024}")
    for k in range(24):
        s, mt = order[k]
        A(f"s_waitcnt lgkmcnt({min(AHEAD - 1, 23 - k)})")
        mfma16(A, O + 4 * mt, vW2 + 4 * s, SFR + 4 * k, O + 4 * mt)
        if k + AHEAD < 24:
            s2, mt2 = order[k + AHEAD]
            A(f"ds_read_b128 {vr(SFR+4*(k+AHEAD),4)}, v12 offset:{s2*RS+mt2*1024}")
    A(f"s_mov_b32 s{s_x}, 4096\ns_mov_b32 s{s_x+1}, 8192\ns_nop 5")
    for mt in range(3):
        A(f"""
        v_cvt_pk_bf16_f32 v{16+2*mt}, v{O+4*mt}, v{O+4*mt+1}
        v_cvt_pk_bf16_f32 v{17+2*mt}, v{O+4*mt+2}, v{O+4*mt+3}
        buffer_store_dwordx2 {vr(16+2*mt,2)}, v13, {S(sA)}, {["0", f"s{s_x}", f"s{s_x+1}"][mt]} offen
        """)
    if SPIN is not None and SPIN[0] == 15:
        A("s_waitcnt vmcnt(0)")
        stamp(A, 15)
    if STAMPS:
        A("s_waitcnt vmcnt(0)")
        stamp(A, 15)
        srd(A, sA, pWS, 0x80000, off=WS_ST)
        A(f"""
        s_lshl_b32 s3, s2, 3
        s_add_u32 s3, s3, s{s_w}
        s_lshl_b32 s3, s3, 8
        v_lshl_add_u32 v1, v{L}, 2, s3
        buffer_store_dword v{vSt}, v1, {S(sA)}, 0 offen
        """)
    A("M_end:\ns_endpgm")

    A(f"""
    M_rare:
    s_cmp_eq_u32 s{s_T0p}, s{s_t}
    s_cbranch_scc0 M_rare2
    s_waitcnt lgkmcnt(0)
    """)
    mfma32(A, vACC, vH, vAgg, vACC)
    A(f"""
    s_lshl_b32 s3, s{s_t}, 10
    v_add_u32 v8, s3, v{vaAgg}
    v_add_u32 v{vaAgg}, 1024, v{vaAgg}
    s_mov_b32 s{s_sw}, 1
    s_mov_b32 s{s_T0p}, 0x7fffffff
    ds_read_b128 {vr(vAgg,4)}, v8
    s_nop 8
    """)
    for r in range(16):
        A(f"v_add_f32 v{vS0+r}, v{vS0+r}, v{vACC+r}")
    for r in range(16):
        A(f"v_mov_b32 v{vACC+r}, 0")
    A(f"""
    s_waitcnt lgkmcnt(0)
    M_rare2:
    s_cmp_le_i32 s{s_pri}, s{s_t}
    s_cbranch_scc0 M_rare3
    s_setprio 0
    s_mov_b32 s{s_pri}, 0x7fffffff
    M_rare3:
    s_sub_u32 s3, s{s_T}, 1
    s_min_i32 s{s_next}, s3, s{s_T0p}
    s_min_i32 s{s_next}, s{s_next}, s{s_pri}
    s_cmp_le_i32 s3, s{s_t}
    s_setpc_b64 s[{s_ret}:{s_ret+1}]
    """)

    A(f"""
    M_align:
    s_mov_b32 s{s_alt}, -1
    s_mov_b32 s{s_x+8}, 0
    v_mov_b32 v13, v{vBase}
    """)
    for G in range(5):
        A(f"""
        v_readlane_b32 s{s_x}, v{vBase}, {8*G}
        v_readlane_b32 s{s_x+1}, v{vBase}, {8*G+8}
        s_nop 1
        s_sub_u32 s{s_x+9}, s{s_x+8}, s{s_x}
        v_cmp_le_u32 vcc, {8*G}, v{L}
        v_add_u32 v10, s{s_x+9}, v{vBase}
        s_sub_u32 s{s_x+1}, s{s_x+1}, s{s_x}
        s_add_u32 s{s_x+8}, s{s_x+8}, s{s_x+1}
        v_cndmask_b32 v13, v13, v10, vcc
        """)
        if G < 4:
            A(f"s_add_u32 s{s_x+8}, s{s_x+8}, 31\ns_and_b32 s{s_x+8}, s{s_x+8}, -32")
    A(f"""
    s_mov_b32 s{s_tot}, s{s_x+8}
    v_mov_b32 v{vBase}, v13
    s_nop 1
    s_branch M_derive
    """)
    A(f"""
    M_goslow:
    s_mov_b32 s{s_slow}, 1
    s_mov_b32 s{s_batch}, 0
    s_branch M_load
    M_next:
    s_add_u32 s{s_batch}, s{s_batch}, 512
    s_cmp_ge_u32 s{s_batch}, {E}
    s_cbranch_scc1 M_epi
    M_load:
    """)
    srd(A, sA, pDST, E * 4)
    srd(A, sB, pSRC, E * 4)
    A(f"""
    v_add_u32 v8, s{s_batch}, v0
    v_lshlrev_b32 v9, 2, v8
    s_waitcnt vmcnt(0) lgkmcnt(0)
    buffer_load_dword v10, v9, {S(sA)}, 0 offen
    buffer_load_dword v11, v9, {S(sB)}, 0 offen
    v_lshlrev_b32 v{vChunk8}, 3, v8
    v_mov_b32 v5, -1
    v_mov_b32 v6, -1
    v_mov_b32 v7, -1
    v_lshlrev_b32 v{vPca}, 8, v{L}
    v_mov_b32 v{vPc}, 16
    s_mov_b64 exec, 0xffff
    v_mov_b32 v{vPc}, 0
    s_mov_b64 exec, -1
    s_mov_b32 s{s_x+2}, {E}
    s_waitcnt vmcnt(0)
    v_subrev_u32 v12, s{s_nb0}, v10
    v_cmp_gt_u32 vcc, s{s_nn}, v12
    v_cmp_gt_u32 s[{s_x}:{s_x+1}], s{s_x+2}, v8
    v_and_b32 v10, 63, v10
    v_lshl_or_b32 v11, v10, 14, v11
    s_and_b64 vcc, vcc, s[{s_x}:{s_x+1}]
    s_nop 1
    v_cndmask_b32 v4, v5, v11, vcc
    s_barrier
    """)
    zerofill()
    A("s_waitcnt lgkmcnt(0)\ns_barrier\ns_branch M_recs")
    A.l += ool.l


def build():
    out = f"""; Fused edge-featured MPNN layer, one workgroup per bucket of 39/40 destination nodes.
; @launch grid=(256,1,1) block=(512,1,1) lds={LDS_BYTES}
.amdgcn_target "amdgcn-amd-amdhsa--gfx950"
.text
.globl {KN}
.p2align 8
.type {KN},@function
"""
    A = Asm()
    kernel(A)
    out += A.text()
    out += f""".section .rodata,"a"
.p2align 6
.amdhsa_kernel {KN}
  .amdhsa_next_free_vgpr {NV}
  .amdhsa_next_free_sgpr 102
  .amdhsa_accum_offset {(NV + 3) // 4 * 4}
  .amdhsa_group_segment_fixed_size 0
  .amdhsa_kernarg_size 88
  .amdhsa_user_sgpr_count 2
  .amdhsa_user_sgpr_kernarg_segment_ptr 1
  .amdhsa_system_sgpr_workgroup_id_x 1
.end_amdhsa_kernel
"""
    return out


if __name__ == "__main__":
    for a in list(sys.argv):
        if a.startswith("-o"):
            OPT.update(a[2:].split(","))
            sys.argv.remove(a)
    for a in list(sys.argv):
        if a.startswith("-spin"):
            i, us = a[5:].split(":")
            SPIN = (int(i), float(us))
            sys.argv.remove(a)
    if "--stamps" in sys.argv:
        STAMPS = True
        sys.argv.remove("--stamps")
    path = sys.argv[1] if len(sys.argv) > 1 else f"cdna_kernels/{NAME}.s"
    open(path, "w").write(build())
    print("wrote", path, "lds", LDS_BYTES)
```

```python
import sys, struct, math

NAME = "gather_scatter__edge_featured_mpnn_mpnn__graph"
KN = NAME + "_kernel"
N, E = 10000, 160000

WS_CNT = 0
WS_W2F = 0x1000
WS_SLOT = 0x11000
WS_P = 0x212000
TABB = N * 512
WS_END = WS_P + TABB
WS_ST = 0x1000000

NCH = 64
CHE = E // NCH
PROWS = 53
LOG2E = 1.4426950408889634
CEXP = 48
STAMPS = False
OPT = set()
PRIO_NUM = 22
W2T0 = 8


def f32(x):
    return struct.unpack("<I", struct.pack("<f", x))[0]


class Asm:
    def __init__(self):
        self.l = []

    def __call__(self, s):
        for x in s.split("\n"):
            x = x.strip()
            if x:
                self.l.append(("" if x.endswith(":") else "    ") + x)

    def text(self):
        return "\n".join(self.l) + "\n"


def vr(a, n=1):
    return f"v{a}" if n == 1 else f"v[{a}:{a+n-1}]"


def srd(A, d, base, size, off=None):
    if off is None:
        A(f"s_mov_b32 s{d}, s{base}\ns_mov_b32 s{d+1}, s{base+1}")
    else:
        A(f"s_add_u32 s{d}, s{base}, {off}\ns_addc_u32 s{d+1}, s{base+1}, 0")
    A(f"s_mov_b32 s{d+2}, {size}\ns_mov_b32 s{d+3}, 0x00020000")


def S(d):
    return f"s[{d}:{d+3}]"


D = 4
CAP_T = 26
QS = 576
L_RING = 0
L_AQE = 8 * D * 2048
L_AQH = L_AQE + CAP_T * 512
L_AGG = L_AQH + CAP_T * 512
L_LIST = L_AGG + (CAP_T + 1) * 1024
L_CNT = L_LIST + 4096
L_N0 = L_CNT + 256
L_WE = L_N0 + 256
L_Q = L_WE + 8 * QS
LDS_BYTES = L_Q + 32768
ZERO_BYTES = L_LIST - L_AQE
L_XP = L_Q
L_XQ = L_Q + 16384
L_BT = L_AQE
L_BC = L_BT + 32768
assert L_BC + 2048 <= L_LIST and LDS_BYTES <= 163840 and 48 * QS <= 32768
DUMMY = 0x400000

pX, pE, pSRC, pDST, pW1, pB1, pW2, pB2, pOUT, pDBG, pWS = 4, 6, 8, 10, 12, 14, 16, 18, 20, 22, 24
s_w2 = 26
sA, sB, sC, sD, sWS, sP, sE = 28, 32, 36, 40, 44, 48, 52
(s_w, s_nb0, s_nb1, s_nn, s_T, s_T0p, s_t, s_next, s_slow, s_batch, s_ring, s_sw, s_tot,
 s_nb4, s_ringh, s_spin, s_pri, s_alt, s_xw) = range(56, 75)
s_x = 76
sM = 86
s_ret = 94
sG = 96

vU = [16, 32]
vT = 48
vH = 64
vACC = 68
vS0 = 84
vS1 = 100
vPf0, vPf1, vAqe, vAgg, vBq, vSel0, vSel1 = 116, 120, 124, 128, 132, 136, 140
vBa = 144
vOff = 176
vW2 = 176
(vC, _c1, vB2, _b1, vK0, vK1, vK2, vK3, vaAqe, vaAgg, vaList, vaP0, vaP1, vaB, vBmul, vBase, vDeg,
 vChunk8, vLane, vDum, vSt, vW2a, vaCnt) = range(228, 251)
NV = 252
vXF = 176
vXP = 160
vWF = 16
vPA = 48
vPO = 148
vXa = 145
vXr = 147
vB1 = 116
vWEr = 128
vF0 = 129
vPc, vPca = 130, 131


def mfma32(A, d, a, b, c):
    cs = "0" if c is None else vr(c, 16)
    A(f"v_mfma_f32_32x32x16_bf16 {vr(d,16)}, {vr(a,4)}, {vr(b,4)}, {cs}")


def mfma16(A, d, a, b, c):
    cs = "0" if c is None else vr(c, 4)
    A(f"v_mfma_f32_16x16x32_bf16 {vr(d,4)}, {vr(a,4)}, {vr(b,4)}, {cs}")


SPIN = None


def stamp(A, i):
    if SPIN is not None:
        if i == 0:
            A("s_memrealtime s[100:101]\ns_waitcnt lgkmcnt(0)\ns_mov_b32 s75, s100")
        elif i == SPIN[0]:
            u = len(A.l)
            A(f"M_spin{u}:\ns_memrealtime s[100:101]\ns_waitcnt lgkmcnt(0)\ns_sub_u32 s100, s100, s75\ns_cmp_lt_u32 s100, {int(SPIN[1]*100)}\ns_cbranch_scc1 M_spin{u}")
    if STAMPS:
        ins = "s_memtime" if "cyc" in OPT else "s_memrealtime"
        A(f"s_waitcnt lgkmcnt(0)\n{ins} s[100:101]\ns_waitcnt lgkmcnt(0)\nv_writelane_b32 v{vSt}, s100, {i}")


def gemm_part(A, init, nmt, xf, vm=None):
    def rd(s):
        for ct in range(2):
            for x in range(2):
                A(f"ds_read_b64_tr_b16 {vr(vWF + 8*s + 4*ct + 2*x, 2)}, v14 offset:{s*2048 + x*256 + ct*8}")
    if vm is None:
        for s in range(4):
            rd(s)
    else:
        A(f"s_waitcnt vmcnt({vm[0]})")
        rd(0)
    for s in range(4):
        if vm is None:
            A(f"s_waitcnt lgkmcnt({12 - 4*s})")
        else:
            A("s_waitcnt lgkmcnt(0)")
        k = 0
        for mt in range(nmt):
            for ct in range(2):
                d = vPA + 8 * mt + 4 * ct
                c = d if s else (None if init is None else init + 4 * ct)
                mfma16(A, d, vWF + 8 * s + 4 * ct, xf + 16 * mt + 4 * s, c)
                k += 1
                if vm is not None and k == 2 and s < 3:
                    A(f"s_waitcnt vmcnt({vm[s+1]})")
                    rd(s + 1)


def gemm_pack(A, nmt, store):
    A("s_nop 4")
    for mt in range(nmt):
        for r in range(0, 8, 2):
            a = vPA + 8 * mt + r
            A(f"v_pk_mul_f32 {vr(a,2)}, {vr(a,2)}, v[12:13]")
        for r in range(0, 8, 2):
            a = vPA + 8 * mt + r
            A(f"v_cvt_pk_bf16_f32 v{vPO + 4*mt + r//2}, v{a}, v{a+1}")
        store(mt)


def kernel(A):
    L = vLane
    SC = "sc0 sc1"
    A(f"{KN}:")
    A(f"""
    s_cmp_ge_u32 s2, 256
    s_cbranch_scc1 M_end
    s_load_dwordx16 s[4:19], s[0:1], 0
    s_load_dwordx4 s[20:23], s[0:1], 64
    s_load_dwordx2 s[24:25], s[0:1], 80
    """)
    if STAMPS:
        A(f"v_mov_b32 v{vSt}, 0")
    stamp(A, 0)
    A(f"""
    v_lshrrev_b32 v2, 6, v0
    v_and_b32 v{L}, 63, v0
    v_readfirstlane_b32 s{s_w}, v2
    s_mul_i32 s{s_nb0}, s2, 160069
    s_add_u32 s{s_nb1}, s{s_nb0}, {160069 + 4049}
    s_add_u32 s{s_nb0}, s{s_nb0}, 4049
    s_lshr_b32 s{s_nb0}, s{s_nb0}, 12
    v_lshrrev_b32 v7, 4, v{L}
    v_and_b32 v8, 15, v{L}
    v_xor_b32 v8, v8, v7
    s_lshl_b32 s{s_ring}, s{s_w}, 13
    s_and_b32 s3, s{s_w}, 1
    s_lshl_b32 s3, s3, 3
    v_xor_b32 v8, s3, v8
    v_lshlrev_b32 v8, 4, v8
    v_lshl_add_u32 v8, v7, 8, v8
    s_lshl_b32 s{s_xw}, s{s_w}, 11
    v_add_u32 v{vXa}, s{s_xw}, v8
    v_xor_b32 v{vXa+1}, 64, v{vXa}
    v_lshrrev_b32 v10, 2, v{L}
    v_and_b32 v11, 3, v{L}
    v_lshlrev_b32 v11, 4, v11
    v_lshl_add_u32 v10, v10, 9, v11
    s_lshl_b32 s3, s{s_w}, 6
    v_add_u32 v10, s3, v10
    v_lshlrev_b32 v2, 2, v0
    s_cmp_ge_u32 s2, {NCH}
    s_waitcnt lgkmcnt(0)
    s_cbranch_scc1 M_pwg
    """)

    def wdma(base):
        for ii in range(8):
            A(f"""
            s_add_u32 m0, s{s_ring}, {ii*1024}
            s_mov_b32 s{s_x+1}, {base + ii*8192}
            buffer_load_dwordx4 v10, {S(sB)}, s{s_x+1} offen lds
            """)

    def xdma(ldsbase, rowreg):
        A(f"""
        s_add_u32 m0, s{s_xw}, {ldsbase}
        s_lshl_b32 s3, s{rowreg}, 8
        buffer_load_dwordx4 v{vXa}, {S(sD)}, s3 offen lds
        buffer_load_dwordx4 v{vXa+1}, {S(sD)}, s3 offen offset:1024 lds
        """)

    def gaddr():
        A(f"""
        v_lshrrev_b32 v3, 4, v{L}        ; q
        v_and_b32 v4, 15, v{L}           ; n
        v_xor_b32 v5, v3, v4
        v_lshlrev_b32 v5, 4, v5
        v_lshl_add_u32 v{vXr}, v4, 8, v5
        v_bfe_u32 v5, v{L}, 2, 2         ; r
        v_lshl_add_u32 v6, v3, 3, v5     ; 8q + r
        v_lshlrev_b32 v6, 6, v6
        v_and_b32 v7, 3, v{L}            ; c
        v_lshl_add_u32 v6, v7, 4, v6
        v_add_u32 v14, s{s_ring}, v6
        v_mov_b32 v12, {f32(-LOG2E):#x}
        v_mov_b32 v13, v12
        """)

    def consts():
        srd(A, sP, pWS, TABB + 4096, off=WS_P - 4096)
        srd(A, sE, pE, E * 8)
        A(f"""
        s_lshr_b32 s{s_nb1}, s{s_nb1}, 12
        s_min_u32 s{s_nb1}, s{s_nb1}, {N}
        s_sub_u32 s{s_nn}, s{s_nb1}, s{s_nb0}
        s_lshl_b32 s{s_nb4}, s{s_nb0}, 2
        s_add_u32 s{s_ringh}, s{s_ring}, 4096
        s_mov_b32 s{s_slow}, 0
        s_lshl_b32 s{s_w2}, s{s_w}, 13
        s_add_u32 s{s_w2}, s{s_w2}, {WS_W2F}
        s_add_u32 s{s_w2+1}, s{s_w2}, 4096
        v_lshrrev_b32 v3, 4, v{L}        ; q
        v_bfe_u32 v5, v{L}, 2, 2         ; r
        v_and_b32 v7, 3, v{L}            ; c
        v_xor_b32 v9, v7, v3
        v_lshlrev_b32 v9, 4, v9
        s_lshl_b32 s3, s{s_w}, 6
        s_add_u32 s{s_x}, s3, 1024
        v_add_u32 v{vK3}, s{s_x}, v9
        v_add_u32 v{vK2}, 1024, v{vK3}
        v_add_u32 v{vK1}, 2048, v{vK3}
        v_add_u32 v{vK0}, 3072, v{vK3}
        v_lshrrev_b32 v1, 5, v{L}        ; h
        v_mul_u32_u24 v5, {QS}, v5
        v_and_b32 v3, 1, v3
        v_lshl_add_u32 v5, v3, 5, v5
        v_lshl_add_u32 v5, v7, 3, v5
        s_add_u32 s3, s3, {L_WE}
        v_add_u32 v5, s3, v5
        v_mul_u32_u24 v6, {8*QS}, v1
        v_add_u32 v{vaB}, v5, v6
        v_mul_u32_u24 v{vBmul}, {QS//4}, v1
        v_and_b32 v3, 31, v{L}           ; m
        v_lshrrev_b32 v9, 4, v3
        v_and_b32 v8, 3, v3
        v_lshl_add_u32 v9, v8, 1, v9
        v_and_b32 v8, 8, v3
        v_add_u32 v9, v9, v8
        v_and_b32 v8, 4, v3
        v_lshl_add_u32 v9, v8, 2, v9
        v_lshlrev_b32 v9, 4, v9
        v_mul_u32_u24 v8, {L_AQH - L_AQE}, v1
        v_add_u32 v9, v9, v8
        v_add_u32 v{vaAqe}, {L_AQE}, v9
        v_lshrrev_b32 v9, 2, v{L}
        v_and_b32 v8, 3, v9
        v_lshlrev_b32 v8, 1, v8
        v_and_b32 v11, 8, v9
        v_add_u32 v8, v8, v11
        v_and_b32 v11, 4, v9
        v_lshl_add_u32 v8, v11, 2, v8
        v_lshlrev_b32 v8, 2, v8
        v_add_u32 v{vaList}, {L_LIST}, v8
        v_bfe_u32 v9, v3, 2, 2
        v_xor_b32 v9, v9, v1
        v_lshlrev_b32 v9, 4, v9
        v_lshl_add_u32 v9, v3, 6, v9
        v_add_u32 v{vaP0}, s{s_ring}, v9
        v_xor_b32 v{vaP1}, 32, v{vaP0}
        v_and_b32 v9, 1, v3
        v_lshlrev_b32 v9, 4, v9
        v_mov_b32 v8, 0x3f80
        v_lshlrev_b32 v9, v9, v8
        v_lshrrev_b32 v8, 1, v3
        v_lshlrev_b32 v11, 2, v1
        v_sub_u32 v8, v8, v11
        """)
        for x in range(4):
            A(f"v_cmp_eq_u32 s[{s_x}:{s_x+1}], {x}, v8\nv_cmp_eq_u32 vcc, {8+x}, v8\ns_nop 0")
            A(f"v_cndmask_b32 v{vSel0+x}, 0, v9, s[{s_x}:{s_x+1}]\nv_cndmask_b32 v{vSel1+x}, 0, v9, vcc")
        A(f"""
        v_mov_b32 v{vC}, {f32(2.0**-CEXP):#x}
        v_mov_b32 v{vC+1}, {f32(2.0**-CEXP):#x}
        v_mov_b32 v{vDeg}, 0
        v_mov_b32 v{vDum}, 0x80000000
        v_lshrrev_b32 v9, 3, v0
        v_mul_u32_u24 v{vChunk8}, {CHE*8}, v9
        v_lshlrev_b32 v{vW2a}, 4, v{L}
        v_lshlrev_b32 v9, 2, v{L}
        v_add_u32 v{vaCnt}, {L_CNT}, v9
        v_lshlrev_b32 v{vPca}, 8, v{L}
        v_lshrrev_b32 v9, 4, v{L}
        v_min_u32 v9, 1, v9
        v_lshlrev_b32 v{vPc}, 4, v9
        """)
        for r in range(16):
            A(f"v_mov_b32 v{vS0+r}, 0\nv_mov_b32 v{vS1+r}, 0")

    def zerofill():
        A(f"""
        v_mov_b32 v40, 0
        v_mov_b32 v41, 0
        v_mov_b32 v42, 0
        v_mov_b32 v43, 0
        v_mov_b32 v44, {DUMMY}
        v_mov_b32 v45, {DUMMY}
        v_lshlrev_b32 v1, 3, v0
        v_add_u32 v1, {L_LIST}, v1
        ds_write_b64 v1, v[44:45]
        ds_write_b32 v{vaCnt}, v40
        ds_write_b32 v{vaCnt}, v40 offset:256
        v_lshlrev_b32 v1, 4, v0
        v_add_u32 v1, {L_AQE}, v1
        """)
        nz = ZERO_BYTES // 8192
        rem = ZERO_BYTES - nz * 8192
        for q in range(nz):
            A(f"ds_write_b128 v1, v[40:43] offset:{q*8192}")
        if rem:
            A(f"""
            v_cmp_gt_u32 vcc, {rem//16}, v0
            s_and_saveexec_b64 s[{s_x}:{s_x+1}], vcc
            ds_write_b128 v1, v[40:43] offset:{nz*8192}
            s_mov_b64 exec, s[{s_x}:{s_x+1}]
            """)

    def small():
        srd(A, sC, pB1, 512)
        srd(A, sA, pB2, 256)
        A(f"""
        v_lshrrev_b32 v3, 4, v{L}
        v_lshlrev_b32 v4, 4, v3
        s_lshl_b32 s3, s{s_w}, 6
        buffer_load_dwordx4 {vr(vB1,4)}, v4, {S(sC)}, s3 offen
        v_lshlrev_b32 v5, 2, v0
        s_mov_b32 s3, {256*512}
        buffer_load_dword v{vWEr}, v5, {S(sB)}, s3 offen
        v_lshlrev_b32 v4, 3, v3
        s_lshl_b32 s3, s{s_w}, 5
        buffer_load_dwordx2 {vr(vB2,2)}, v4, {S(sA)}, s3 offen
        """)

    def f0load():
        A(f"buffer_load_dword v{vF0}, off, {S(sG)}, 0 offset:196 sc1")

    srd(A, sWS, pWS, WS_END)
    A(f"""
    v_lshlrev_b32 v3, 8, v0
    s_cmp_eq_u32 s2, 0
    s_cselect_b32 s3, 16, 0
    v_cmp_gt_u32 vcc, s3, v0
    v_mov_b32 v4, 0x40000000
    v_mov_b32 v8, 0
    v_cndmask_b32 v3, v4, v3, vcc
    s_mul_i32 s3, s2, {CHE*4}
    buffer_store_dword v8, v3, {S(sWS)}, 0 offen {SC}
    """)
    srd(A, sC, pDST, CHE * 4, off="s3")
    srd(A, sD, pSRC, CHE * 4, off="s3")
    A(f"s_mov_b32 s{s_x+1}, 4096\ns_mov_b32 s{s_x+2}, 8192")
    vD, vS = 164, 169
    so = ["0", "0", f"s{s_x+1}", f"s{s_x+1}", f"s{s_x+2}"]
    for k in range(5):
        A(f"buffer_load_dword v{vD+k}, v2, {S(sC)}, {so[k]} offen offset:{(k & 1)*2048}")
    for k in range(5):
        A(f"buffer_load_dword v{vS+k}, v2, {S(sD)}, {so[k]} offen offset:{(k & 1)*2048}")
    srd(A, sC, pW2, 256 * 256)
    A(f"""
    v_lshlrev_b32 v3, 4, v0
    v_add_u32 v15, {L_BT}, v3
    v_add_u32 v2, {L_BC}, v2
    v_mov_b32 v4, -1
    v_mov_b32 v5, -1
    v_mov_b32 v6, -1
    v_mov_b32 v7, -1
    """)
    for q in range(4):
        A(f"ds_write_b128 v15, v[4:7] offset:{q*8192}")
    A(f"""
    ds_write_b32 v2, v8
    s_lshl_b32 s3, s2, 8
    v_add_u32 v3, s3, v0
    v_bfe_u32 v4, v3, 8, 3           ; s
    v_lshlrev_b32 v4, 5, v4
    v_bfe_u32 v5, v3, 6, 1           ; ab
    v_lshl_add_u32 v4, v5, 4, v4
    v_bfe_u32 v5, v3, 1, 1           ; e>>2
    v_lshl_add_u32 v4, v5, 3, v4
    v_bfe_u32 v5, v3, 7, 1           ; h
    v_lshl_add_u32 v4, v5, 2, v4
    v_and_b32 v5, 1, v3
    v_lshl_add_u32 v4, v5, 1, v4     ; hidden
    v_lshlrev_b32 v4, 8, v4
    v_lshrrev_b32 v5, 11, v3         ; wo
    v_lshl_add_u32 v4, v5, 5, v4
    v_bfe_u32 v5, v3, 2, 4           ; m
    v_lshl_add_u32 v4, v5, 1, v4
    v_lshrrev_b32 v5, 8, v0
    v_lshl_or_b32 v4, v5, 30, v4
    v_lshlrev_b32 v3, 2, v3
    v_lshl_or_b32 v176, v5, 30, v3
    buffer_load_ushort v174, v4, {S(sC)}, 0 offen
    buffer_load_ushort v175, v4, {S(sC)}, 0 offen offset:256
    """)
    srd(A, sB, pW1, 260 * 512)
    srd(A, sD, pX, N * 256)
    srd(A, sG, pDBG, 256)
    xdma(L_XQ, s_nb0)
    small()
    stamp(A, 1)
    A(f"""
    v_mov_b32 v9, 1
    s_waitcnt lgkmcnt(0)
    s_barrier
    s_waitcnt vmcnt(12)
    """)
    vb, va, vk = 16, 21, 26
    for k in range(5):
        A(f"v_mul_u32_u24 v{vb+k}, 1677, v{vD+k}")
        A(f"v_lshrrev_b32 v{vb+k}, 16, v{vb+k}")
        A(f"v_lshlrev_b32 v{va+k}, 2, v{vb+k}")
        A(f"v_add_u32 v{va+k}, {L_BC}, v{va+k}")
        if k == 4:
            A(f"v_cmp_gt_u32 vcc, {CHE - 2048}, v0\ns_and_saveexec_b64 s[{s_x+2}:{s_x+3}], vcc")
        A(f"ds_add_rtn_u32 v{vk+k}, v{va+k}, v9")
    A(f"""
    s_mov_b64 s[{s_x+4}:{s_x+5}], exec
    s_or_b32 s3, s2, s{s_w}
    s_cbranch_scc1 M_nf0
    s_mov_b64 exec, 1
    buffer_store_dword v9, off, {S(sG)}, 0 offset:196 {SC}
    M_nf0:
    s_mov_b64 exec, s[{s_x+2}:{s_x+3}]
    s_waitcnt vmcnt(7)
    """)
    for k in range(5):
        A(f"""
        v_and_b32 v{vD+k}, 63, v{vD+k}
        v_lshl_or_b32 v{vS+k}, v{vD+k}, 14, v{vS+k}
        v_add_u32 v{vD+k}, {512*k}, v0
        v_lshl_or_b32 v{vS+k}, v{vD+k}, 20, v{vS+k}
        v_lshlrev_b32 v{va+k}, 7, v{vb+k}
        v_add_u32 v{va+k}, {L_BT}, v{va+k}
        """)
    for k in range(5):
        if k == 4:
            A(f"s_mov_b64 exec, s[{s_x+4}:{s_x+5}]")
        A(f"""
        s_waitcnt lgkmcnt({4-k})
        v_add_u32 v4, v{vk+k}, v{vb+k}
        v_and_b32 v4, 7, v4
        v_lshrrev_b32 v5, 3, v{vk+k}
        v_lshl_add_u32 v4, v4, 2, v5
        v_lshl_add_u32 v{va+k}, v4, 2, v{va+k}
        v_cmp_gt_u32 vcc, 32, v{vk+k}
        s_and_saveexec_b64 s[{s_x+6}:{s_x+7}], vcc
        ds_write_b32 v{va+k}, v{vS+k}
        s_mov_b64 exec, s[{s_x+6}:{s_x+7}]
        """)
    A(f"""
    s_mov_b64 exec, -1
    v_lshrrev_b32 v4, 3, v0
    v_lshlrev_b32 v5, 2, v4
    v_add_u32 v5, {L_BC}, v5
    v_and_b32 v6, 7, v0
    v_lshlrev_b32 v7, 13, v4
    v_lshl_add_u32 v7, v6, 4, v7
    s_lshl_b32 s3, s2, 7
    s_add_u32 s3, s3, {WS_SLOT}
    v_add_u32 v7, s3, v7
    v_cmp_eq_u32 s[{s_x+2}:{s_x+3}], 7, v6
    v_mov_b32 v8, -2
    s_mov_b32 s{s_x+4}, 0
    s_mov_b32 s{s_x+5}, {64*8192}
    s_mov_b32 s{s_x+6}, {128*8192}
    s_mov_b32 s{s_x+7}, {192*8192}
    s_waitcnt lgkmcnt(0)
    s_barrier
    """)
    stamp(A, 2)
    for q in range(4):
        A(f"ds_read_b128 {vr(16+4*q,4)}, v15 offset:{q*8192}")
        A(f"ds_read_b32 v{32+q}, v5 offset:{q*256}")
    A(f"s_mov_b32 s3, {WS_W2F}\ns_waitcnt vmcnt(5)\nv_lshl_or_b32 v174, v175, 16, v174")
    for q in range(4):
        A(f"""
        s_waitcnt lgkmcnt({6-2*q})
        v_cmp_lt_u32 vcc, 32, v{32+q}
        s_and_b64 vcc, vcc, s[{s_x+2}:{s_x+3}]
        s_nop 1
        v_cndmask_b32 v{19+4*q}, v{19+4*q}, v8, vcc
        buffer_store_dwordx4 {vr(16+4*q,4)}, v7, {S(sWS)}, s{s_x+4+q} offen {SC}
        """)
    A(f"buffer_store_dword v174, v176, {S(sWS)}, s3 offen {SC}")
    stamp(A, 3)
    gaddr()
    consts()
    A(f"""
    s_waitcnt vmcnt(0)
    s_barrier
    s_cmp_lg_u32 s{s_w}, 0
    s_cbranch_scc1 M_nlast2
    """)
    stamp(A, 16)
    A(f"""
    s_and_b32 s3, s2, 1
    s_lshl_b32 s{s_x+1}, s3, 6
    s_lshl_b32 s3, s3, 2
    v_mov_b32 v9, 1
    s_mov_b64 exec, 1
    buffer_atomic_add v9, off, {S(sG)}, s{s_x+1} sc0 sc1
    s_waitcnt vmcnt(0)
    v_cmp_eq_u32 vcc, {NCH//2 - 1}, v9
    s_cbranch_vccz M_nlast
    buffer_store_dword v9, off, {S(sG)}, s3 offset:128 {SC}
    M_nlast:
    s_mov_b64 exec, -1
    """)
    stamp(A, 17)
    A(f"""
    M_nlast2:
    """)
    f0load()
    wdma(128 * 512)
    zerofill()
    A("s_branch M_join")
    A("M_pwg:")
    srd(A, sD, pX, N * 256)
    srd(A, sB, pW1, 260 * 512)
    A(f"s_sub_u32 s{s_t}, s2, {NCH}\ns_mul_i32 s{s_t}, s{s_t}, {PROWS}")
    xdma(L_XP, s_t)
    wdma(0)
    stamp(A, 1)
    srd(A, sWS, pWS, WS_END)
    srd(A, sG, pDBG, 256)
    gaddr()
    A(f"""
    v_add_u32 v15, {L_XP}, v{vXr}
    v_add_u32 v11, s{s_t}, v4
    v_lshlrev_b32 v11, 9, v11
    v_lshl_add_u32 v11, v3, 4, v11
    s_lshl_b32 s3, s{s_w}, 6
    v_add_u32 v11, s3, v11
    s_add_u32 s3, s{s_t}, {PROWS}
    s_min_u32 s3, s3, {N}
    s_lshl_b32 s3, s3, 9
    """)
    srd(A, sE, pWS, "s3", off=WS_P)
    A(f"""
    s_mov_b32 s{s_x+4}, 0
    s_mov_b32 s{s_x+5}, 8192
    s_mov_b32 s{s_x+6}, 16384
    s_mov_b32 s{s_x+7}, 24576
    s_waitcnt vmcnt(8)
    s_barrier
    """)
    stamp(A, 2)
    for s in range(4):
        if s:
            A(f"v_xor_b32 v4, {s << 6:#x}, v15")
        for mt in range(4):
            A(f"ds_read_b128 {vr(vXP + 16*mt + 4*s, 4)}, v{4 if s else 15} offset:{mt*4096}")
    gemm_part(A, None, 4, vXP, vm=[6, 4, 2, 0])
    xdma(L_XQ, s_nb0)
    small()
    gemm_pack(A, 4, lambda mt: A(f"buffer_store_dwordx4 {vr(vPO+4*mt,4)}, v11, {S(sE)}, s{s_x+4+mt} offen {SC}"))
    stamp(A, 3)
    consts()
    zerofill()
    f0load()
    wdma(128 * 512)
    A("s_waitcnt vmcnt(13)\ns_barrier")
    A("M_join:")
    stamp(A, 4)
    A(f"""
    v_lshlrev_b32 v8, 16, v{vWEr}
    v_and_b32 v9, 0xffff0000, v{vWEr}
    v_mul_f32 v8, v12, v8
    v_mul_f32 v9, v12, v9
    v_cvt_pk_bf16_f32 v10, v8, v9
    v_lshrrev_b32 v4, 7, v0          ; f
    v_lshlrev_b32 v5, 16, v10
    v_and_b32 v6, 0xffff0000, v10
    v_sub_f32 v8, v8, v5
    v_sub_f32 v9, v9, v6
    v_cvt_pk_bf16_f32 v11, v8, v9
    v_lshlrev_b32 v5, 2, v0
    v_lshl_add_u32 v5, v4, 6, v5
    v_add_u32 v5, {L_WE}, v5
    ds_write_b32 v5, v10
    ds_write_b32 v5, v11 offset:{4*QS}
    """)
    for x in range(4):
        A(f"v_lshlrev_b32 v{vB1+4+2*x}, 16, v{vB1+x}\nv_and_b32 v{vB1+5+2*x}, 0xffff0000, v{vB1+x}")
    A(f"v_add_u32 v15, {L_XQ}, v{vXr}")
    for s in range(4):
        if s:
            A(f"v_xor_b32 v4, {s << 6:#x}, v15")
        for mt in range(3):
            A(f"ds_read_b128 {vr(vXF + 16*mt + 4*s, 4)}, v{4 if s else 15} offset:{mt*4096}")
    stamp(A, 5)
    A(f"""
    s_mov_b32 s{s_spin}, 0x400000
    s_cmp_lg_u32 s{s_w}, 0
    s_cbranch_scc1 M_w1
    s_mov_b64 exec, 1
    M_polla:
    buffer_load_dwordx2 v[8:9], off, {S(sG)}, 0 offset:128 sc1
    s_sub_u32 s{s_spin}, s{s_spin}, 1
    s_cbranch_scc1 M_pollda
    s_waitcnt vmcnt(0)
    v_min_u32 v8, v8, v9
    v_cmp_eq_u32 vcc, 0, v8
    s_cbranch_vccz M_pollda
    s_sleep 1
    s_branch M_polla
    M_pollda:
    s_mov_b64 exec, -1
    M_w1:
    s_lshl_b32 s3, s2, 13
    s_add_u32 s3, s3, {WS_SLOT}
    v_lshlrev_b32 v1, 4, v0
    s_waitcnt vmcnt(8) lgkmcnt(0)
    s_barrier
    buffer_load_dwordx4 v[4:7], v1, {S(sWS)}, s3 offen {SC}
    s_cmp_lg_u32 s{s_w}, 1
    s_cbranch_scc1 M_w1b
    s_mov_b64 exec, 1
    M_pollf:
    v_cmp_eq_u32 vcc, 0, v{vF0}
    s_cbranch_vccz M_polldf
    s_sub_u32 s{s_spin}, s{s_spin}, 1
    s_cbranch_scc1 M_polldf
    buffer_load_dword v{vF0}, off, {S(sG)}, 0 offset:196 sc1
    s_waitcnt vmcnt(0)
    s_branch M_pollf
    M_polldf:
    s_and_b32 s3, s2, 15
    s_lshl_b32 s3, s3, 8
    v_mov_b32 v9, 1
    buffer_atomic_add v9, off, {S(sWS)}, s3 sc1
    s_mov_b64 exec, -1
    s_waitcnt vmcnt(2)
    s_branch M_w1c
    M_w1b:
    s_waitcnt vmcnt(1)
    M_w1c:
    """)
    stamp(A, 6)
    gemm_part(A, vB1 + 4, 3, vXF)
    A(f"""
    v_and_b32 v8, 15, v{L}           ; n
    v_lshrrev_b32 v9, 4, v{L}        ; q
    v_lshlrev_b32 v9, 4, v9
    v_mul_u32_u24 v8, {QS}, v8
    s_lshl_b32 s3, s{s_w}, 6
    s_add_u32 s3, s3, {L_Q}
    v_add3_u32 v9, v8, v9, s3
    """)
    gemm_pack(A, 3, lambda mt: A(f"ds_write_b128 v9, {vr(vPO+4*mt,4)} offset:{mt*16*QS}"))
    stamp(A, 7)
    A(f"""
    s_cmp_lg_u32 s{s_w}, 1
    s_cbranch_scc1 M_wv0
    s_waitcnt vmcnt(1)
    s_branch M_recs
    M_wv0:
    s_waitcnt vmcnt(0)
    M_recs:
    s_cmp_lg_u32 s{s_w}, 0
    s_cbranch_scc1 M_nop1
    s_mov_b64 exec, 0xffff
    buffer_load_dword v{vPc}, v{vPca}, {S(sWS)}, 0 offen sc0 sc1
    s_mov_b64 exec, -1
    M_nop1:
    """)
    stamp(A, 8)
    vD4, vRk, vEo, vEv, vBs, vTa = 16, 20, 24, 28, 36, 40
    A(f"s_mov_b32 s{s_x}, 0xfff00000\nv_mov_b32 v1, 1")
    for j in range(4):
        A(f"v_cmp_gt_u32 s[{sM+2*j}:{sM+2*j+1}], s{s_x}, v{4+j}")
    for j in range(4):
        A(f"""
        s_mov_b64 exec, s[{sM+2*j}:{sM+2*j+1}]
        s_cbranch_execz M_r1_{j}
        v_lshrrev_b32 v{vD4+j}, 12, v{4+j}
        v_subrev_u32 v{vD4+j}, s{s_nb4}, v{vD4+j}
        v_and_b32 v{vD4+j}, 0xfc, v{vD4+j}
        v_add_u32 v8, {L_CNT}, v{vD4+j}
        ds_add_rtn_u32 v{vRk+j}, v8, v1
        v_lshrrev_b32 v{vEo+j}, 20, v{4+j}
        v_lshl_add_u32 v{vEo+j}, v{vEo+j}, 3, v{vChunk8}
        buffer_load_dwordx2 {vr(vEv+2*j,2)}, v{vEo+j}, {S(sE)}, 0 offen
        v_and_b32 v{4+j}, 0x3fff, v{4+j}
        M_r1_{j}:
        """)
        if j == 2:
            A(f"""
            s_mov_b64 exec, -1
            v_cmp_eq_u32 vcc, -2, v7
            s_and_b64 exec, exec, vcc
            s_cbranch_execz M_nomark
            v_mov_b32 v8, {L_CNT + 63*4}
            v_mov_b32 v9, 0x10000
            ds_add_u32 v8, v9
            M_nomark:
            """)
    A(f"""
    s_mov_b64 exec, -1
    s_mov_b32 s{s_alt}, 0
    s_mov_b32 s{s_sw}, 0
    v_lshlrev_b32 v9, 4, v{L}
    v_add_u32 v{vaAgg}, {L_AGG}, v9
    v_lshlrev_b32 v11, 2, v{L}
    v_add_u32 v11, 32, v11
    s_waitcnt lgkmcnt(0)
    s_barrier
    ds_read_b32 v8, v{vaCnt}
    """)
    for r in range(16):
        A(f"v_mov_b32 v{vACC+r}, 0")
    A(f"""
    s_waitcnt lgkmcnt(0)
    v_add_u32 v9, 1, v8
    v_and_b32 v9, -2, v9
    v_mov_b32 v10, v9
    v_mov_b32 v{vH}, 0
    v_mov_b32 v{vH+1}, 0
    v_add_u32_dpp v10, v10, v10 row_shr:1 row_mask:0xf bank_mask:0xf bound_ctrl:0
    v_mov_b32 v{vH+2}, 0
    v_mov_b32 v{vH+3}, 0
    v_add_u32_dpp v10, v10, v10 row_shr:2 row_mask:0xf bank_mask:0xf bound_ctrl:0
    v_mov_b32 v{vAgg}, 0
    v_mov_b32 v{vAgg+1}, 0
    v_add_u32_dpp v10, v10, v10 row_shr:4 row_mask:0xf bank_mask:0xf bound_ctrl:0
    s_nop 1
    v_add_u32_dpp v10, v10, v10 row_shr:8 row_mask:0xf bank_mask:0xf bound_ctrl:0
    s_nop 1
    v_add_u32_dpp v10, v10, v10 row_bcast:15 row_mask:0xa bank_mask:0xf
    s_nop 1
    v_add_u32_dpp v10, v10, v10 row_bcast:31 row_mask:0xc bank_mask:0xf
    s_nop 0
    v_sub_u32 v{vBase}, v10, v9
    v_readlane_b32 s{s_tot}, v10, 63
    M_derive:
    """)
    for j in range(4):
        A(f"ds_bpermute_b32 v{vBs+j}, v{vD4+j}, v{vBase}")
    A(f"""
    ds_bpermute_b32 v12, v11, v{vBase}
    s_cmp_gt_u32 s{s_tot}, {CAP_T*32}
    s_cbranch_scc1 M_goslow
    v_readlane_b32 s{s_T0p}, v{vBase}, 32
    s_add_u32 s{s_T}, s{s_tot}, 31
    s_lshr_b32 s{s_T}, s{s_T}, 5
    v_add3_u32 v13, v{vBase}, v9, 31
    v_and_b32 v13, -32, v13                ; end of the tile that holds node i's last slot
    s_waitcnt lgkmcnt(0)
    v_cmp_gt_u32 vcc, v13, v12
    v_cmp_ne_u32 s[{s_x}:{s_x+1}], s{s_tot}, v12
    s_andn2_b32 s{s_x+1}, vcc_lo, s{s_alt}
    s_and_b32 s{s_x}, s{s_x}, s{s_x+1}
    s_cbranch_scc1 M_align
    """)
    for j in range(4):
        A(f"""
        s_mov_b64 exec, s[{sM+2*j}:{sM+2*j+1}]
        s_cbranch_execz M_r2_{j}
        v_add_u32 v{vRk+j}, v{vRk+j}, v{vBs+j}
        v_lshlrev_b32 v9, 2, v{vRk+j}
        v_add_u32 v9, {L_LIST}, v9
        ds_write_b32 v9, v{4+j}
        v_lshrrev_b32 v9, 3, v{vRk+j}
        v_and_b32 v10, 31, v{vRk+j}
        v_and_b32 v9, -4, v9
        v_cmp_eq_u32 vcc, 0, v10
        v_add_u32 v{vTa+j}, {L_N0}, v9
        s_and_b64 exec, exec, vcc
        ds_write_b32 v{vTa+j}, v{vD4+j}
        M_r2_{j}:
        """)
    A(f"""
    s_mov_b64 exec, -1
    s_cmp_lt_u32 s{s_T0p}, s{s_tot}
    s_cselect_b32 s{s_x}, 5, 31
    s_cselect_b32 s{s_x+1}, 1, 0x7fffffff
    s_lshr_b32 s{s_T0p}, s{s_T0p}, s{s_x}
    s_add_u32 s{s_T0p}, s{s_T0p}, s{s_x+1}
    v_add_u32 v{vDeg}, v{vDeg}, v8
    s_mul_i32 s{s_pri}, s{s_T}, {PRIO_NUM}
    s_lshr_b32 s{s_pri}, s{s_pri}, 5
    s_cmp_lt_u32 s{s_w}, 4
    s_cselect_b32 s{s_pri}, 0x7fffffff, s{s_pri}
    s_sub_u32 s{s_next}, s{s_T}, 1
    s_min_i32 s{s_next}, s{s_next}, s{s_T0p}
    s_min_i32 s{s_next}, s{s_next}, s{s_pri}
    v_mov_b32 v1, 0x3f80
    v_mov_b32 v14, {L_N0}
    s_cmp_lg_u32 s{s_w}, 0
    s_cbranch_scc1 M_w2
    s_mov_b32 s{s_spin}, 0x400000
    s_waitcnt vmcnt(4)
    M_pollb:
    v_cmp_ne_u32 vcc, 16, v{vPc}
    s_cbranch_vccz M_w2
    s_sub_u32 s{s_spin}, s{s_spin}, 1
    s_cbranch_scc1 M_w2
    s_mov_b64 exec, 0xffff
    buffer_load_dword v{vPc}, v{vPca}, {S(sWS)}, 0 offen sc0 sc1
    s_mov_b64 exec, -1
    s_sleep 1
    s_waitcnt vmcnt(0)
    s_branch M_pollb
    M_w2:
    v_mov_b32 v{vAgg+2}, 0
    v_mov_b32 v{vAgg+3}, 0
    s_waitcnt lgkmcnt(0)
    s_barrier
    """)
    stamp(A, 9)
    PSC = "sc1" if "psc1" in OPT else ""

    def dma(t, jj):
        r = vOff + 2 * t + jj if t < CAP_T else vDum
        return f"buffer_load_dwordx4 v{r}, {S(sP)}, 0 offen offset:{(t & 1)*2048 + jj*1024} {PSC} lds"

    def m0set(t):
        return f"s_mov_b32 m0, s{s_ring if (t % 4) < 2 else s_ringh}"

    def offs(lo, hi, after=None):
        for t0 in range(lo, hi, 8):
            ts = range(t0, min(t0 + 8, hi))
            for t in ts:
                A(f"ds_read_b64 {vr(vOff+2*t,2)}, v{vaList} offset:{t*128}")
            for i, t in enumerate(ts):
                A(f"s_waitcnt lgkmcnt({len(ts)-1-i})")
                for jj in range(2):
                    A(f"v_lshl_add_u32 v{vOff+2*t+jj}, v{vOff+2*t+jj}, 9, v{vK0 + 2*(t & 1) + jj}")
                if after:
                    after(t)

    def first_dma(t):
        if t < 2:
            A(dma(t, 0) + "\n" + dma(t, 1))
    A(m0set(0))
    offs(0, 6, first_dma)
    for j in range(4):
        A(f"ds_read_b32 v{vBs+j}, v{vTa+j}")
    for g in range(7):
        A(f"ds_read_b128 {vr(vBa+4*g,4)}, v14 offset:{16*g}")
    A(f"{m0set(2)}\ns_waitcnt vmcnt(4) lgkmcnt(7)")
    for j in range(4):
        A(f"""
        s_mov_b64 exec, s[{sM+2*j}:{sM+2*j+1}]
        s_cbranch_execz M_r3_{j}
        v_lshlrev_b32 v8, 4, v{vRk+j}
        v_add_u32 v8, {L_AQE}, v8
        ds_write2_b64 v8, {vr(vEv+2*j,2)}, {vr(vEv+2*j,2)} offset0:0 offset1:1
        v_sub_u32 v9, v{vD4+j}, v{vBs+j}
        v_lshrrev_b32 v9, 1, v9
        v_add_u32 v9, v9, v8
        ds_write_b16 v9, v1 offset:{L_AQH - L_AQE}
        v_and_b32 v9, 0x80, v{vD4+j}
        v_add_u32 v9, v9, v{vD4+j}
        v_and_b32 v10, 14, v{vRk+j}
        v_lshl_add_u32 v9, v9, 2, v10
        v_lshrrev_b32 v10, 4, v{vRk+j}
        v_lshl_add_u32 v9, v10, 9, v9
        v_add_u32 v9, {L_AGG}, v9
        ds_write_b16 v9, v1
        M_r3_{j}:
        """)
    A("s_mov_b64 exec, -1")
    A("s_waitcnt lgkmcnt(0)\ns_barrier")
    A(dma(2, 0) + "\n" + dma(2, 1) + "\n" + dma(3, 0) + "\n" + dma(3, 1))
    stamp(A, 10)
    for t in range(CAP_T):
        A(f"v_mad_u32_u24 v{vBa+t}, v{vBa+t}, v{vBmul}, v{vaB}")
    A(f"""
    s_cmp_eq_u32 s{s_T}, 0
    s_cbranch_scc1 M_bend
    """)
    offs(6, CAP_T)
    stamp(A, 11)

    def bread(t):
        r = vBa + min(t, CAP_T - 1)
        return [f"ds_read_b64_tr_b16 {vr(vBq,2)}, v{r}", f"ds_read_b64_tr_b16 {vr(vBq+2,2)}, v{r} offset:{4*QS}"]

    def w2load(s):
        return f"buffer_load_dwordx4 {vr(vW2+4*s,4)}, v{vW2a}, {S(sWS)}, s{s_w2 + (s >> 2)} offen offset:{(s & 3)*1024} sc1"

    A("\n".join(bread(0)))
    A(f"""
    ds_read_b128 {vr(vAqe,4)}, v{vaAqe}
    s_cmp_lt_u32 s{s_w}, 4
    s_cbranch_scc1 M_nopri
    s_setprio 1
    M_nopri:
    s_waitcnt vmcnt({2*(D-1)})
    ds_read_b128 {vr(vPf0,4)}, v{vaP0}
    ds_read_b128 {vr(vPf1,4)}, v{vaP1}
    {m0set(D)}
    s_waitcnt lgkmcnt(0)
    """)
    mfma32(A, vU[0], vAqe, vBq, None)
    A(dma(D, 0))
    mfma32(A, vU[0], vPf0, vSel0, vU[0])
    A(dma(D, 1))
    mfma32(A, vU[0], vPf1, vSel1, vU[0])
    A("\n".join(bread(1)))
    A(f"""
    ds_read_b128 {vr(vAqe,4)}, v{vaAqe} offset:512
    s_waitcnt vmcnt({2*(D-1)})
    ds_read_b128 {vr(vPf0,4)}, v{vaP0} offset:2048
    ds_read_b128 {vr(vPf1,4)}, v{vaP1} offset:2048
    s_nop 7
    """)
    stamp(A, 12)

    def second_half(B, U, aggread):
        mfma32(B, vACC, vH, vAgg, vACC)
        for i in range(8):
            B(f"v_rcp_f32 v{vT+i}, v{vT+i}")
        for i in range(0, 8, 2):
            B(f"v_pk_mul_f32 {vr(U+i,2)}, {vr(U+i,2)}, {vr(vT+i,2)}")
            if i == 0:
                B(aggread)
        for i in range(0, 8, 2):
            B(f"v_cvt_pk_bf16_f32 v{vH+i//2}, v{U+i}, v{U+i+1}")

    vmq = ["d"] * (2 * (D + 1))

    def vm_need(t):
        seen = 0
        for i, k in enumerate(vmq):
            if k == "d":
                seen += 1
                if seen == 2 * (t + 1):
                    return len(vmq) - 1 - i

    ool = Asm()
    A(".p2align 3")
    for t in range(CAP_T):
        U, Un = vU[t & 1], vU[(t + 1) & 1]
        tn = t + 1 + D
        s2 = ((t + 2) % D) * 2048
        ex = [f"v_exp_f32 v{vT+i}, v{U+i}" for i in range(16)]
        if "itst" in OPT:
            A(f"s_memtime s[100:101]")
        late_vm = t < 2
        A(f"s_waitcnt lgkmcnt(0)" if late_vm else f"s_waitcnt vmcnt({vm_need(t+2)}) lgkmcnt(0)")
        if "itst" in OPT:
            A(f"v_writelane_b32 v{vSt}, s100, {16+t}")
        mfma32(A, Un, vAqe, vBq, None)
        A("\n".join(ex[0:4]))
        mfma32(A, Un, vPf0, vSel0, Un)
        A("\n".join(ex[4:8]))
        mfma32(A, Un, vPf1, vSel1, Un)
        A("\n".join(ex[8:16]))
        pk = [f"v_pk_fma_f32 {vr(vT+i,2)}, {vr(vT+i,2)}, {vr(vC,2)}, {vr(vC,2)} clamp" for i in (0, 8, 2, 10, 4, 12, 6, 14)]
        pk += [f"v_pk_mul_f32 {vr(U+i,2)}, {vr(U+i,2)}, {vr(vT+8+i,2)}" for i in range(0, 8, 2)]
        pk += [f"v_pk_fma_f32 {vr(U+i,2)}, {vr(U+8+i,2)}, {vr(vT+i,2)}, {vr(U+i,2)}" for i in range(0, 8, 2)]
        pk += [f"v_pk_mul_f32 {vr(vT+i,2)}, {vr(vT+i,2)}, {vr(vT+8+i,2)}" for i in range(0, 8, 2)]
        oth = []
        if tn % 2 == 0:
            oth.append(m0set(tn))
        b0, b1 = bread(t + 2)
        oth += [f"ds_read_b128 {vr(vAqe,4)}, v{vaAqe} offset:{(t+2)*512}", dma(tn, 0),
                f"ds_read_b128 {vr(vPf0,4)}, v{vaP0} offset:{s2}", dma(tn, 1),
                f"ds_read_b128 {vr(vPf1,4)}, v{vaP1} offset:{s2}", b0, b1]
        if late_vm:
            d0, d1 = oth[-6], oth[-4]
            oth.remove(d0)
            oth.remove(d1)
            k = oth.index(b0)
            oth = oth[:k-2] + [b0, b1, f"s_waitcnt vmcnt({vm_need(t+2)})\n" + oth[k-2], oth[k-1], d0, d1]
        vmq += ["d", "d"]
        if W2T0 <= t < W2T0 + 8:
            oth.append(w2load(t - W2T0))
            vmq.append("w")
        oth.append(f"s_cmp_le_i32 s{s_next}, {t}")
        if "nodma" in OPT:
            oth = [x for x in oth if " lds" not in x]
        for i, x in enumerate(pk):
            A(x)
            if i % 2 == 0 and oth:
                A(oth.pop(0))
        assert not oth
        A(f"s_cbranch_scc1 M_ev{t}\nM_evr{t}:")
        second_half(A, U, f"ds_read_b128 {vr(vAgg,4)}, v{vaAgg} offset:{t*1024}")
        ool(f"""
        M_ev{t}:
        s_movk_i32 s{s_t}, {t}
        s_call_b64 s[{s_ret}:{s_ret+1}], M_rare
        s_cbranch_scc1 M_tail{t & 1}
        s_branch M_evr{t}
        """)
    A("s_branch M_fin")
    for p in range(2):
        A(f"""
        M_tail{p}:
        s_lshl_b32 s3, s{s_t}, 10
        v_add_u32 v8, s3, v{vaAgg}
        """)
        second_half(A, vU[p], f"ds_read_b128 {vr(vAgg,4)}, v8")
        if p == 0:
            A("s_branch M_fin")
    A(f"""
    M_fin:
    s_mov_b32 s{s_t}, s{s_T}
    s_cmp_eq_u32 s{s_T0p}, s{s_T}
    s_cbranch_scc0 M_fin2
    s_call_b64 s[{s_ret}:{s_ret+1}], M_rare
    M_fin2:
    s_waitcnt lgkmcnt(0)
    """)
    mfma32(A, vACC, vH, vAgg, vACC)
    stamp(A, 13)
    A(f"""
    s_cmp_lg_u32 s{s_sw}, 0
    s_nop 11
    s_cbranch_scc1 M_fin_hi
    """)
    for r in range(16):
        A(f"v_add_f32 v{vS0+r}, v{vS0+r}, v{vACC+r}")
    A("s_branch M_bend\nM_fin_hi:")
    for r in range(16):
        A(f"v_add_f32 v{vS1+r}, v{vS1+r}, v{vACC+r}")
    K = -math.log(2.0) * 2.0 ** -CEXP
    A(f"""
    M_bend:
    s_setprio 0
    s_cmp_lg_u32 s{s_slow}, 0
    s_cbranch_scc1 M_next
    M_epi:
    s_cmp_gt_u32 s{s_T}, {W2T0 + 8}
    s_cbranch_scc1 M_epi2
    """)
    for s_ in range(8):
        A(w2load(s_))
    A(f"""
    M_epi2:
    s_lshl_b32 s3, s{s_nb1}, 8
    """)
    srd(A, sA, pOUT, "s3")
    A(f"""
    v_mov_b32 v{vC}, {f32(K):#x}
    v_mov_b32 v{vC+1}, {f32(K):#x}
    v_and_b32 v3, 31, v{L}
    v_lshrrev_b32 v2, 5, v{L}
    v_bfe_u32 v8, v3, 1, 2
    v_lshlrev_b32 v9, 1, v2
    v_xor_b32 v8, v8, v9
    v_lshlrev_b32 v8, 4, v8
    v_lshl_add_u32 v8, v3, 6, v8
    v_add_u32 v8, s{s_ring}, v8
    v_xor_b32 v9, 16, v8
    v_and_b32 v10, 15, v{L}              ; n
    v_lshrrev_b32 v11, 4, v{L}           ; q
    v_lshlrev_b32 v12, 2, v10
    v_add_u32 v13, 64, v12
    v_add_u32 v14, 128, v12
    ds_bpermute_b32 v4, v12, v{vDeg}
    ds_bpermute_b32 v5, v13, v{vDeg}
    ds_bpermute_b32 v6, v14, v{vDeg}
    """)
    for Sx, o in ((vS0, 16), (vS1, 24)):
        for r in range(0, 16, 2):
            A(f"v_pk_mul_f32 {vr(Sx+r,2)}, {vr(Sx+r,2)}, {vr(vC,2)}")
        for r in range(0, 16, 2):
            A(f"v_cvt_pk_bf16_f32 v{o+r//2}, v{Sx+r}, v{Sx+r+1}")
    A(f"""
    s_waitcnt vmcnt(0)
    ds_write_b128 v8, v[16:19]
    ds_write_b128 v9, v[20:23]
    ds_write_b128 v8, v[24:27] offset:2048
    ds_write_b128 v9, v[28:31] offset:2048
    v_bfe_u32 v12, v10, 1, 2
    v_xor_b32 v12, v12, v11
    v_lshlrev_b32 v12, 4, v12
    v_lshl_add_u32 v12, v10, 6, v12
    v_lshlrev_b32 v32, 16, v{vB2}
    v_and_b32 v33, 0xffff0000, v{vB2}
    v_lshlrev_b32 v34, 16, v{vB2+1}
    v_and_b32 v35, 0xffff0000, v{vB2+1}
    v_add_u32 v13, s{s_nb0}, v10
    v_lshlrev_b32 v13, 8, v13
    v_lshl_add_u32 v13, v11, 3, v13
    s_lshl_b32 s{s_x}, s{s_w}, 5
    v_add_u32 v13, s{s_x}, v13
    s_waitcnt lgkmcnt(4)
    v_cvt_f32_u32 v4, v4
    v_cvt_f32_u32 v5, v5
    v_cvt_f32_u32 v6, v6
    """)
    O = 36
    for mt in range(3):
        for i in range(4):
            A(f"v_mul_f32 v{O+4*mt+i}, v{4+mt}, v{32+i}")
    A("s_waitcnt lgkmcnt(0)\ns_barrier")
    stamp(A, 14)
    SFR = 48
    order = [(s, mt) for s in range(8) for mt in range(3)]
    RS = D * 2048
    AHEAD = 12
    for k in range(AHEAD):
        s, mt = order[k]
        A(f"ds_read_b128 {vr(SFR+4*k,4)}, v12 offset:{s*RS+mt*1024}")
    for k in range(24):
        s, mt = order[k]
        A(f"s_waitcnt lgkmcnt({min(AHEAD - 1, 23 - k)})")
        mfma16(A, O + 4 * mt, vW2 + 4 * s, SFR + 4 * k, O + 4 * mt)
        if k + AHEAD < 24:
            s2, mt2 = order[k + AHEAD]
            A(f"ds_read_b128 {vr(SFR+4*(k+AHEAD),4)}, v12 offset:{s2*RS+mt2*1024}")
    A(f"s_mov_b32 s{s_x}, 4096\ns_mov_b32 s{s_x+1}, 8192\ns_nop 5")
    for mt in range(3):
        A(f"""
        v_cvt_pk_bf16_f32 v{16+2*mt}, v{O+4*mt}, v{O+4*mt+1}
        v_cvt_pk_bf16_f32 v{17+2*mt}, v{O+4*mt+2}, v{O+4*mt+3}
        buffer_store_dwordx2 {vr(16+2*mt,2)}, v13, {S(sA)}, {["0", f"s{s_x}", f"s{s_x+1}"][mt]} offen
        """)
    if SPIN is not None and SPIN[0] == 15:
        A("s_waitcnt vmcnt(0)")
        stamp(A, 15)
    if STAMPS:
        A("s_waitcnt vmcnt(0)")
        stamp(A, 15)
        srd(A, sA, pWS, 0x80000, off=WS_ST)
        A(f"""
        s_lshl_b32 s3, s2, 3
        s_add_u32 s3, s3, s{s_w}
        s_lshl_b32 s3, s3, 8
        v_lshl_add_u32 v1, v{L}, 2, s3
        buffer_store_dword v{vSt}, v1, {S(sA)}, 0 offen
        """)
    A("M_end:\ns_endpgm")

    A(f"""
    M_rare:
    s_cmp_eq_u32 s{s_T0p}, s{s_t}
    s_cbranch_scc0 M_rare2
    s_waitcnt lgkmcnt(0)
    """)
    mfma32(A, vACC, vH, vAgg, vACC)
    A(f"""
    s_lshl_b32 s3, s{s_t}, 10
    v_add_u32 v8, s3, v{vaAgg}
    v_add_u32 v{vaAgg}, 1024, v{vaAgg}
    s_mov_b32 s{s_sw}, 1
    s_mov_b32 s{s_T0p}, 0x7fffffff
    ds_read_b128 {vr(vAgg,4)}, v8
    s_nop 8
    """)
    for r in range(16):
        A(f"v_add_f32 v{vS0+r}, v{vS0+r}, v{vACC+r}")
    for r in range(16):
        A(f"v_mov_b32 v{vACC+r}, 0")
    A(f"""
    s_waitcnt lgkmcnt(0)
    M_rare2:
    s_cmp_le_i32 s{s_pri}, s{s_t}
    s_cbranch_scc0 M_rare3
    s_setprio 0
    s_mov_b32 s{s_pri}, 0x7fffffff
    M_rare3:
    s_sub_u32 s3, s{s_T}, 1
    s_min_i32 s{s_next}, s3, s{s_T0p}
    s_min_i32 s{s_next}, s{s_next}, s{s_pri}
    s_cmp_le_i32 s3, s{s_t}
    s_setpc_b64 s[{s_ret}:{s_ret+1}]
    """)

    A(f"""
    M_align:
    s_mov_b32 s{s_alt}, -1
    s_mov_b32 s{s_x+8}, 0
    v_mov_b32 v13, v{vBase}
    """)
    for G in range(5):
        A(f"""
        v_readlane_b32 s{s_x}, v{vBase}, {8*G}
        v_readlane_b32 s{s_x+1}, v{vBase}, {8*G+8}
        s_nop 1
        s_sub_u32 s{s_x+9}, s{s_x+8}, s{s_x}
        v_cmp_le_u32 vcc, {8*G}, v{L}
        v_add_u32 v10, s{s_x+9}, v{vBase}
        s_sub_u32 s{s_x+1}, s{s_x+1}, s{s_x}
        s_add_u32 s{s_x+8}, s{s_x+8}, s{s_x+1}
        v_cndmask_b32 v13, v13, v10, vcc
        """)
        if G < 4:
            A(f"s_add_u32 s{s_x+8}, s{s_x+8}, 31\ns_and_b32 s{s_x+8}, s{s_x+8}, -32")
    A(f"""
    s_mov_b32 s{s_tot}, s{s_x+8}
    v_mov_b32 v{vBase}, v13
    s_nop 1
    s_branch M_derive
    """)
    A(f"""
    M_goslow:
    s_mov_b32 s{s_slow}, 1
    s_mov_b32 s{s_batch}, 0
    s_branch M_load
    M_next:
    s_add_u32 s{s_batch}, s{s_batch}, 512
    s_cmp_ge_u32 s{s_batch}, {E}
    s_cbranch_scc1 M_epi
    M_load:
    """)
    srd(A, sA, pDST, E * 4)
    srd(A, sB, pSRC, E * 4)
    A(f"""
    v_add_u32 v8, s{s_batch}, v0
    v_lshlrev_b32 v9, 2, v8
    s_waitcnt vmcnt(0) lgkmcnt(0)
    buffer_load_dword v10, v9, {S(sA)}, 0 offen
    buffer_load_dword v11, v9, {S(sB)}, 0 offen
    v_lshlrev_b32 v{vChunk8}, 3, v8
    v_mov_b32 v5, -1
    v_mov_b32 v6, -1
    v_mov_b32 v7, -1
    v_lshlrev_b32 v{vPca}, 8, v{L}
    v_mov_b32 v{vPc}, 16
    s_mov_b64 exec, 0xffff
    v_mov_b32 v{vPc}, 0
    s_mov_b64 exec, -1
    s_mov_b32 s{s_x+2}, {E}
    s_waitcnt vmcnt(0)
    v_subrev_u32 v12, s{s_nb0}, v10
    v_cmp_gt_u32 vcc, s{s_nn}, v12
    v_cmp_gt_u32 s[{s_x}:{s_x+1}], s{s_x+2}, v8
    v_and_b32 v10, 63, v10
    v_lshl_or_b32 v11, v10, 14, v11
    s_and_b64 vcc, vcc, s[{s_x}:{s_x+1}]
    s_nop 1
    v_cndmask_b32 v4, v5, v11, vcc
    s_barrier
    """)
    zerofill()
    A("s_waitcnt lgkmcnt(0)\ns_barrier\ns_branch M_recs")
    A.l += ool.l


def build():
    out = f"""; Fused edge-featured MPNN layer, one workgroup per bucket of 39/40 destination nodes.
; @launch grid=(256,1,1) block=(512,1,1) lds={LDS_BYTES}
.amdgcn_target "amdgcn-amd-amdhsa--gfx950"
.text
.globl {KN}
.p2align 8
.type {KN},@function
"""
    A = Asm()
    kernel(A)
    out += A.text()
    out += f""".section .rodata,"a"
.p2align 6
.amdhsa_kernel {KN}
  .amdhsa_next_free_vgpr {NV}
  .amdhsa_next_free_sgpr 102
  .amdhsa_accum_offset {(NV + 3) // 4 * 4}
  .amdhsa_group_segment_fixed_size 0
  .amdhsa_kernarg_size 88
  .amdhsa_user_sgpr_count 2
  .amdhsa_user_sgpr_kernarg_segment_ptr 1
  .amdhsa_system_sgpr_workgroup_id_x 1
.end_amdhsa_kernel
"""
    return out


if __name__ == "__main__":
    for a in list(sys.argv):
        if a.startswith("-o"):
            OPT.update(a[2:].split(","))
            sys.argv.remove(a)
    for a in list(sys.argv):
        if a.startswith("-spin"):
            i, us = a[5:].split(":")
            SPIN = (int(i), float(us))
            sys.argv.remove(a)
    if "--stamps" in sys.argv:
        STAMPS = True
        sys.argv.remove("--stamps")
    path = sys.argv[1] if len(sys.argv) > 1 else f"cdna_kernels/{NAME}.s"
    open(path, "w").write(build())
    print("wrote", path, "lds", LDS_BYTES)
```

```python
import sys, struct, math

NAME = "gather_scatter__edge_featured_mpnn_mpnn__graph"
KN = NAME + "_kernel"
N, E = 10000, 160000

WS_CNT = 0
WS_W2F = 0x1000
WS_SLOT = 0x11000
WS_P = 0x212000
TABB = N * 512
WS_END = WS_P + TABB
WS_ST = 0x1000000

WS_BASE = 0
NCH = 64
CHE = E // NCH
PROWS = 53
LOG2E = 1.4426950408889634
CEXP = 48
STAMPS = False
OPT = set()
PRIO_NUM = 22
W2T0 = 8


def f32(x):
    return struct.unpack("<I", struct.pack("<f", x))[0]


class Asm:
    def __init__(self):
        self.l = []

    def __call__(self, s):
        for x in s.split("\n"):
            x = x.strip()
            if x:
                self.l.append(("" if x.endswith(":") else "    ") + x)

    def text(self):
        return "\n".join(self.l) + "\n"


def vr(a, n=1):
    return f"v{a}" if n == 1 else f"v[{a}:{a+n-1}]"


def srd(A, d, base, size, off=None):
    if off is None:
        A(f"s_mov_b32 s{d}, s{base}\ns_mov_b32 s{d+1}, s{base+1}")
    else:
        A(f"s_add_u32 s{d}, s{base}, {off}\ns_addc_u32 s{d+1}, s{base+1}, 0")
    A(f"s_mov_b32 s{d+2}, {size}\ns_mov_b32 s{d+3}, 0x00020000")


def S(d):
    return f"s[{d}:{d+3}]"


D = 4
CAP_T = 26
QS = 576
L_RING = 0
L_AQE = 8 * D * 2048
L_AQH = L_AQE + CAP_T * 512
L_AGG = L_AQH + CAP_T * 512
L_LIST = L_AGG + (CAP_T + 1) * 1024
L_CNT = L_LIST + 4096
L_N0 = L_CNT + 256
L_WE = L_N0 + 256
L_Q = L_WE + 8 * QS
LDS_BYTES = L_Q + 32768
ZERO_BYTES = L_LIST - L_AQE
L_XP = L_Q
L_XQ = L_Q + 16384
L_BT = L_AQE
L_BC = L_BT + 32768
assert L_BC + 2048 <= L_LIST and LDS_BYTES <= 163840 and 48 * QS <= 32768
DUMMY = 0x400000

pX, pE, pSRC, pDST, pW1, pB1, pW2, pB2, pOUT, pDBG, pWS = 4, 6, 8, 10, 12, 14, 16, 18, 20, 22, 24
s_w2 = 26
sA, sB, sC, sD, sWS, sP, sE = 28, 32, 36, 40, 44, 48, 52
(s_w, s_nb0, s_nb1, s_nn, s_T, s_T0p, s_t, s_next, s_slow, s_batch, s_ring, s_sw, s_tot,
 s_nb4, s_ringh, s_spin, s_pri, s_alt, s_xw) = range(56, 75)
s_x = 76
sM = 86
s_ret = 94
sG = 96

vU = [16, 32]
vT = 48
vH = 64
vACC = 68
vS0 = 84
vS1 = 100
vPf0, vPf1, vAqe, vAgg, vBq, vSel0, vSel1 = 116, 120, 124, 128, 132, 136, 140
vBa = 144
vOff = 176
vW2 = 176
(vC, _c1, vB2, _b1, vK0, vK1, vK2, vK3, vaAqe, vaAgg, vaList, vaP0, vaP1, vaB, vBmul, vBase, vDeg,
 vChunk8, vLane, vDum, vSt, vW2a, vaCnt) = range(228, 251)
NV = 252
vXF = 176
vXP = 160
vWF = 16
vPA = 48
vPO = 148
vXa = 145
vXr = 147
vB1 = 116
vWEr = 128
vF0 = 129
vPc, vPca = 130, 131


def mfma32(A, d, a, b, c):
    cs = "0" if c is None else vr(c, 16)
    A(f"v_mfma_f32_32x32x16_bf16 {vr(d,16)}, {vr(a,4)}, {vr(b,4)}, {cs}")


def mfma16(A, d, a, b, c):
    cs = "0" if c is None else vr(c, 4)
    A(f"v_mfma_f32_16x16x32_bf16 {vr(d,4)}, {vr(a,4)}, {vr(b,4)}, {cs}")


SPIN = None


def stamp(A, i):
    if SPIN is not None:
        if i == 0:
            A("s_memrealtime s[100:101]\ns_waitcnt lgkmcnt(0)\ns_mov_b32 s75, s100")
        elif i == SPIN[0]:
            u = len(A.l)
            A(f"M_spin{u}:\ns_memrealtime s[100:101]\ns_waitcnt lgkmcnt(0)\ns_sub_u32 s100, s100, s75\ns_cmp_lt_u32 s100, {int(SPIN[1]*100)}\ns_cbranch_scc1 M_spin{u}")
    if STAMPS:
        ins = "s_memtime" if "cyc" in OPT else "s_memrealtime"
        A(f"s_waitcnt lgkmcnt(0)\n{ins} s[100:101]\ns_waitcnt lgkmcnt(0)\nv_writelane_b32 v{vSt}, s100, {i}")


def gemm_part(A, init, nmt, xf, vm=None):
    def rd(s):
        for ct in range(2):
            for x in range(2):
                A(f"ds_read_b64_tr_b16 {vr(vWF + 8*s + 4*ct + 2*x, 2)}, v14 offset:{s*2048 + x*256 + ct*8}")
    if vm is None:
        for s in range(4):
            rd(s)
    else:
        A(f"s_waitcnt vmcnt({vm[0]})")
        rd(0)
    for s in range(4):
        if vm is None:
            A(f"s_waitcnt lgkmcnt({12 - 4*s})")
        else:
            A("s_waitcnt lgkmcnt(0)")
        k = 0
        for mt in range(nmt):
            for ct in range(2):
                d = vPA + 8 * mt + 4 * ct
                c = d if s else (None if init is None else init + 4 * ct)
                mfma16(A, d, vWF + 8 * s + 4 * ct, xf + 16 * mt + 4 * s, c)
                k += 1
                if vm is not None and k == 2 and s < 3:
                    A(f"s_waitcnt vmcnt({vm[s+1]})")
                    rd(s + 1)


def gemm_pack(A, nmt, store):
    A("s_nop 4")
    for mt in range(nmt):
        for r in range(0, 8, 2):
            a = vPA + 8 * mt + r
            A(f"v_pk_mul_f32 {vr(a,2)}, {vr(a,2)}, v[12:13]")
        for r in range(0, 8, 2):
            a = vPA + 8 * mt + r
            A(f"v_cvt_pk_bf16_f32 v{vPO + 4*mt + r//2}, v{a}, v{a+1}")
        store(mt)


def kernel(A):
    L = vLane
    SC = "sc0 sc1"
    A(f"{KN}:")
    A(f"""
    s_cmp_ge_u32 s2, 256
    s_cbranch_scc1 M_end
    s_load_dwordx16 s[4:19], s[0:1], 0
    s_load_dwordx4 s[20:23], s[0:1], 64
    s_load_dwordx2 s[24:25], s[0:1], 80
    """)
    if STAMPS:
        A(f"v_mov_b32 v{vSt}, 0")
    stamp(A, 0)
    A(f"""
    v_lshrrev_b32 v2, 6, v0
    v_and_b32 v{L}, 63, v0
    v_readfirstlane_b32 s{s_w}, v2
    s_mul_i32 s{s_nb0}, s2, 160069
    s_add_u32 s{s_nb1}, s{s_nb0}, {160069 + 4049}
    s_add_u32 s{s_nb0}, s{s_nb0}, 4049
    s_lshr_b32 s{s_nb0}, s{s_nb0}, 12
    v_lshrrev_b32 v7, 4, v{L}
    v_and_b32 v8, 15, v{L}
    v_xor_b32 v8, v8, v7
    s_lshl_b32 s{s_ring}, s{s_w}, 13
    s_and_b32 s3, s{s_w}, 1
    s_lshl_b32 s3, s3, 3
    v_xor_b32 v8, s3, v8
    v_lshlrev_b32 v8, 4, v8
    v_lshl_add_u32 v8, v7, 8, v8
    s_lshl_b32 s{s_xw}, s{s_w}, 11
    v_add_u32 v{vXa}, s{s_xw}, v8
    v_xor_b32 v{vXa+1}, 64, v{vXa}
    v_lshrrev_b32 v10, 2, v{L}
    v_and_b32 v11, 3, v{L}
    v_lshlrev_b32 v11, 4, v11
    v_lshl_add_u32 v10, v10, 9, v11
    s_lshl_b32 s3, s{s_w}, 6
    v_add_u32 v10, s3, v10
    v_lshlrev_b32 v2, 2, v0
    s_waitcnt lgkmcnt(0)
    s_add_u32 s{pWS}, s{pWS}, {WS_BASE}
    s_addc_u32 s{pWS+1}, s{pWS+1}, 0
    s_cmp_ge_u32 s2, {NCH}
    s_cbranch_scc1 M_pwg
    """)

    def wdma(base):
        for ii in range(8):
            A(f"""
            s_add_u32 m0, s{s_ring}, {ii*1024}
            s_mov_b32 s{s_x+1}, {base + ii*8192}
            buffer_load_dwordx4 v10, {S(sB)}, s{s_x+1} offen lds
            """)

    def xdma(ldsbase, rowreg):
        A(f"""
        s_add_u32 m0, s{s_xw}, {ldsbase}
        s_lshl_b32 s3, s{rowreg}, 8
        buffer_load_dwordx4 v{vXa}, {S(sD)}, s3 offen lds
        buffer_load_dwordx4 v{vXa+1}, {S(sD)}, s3 offen offset:1024 lds
        """)

    def gaddr():
        A(f"""
        v_lshrrev_b32 v3, 4, v{L}        ; q
        v_and_b32 v4, 15, v{L}           ; n
        v_xor_b32 v5, v3, v4
        v_lshlrev_b32 v5, 4, v5
        v_lshl_add_u32 v{vXr}, v4, 8, v5
        v_bfe_u32 v5, v{L}, 2, 2         ; r
        v_lshl_add_u32 v6, v3, 3, v5     ; 8q + r
        v_lshlrev_b32 v6, 6, v6
        v_and_b32 v7, 3, v{L}            ; c
        v_lshl_add_u32 v6, v7, 4, v6
        v_add_u32 v14, s{s_ring}, v6
        v_mov_b32 v12, {f32(-LOG2E):#x}
        v_mov_b32 v13, v12
        """)

    def consts():
        srd(A, sP, pWS, TABB + 4096, off=WS_P - 4096)
        srd(A, sE, pE, E * 8)
        A(f"""
        s_lshr_b32 s{s_nb1}, s{s_nb1}, 12
        s_min_u32 s{s_nb1}, s{s_nb1}, {N}
        s_sub_u32 s{s_nn}, s{s_nb1}, s{s_nb0}
        s_lshl_b32 s{s_nb4}, s{s_nb0}, 2
        s_add_u32 s{s_ringh}, s{s_ring}, 4096
        s_mov_b32 s{s_slow}, 0
        s_lshl_b32 s{s_w2}, s{s_w}, 13
        s_add_u32 s{s_w2}, s{s_w2}, {WS_W2F}
        s_add_u32 s{s_w2+1}, s{s_w2}, 4096
        v_lshrrev_b32 v3, 4, v{L}        ; q
        v_bfe_u32 v5, v{L}, 2, 2         ; r
        v_and_b32 v7, 3, v{L}            ; c
        v_xor_b32 v9, v7, v3
        v_lshlrev_b32 v9, 4, v9
        s_lshl_b32 s3, s{s_w}, 6
        s_add_u32 s{s_x}, s3, 1024
        v_add_u32 v{vK3}, s{s_x}, v9
        v_add_u32 v{vK2}, 1024, v{vK3}
        v_add_u32 v{vK1}, 2048, v{vK3}
        v_add_u32 v{vK0}, 3072, v{vK3}
        v_lshrrev_b32 v1, 5, v{L}        ; h
        v_mul_u32_u24 v5, {QS}, v5
        v_and_b32 v3, 1, v3
        v_lshl_add_u32 v5, v3, 5, v5
        v_lshl_add_u32 v5, v7, 3, v5
        s_add_u32 s3, s3, {L_WE}
        v_add_u32 v5, s3, v5
        v_mul_u32_u24 v6, {8*QS}, v1
        v_add_u32 v{vaB}, v5, v6
        v_mul_u32_u24 v{vBmul}, {QS//4}, v1
        v_and_b32 v3, 31, v{L}           ; m
        v_lshrrev_b32 v9, 4, v3
        v_and_b32 v8, 3, v3
        v_lshl_add_u32 v9, v8, 1, v9
        v_and_b32 v8, 8, v3
        v_add_u32 v9, v9, v8
        v_and_b32 v8, 4, v3
        v_lshl_add_u32 v9, v8, 2, v9
        v_lshlrev_b32 v9, 4, v9
        v_mul_u32_u24 v8, {L_AQH - L_AQE}, v1
        v_add_u32 v9, v9, v8
        v_add_u32 v{vaAqe}, {L_AQE}, v9
        v_lshrrev_b32 v9, 2, v{L}
        v_and_b32 v8, 3, v9
        v_lshlrev_b32 v8, 1, v8
        v_and_b32 v11, 8, v9
        v_add_u32 v8, v8, v11
        v_and_b32 v11, 4, v9
        v_lshl_add_u32 v8, v11, 2, v8
        v_lshlrev_b32 v8, 2, v8
        v_add_u32 v{vaList}, {L_LIST}, v8
        v_bfe_u32 v9, v3, 2, 2
        v_xor_b32 v9, v9, v1
        v_lshlrev_b32 v9, 4, v9
        v_lshl_add_u32 v9, v3, 6, v9
        v_add_u32 v{vaP0}, s{s_ring}, v9
        v_xor_b32 v{vaP1}, 32, v{vaP0}
        v_and_b32 v9, 1, v3
        v_lshlrev_b32 v9, 4, v9
        v_mov_b32 v8, 0x3f80
        v_lshlrev_b32 v9, v9, v8
        v_lshrrev_b32 v8, 1, v3
        v_lshlrev_b32 v11, 2, v1
        v_sub_u32 v8, v8, v11
        """)
        for x in range(4):
            A(f"v_cmp_eq_u32 s[{s_x}:{s_x+1}], {x}, v8\nv_cmp_eq_u32 vcc, {8+x}, v8\ns_nop 0")
            A(f"v_cndmask_b32 v{vSel0+x}, 0, v9, s[{s_x}:{s_x+1}]\nv_cndmask_b32 v{vSel1+x}, 0, v9, vcc")
        A(f"""
        v_mov_b32 v{vC}, {f32(2.0**-CEXP):#x}
        v_mov_b32 v{vC+1}, {f32(2.0**-CEXP):#x}
        v_mov_b32 v{vDeg}, 0
        v_mov_b32 v{vDum}, 0x80000000
        v_lshrrev_b32 v9, 3, v0
        v_mul_u32_u24 v{vChunk8}, {CHE*8}, v9
        v_lshlrev_b32 v{vW2a}, 4, v{L}
        v_lshlrev_b32 v9, 2, v{L}
        v_add_u32 v{vaCnt}, {L_CNT}, v9
        v_lshlrev_b32 v{vPca}, 8, v{L}
        v_lshrrev_b32 v9, 4, v{L}
        v_min_u32 v9, 1, v9
        v_lshlrev_b32 v{vPc}, 4, v9
        """)
        for r in range(16):
            A(f"v_mov_b32 v{vS0+r}, 0\nv_mov_b32 v{vS1+r}, 0")

    def zerofill():
        A(f"""
        v_mov_b32 v40, 0
        v_mov_b32 v41, 0
        v_mov_b32 v42, 0
        v_mov_b32 v43, 0
        v_mov_b32 v44, {DUMMY}
        v_mov_b32 v45, {DUMMY}
        v_lshlrev_b32 v1, 3, v0
        v_add_u32 v1, {L_LIST}, v1
        ds_write_b64 v1, v[44:45]
        ds_write_b32 v{vaCnt}, v40
        ds_write_b32 v{vaCnt}, v40 offset:256
        v_lshlrev_b32 v1, 4, v0
        v_add_u32 v1, {L_AQE}, v1
        """)
        nz = ZERO_BYTES // 8192
        rem = ZERO_BYTES - nz * 8192
        for q in range(nz):
            A(f"ds_write_b128 v1, v[40:43] offset:{q*8192}")
        if rem:
            A(f"""
            v_cmp_gt_u32 vcc, {rem//16}, v0
            s_and_saveexec_b64 s[{s_x}:{s_x+1}], vcc
            ds_write_b128 v1, v[40:43] offset:{nz*8192}
            s_mov_b64 exec, s[{s_x}:{s_x+1}]
            """)

    def small():
        srd(A, sC, pB1, 512)
        srd(A, sA, pB2, 256)
        A(f"""
        v_lshrrev_b32 v3, 4, v{L}
        v_lshlrev_b32 v4, 4, v3
        s_lshl_b32 s3, s{s_w}, 6
        buffer_load_dwordx4 {vr(vB1,4)}, v4, {S(sC)}, s3 offen
        v_lshlrev_b32 v5, 2, v0
        s_mov_b32 s3, {256*512}
        buffer_load_dword v{vWEr}, v5, {S(sB)}, s3 offen
        v_lshlrev_b32 v4, 3, v3
        s_lshl_b32 s3, s{s_w}, 5
        buffer_load_dwordx2 {vr(vB2,2)}, v4, {S(sA)}, s3 offen
        """)

    def f0load():
        A(f"buffer_load_dword v{vF0}, off, {S(sG)}, 0 offset:196 sc1")

    srd(A, sWS, pWS, WS_END)
    A(f"""
    v_lshlrev_b32 v3, 8, v0
    s_cmp_eq_u32 s2, 0
    s_cselect_b32 s3, 16, 0
    v_cmp_gt_u32 vcc, s3, v0
    v_mov_b32 v4, 0x40000000
    v_mov_b32 v8, 0
    v_cndmask_b32 v3, v4, v3, vcc
    s_mul_i32 s3, s2, {CHE*4}
    buffer_store_dword v8, v3, {S(sWS)}, 0 offen {SC}
    """)
    srd(A, sC, pDST, CHE * 4, off="s3")
    srd(A, sD, pSRC, CHE * 4, off="s3")
    A(f"s_mov_b32 s{s_x+1}, 4096\ns_mov_b32 s{s_x+2}, 8192")
    vD, vS = 164, 169
    so = ["0", "0", f"s{s_x+1}", f"s{s_x+1}", f"s{s_x+2}"]
    for k in range(5):
        A(f"buffer_load_dword v{vD+k}, v2, {S(sC)}, {so[k]} offen offset:{(k & 1)*2048}")
    for k in range(5):
        A(f"buffer_load_dword v{vS+k}, v2, {S(sD)}, {so[k]} offen offset:{(k & 1)*2048}")
    srd(A, sC, pW2, 256 * 256)
    A(f"""
    v_lshlrev_b32 v3, 4, v0
    v_add_u32 v15, {L_BT}, v3
    v_add_u32 v2, {L_BC}, v2
    v_mov_b32 v4, -1
    v_mov_b32 v5, -1
    v_mov_b32 v6, -1
    v_mov_b32 v7, -1
    """)
    for q in range(4):
        A(f"ds_write_b128 v15, v[4:7] offset:{q*8192}")
    A(f"""
    ds_write_b32 v2, v8
    s_lshl_b32 s3, s2, 8
    v_add_u32 v3, s3, v0
    v_bfe_u32 v4, v3, 8, 3           ; s
    v_lshlrev_b32 v4, 5, v4
    v_bfe_u32 v5, v3, 6, 1           ; ab
    v_lshl_add_u32 v4, v5, 4, v4
    v_bfe_u32 v5, v3, 1, 1           ; e>>2
    v_lshl_add_u32 v4, v5, 3, v4
    v_bfe_u32 v5, v3, 7, 1           ; h
    v_lshl_add_u32 v4, v5, 2, v4
    v_and_b32 v5, 1, v3
    v_lshl_add_u32 v4, v5, 1, v4     ; hidden
    v_lshlrev_b32 v4, 8, v4
    v_lshrrev_b32 v5, 11, v3         ; wo
    v_lshl_add_u32 v4, v5, 5, v4
    v_bfe_u32 v5, v3, 2, 4           ; m
    v_lshl_add_u32 v4, v5, 1, v4
    v_lshrrev_b32 v5, 8, v0
    v_lshl_or_b32 v4, v5, 30, v4
    v_lshlrev_b32 v3, 2, v3
    v_lshl_or_b32 v176, v5, 30, v3
    buffer_load_ushort v174, v4, {S(sC)}, 0 offen
    buffer_load_ushort v175, v4, {S(sC)}, 0 offen offset:256
    """)
    srd(A, sB, pW1, 260 * 512)
    srd(A, sD, pX, N * 256)
    srd(A, sG, pDBG, 256)
    xdma(L_XQ, s_nb0)
    small()
    stamp(A, 1)
    A(f"""
    v_mov_b32 v9, 1
    s_waitcnt lgkmcnt(0)
    s_barrier
    s_waitcnt vmcnt(12)
    """)
    vb, va, vk = 16, 21, 26
    for k in range(5):
        A(f"v_mul_u32_u24 v{vb+k}, 1677, v{vD+k}")
        A(f"v_lshrrev_b32 v{vb+k}, 16, v{vb+k}")
        A(f"v_lshlrev_b32 v{va+k}, 2, v{vb+k}")
        A(f"v_add_u32 v{va+k}, {L_BC}, v{va+k}")
        if k == 4:
            A(f"v_cmp_gt_u32 vcc, {CHE - 2048}, v0\ns_and_saveexec_b64 s[{s_x+2}:{s_x+3}], vcc")
        A(f"ds_add_rtn_u32 v{vk+k}, v{va+k}, v9")
    A(f"""
    s_mov_b64 s[{s_x+4}:{s_x+5}], exec
    s_or_b32 s3, s2, s{s_w}
    s_cbranch_scc1 M_nf0
    s_mov_b64 exec, 1
    buffer_store_dword v9, off, {S(sG)}, 0 offset:196 {SC}
    M_nf0:
    s_mov_b64 exec, s[{s_x+2}:{s_x+3}]
    s_waitcnt vmcnt(7)
    """)
    for k in range(5):
        A(f"""
        v_and_b32 v{vD+k}, 63, v{vD+k}
        v_lshl_or_b32 v{vS+k}, v{vD+k}, 14, v{vS+k}
        v_add_u32 v{vD+k}, {512*k}, v0
        v_lshl_or_b32 v{vS+k}, v{vD+k}, 20, v{vS+k}
        v_lshlrev_b32 v{va+k}, 7, v{vb+k}
        v_add_u32 v{va+k}, {L_BT}, v{va+k}
        """)
    for k in range(5):
        if k == 4:
            A(f"s_mov_b64 exec, s[{s_x+4}:{s_x+5}]")
        A(f"""
        s_waitcnt lgkmcnt({4-k})
        v_add_u32 v4, v{vk+k}, v{vb+k}
        v_and_b32 v4, 7, v4
        v_lshrrev_b32 v5, 3, v{vk+k}
        v_lshl_add_u32 v4, v4, 2, v5
        v_lshl_add_u32 v{va+k}, v4, 2, v{va+k}
        v_cmp_gt_u32 vcc, 32, v{vk+k}
        s_and_saveexec_b64 s[{s_x+6}:{s_x+7}], vcc
        ds_write_b32 v{va+k}, v{vS+k}
        s_mov_b64 exec, s[{s_x+6}:{s_x+7}]
        """)
    A(f"""
    s_mov_b64 exec, -1
    v_lshrrev_b32 v4, 3, v0
    v_lshlrev_b32 v5, 2, v4
    v_add_u32 v5, {L_BC}, v5
    v_and_b32 v6, 7, v0
    v_lshlrev_b32 v7, 13, v4
    v_lshl_add_u32 v7, v6, 4, v7
    s_lshl_b32 s3, s2, 7
    s_add_u32 s3, s3, {WS_SLOT}
    v_add_u32 v7, s3, v7
    v_cmp_eq_u32 s[{s_x+2}:{s_x+3}], 7, v6
    v_mov_b32 v8, -2
    s_mov_b32 s{s_x+4}, 0
    s_mov_b32 s{s_x+5}, {64*8192}
    s_mov_b32 s{s_x+6}, {128*8192}
    s_mov_b32 s{s_x+7}, {192*8192}
    s_waitcnt lgkmcnt(0)
    s_barrier
    """)
    stamp(A, 2)
    for q in range(4):
        A(f"ds_read_b128 {vr(16+4*q,4)}, v15 offset:{q*8192}")
        A(f"ds_read_b32 v{32+q}, v5 offset:{q*256}")
    A(f"s_mov_b32 s3, {WS_W2F}\ns_waitcnt vmcnt(5)\nv_lshl_or_b32 v174, v175, 16, v174")
    for q in range(4):
        A(f"""
        s_waitcnt lgkmcnt({6-2*q})
        v_cmp_lt_u32 vcc, 32, v{32+q}
        s_and_b64 vcc, vcc, s[{s_x+2}:{s_x+3}]
        s_nop 1
        v_cndmask_b32 v{19+4*q}, v{19+4*q}, v8, vcc
        buffer_store_dwordx4 {vr(16+4*q,4)}, v7, {S(sWS)}, s{s_x+4+q} offen {SC}
        """)
    A(f"buffer_store_dword v174, v176, {S(sWS)}, s3 offen {SC}")
    stamp(A, 3)
    gaddr()
    consts()
    A(f"""
    s_waitcnt vmcnt(0)
    s_barrier
    s_cmp_lg_u32 s{s_w}, 0
    s_cbranch_scc1 M_nlast2
    """)
    stamp(A, 16)
    A(f"""
    s_and_b32 s3, s2, 1
    s_lshl_b32 s{s_x+1}, s3, 6
    s_lshl_b32 s3, s3, 2
    v_mov_b32 v9, 1
    s_mov_b64 exec, 1
    buffer_atomic_add v9, off, {S(sG)}, s{s_x+1} sc0 sc1
    s_waitcnt vmcnt(0)
    v_cmp_eq_u32 vcc, {NCH//2 - 1}, v9
    s_cbranch_vccz M_nlast
    buffer_store_dword v9, off, {S(sG)}, s3 offset:128 {SC}
    M_nlast:
    s_mov_b64 exec, -1
    """)
    stamp(A, 17)
    A(f"""
    M_nlast2:
    """)
    f0load()
    wdma(128 * 512)
    zerofill()
    A("s_branch M_join")
    A("M_pwg:")
    srd(A, sD, pX, N * 256)
    srd(A, sB, pW1, 260 * 512)
    A(f"s_sub_u32 s{s_t}, s2, {NCH}\ns_mul_i32 s{s_t}, s{s_t}, {PROWS}")
    xdma(L_XP, s_t)
    wdma(0)
    stamp(A, 1)
    srd(A, sWS, pWS, WS_END)
    srd(A, sG, pDBG, 256)
    gaddr()
    A(f"""
    v_add_u32 v15, {L_XP}, v{vXr}
    v_add_u32 v11, s{s_t}, v4
    v_lshlrev_b32 v11, 9, v11
    v_lshl_add_u32 v11, v3, 4, v11
    s_lshl_b32 s3, s{s_w}, 6
    v_add_u32 v11, s3, v11
    s_add_u32 s3, s{s_t}, {PROWS}
    s_min_u32 s3, s3, {N}
    s_lshl_b32 s3, s3, 9
    """)
    srd(A, sE, pWS, "s3", off=WS_P)
    A(f"""
    s_mov_b32 s{s_x+4}, 0
    s_mov_b32 s{s_x+5}, 8192
    s_mov_b32 s{s_x+6}, 16384
    s_mov_b32 s{s_x+7}, 24576
    s_waitcnt vmcnt(8)
    s_barrier
    """)
    stamp(A, 2)
    for s in range(4):
        if s:
            A(f"v_xor_b32 v4, {s << 6:#x}, v15")
        for mt in range(4):
            A(f"ds_read_b128 {vr(vXP + 16*mt + 4*s, 4)}, v{4 if s else 15} offset:{mt*4096}")
    gemm_part(A, None, 4, vXP, vm=[6, 4, 2, 0])
    xdma(L_XQ, s_nb0)
    small()
    gemm_pack(A, 4, lambda mt: A(f"buffer_store_dwordx4 {vr(vPO+4*mt,4)}, v11, {S(sE)}, s{s_x+4+mt} offen {'' if 'pplain' in OPT else SC}"))
    stamp(A, 3)
    consts()
    zerofill()
    f0load()
    wdma(128 * 512)
    A("s_waitcnt vmcnt(13)\ns_barrier")
    A("M_join:")
    stamp(A, 4)
    A(f"""
    v_lshlrev_b32 v8, 16, v{vWEr}
    v_and_b32 v9, 0xffff0000, v{vWEr}
    v_mul_f32 v8, v12, v8
    v_mul_f32 v9, v12, v9
    v_cvt_pk_bf16_f32 v10, v8, v9
    v_lshrrev_b32 v4, 7, v0          ; f
    v_lshlrev_b32 v5, 16, v10
    v_and_b32 v6, 0xffff0000, v10
    v_sub_f32 v8, v8, v5
    v_sub_f32 v9, v9, v6
    v_cvt_pk_bf16_f32 v11, v8, v9
    v_lshlrev_b32 v5, 2, v0
    v_lshl_add_u32 v5, v4, 6, v5
    v_add_u32 v5, {L_WE}, v5
    ds_write_b32 v5, v10
    ds_write_b32 v5, v11 offset:{4*QS}
    """)
    for x in range(4):
        A(f"v_lshlrev_b32 v{vB1+4+2*x}, 16, v{vB1+x}\nv_and_b32 v{vB1+5+2*x}, 0xffff0000, v{vB1+x}")
    A(f"v_add_u32 v15, {L_XQ}, v{vXr}")
    for s in range(4):
        if s:
            A(f"v_xor_b32 v4, {s << 6:#x}, v15")
        for mt in range(3):
            A(f"ds_read_b128 {vr(vXF + 16*mt + 4*s, 4)}, v{4 if s else 15} offset:{mt*4096}")
    stamp(A, 5)
    A(f"""
    s_mov_b32 s{s_spin}, 0x400000
    s_cmp_lg_u32 s{s_w}, 0
    s_cbranch_scc1 M_w1
    s_mov_b64 exec, 1
    M_polla:
    buffer_load_dwordx2 v[8:9], off, {S(sG)}, 0 offset:128 sc1
    s_sub_u32 s{s_spin}, s{s_spin}, 1
    s_cbranch_scc1 M_pollda
    s_waitcnt vmcnt(0)
    v_min_u32 v8, v8, v9
    v_cmp_eq_u32 vcc, 0, v8
    s_cbranch_vccz M_pollda
    s_sleep {12 if 'slp' in OPT else 1}
    s_branch M_polla
    M_pollda:
    s_mov_b64 exec, -1
    M_w1:
    s_lshl_b32 s3, s2, 13
    s_add_u32 s3, s3, {WS_SLOT}
    v_lshlrev_b32 v1, 4, v0
    s_waitcnt vmcnt(8) lgkmcnt(0)
    s_barrier
    buffer_load_dwordx4 v[4:7], v1, {S(sWS)}, s3 offen {SC}
    s_cmp_lg_u32 s{s_w}, 1
    s_cbranch_scc1 M_w1b
    s_mov_b64 exec, 1
    M_pollf:
    v_cmp_eq_u32 vcc, 0, v{vF0}
    s_cbranch_vccz M_polldf
    s_sub_u32 s{s_spin}, s{s_spin}, 1
    s_cbranch_scc1 M_polldf
    buffer_load_dword v{vF0}, off, {S(sG)}, 0 offset:196 sc1
    s_waitcnt vmcnt(0)
    s_branch M_pollf
    M_polldf:
    s_and_b32 s3, s2, 15
    s_lshl_b32 s3, s3, 8
    v_mov_b32 v9, 1
    buffer_atomic_add v9, off, {S(sWS)}, s3 sc1
    s_mov_b64 exec, -1
    s_waitcnt vmcnt(2)
    s_branch M_w1c
    M_w1b:
    s_waitcnt vmcnt(1)
    M_w1c:
    """)
    stamp(A, 6)
    gemm_part(A, vB1 + 4, 3, vXF)
    A(f"""
    v_and_b32 v8, 15, v{L}           ; n
    v_lshrrev_b32 v9, 4, v{L}        ; q
    v_lshlrev_b32 v9, 4, v9
    v_mul_u32_u24 v8, {QS}, v8
    s_lshl_b32 s3, s{s_w}, 6
    s_add_u32 s3, s3, {L_Q}
    v_add3_u32 v9, v8, v9, s3
    """)
    gemm_pack(A, 3, lambda mt: A(f"ds_write_b128 v9, {vr(vPO+4*mt,4)} offset:{mt*16*QS}"))
    stamp(A, 7)
    A(f"""
    s_cmp_lg_u32 s{s_w}, 1
    s_cbranch_scc1 M_wv0
    s_waitcnt vmcnt(1)
    s_branch M_recs
    M_wv0:
    s_waitcnt vmcnt(0)
    M_recs:
    s_cmp_lg_u32 s{s_w}, 0
    s_cbranch_scc1 M_nop1
    s_mov_b64 exec, 0xffff
    buffer_load_dword v{vPc}, v{vPca}, {S(sWS)}, 0 offen sc0 sc1
    s_mov_b64 exec, -1
    M_nop1:
    """)
    stamp(A, 8)
    vD4, vRk, vEo, vEv, vBs, vTa = 16, 20, 24, 28, 36, 40
    A(f"s_mov_b32 s{s_x}, 0xfff00000\nv_mov_b32 v1, 1")
    for j in range(4):
        A(f"v_cmp_gt_u32 s[{sM+2*j}:{sM+2*j+1}], s{s_x}, v{4+j}")
    for j in range(4):
        A(f"""
        s_mov_b64 exec, s[{sM+2*j}:{sM+2*j+1}]
        s_cbranch_execz M_r1_{j}
        v_lshrrev_b32 v{vD4+j}, 12, v{4+j}
        v_subrev_u32 v{vD4+j}, s{s_nb4}, v{vD4+j}
        v_and_b32 v{vD4+j}, 0xfc, v{vD4+j}
        v_add_u32 v8, {L_CNT}, v{vD4+j}
        ds_add_rtn_u32 v{vRk+j}, v8, v1
        v_lshrrev_b32 v{vEo+j}, 20, v{4+j}
        v_lshl_add_u32 v{vEo+j}, v{vEo+j}, 3, v{vChunk8}
        buffer_load_dwordx2 {vr(vEv+2*j,2)}, v{vEo+j}, {S(sE)}, 0 offen
        v_and_b32 v{4+j}, 0x3fff, v{4+j}
        M_r1_{j}:
        """)
        if j == 2:
            A(f"""
            s_mov_b64 exec, -1
            v_cmp_eq_u32 vcc, -2, v7
            s_and_b64 exec, exec, vcc
            s_cbranch_execz M_nomark
            v_mov_b32 v8, {L_CNT + 63*4}
            v_mov_b32 v9, 0x10000
            ds_add_u32 v8, v9
            M_nomark:
            """)
    A(f"""
    s_mov_b64 exec, -1
    s_mov_b32 s{s_alt}, 0
    s_mov_b32 s{s_sw}, 0
    v_lshlrev_b32 v9, 4, v{L}
    v_add_u32 v{vaAgg}, {L_AGG}, v9
    v_lshlrev_b32 v11, 2, v{L}
    v_add_u32 v11, 32, v11
    s_waitcnt lgkmcnt(0)
    s_barrier
    ds_read_b32 v8, v{vaCnt}
    """)
    for r in range(16):
        A(f"v_mov_b32 v{vACC+r}, 0")
    A(f"""
    s_waitcnt lgkmcnt(0)
    v_add_u32 v9, 1, v8
    v_and_b32 v9, -2, v9
    v_mov_b32 v10, v9
    v_mov_b32 v{vH}, 0
    v_mov_b32 v{vH+1}, 0
    v_add_u32_dpp v10, v10, v10 row_shr:1 row_mask:0xf bank_mask:0xf bound_ctrl:0
    v_mov_b32 v{vH+2}, 0
    v_mov_b32 v{vH+3}, 0
    v_add_u32_dpp v10, v10, v10 row_shr:2 row_mask:0xf bank_mask:0xf bound_ctrl:0
    v_mov_b32 v{vAgg}, 0
    v_mov_b32 v{vAgg+1}, 0
    v_add_u32_dpp v10, v10, v10 row_shr:4 row_mask:0xf bank_mask:0xf bound_ctrl:0
    s_nop 1
    v_add_u32_dpp v10, v10, v10 row_shr:8 row_mask:0xf bank_mask:0xf bound_ctrl:0
    s_nop 1
    v_add_u32_dpp v10, v10, v10 row_bcast:15 row_mask:0xa bank_mask:0xf
    s_nop 1
    v_add_u32_dpp v10, v10, v10 row_bcast:31 row_mask:0xc bank_mask:0xf
    s_nop 0
    v_sub_u32 v{vBase}, v10, v9
    v_readlane_b32 s{s_tot}, v10, 63
    M_derive:
    """)
    for j in range(4):
        A(f"ds_bpermute_b32 v{vBs+j}, v{vD4+j}, v{vBase}")
    A(f"""
    ds_bpermute_b32 v12, v11, v{vBase}
    s_cmp_gt_u32 s{s_tot}, {CAP_T*32}
    s_cbranch_scc1 M_goslow
    v_readlane_b32 s{s_T0p}, v{vBase}, 32
    s_add_u32 s{s_T}, s{s_tot}, 31
    s_lshr_b32 s{s_T}, s{s_T}, 5
    v_add3_u32 v13, v{vBase}, v9, 31
    v_and_b32 v13, -32, v13                ; end of the tile that holds node i's last slot
    s_waitcnt lgkmcnt(0)
    v_cmp_gt_u32 vcc, v13, v12
    v_cmp_ne_u32 s[{s_x}:{s_x+1}], s{s_tot}, v12
    s_andn2_b32 s{s_x+1}, vcc_lo, s{s_alt}
    s_and_b32 s{s_x}, s{s_x}, s{s_x+1}
    s_cbranch_scc1 M_align
    """)
    for j in range(4):
        A(f"""
        s_mov_b64 exec, s[{sM+2*j}:{sM+2*j+1}]
        s_cbranch_execz M_r2_{j}
        v_add_u32 v{vRk+j}, v{vRk+j}, v{vBs+j}
        v_lshlrev_b32 v9, 2, v{vRk+j}
        v_add_u32 v9, {L_LIST}, v9
        ds_write_b32 v9, v{4+j}
        v_lshrrev_b32 v9, 3, v{vRk+j}
        v_and_b32 v10, 31, v{vRk+j}
        v_and_b32 v9, -4, v9
        v_cmp_eq_u32 vcc, 0, v10
        v_add_u32 v{vTa+j}, {L_N0}, v9
        s_and_b64 exec, exec, vcc
        ds_write_b32 v{vTa+j}, v{vD4+j}
        M_r2_{j}:
        """)
    A(f"""
    s_mov_b64 exec, -1
    s_cmp_lt_u32 s{s_T0p}, s{s_tot}
    s_cselect_b32 s{s_x}, 5, 31
    s_cselect_b32 s{s_x+1}, 1, 0x7fffffff
    s_lshr_b32 s{s_T0p}, s{s_T0p}, s{s_x}
    s_add_u32 s{s_T0p}, s{s_T0p}, s{s_x+1}
    v_add_u32 v{vDeg}, v{vDeg}, v8
    s_mul_i32 s{s_pri}, s{s_T}, {PRIO_NUM}
    s_lshr_b32 s{s_pri}, s{s_pri}, 5
    s_cmp_lt_u32 s{s_w}, 4
    s_cselect_b32 s{s_pri}, 0x7fffffff, s{s_pri}
    s_sub_u32 s{s_next}, s{s_T}, 1
    s_min_i32 s{s_next}, s{s_next}, s{s_T0p}
    s_min_i32 s{s_next}, s{s_next}, s{s_pri}
    v_mov_b32 v1, 0x3f80
    v_mov_b32 v14, {L_N0}
    s_cmp_lg_u32 s{s_w}, 0
    s_cbranch_scc1 M_w2
    s_mov_b32 s{s_spin}, 0x400000
    s_waitcnt vmcnt(4)
    M_pollb:
    v_cmp_ne_u32 vcc, 16, v{vPc}
    s_cbranch_vccz M_w2
    s_sub_u32 s{s_spin}, s{s_spin}, 1
    s_cbranch_scc1 M_w2
    s_mov_b64 exec, 0xffff
    buffer_load_dword v{vPc}, v{vPca}, {S(sWS)}, 0 offen sc0 sc1
    s_mov_b64 exec, -1
    s_sleep 1
    s_waitcnt vmcnt(0)
    s_branch M_pollb
    M_w2:
    v_mov_b32 v{vAgg+2}, 0
    v_mov_b32 v{vAgg+3}, 0
    s_waitcnt lgkmcnt(0)
    s_barrier
    """)
    stamp(A, 9)
    PSC = "sc1" if "psc1" in OPT else ""

    def dma(t, jj):
        r = vOff + 2 * t + jj if t < CAP_T else vDum
        return f"buffer_load_dwordx4 v{r}, {S(sP)}, 0 offen offset:{(t & 1)*2048 + jj*1024} {PSC} lds"

    def m0set(t):
        return f"s_mov_b32 m0, s{s_ring if (t % 4) < 2 else s_ringh}"

    def offs(lo, hi, after=None):
        for t0 in range(lo, hi, 8):
            ts = range(t0, min(t0 + 8, hi))
            for t in ts:
                A(f"ds_read_b64 {vr(vOff+2*t,2)}, v{vaList} offset:{t*128}")
            for i, t in enumerate(ts):
                A(f"s_waitcnt lgkmcnt({len(ts)-1-i})")
                for jj in range(2):
                    A(f"v_lshl_add_u32 v{vOff+2*t+jj}, v{vOff+2*t+jj}, 9, v{vK0 + 2*(t & 1) + jj}")
                if after:
                    after(t)

    def first_dma(t):
        if t < 2:
            A(dma(t, 0) + "\n" + dma(t, 1))
    A(m0set(0))
    offs(0, 6, first_dma)
    for j in range(4):
        A(f"ds_read_b32 v{vBs+j}, v{vTa+j}")
    for g in range(7):
        A(f"ds_read_b128 {vr(vBa+4*g,4)}, v14 offset:{16*g}")
    A(f"{m0set(2)}\ns_waitcnt vmcnt(4) lgkmcnt(7)")
    for j in range(4):
        A(f"""
        s_mov_b64 exec, s[{sM+2*j}:{sM+2*j+1}]
        s_cbranch_execz M_r3_{j}
        v_lshlrev_b32 v8, 4, v{vRk+j}
        v_add_u32 v8, {L_AQE}, v8
        ds_write2_b64 v8, {vr(vEv+2*j,2)}, {vr(vEv+2*j,2)} offset0:0 offset1:1
        v_sub_u32 v9, v{vD4+j}, v{vBs+j}
        v_lshrrev_b32 v9, 1, v9
        v_add_u32 v9, v9, v8
        ds_write_b16 v9, v1 offset:{L_AQH - L_AQE}
        v_and_b32 v9, 0x80, v{vD4+j}
        v_add_u32 v9, v9, v{vD4+j}
        v_and_b32 v10, 14, v{vRk+j}
        v_lshl_add_u32 v9, v9, 2, v10
        v_lshrrev_b32 v10, 4, v{vRk+j}
        v_lshl_add_u32 v9, v10, 9, v9
        v_add_u32 v9, {L_AGG}, v9
        ds_write_b16 v9, v1
        M_r3_{j}:
        """)
    A("s_mov_b64 exec, -1")
    A("s_waitcnt lgkmcnt(0)\ns_barrier")
    A(dma(2, 0) + "\n" + dma(2, 1) + "\n" + dma(3, 0) + "\n" + dma(3, 1))
    stamp(A, 10)
    for t in range(CAP_T):
        A(f"v_mad_u32_u24 v{vBa+t}, v{vBa+t}, v{vBmul}, v{vaB}")
    A(f"""
    s_cmp_eq_u32 s{s_T}, 0
    s_cbranch_scc1 M_bend
    """)
    offs(6, CAP_T)
    stamp(A, 11)

    def bread(t):
        r = vBa + min(t, CAP_T - 1)
        return [f"ds_read_b64_tr_b16 {vr(vBq,2)}, v{r}", f"ds_read_b64_tr_b16 {vr(vBq+2,2)}, v{r} offset:{4*QS}"]

    def w2load(s):
        return f"buffer_load_dwordx4 {vr(vW2+4*s,4)}, v{vW2a}, {S(sWS)}, s{s_w2 + (s >> 2)} offen offset:{(s & 3)*1024} sc1"

    A("\n".join(bread(0)))
    A(f"""
    ds_read_b128 {vr(vAqe,4)}, v{vaAqe}
    s_cmp_lt_u32 s{s_w}, 4
    s_cbranch_scc1 M_nopri
    s_setprio 1
    M_nopri:
    s_waitcnt vmcnt({2*(D-1)})
    ds_read_b128 {vr(vPf0,4)}, v{vaP0}
    ds_read_b128 {vr(vPf1,4)}, v{vaP1}
    {m0set(D)}
    s_waitcnt lgkmcnt(0)
    """)
    mfma32(A, vU[0], vAqe, vBq, None)
    A(dma(D, 0))
    mfma32(A, vU[0], vPf0, vSel0, vU[0])
    A(dma(D, 1))
    mfma32(A, vU[0], vPf1, vSel1, vU[0])
    A("\n".join(bread(1)))
    A(f"""
    ds_read_b128 {vr(vAqe,4)}, v{vaAqe} offset:512
    s_waitcnt vmcnt({2*(D-1)})
    ds_read_b128 {vr(vPf0,4)}, v{vaP0} offset:2048
    ds_read_b128 {vr(vPf1,4)}, v{vaP1} offset:2048
    s_nop 7
    """)
    stamp(A, 12)

    def second_half(B, U, aggread):
        mfma32(B, vACC, vH, vAgg, vACC)
        for i in range(8):
            B(f"v_rcp_f32 v{vT+i}, v{vT+i}")
        for i in range(0, 8, 2):
            B(f"v_pk_mul_f32 {vr(U+i,2)}, {vr(U+i,2)}, {vr(vT+i,2)}")
            if i == 0:
                B(aggread)
        for i in range(0, 8, 2):
            B(f"v_cvt_pk_bf16_f32 v{vH+i//2}, v{U+i}, v{U+i+1}")

    vmq = ["d"] * (2 * (D + 1))

    def vm_need(t):
        seen = 0
        for i, k in enumerate(vmq):
            if k == "d":
                seen += 1
                if seen == 2 * (t + 1):
                    return len(vmq) - 1 - i

    ool = Asm()
    A(".p2align 3")
    for t in range(CAP_T):
        U, Un = vU[t & 1], vU[(t + 1) & 1]
        tn = t + 1 + D
        s2 = ((t + 2) % D) * 2048
        ex = [f"v_exp_f32 v{vT+i}, v{U+i}" for i in range(16)]
        if "itst" in OPT:
            A(f"s_memtime s[100:101]")
        late_vm = t < 2
        A(f"s_waitcnt lgkmcnt(0)" if late_vm else f"s_waitcnt vmcnt({vm_need(t+2)}) lgkmcnt(0)")
        if "itst" in OPT:
            A(f"v_writelane_b32 v{vSt}, s100, {16+t}")
        mfma32(A, Un, vAqe, vBq, None)
        A("\n".join(ex[0:4]))
        mfma32(A, Un, vPf0, vSel0, Un)
        A("\n".join(ex[4:8]))
        mfma32(A, Un, vPf1, vSel1, Un)
        A("\n".join(ex[8:16]))
        pk = [f"v_pk_fma_f32 {vr(vT+i,2)}, {vr(vT+i,2)}, {vr(vC,2)}, {vr(vC,2)} clamp" for i in (0, 8, 2, 10, 4, 12, 6, 14)]
        pk += [f"v_pk_mul_f32 {vr(U+i,2)}, {vr(U+i,2)}, {vr(vT+8+i,2)}" for i in range(0, 8, 2)]
        pk += [f"v_pk_fma_f32 {vr(U+i,2)}, {vr(U+8+i,2)}, {vr(vT+i,2)}, {vr(U+i,2)}" for i in range(0, 8, 2)]
        pk += [f"v_pk_mul_f32 {vr(vT+i,2)}, {vr(vT+i,2)}, {vr(vT+8+i,2)}" for i in range(0, 8, 2)]
        oth = []
        if tn % 2 == 0:
            oth.append(m0set(tn))
        b0, b1 = bread(t + 2)
        oth += [f"ds_read_b128 {vr(vAqe,4)}, v{vaAqe} offset:{(t+2)*512}", dma(tn, 0),
                f"ds_read_b128 {vr(vPf0,4)}, v{vaP0} offset:{s2}", dma(tn, 1),
                f"ds_read_b128 {vr(vPf1,4)}, v{vaP1} offset:{s2}", b0, b1]
        if late_vm:
            d0, d1 = oth[-6], oth[-4]
            oth.remove(d0)
            oth.remove(d1)
            k = oth.index(b0)
            oth = oth[:k-2] + [b0, b1, f"s_waitcnt vmcnt({vm_need(t+2)})\n" + oth[k-2], oth[k-1], d0, d1]
        vmq += ["d", "d"]
        if W2T0 <= t < W2T0 + 8:
            oth.append(w2load(t - W2T0))
            vmq.append("w")
        oth.append(f"s_cmp_le_i32 s{s_next}, {t}")
        if "nodma" in OPT:
            oth = [x for x in oth if " lds" not in x]
        for i, x in enumerate(pk):
            A(x)
            if i % 2 == 0 and oth:
                A(oth.pop(0))
        assert not oth
        A(f"s_cbranch_scc1 M_ev{t}\nM_evr{t}:")
        second_half(A, U, f"ds_read_b128 {vr(vAgg,4)}, v{vaAgg} offset:{t*1024}")
        ool(f"""
        M_ev{t}:
        s_movk_i32 s{s_t}, {t}
        s_call_b64 s[{s_ret}:{s_ret+1}], M_rare
        s_cbranch_scc1 M_tail{t & 1}
        s_branch M_evr{t}
        """)
    A("s_branch M_fin")
    for p in range(2):
        A(f"""
        M_tail{p}:
        s_lshl_b32 s3, s{s_t}, 10
        v_add_u32 v8, s3, v{vaAgg}
        """)
        second_half(A, vU[p], f"ds_read_b128 {vr(vAgg,4)}, v8")
        if p == 0:
            A("s_branch M_fin")
    A(f"""
    M_fin:
    s_mov_b32 s{s_t}, s{s_T}
    s_cmp_eq_u32 s{s_T0p}, s{s_T}
    s_cbranch_scc0 M_fin2
    s_call_b64 s[{s_ret}:{s_ret+1}], M_rare
    M_fin2:
    s_waitcnt lgkmcnt(0)
    """)
    mfma32(A, vACC, vH, vAgg, vACC)
    stamp(A, 13)
    A(f"""
    s_cmp_lg_u32 s{s_sw}, 0
    s_nop 11
    s_cbranch_scc1 M_fin_hi
    """)
    for r in range(16):
        A(f"v_add_f32 v{vS0+r}, v{vS0+r}, v{vACC+r}")
    A("s_branch M_bend\nM_fin_hi:")
    for r in range(16):
        A(f"v_add_f32 v{vS1+r}, v{vS1+r}, v{vACC+r}")
    K = -math.log(2.0) * 2.0 ** -CEXP
    A(f"""
    M_bend:
    s_setprio 0
    s_cmp_lg_u32 s{s_slow}, 0
    s_cbranch_scc1 M_next
    M_epi:
    s_cmp_gt_u32 s{s_T}, {W2T0 + 8}
    s_cbranch_scc1 M_epi2
    """)
    for s_ in range(8):
        A(w2load(s_))
    A(f"""
    M_epi2:
    s_lshl_b32 s3, s{s_nb1}, 8
    """)
    srd(A, sA, pOUT, "s3")
    A(f"""
    v_mov_b32 v{vC}, {f32(K):#x}
    v_mov_b32 v{vC+1}, {f32(K):#x}
    v_and_b32 v3, 31, v{L}
    v_lshrrev_b32 v2, 5, v{L}
    v_bfe_u32 v8, v3, 1, 2
    v_lshlrev_b32 v9, 1, v2
    v_xor_b32 v8, v8, v9
    v_lshlrev_b32 v8, 4, v8
    v_lshl_add_u32 v8, v3, 6, v8
    v_add_u32 v8, s{s_ring}, v8
    v_xor_b32 v9, 16, v8
    v_and_b32 v10, 15, v{L}              ; n
    v_lshrrev_b32 v11, 4, v{L}           ; q
    v_lshlrev_b32 v12, 2, v10
    v_add_u32 v13, 64, v12
    v_add_u32 v14, 128, v12
    ds_bpermute_b32 v4, v12, v{vDeg}
    ds_bpermute_b32 v5, v13, v{vDeg}
    ds_bpermute_b32 v6, v14, v{vDeg}
    """)
    for Sx, o in ((vS0, 16), (vS1, 24)):
        for r in range(0, 16, 2):
            A(f"v_pk_mul_f32 {vr(Sx+r,2)}, {vr(Sx+r,2)}, {vr(vC,2)}")
        for r in range(0, 16, 2):
            A(f"v_cvt_pk_bf16_f32 v{o+r//2}, v{Sx+r}, v{Sx+r+1}")
    A(f"""
    s_waitcnt vmcnt(0)
    ds_write_b128 v8, v[16:19]
    ds_write_b128 v9, v[20:23]
    ds_write_b128 v8, v[24:27] offset:2048
    ds_write_b128 v9, v[28:31] offset:2048
    v_bfe_u32 v12, v10, 1, 2
    v_xor_b32 v12, v12, v11
    v_lshlrev_b32 v12, 4, v12
    v_lshl_add_u32 v12, v10, 6, v12
    v_lshlrev_b32 v32, 16, v{vB2}
    v_and_b32 v33, 0xffff0000, v{vB2}
    v_lshlrev_b32 v34, 16, v{vB2+1}
    v_and_b32 v35, 0xffff0000, v{vB2+1}
    v_add_u32 v13, s{s_nb0}, v10
    v_lshlrev_b32 v13, 8, v13
    v_lshl_add_u32 v13, v11, 3, v13
    s_lshl_b32 s{s_x}, s{s_w}, 5
    v_add_u32 v13, s{s_x}, v13
    s_waitcnt lgkmcnt(4)
    v_cvt_f32_u32 v4, v4
    v_cvt_f32_u32 v5, v5
    v_cvt_f32_u32 v6, v6
    """)
    O = 36
    for mt in range(3):
        for i in range(4):
            A(f"v_mul_f32 v{O+4*mt+i}, v{4+mt}, v{32+i}")
    A("s_waitcnt lgkmcnt(0)\ns_barrier")
    stamp(A, 14)
    SFR = 48
    order = [(s, mt) for s in range(8) for mt in range(3)]
    RS = D * 2048
    AHEAD = 12
    for k in range(AHEAD):
        s, mt = order[k]
        A(f"ds_read_b128 {vr(SFR+4*k,4)}, v12 offset:{s*RS+mt*1024}")
    for k in range(24):
        s, mt = order[k]
        A(f"s_waitcnt lgkmcnt({min(AHEAD - 1, 23 - k)})")
        mfma16(A, O + 4 * mt, vW2 + 4 * s, SFR + 4 * k, O + 4 * mt)
        if k + AHEAD < 24:
            s2, mt2 = order[k + AHEAD]
            A(f"ds_read_b128 {vr(SFR+4*(k+AHEAD),4)}, v12 offset:{s2*RS+mt2*1024}")
    A(f"s_mov_b32 s{s_x}, 4096\ns_mov_b32 s{s_x+1}, 8192\ns_nop 5")
    for mt in range(3):
        A(f"""
        v_cvt_pk_bf16_f32 v{16+2*mt}, v{O+4*mt}, v{O+4*mt+1}
        v_cvt_pk_bf16_f32 v{17+2*mt}, v{O+4*mt+2}, v{O+4*mt+3}
        buffer_store_dwordx2 {vr(16+2*mt,2)}, v13, {S(sA)}, {["0", f"s{s_x}", f"s{s_x+1}"][mt]} offen
        """)
    if SPIN is not None and SPIN[0] == 15:
        A("s_waitcnt vmcnt(0)")
        stamp(A, 15)
    if STAMPS:
        A("s_waitcnt vmcnt(0)")
        stamp(A, 15)
        srd(A, sA, pWS, 0x80000, off=WS_ST)
        A(f"""
        s_lshl_b32 s3, s2, 3
        s_add_u32 s3, s3, s{s_w}
        s_lshl_b32 s3, s3, 8
        v_lshl_add_u32 v1, v{L}, 2, s3
        buffer_store_dword v{vSt}, v1, {S(sA)}, 0 offen
        """)
    A("M_end:\ns_endpgm")

    A(f"""
    M_rare:
    s_cmp_eq_u32 s{s_T0p}, s{s_t}
    s_cbranch_scc0 M_rare2
    s_waitcnt lgkmcnt(0)
    """)
    mfma32(A, vACC, vH, vAgg, vACC)
    A(f"""
    s_lshl_b32 s3, s{s_t}, 10
    v_add_u32 v8, s3, v{vaAgg}
    v_add_u32 v{vaAgg}, 1024, v{vaAgg}
    s_mov_b32 s{s_sw}, 1
    s_mov_b32 s{s_T0p}, 0x7fffffff
    ds_read_b128 {vr(vAgg,4)}, v8
    s_nop 8
    """)
    for r in range(16):
        A(f"v_add_f32 v{vS0+r}, v{vS0+r}, v{vACC+r}")
    for r in range(16):
        A(f"v_mov_b32 v{vACC+r}, 0")
    A(f"""
    s_waitcnt lgkmcnt(0)
    M_rare2:
    s_cmp_le_i32 s{s_pri}, s{s_t}
    s_cbranch_scc0 M_rare3
    s_setprio 0
    s_mov_b32 s{s_pri}, 0x7fffffff
    M_rare3:
    s_sub_u32 s3, s{s_T}, 1
    s_min_i32 s{s_next}, s3, s{s_T0p}
    s_min_i32 s{s_next}, s{s_next}, s{s_pri}
    s_cmp_le_i32 s3, s{s_t}
    s_setpc_b64 s[{s_ret}:{s_ret+1}]
    """)

    A(f"""
    M_align:
    s_mov_b32 s{s_alt}, -1
    s_mov_b32 s{s_x+8}, 0
    v_mov_b32 v13, v{vBase}
    """)
    for G in range(5):
        A(f"""
        v_readlane_b32 s{s_x}, v{vBase}, {8*G}
        v_readlane_b32 s{s_x+1}, v{vBase}, {8*G+8}
        s_nop 1
        s_sub_u32 s{s_x+9}, s{s_x+8}, s{s_x}
        v_cmp_le_u32 vcc, {8*G}, v{L}
        v_add_u32 v10, s{s_x+9}, v{vBase}
        s_sub_u32 s{s_x+1}, s{s_x+1}, s{s_x}
        s_add_u32 s{s_x+8}, s{s_x+8}, s{s_x+1}
        v_cndmask_b32 v13, v13, v10, vcc
        """)
        if G < 4:
            A(f"s_add_u32 s{s_x+8}, s{s_x+8}, 31\ns_and_b32 s{s_x+8}, s{s_x+8}, -32")
    A(f"""
    s_mov_b32 s{s_tot}, s{s_x+8}
    v_mov_b32 v{vBase}, v13
    s_nop 1
    s_branch M_derive
    """)
    A(f"""
    M_goslow:
    s_mov_b32 s{s_slow}, 1
    s_mov_b32 s{s_batch}, 0
    s_branch M_load
    M_next:
    s_add_u32 s{s_batch}, s{s_batch}, 512
    s_cmp_ge_u32 s{s_batch}, {E}
    s_cbranch_scc1 M_epi
    M_load:
    """)
    srd(A, sA, pDST, E * 4)
    srd(A, sB, pSRC, E * 4)
    A(f"""
    v_add_u32 v8, s{s_batch}, v0
    v_lshlrev_b32 v9, 2, v8
    s_waitcnt vmcnt(0) lgkmcnt(0)
    buffer_load_dword v10, v9, {S(sA)}, 0 offen
    buffer_load_dword v11, v9, {S(sB)}, 0 offen
    v_lshlrev_b32 v{vChunk8}, 3, v8
    v_mov_b32 v5, -1
    v_mov_b32 v6, -1
    v_mov_b32 v7, -1
    v_lshlrev_b32 v{vPca}, 8, v{L}
    v_mov_b32 v{vPc}, 16
    s_mov_b64 exec, 0xffff
    v_mov_b32 v{vPc}, 0
    s_mov_b64 exec, -1
    s_mov_b32 s{s_x+2}, {E}
    s_waitcnt vmcnt(0)
    v_subrev_u32 v12, s{s_nb0}, v10
    v_cmp_gt_u32 vcc, s{s_nn}, v12
    v_cmp_gt_u32 s[{s_x}:{s_x+1}], s{s_x+2}, v8
    v_and_b32 v10, 63, v10
    v_lshl_or_b32 v11, v10, 14, v11
    s_and_b64 vcc, vcc, s[{s_x}:{s_x+1}]
    s_nop 1
    v_cndmask_b32 v4, v5, v11, vcc
    s_barrier
    """)
    zerofill()
    A("s_waitcnt lgkmcnt(0)\ns_barrier\ns_branch M_recs")
    A.l += ool.l


def build():
    out = f"""; Fused edge-featured MPNN layer, one workgroup per bucket of 39/40 destination nodes.
; @launch grid=(256,1,1) block=(512,1,1) lds={LDS_BYTES}
.amdgcn_target "amdgcn-amd-amdhsa--gfx950"
.text
.globl {KN}
.p2align 8
.type {KN},@function
"""
    A = Asm()
    kernel(A)
    out += A.text()
    out += f""".section .rodata,"a"
.p2align 6
.amdhsa_kernel {KN}
  .amdhsa_next_free_vgpr {NV}
  .amdhsa_next_free_sgpr 102
  .amdhsa_accum_offset {(NV + 3) // 4 * 4}
  .amdhsa_group_segment_fixed_size 0
  .amdhsa_kernarg_size 88
  .amdhsa_user_sgpr_count 2
  .amdhsa_user_sgpr_kernarg_segment_ptr 1
  .amdhsa_system_sgpr_workgroup_id_x 1
.end_amdhsa_kernel
"""
    return out


if __name__ == "__main__":
    for a in list(sys.argv):
        if a.startswith("-o"):
            OPT.update(a[2:].split(","))
            sys.argv.remove(a)
    for a in list(sys.argv):
        if a.startswith("-spin"):
            i, us = a[5:].split(":")
            SPIN = (int(i), float(us))
            sys.argv.remove(a)
    for a in list(sys.argv):
        if a.startswith("-wsb"):
            WS_BASE = int(a[4:]) << 20
            sys.argv.remove(a)
    if "--stamps" in sys.argv:
        STAMPS = True
        sys.argv.remove("--stamps")
    path = sys.argv[1] if len(sys.argv) > 1 else f"cdna_kernels/{NAME}.s"
    open(path, "w").write(build())
    print("wrote", path, "lds", LDS_BYTES)
```

```python
import sys, struct, math

NAME = "gather_scatter__edge_featured_mpnn_mpnn__graph"
KN = NAME + "_kernel"
N, E = 10000, 160000

WS_CNT = 0
WS_W2F = 0x1000
WS_SLOT = 0x11000
WS_P = 0x212000
TABB = N * 512
WS_END = WS_P + TABB
WS_ST = 0x1000000

WS_BASE = 0
NCH = 64
CHE = E // NCH
PROWS = 53
LOG2E = 1.4426950408889634
CEXP = 48
STAMPS = False
OPT = set()
PRIO_NUM = 22
W2T0 = 8


def f32(x):
    return struct.unpack("<I", struct.pack("<f", x))[0]


class Asm:
    def __init__(self):
        self.l = []

    def __call__(self, s):
        for x in s.split("\n"):
            x = x.strip()
            if x:
                self.l.append(("" if x.endswith(":") else "    ") + x)

    def text(self):
        return "\n".join(self.l) + "\n"


def vr(a, n=1):
    return f"v{a}" if n == 1 else f"v[{a}:{a+n-1}]"


def srd(A, d, base, size, off=None):
    if off is None:
        A(f"s_mov_b32 s{d}, s{base}\ns_mov_b32 s{d+1}, s{base+1}")
    else:
        A(f"s_add_u32 s{d}, s{base}, {off}\ns_addc_u32 s{d+1}, s{base+1}, 0")
    A(f"s_mov_b32 s{d+2}, {size}\ns_mov_b32 s{d+3}, 0x00020000")


def S(d):
    return f"s[{d}:{d+3}]"


D = 4
CAP_T = 26
QS = 576
L_RING = 0
L_AQE = 8 * D * 2048
L_AQH = L_AQE + CAP_T * 512
L_AGG = L_AQH + CAP_T * 512
L_LIST = L_AGG + (CAP_T + 1) * 1024
L_CNT = L_LIST + 4096
L_N0 = L_CNT + 256
L_WE = L_N0 + 256
L_Q = L_WE + 8 * QS
LDS_BYTES = L_Q + 32768
ZERO_BYTES = L_LIST - L_AQE
L_XP = L_Q
L_XQ = L_Q + 16384
L_BT = L_AQE
L_BC = L_BT + 32768
assert L_BC + 2048 <= L_LIST and LDS_BYTES <= 163840 and 48 * QS <= 32768
DUMMY = 0x400000

pX, pE, pSRC, pDST, pW1, pB1, pW2, pB2, pOUT, pDBG, pWS = 4, 6, 8, 10, 12, 14, 16, 18, 20, 22, 24
s_w2 = 26
sA, sB, sC, sD, sWS, sP, sE = 28, 32, 36, 40, 44, 48, 52
(s_w, s_nb0, s_nb1, s_nn, s_T, s_T0p, s_t, s_next, s_slow, s_batch, s_ring, s_sw, s_tot,
 s_nb4, s_ringh, s_spin, s_pri, s_alt, s_xw) = range(56, 75)
s_x = 76
sM = 86
s_ret = 94
sG = 96

vU = [16, 32]
vT = 48
vH = 64
vACC = 68
vS0 = 84
vS1 = 100
vPf0, vPf1, vAqe, vAgg, vBq, vSel0, vSel1 = 116, 120, 124, 128, 132, 136, 140
vBa = 144
vOff = 176
vW2 = 176
(vC, _c1, vB2, _b1, vK0, vK1, vK2, vK3, vaAqe, vaAgg, vaList, vaP0, vaP1, vaB, vBmul, vBase, vDeg,
 vChunk8, vLane, vDum, vSt, vW2a, vaCnt) = range(228, 251)
NV = 252
vXF = 176
vXP = 160
vWF = 16
vPA = 48
vPO = 148
vXa = 145
vXr = 147
vB1 = 116
vWEr = 128
vF0 = 129
vPc, vPca = 130, 131


def mfma32(A, d, a, b, c):
    cs = "0" if c is None else vr(c, 16)
    A(f"v_mfma_f32_32x32x16_bf16 {vr(d,16)}, {vr(a,4)}, {vr(b,4)}, {cs}")


def mfma16(A, d, a, b, c):
    cs = "0" if c is None else vr(c, 4)
    A(f"v_mfma_f32_16x16x32_bf16 {vr(d,4)}, {vr(a,4)}, {vr(b,4)}, {cs}")


SPIN = None


ENC = None


def stamp(A, i):
    if ENC is not None:
        if i == 0:
            A("s_memrealtime s[100:101]\ns_waitcnt lgkmcnt(0)\ns_mov_b32 s75, s100\ns_nop 0")
        if i == ENC:
            A("s_waitcnt lgkmcnt(0)\ns_memrealtime s[100:101]\ns_waitcnt lgkmcnt(0)\ns_sub_u32 s101, s100, s75")
            A(f"v_writelane_b32 v{vSt}, s101, 0")
        if i == 15:
            u = len(A.l)
            A(f"v_readlane_b32 s3, v{vSt}, 0\ns_nop 3\ns_lshl_b32 s3, s3, 2\ns_add_u32 s3, s3, 6000")
            A(f"M_spin{u}:\ns_memrealtime s[100:101]\ns_waitcnt lgkmcnt(0)\ns_sub_u32 s100, s100, s75\ns_cmp_lt_u32 s100, s3\ns_cbranch_scc1 M_spin{u}")
    if SPIN is not None:
        if i == 0:
            A("s_memrealtime s[100:101]\ns_waitcnt lgkmcnt(0)\ns_mov_b32 s75, s100")
        elif i == SPIN[0]:
            u = len(A.l)
            A(f"M_spin{u}:\ns_memrealtime s[100:101]\ns_waitcnt lgkmcnt(0)\ns_sub_u32 s100, s100, s75\ns_cmp_lt_u32 s100, {int(SPIN[1]*100)}\ns_cbranch_scc1 M_spin{u}")
    if STAMPS:
        ins = "s_memtime" if "cyc" in OPT else "s_memrealtime"
        A(f"s_waitcnt lgkmcnt(0)\n{ins} s[100:101]\ns_waitcnt lgkmcnt(0)\nv_writelane_b32 v{vSt}, s100, {i}")


def gemm_part(A, init, nmt, xf, vm=None):
    def rd(s):
        for ct in range(2):
            for x in range(2):
                A(f"ds_read_b64_tr_b16 {vr(vWF + 8*s + 4*ct + 2*x, 2)}, v14 offset:{s*2048 + x*256 + ct*8}")
    if vm is None:
        for s in range(4):
            rd(s)
    else:
        A(f"s_waitcnt vmcnt({vm[0]})")
        rd(0)
    for s in range(4):
        if vm is None:
            A(f"s_waitcnt lgkmcnt({12 - 4*s})")
        else:
            A("s_waitcnt lgkmcnt(0)")
        k = 0
        for mt in range(nmt):
            for ct in range(2):
                d = vPA + 8 * mt + 4 * ct
                c = d if s else (None if init is None else init + 4 * ct)
                mfma16(A, d, vWF + 8 * s + 4 * ct, xf + 16 * mt + 4 * s, c)
                k += 1
                if vm is not None and k == 2 and s < 3:
                    A(f"s_waitcnt vmcnt({vm[s+1]})")
                    rd(s + 1)


def gemm_pack(A, nmt, store):
    A("s_nop 4")
    for mt in range(nmt):
        for r in range(0, 8, 2):
            a = vPA + 8 * mt + r
            A(f"v_pk_mul_f32 {vr(a,2)}, {vr(a,2)}, v[12:13]")
        for r in range(0, 8, 2):
            a = vPA + 8 * mt + r
            A(f"v_cvt_pk_bf16_f32 v{vPO + 4*mt + r//2}, v{a}, v{a+1}")
        store(mt)


def kernel(A):
    L = vLane
    SC = "sc0 sc1"
    A(f"{KN}:")
    A(f"""
    s_cmp_ge_u32 s2, 256
    s_cbranch_scc1 M_end
    s_load_dwordx16 s[4:19], s[0:1], 0
    s_load_dwordx4 s[20:23], s[0:1], 64
    s_load_dwordx2 s[24:25], s[0:1], 80
    """)
    if STAMPS or ENC is not None:
        A(f"v_mov_b32 v{vSt}, 0")
    stamp(A, 0)
    A(f"""
    v_lshrrev_b32 v2, 6, v0
    v_and_b32 v{L}, 63, v0
    v_readfirstlane_b32 s{s_w}, v2
    s_mul_i32 s{s_nb0}, s2, 160069
    s_add_u32 s{s_nb1}, s{s_nb0}, {160069 + 4049}
    s_add_u32 s{s_nb0}, s{s_nb0}, 4049
    s_lshr_b32 s{s_nb0}, s{s_nb0}, 12
    v_lshrrev_b32 v7, 4, v{L}
    v_and_b32 v8, 15, v{L}
    v_xor_b32 v8, v8, v7
    s_lshl_b32 s{s_ring}, s{s_w}, 13
    s_and_b32 s3, s{s_w}, 1
    s_lshl_b32 s3, s3, 3
    v_xor_b32 v8, s3, v8
    v_lshlrev_b32 v8, 4, v8
    v_lshl_add_u32 v8, v7, 8, v8
    s_lshl_b32 s{s_xw}, s{s_w}, 11
    v_add_u32 v{vXa}, s{s_xw}, v8
    v_xor_b32 v{vXa+1}, 64, v{vXa}
    v_lshrrev_b32 v10, 2, v{L}
    v_and_b32 v11, 3, v{L}
    v_lshlrev_b32 v11, 4, v11
    v_lshl_add_u32 v10, v10, 9, v11
    s_lshl_b32 s3, s{s_w}, 6
    v_add_u32 v10, s3, v10
    v_lshlrev_b32 v2, 2, v0
    s_waitcnt lgkmcnt(0)
    s_add_u32 s{pWS}, s{pWS}, {WS_BASE}
    s_addc_u32 s{pWS+1}, s{pWS+1}, 0
    s_cmp_ge_u32 s2, {NCH}
    s_cbranch_scc1 M_pwg
    """)

    def wdma(base):
        for ii in range(8):
            A(f"""
            s_add_u32 m0, s{s_ring}, {ii*1024}
            s_mov_b32 s{s_x+1}, {base + ii*8192}
            buffer_load_dwordx4 v10, {S(sB)}, s{s_x+1} offen lds
            """)

    def xdma(ldsbase, rowreg):
        A(f"""
        s_add_u32 m0, s{s_xw}, {ldsbase}
        s_lshl_b32 s3, s{rowreg}, 8
        buffer_load_dwordx4 v{vXa}, {S(sD)}, s3 offen lds
        buffer_load_dwordx4 v{vXa+1}, {S(sD)}, s3 offen offset:1024 lds
        """)

    def gaddr():
        A(f"""
        v_lshrrev_b32 v3, 4, v{L}        ; q
        v_and_b32 v4, 15, v{L}           ; n
        v_xor_b32 v5, v3, v4
        v_lshlrev_b32 v5, 4, v5
        v_lshl_add_u32 v{vXr}, v4, 8, v5
        v_bfe_u32 v5, v{L}, 2, 2         ; r
        v_lshl_add_u32 v6, v3, 3, v5     ; 8q + r
        v_lshlrev_b32 v6, 6, v6
        v_and_b32 v7, 3, v{L}            ; c
        v_lshl_add_u32 v6, v7, 4, v6
        v_add_u32 v14, s{s_ring}, v6
        v_mov_b32 v12, {f32(-LOG2E):#x}
        v_mov_b32 v13, v12
        """)

    def consts():
        srd(A, sP, pWS, TABB + 4096, off=WS_P - 4096)
        srd(A, sE, pE, E * 8)
        A(f"""
        s_lshr_b32 s{s_nb1}, s{s_nb1}, 12
        s_min_u32 s{s_nb1}, s{s_nb1}, {N}
        s_sub_u32 s{s_nn}, s{s_nb1}, s{s_nb0}
        s_lshl_b32 s{s_nb4}, s{s_nb0}, 2
        s_add_u32 s{s_ringh}, s{s_ring}, 4096
        s_mov_b32 s{s_slow}, 0
        s_lshl_b32 s{s_w2}, s{s_w}, 13
        s_add_u32 s{s_w2}, s{s_w2}, {WS_W2F}
        s_add_u32 s{s_w2+1}, s{s_w2}, 4096
        v_lshrrev_b32 v3, 4, v{L}        ; q
        v_bfe_u32 v5, v{L}, 2, 2         ; r
        v_and_b32 v7, 3, v{L}            ; c
        v_xor_b32 v9, v7, v3
        v_lshlrev_b32 v9, 4, v9
        s_lshl_b32 s3, s{s_w}, 6
        s_add_u32 s{s_x}, s3, 1024
        v_add_u32 v{vK3}, s{s_x}, v9
        v_add_u32 v{vK2}, 1024, v{vK3}
        v_add_u32 v{vK1}, 2048, v{vK3}
        v_add_u32 v{vK0}, 3072, v{vK3}
        v_lshrrev_b32 v1, 5, v{L}        ; h
        v_mul_u32_u24 v5, {QS}, v5
        v_and_b32 v3, 1, v3
        v_lshl_add_u32 v5, v3, 5, v5
        v_lshl_add_u32 v5, v7, 3, v5
        s_add_u32 s3, s3, {L_WE}
        v_add_u32 v5, s3, v5
        v_mul_u32_u24 v6, {8*QS}, v1
        v_add_u32 v{vaB}, v5, v6
        v_mul_u32_u24 v{vBmul}, {QS//4}, v1
        v_and_b32 v3, 31, v{L}           ; m
        v_lshrrev_b32 v9, 4, v3
        v_and_b32 v8, 3, v3
        v_lshl_add_u32 v9, v8, 1, v9
        v_and_b32 v8, 8, v3
        v_add_u32 v9, v9, v8
        v_and_b32 v8, 4, v3
        v_lshl_add_u32 v9, v8, 2, v9
        v_lshlrev_b32 v9, 4, v9
        v_mul_u32_u24 v8, {L_AQH - L_AQE}, v1
        v_add_u32 v9, v9, v8
        v_add_u32 v{vaAqe}, {L_AQE}, v9
        v_lshrrev_b32 v9, 2, v{L}
        v_and_b32 v8, 3, v9
        v_lshlrev_b32 v8, 1, v8
        v_and_b32 v11, 8, v9
        v_add_u32 v8, v8, v11
        v_and_b32 v11, 4, v9
        v_lshl_add_u32 v8, v11, 2, v8
        v_lshlrev_b32 v8, 2, v8
        v_add_u32 v{vaList}, {L_LIST}, v8
        v_bfe_u32 v9, v3, 2, 2
        v_xor_b32 v9, v9, v1
        v_lshlrev_b32 v9, 4, v9
        v_lshl_add_u32 v9, v3, 6, v9
        v_add_u32 v{vaP0}, s{s_ring}, v9
        v_xor_b32 v{vaP1}, 32, v{vaP0}
        v_and_b32 v9, 1, v3
        v_lshlrev_b32 v9, 4, v9
        v_mov_b32 v8, 0x3f80
        v_lshlrev_b32 v9, v9, v8
        v_lshrrev_b32 v8, 1, v3
        v_lshlrev_b32 v11, 2, v1
        v_sub_u32 v8, v8, v11
        """)
        for x in range(4):
            A(f"v_cmp_eq_u32 s[{s_x}:{s_x+1}], {x}, v8\nv_cmp_eq_u32 vcc, {8+x}, v8\ns_nop 0")
            A(f"v_cndmask_b32 v{vSel0+x}, 0, v9, s[{s_x}:{s_x+1}]\nv_cndmask_b32 v{vSel1+x}, 0, v9, vcc")
        A(f"""
        v_mov_b32 v{vC}, {f32(2.0**-CEXP):#x}
        v_mov_b32 v{vC+1}, {f32(2.0**-CEXP):#x}
        v_mov_b32 v{vDeg}, 0
        v_mov_b32 v{vDum}, 0x80000000
        v_lshrrev_b32 v9, 3, v0
        v_mul_u32_u24 v{vChunk8}, {CHE*8}, v9
        v_lshlrev_b32 v{vW2a}, 4, v{L}
        v_lshlrev_b32 v9, 2, v{L}
        v_add_u32 v{vaCnt}, {L_CNT}, v9
        v_lshlrev_b32 v{vPca}, 8, v{L}
        v_lshrrev_b32 v9, 4, v{L}
        v_min_u32 v9, 1, v9
        v_lshlrev_b32 v{vPc}, 4, v9
        """)
        for r in range(16):
            A(f"v_mov_b32 v{vS0+r}, 0\nv_mov_b32 v{vS1+r}, 0")

    def zerofill():
        A(f"""
        v_mov_b32 v40, 0
        v_mov_b32 v41, 0
        v_mov_b32 v42, 0
        v_mov_b32 v43, 0
        v_mov_b32 v44, {DUMMY}
        v_mov_b32 v45, {DUMMY}
        v_lshlrev_b32 v1, 3, v0
        v_add_u32 v1, {L_LIST}, v1
        ds_write_b64 v1, v[44:45]
        ds_write_b32 v{vaCnt}, v40
        ds_write_b32 v{vaCnt}, v40 offset:256
        v_lshlrev_b32 v1, 4, v0
        v_add_u32 v1, {L_AQE}, v1
        """)
        nz = ZERO_BYTES // 8192
        rem = ZERO_BYTES - nz * 8192
        for q in range(nz):
            A(f"ds_write_b128 v1, v[40:43] offset:{q*8192}")
        if rem:
            A(f"""
            v_cmp_gt_u32 vcc, {rem//16}, v0
            s_and_saveexec_b64 s[{s_x}:{s_x+1}], vcc
            ds_write_b128 v1, v[40:43] offset:{nz*8192}
            s_mov_b64 exec, s[{s_x}:{s_x+1}]
            """)

    def small():
        srd(A, sC, pB1, 512)
        srd(A, sA, pB2, 256)
        A(f"""
        v_lshrrev_b32 v3, 4, v{L}
        v_lshlrev_b32 v4, 4, v3
        s_lshl_b32 s3, s{s_w}, 6
        buffer_load_dwordx4 {vr(vB1,4)}, v4, {S(sC)}, s3 offen
        v_lshlrev_b32 v5, 2, v0
        s_mov_b32 s3, {256*512}
        buffer_load_dword v{vWEr}, v5, {S(sB)}, s3 offen
        v_lshlrev_b32 v4, 3, v3
        s_lshl_b32 s3, s{s_w}, 5
        buffer_load_dwordx2 {vr(vB2,2)}, v4, {S(sA)}, s3 offen
        """)

    def f0load():
        A(f"buffer_load_dword v{vF0}, off, {S(sG)}, 0 offset:196 sc1")

    srd(A, sWS, pWS, WS_END)
    A(f"""
    v_lshlrev_b32 v3, 8, v0
    s_cmp_eq_u32 s2, 0
    s_cselect_b32 s3, 16, 0
    v_cmp_gt_u32 vcc, s3, v0
    v_mov_b32 v4, 0x40000000
    v_mov_b32 v8, 0
    v_cndmask_b32 v3, v4, v3, vcc
    s_mul_i32 s3, s2, {CHE*4}
    buffer_store_dword v8, v3, {S(sWS)}, 0 offen {SC}
    """)
    srd(A, sC, pDST, CHE * 4, off="s3")
    srd(A, sD, pSRC, CHE * 4, off="s3")
    A(f"s_mov_b32 s{s_x+1}, 4096\ns_mov_b32 s{s_x+2}, 8192")
    vD, vS = 164, 169
    so = ["0", "0", f"s{s_x+1}", f"s{s_x+1}", f"s{s_x+2}"]
    for k in range(5):
        A(f"buffer_load_dword v{vD+k}, v2, {S(sC)}, {so[k]} offen offset:{(k & 1)*2048}")
    for k in range(5):
        A(f"buffer_load_dword v{vS+k}, v2, {S(sD)}, {so[k]} offen offset:{(k & 1)*2048}")
    srd(A, sC, pW2, 256 * 256)
    A(f"""
    v_lshlrev_b32 v3, 4, v0
    v_add_u32 v15, {L_BT}, v3
    v_add_u32 v2, {L_BC}, v2
    v_mov_b32 v4, -1
    v_mov_b32 v5, -1
    v_mov_b32 v6, -1
    v_mov_b32 v7, -1
    """)
    for q in range(4):
        A(f"ds_write_b128 v15, v[4:7] offset:{q*8192}")
    A(f"""
    ds_write_b32 v2, v8
    s_lshl_b32 s3, s2, 8
    v_add_u32 v3, s3, v0
    v_bfe_u32 v4, v3, 8, 3           ; s
    v_lshlrev_b32 v4, 5, v4
    v_bfe_u32 v5, v3, 6, 1           ; ab
    v_lshl_add_u32 v4, v5, 4, v4
    v_bfe_u32 v5, v3, 1, 1           ; e>>2
    v_lshl_add_u32 v4, v5, 3, v4
    v_bfe_u32 v5, v3, 7, 1           ; h
    v_lshl_add_u32 v4, v5, 2, v4
    v_and_b32 v5, 1, v3
    v_lshl_add_u32 v4, v5, 1, v4     ; hidden
    v_lshlrev_b32 v4, 8, v4
    v_lshrrev_b32 v5, 11, v3         ; wo
    v_lshl_add_u32 v4, v5, 5, v4
    v_bfe_u32 v5, v3, 2, 4           ; m
    v_lshl_add_u32 v4, v5, 1, v4
    v_lshrrev_b32 v5, 8, v0
    v_lshl_or_b32 v4, v5, 30, v4
    v_lshlrev_b32 v3, 2, v3
    v_lshl_or_b32 v176, v5, 30, v3
    buffer_load_ushort v174, v4, {S(sC)}, 0 offen
    buffer_load_ushort v175, v4, {S(sC)}, 0 offen offset:256
    """)
    srd(A, sB, pW1, 260 * 512)
    srd(A, sD, pX, N * 256)
    srd(A, sG, pDBG, 256)
    xdma(L_XQ, s_nb0)
    small()
    stamp(A, 1)
    A(f"""
    v_mov_b32 v9, 1
    s_waitcnt lgkmcnt(0)
    s_barrier
    s_waitcnt vmcnt(12)
    """)
    vb, va, vk = 16, 21, 26
    for k in range(5):
        A(f"v_mul_u32_u24 v{vb+k}, 1677, v{vD+k}")
        A(f"v_lshrrev_b32 v{vb+k}, 16, v{vb+k}")
        A(f"v_lshlrev_b32 v{va+k}, 2, v{vb+k}")
        A(f"v_add_u32 v{va+k}, {L_BC}, v{va+k}")
        if k == 4:
            A(f"v_cmp_gt_u32 vcc, {CHE - 2048}, v0\ns_and_saveexec_b64 s[{s_x+2}:{s_x+3}], vcc")
        A(f"ds_add_rtn_u32 v{vk+k}, v{va+k}, v9")
    A(f"""
    s_mov_b64 s[{s_x+4}:{s_x+5}], exec
    s_or_b32 s3, s2, s{s_w}
    s_cbranch_scc1 M_nf0
    s_mov_b64 exec, 1
    buffer_store_dword v9, off, {S(sG)}, 0 offset:196 {SC}
    M_nf0:
    s_mov_b64 exec, s[{s_x+2}:{s_x+3}]
    s_waitcnt vmcnt(7)
    """)
    for k in range(5):
        A(f"""
        v_and_b32 v{vD+k}, 63, v{vD+k}
        v_lshl_or_b32 v{vS+k}, v{vD+k}, 14, v{vS+k}
        v_add_u32 v{vD+k}, {512*k}, v0
        v_lshl_or_b32 v{vS+k}, v{vD+k}, 20, v{vS+k}
        v_lshlrev_b32 v{va+k}, 7, v{vb+k}
        v_add_u32 v{va+k}, {L_BT}, v{va+k}
        """)
    for k in range(5):
        if k == 4:
            A(f"s_mov_b64 exec, s[{s_x+4}:{s_x+5}]")
        A(f"""
        s_waitcnt lgkmcnt({4-k})
        v_add_u32 v4, v{vk+k}, v{vb+k}
        v_and_b32 v4, 7, v4
        v_lshrrev_b32 v5, 3, v{vk+k}
        v_lshl_add_u32 v4, v4, 2, v5
        v_lshl_add_u32 v{va+k}, v4, 2, v{va+k}
        v_cmp_gt_u32 vcc, 32, v{vk+k}
        s_and_saveexec_b64 s[{s_x+6}:{s_x+7}], vcc
        ds_write_b32 v{va+k}, v{vS+k}
        s_mov_b64 exec, s[{s_x+6}:{s_x+7}]
        """)
    A(f"""
    s_mov_b64 exec, -1
    v_lshrrev_b32 v4, 3, v0
    v_lshlrev_b32 v5, 2, v4
    v_add_u32 v5, {L_BC}, v5
    v_and_b32 v6, 7, v0
    v_lshlrev_b32 v7, 13, v4
    v_lshl_add_u32 v7, v6, 4, v7
    s_lshl_b32 s3, s2, 7
    s_add_u32 s3, s3, {WS_SLOT}
    v_add_u32 v7, s3, v7
    v_cmp_eq_u32 s[{s_x+2}:{s_x+3}], 7, v6
    v_mov_b32 v8, -2
    s_mov_b32 s{s_x+4}, 0
    s_mov_b32 s{s_x+5}, {64*8192}
    s_mov_b32 s{s_x+6}, {128*8192}
    s_mov_b32 s{s_x+7}, {192*8192}
    s_waitcnt lgkmcnt(0)
    s_barrier
    """)
    stamp(A, 2)
    for q in range(4):
        A(f"ds_read_b128 {vr(16+4*q,4)}, v15 offset:{q*8192}")
        A(f"ds_read_b32 v{32+q}, v5 offset:{q*256}")
    A(f"s_mov_b32 s3, {WS_W2F}\ns_waitcnt vmcnt(5)\nv_lshl_or_b32 v174, v175, 16, v174")
    for q in range(4):
        A(f"""
        s_waitcnt lgkmcnt({6-2*q})
        v_cmp_lt_u32 vcc, 32, v{32+q}
        s_and_b64 vcc, vcc, s[{s_x+2}:{s_x+3}]
        s_nop 1
        v_cndmask_b32 v{19+4*q}, v{19+4*q}, v8, vcc
        buffer_store_dwordx4 {vr(16+4*q,4)}, v7, {S(sWS)}, s{s_x+4+q} offen {SC}
        """)
    A(f"buffer_store_dword v174, v176, {S(sWS)}, s3 offen {SC}")
    stamp(A, 3)
    gaddr()
    consts()
    A(f"""
    s_waitcnt vmcnt(0)
    s_barrier
    s_cmp_lg_u32 s{s_w}, 0
    s_cbranch_scc1 M_nlast2
    """)
    stamp(A, 16)
    A(f"""
    s_and_b32 s3, s2, 1
    s_lshl_b32 s{s_x+1}, s3, 6
    s_lshl_b32 s3, s3, 2
    v_mov_b32 v9, 1
    s_mov_b64 exec, 1
    buffer_atomic_add v9, off, {S(sG)}, s{s_x+1} sc0 sc1
    s_waitcnt vmcnt(0)
    v_cmp_eq_u32 vcc, {NCH//2 - 1}, v9
    s_cbranch_vccz M_nlast
    buffer_store_dword v9, off, {S(sG)}, s3 offset:128 {SC}
    M_nlast:
    s_mov_b64 exec, -1
    """)
    stamp(A, 17)
    A(f"""
    M_nlast2:
    """)
    f0load()
    wdma(128 * 512)
    zerofill()
    A("s_branch M_join")
    A("M_pwg:")
    srd(A, sD, pX, N * 256)
    srd(A, sB, pW1, 260 * 512)
    A(f"s_sub_u32 s{s_t}, s2, {NCH}\ns_mul_i32 s{s_t}, s{s_t}, {PROWS}")
    xdma(L_XP, s_t)
    wdma(0)
    stamp(A, 1)
    srd(A, sWS, pWS, WS_END)
    srd(A, sG, pDBG, 256)
    gaddr()
    A(f"""
    v_add_u32 v15, {L_XP}, v{vXr}
    v_add_u32 v11, s{s_t}, v4
    v_lshlrev_b32 v11, 9, v11
    v_lshl_add_u32 v11, v3, 4, v11
    s_lshl_b32 s3, s{s_w}, 6
    v_add_u32 v11, s3, v11
    s_add_u32 s3, s{s_t}, {PROWS}
    s_min_u32 s3, s3, {N}
    s_lshl_b32 s3, s3, 9
    """)
    srd(A, sE, pWS, "s3", off=WS_P)
    A(f"""
    s_mov_b32 s{s_x+4}, 0
    s_mov_b32 s{s_x+5}, 8192
    s_mov_b32 s{s_x+6}, 16384
    s_mov_b32 s{s_x+7}, 24576
    s_waitcnt vmcnt(8)
    s_barrier
    """)
    stamp(A, 2)
    for s in range(4):
        if s:
            A(f"v_xor_b32 v4, {s << 6:#x}, v15")
        for mt in range(4):
            A(f"ds_read_b128 {vr(vXP + 16*mt + 4*s, 4)}, v{4 if s else 15} offset:{mt*4096}")
    gemm_part(A, None, 4, vXP, vm=[6, 4, 2, 0])
    xdma(L_XQ, s_nb0)
    small()
    gemm_pack(A, 4, lambda mt: A(f"buffer_store_dwordx4 {vr(vPO+4*mt,4)}, v11, {S(sE)}, s{s_x+4+mt} offen {'' if 'pplain' in OPT else SC}"))
    stamp(A, 3)
    consts()
    zerofill()
    f0load()
    wdma(128 * 512)
    A("s_waitcnt vmcnt(13)\ns_barrier")
    A("M_join:")
    stamp(A, 4)
    A(f"""
    v_lshlrev_b32 v8, 16, v{vWEr}
    v_and_b32 v9, 0xffff0000, v{vWEr}
    v_mul_f32 v8, v12, v8
    v_mul_f32 v9, v12, v9
    v_cvt_pk_bf16_f32 v10, v8, v9
    v_lshrrev_b32 v4, 7, v0          ; f
    v_lshlrev_b32 v5, 16, v10
    v_and_b32 v6, 0xffff0000, v10
    v_sub_f32 v8, v8, v5
    v_sub_f32 v9, v9, v6
    v_cvt_pk_bf16_f32 v11, v8, v9
    v_lshlrev_b32 v5, 2, v0
    v_lshl_add_u32 v5, v4, 6, v5
    v_add_u32 v5, {L_WE}, v5
    ds_write_b32 v5, v10
    ds_write_b32 v5, v11 offset:{4*QS}
    """)
    for x in range(4):
        A(f"v_lshlrev_b32 v{vB1+4+2*x}, 16, v{vB1+x}\nv_and_b32 v{vB1+5+2*x}, 0xffff0000, v{vB1+x}")
    A(f"v_add_u32 v15, {L_XQ}, v{vXr}")
    for s in range(4):
        if s:
            A(f"v_xor_b32 v4, {s << 6:#x}, v15")
        for mt in range(3):
            A(f"ds_read_b128 {vr(vXF + 16*mt + 4*s, 4)}, v{4 if s else 15} offset:{mt*4096}")
    stamp(A, 5)
    A(f"""
    s_mov_b32 s{s_spin}, 0x400000
    s_cmp_lg_u32 s{s_w}, 0
    s_cbranch_scc1 M_w1
    s_mov_b64 exec, 1
    M_polla:
    buffer_load_dwordx2 v[8:9], off, {S(sG)}, 0 offset:128 sc1
    s_sub_u32 s{s_spin}, s{s_spin}, 1
    s_cbranch_scc1 M_pollda
    s_waitcnt vmcnt(0)
    v_min_u32 v8, v8, v9
    v_cmp_eq_u32 vcc, 0, v8
    s_cbranch_vccz M_pollda
    s_sleep {12 if 'slp' in OPT else 1}
    s_branch M_polla
    M_pollda:
    s_mov_b64 exec, -1
    M_w1:
    s_lshl_b32 s3, s2, 13
    s_add_u32 s3, s3, {WS_SLOT}
    v_lshlrev_b32 v1, 4, v0
    s_waitcnt vmcnt(8) lgkmcnt(0)
    s_barrier
    buffer_load_dwordx4 v[4:7], v1, {S(sWS)}, s3 offen {SC}
    s_cmp_lg_u32 s{s_w}, 1
    s_cbranch_scc1 M_w1b
    s_mov_b64 exec, 1
    M_pollf:
    v_cmp_eq_u32 vcc, 0, v{vF0}
    s_cbranch_vccz M_polldf
    s_sub_u32 s{s_spin}, s{s_spin}, 1
    s_cbranch_scc1 M_polldf
    buffer_load_dword v{vF0}, off, {S(sG)}, 0 offset:196 sc1
    s_waitcnt vmcnt(0)
    s_branch M_pollf
    M_polldf:
    s_and_b32 s3, s2, 15
    s_lshl_b32 s3, s3, 8
    v_mov_b32 v9, 1
    buffer_atomic_add v9, off, {S(sWS)}, s3 sc1
    s_mov_b64 exec, -1
    s_waitcnt vmcnt(2)
    s_branch M_w1c
    M_w1b:
    s_waitcnt vmcnt(1)
    M_w1c:
    """)
    stamp(A, 6)
    gemm_part(A, vB1 + 4, 3, vXF)
    A(f"""
    v_and_b32 v8, 15, v{L}           ; n
    v_lshrrev_b32 v9, 4, v{L}        ; q
    v_lshlrev_b32 v9, 4, v9
    v_mul_u32_u24 v8, {QS}, v8
    s_lshl_b32 s3, s{s_w}, 6
    s_add_u32 s3, s3, {L_Q}
    v_add3_u32 v9, v8, v9, s3
    """)
    gemm_pack(A, 3, lambda mt: A(f"ds_write_b128 v9, {vr(vPO+4*mt,4)} offset:{mt*16*QS}"))
    stamp(A, 7)
    A(f"""
    s_cmp_lg_u32 s{s_w}, 1
    s_cbranch_scc1 M_wv0
    s_waitcnt vmcnt(1)
    s_branch M_recs
    M_wv0:
    s_waitcnt vmcnt(0)
    M_recs:
    s_cmp_lg_u32 s{s_w}, 0
    s_cbranch_scc1 M_nop1
    s_mov_b64 exec, 0xffff
    buffer_load_dword v{vPc}, v{vPca}, {S(sWS)}, 0 offen sc0 sc1
    s_mov_b64 exec, -1
    M_nop1:
    """)
    stamp(A, 8)
    vD4, vRk, vEo, vEv, vBs, vTa = 16, 20, 24, 28, 36, 40
    A(f"s_mov_b32 s{s_x}, 0xfff00000\nv_mov_b32 v1, 1")
    for j in range(4):
        A(f"v_cmp_gt_u32 s[{sM+2*j}:{sM+2*j+1}], s{s_x}, v{4+j}")
    for j in range(4):
        A(f"""
        s_mov_b64 exec, s[{sM+2*j}:{sM+2*j+1}]
        s_cbranch_execz M_r1_{j}
        v_lshrrev_b32 v{vD4+j}, 12, v{4+j}
        v_subrev_u32 v{vD4+j}, s{s_nb4}, v{vD4+j}
        v_and_b32 v{vD4+j}, 0xfc, v{vD4+j}
        v_add_u32 v8, {L_CNT}, v{vD4+j}
        ds_add_rtn_u32 v{vRk+j}, v8, v1
        v_lshrrev_b32 v{vEo+j}, 20, v{4+j}
        v_lshl_add_u32 v{vEo+j}, v{vEo+j}, 3, v{vChunk8}
        buffer_load_dwordx2 {vr(vEv+2*j,2)}, v{vEo+j}, {S(sE)}, 0 offen
        v_and_b32 v{4+j}, 0x3fff, v{4+j}
        M_r1_{j}:
        """)
        if j == 2:
            A(f"""
            s_mov_b64 exec, -1
            v_cmp_eq_u32 vcc, -2, v7
            s_and_b64 exec, exec, vcc
            s_cbranch_execz M_nomark
            v_mov_b32 v8, {L_CNT + 63*4}
            v_mov_b32 v9, 0x10000
            ds_add_u32 v8, v9
            M_nomark:
            """)
    A(f"""
    s_mov_b64 exec, -1
    s_mov_b32 s{s_alt}, 0
    s_mov_b32 s{s_sw}, 0
    v_lshlrev_b32 v9, 4, v{L}
    v_add_u32 v{vaAgg}, {L_AGG}, v9
    v_lshlrev_b32 v11, 2, v{L}
    v_add_u32 v11, 32, v11
    s_waitcnt lgkmcnt(0)
    s_barrier
    ds_read_b32 v8, v{vaCnt}
    """)
    for r in range(16):
        A(f"v_mov_b32 v{vACC+r}, 0")
    A(f"""
    s_waitcnt lgkmcnt(0)
    v_add_u32 v9, 1, v8
    v_and_b32 v9, -2, v9
    v_mov_b32 v10, v9
    v_mov_b32 v{vH}, 0
    v_mov_b32 v{vH+1}, 0
    v_add_u32_dpp v10, v10, v10 row_shr:1 row_mask:0xf bank_mask:0xf bound_ctrl:0
    v_mov_b32 v{vH+2}, 0
    v_mov_b32 v{vH+3}, 0
    v_add_u32_dpp v10, v10, v10 row_shr:2 row_mask:0xf bank_mask:0xf bound_ctrl:0
    v_mov_b32 v{vAgg}, 0
    v_mov_b32 v{vAgg+1}, 0
    v_add_u32_dpp v10, v10, v10 row_shr:4 row_mask:0xf bank_mask:0xf bound_ctrl:0
    s_nop 1
    v_add_u32_dpp v10, v10, v10 row_shr:8 row_mask:0xf bank_mask:0xf bound_ctrl:0
    s_nop 1
    v_add_u32_dpp v10, v10, v10 row_bcast:15 row_mask:0xa bank_mask:0xf
    s_nop 1
    v_add_u32_dpp v10, v10, v10 row_bcast:31 row_mask:0xc bank_mask:0xf
    s_nop 0
    v_sub_u32 v{vBase}, v10, v9
    v_readlane_b32 s{s_tot}, v10, 63
    M_derive:
    """)
    for j in range(4):
        A(f"ds_bpermute_b32 v{vBs+j}, v{vD4+j}, v{vBase}")
    A(f"""
    ds_bpermute_b32 v12, v11, v{vBase}
    s_cmp_gt_u32 s{s_tot}, {CAP_T*32}
    s_cbranch_scc1 M_goslow
    v_readlane_b32 s{s_T0p}, v{vBase}, 32
    s_add_u32 s{s_T}, s{s_tot}, 31
    s_lshr_b32 s{s_T}, s{s_T}, 5
    v_add3_u32 v13, v{vBase}, v9, 31
    v_and_b32 v13, -32, v13                ; end of the tile that holds node i's last slot
    s_waitcnt lgkmcnt(0)
    v_cmp_gt_u32 vcc, v13, v12
    v_cmp_ne_u32 s[{s_x}:{s_x+1}], s{s_tot}, v12
    s_andn2_b32 s{s_x+1}, vcc_lo, s{s_alt}
    s_and_b32 s{s_x}, s{s_x}, s{s_x+1}
    s_cbranch_scc1 M_align
    """)
    for j in range(4):
        A(f"""
        s_mov_b64 exec, s[{sM+2*j}:{sM+2*j+1}]
        s_cbranch_execz M_r2_{j}
        v_add_u32 v{vRk+j}, v{vRk+j}, v{vBs+j}
        v_lshlrev_b32 v9, 2, v{vRk+j}
        v_add_u32 v9, {L_LIST}, v9
        ds_write_b32 v9, v{4+j}
        v_lshrrev_b32 v9, 3, v{vRk+j}
        v_and_b32 v10, 31, v{vRk+j}
        v_and_b32 v9, -4, v9
        v_cmp_eq_u32 vcc, 0, v10
        v_add_u32 v{vTa+j}, {L_N0}, v9
        s_and_b64 exec, exec, vcc
        ds_write_b32 v{vTa+j}, v{vD4+j}
        M_r2_{j}:
        """)
    A(f"""
    s_mov_b64 exec, -1
    s_cmp_lt_u32 s{s_T0p}, s{s_tot}
    s_cselect_b32 s{s_x}, 5, 31
    s_cselect_b32 s{s_x+1}, 1, 0x7fffffff
    s_lshr_b32 s{s_T0p}, s{s_T0p}, s{s_x}
    s_add_u32 s{s_T0p}, s{s_T0p}, s{s_x+1}
    v_add_u32 v{vDeg}, v{vDeg}, v8
    s_mul_i32 s{s_pri}, s{s_T}, {PRIO_NUM}
    s_lshr_b32 s{s_pri}, s{s_pri}, 5
    s_cmp_lt_u32 s{s_w}, 4
    s_cselect_b32 s{s_pri}, 0x7fffffff, s{s_pri}
    s_sub_u32 s{s_next}, s{s_T}, 1
    s_min_i32 s{s_next}, s{s_next}, s{s_T0p}
    s_min_i32 s{s_next}, s{s_next}, s{s_pri}
    v_mov_b32 v1, 0x3f80
    v_mov_b32 v14, {L_N0}
    s_cmp_lg_u32 s{s_w}, 0
    s_cbranch_scc1 M_w2
    s_mov_b32 s{s_spin}, 0x400000
    s_waitcnt vmcnt(4)
    M_pollb:
    v_cmp_ne_u32 vcc, 16, v{vPc}
    s_cbranch_vccz M_w2
    s_sub_u32 s{s_spin}, s{s_spin}, 1
    s_cbranch_scc1 M_w2
    s_mov_b64 exec, 0xffff
    buffer_load_dword v{vPc}, v{vPca}, {S(sWS)}, 0 offen sc0 sc1
    s_mov_b64 exec, -1
    s_sleep 1
    s_waitcnt vmcnt(0)
    s_branch M_pollb
    M_w2:
    v_mov_b32 v{vAgg+2}, 0
    v_mov_b32 v{vAgg+3}, 0
    s_waitcnt lgkmcnt(0)
    s_barrier
    """)
    stamp(A, 9)
    PSC = "sc1" if "psc1" in OPT else ""

    def dma(t, jj):
        r = vOff + 2 * t + jj if t < CAP_T else vDum
        return f"buffer_load_dwordx4 v{r}, {S(sP)}, 0 offen offset:{(t & 1)*2048 + jj*1024} {PSC} lds"

    def m0set(t):
        return f"s_mov_b32 m0, s{s_ring if (t % 4) < 2 else s_ringh}"

    def offs(lo, hi, after=None):
        for t0 in range(lo, hi, 8):
            ts = range(t0, min(t0 + 8, hi))
            for t in ts:
                A(f"ds_read_b64 {vr(vOff+2*t,2)}, v{vaList} offset:{t*128}")
            for i, t in enumerate(ts):
                A(f"s_waitcnt lgkmcnt({len(ts)-1-i})")
                for jj in range(2):
                    A(f"v_lshl_add_u32 v{vOff+2*t+jj}, v{vOff+2*t+jj}, 9, v{vK0 + 2*(t & 1) + jj}")
                if after:
                    after(t)

    def first_dma(t):
        if t < 2:
            A(dma(t, 0) + "\n" + dma(t, 1))
    A(m0set(0))
    offs(0, 6, first_dma)
    for j in range(4):
        A(f"ds_read_b32 v{vBs+j}, v{vTa+j}")
    for g in range(7):
        A(f"ds_read_b128 {vr(vBa+4*g,4)}, v14 offset:{16*g}")
    A(f"{m0set(2)}\ns_waitcnt vmcnt(4) lgkmcnt(7)")
    for j in range(4):
        A(f"""
        s_mov_b64 exec, s[{sM+2*j}:{sM+2*j+1}]
        s_cbranch_execz M_r3_{j}
        v_lshlrev_b32 v8, 4, v{vRk+j}
        v_add_u32 v8, {L_AQE}, v8
        ds_write2_b64 v8, {vr(vEv+2*j,2)}, {vr(vEv+2*j,2)} offset0:0 offset1:1
        v_sub_u32 v9, v{vD4+j}, v{vBs+j}
        v_lshrrev_b32 v9, 1, v9
        v_add_u32 v9, v9, v8
        ds_write_b16 v9, v1 offset:{L_AQH - L_AQE}
        v_and_b32 v9, 0x80, v{vD4+j}
        v_add_u32 v9, v9, v{vD4+j}
        v_and_b32 v10, 14, v{vRk+j}
        v_lshl_add_u32 v9, v9, 2, v10
        v_lshrrev_b32 v10, 4, v{vRk+j}
        v_lshl_add_u32 v9, v10, 9, v9
        v_add_u32 v9, {L_AGG}, v9
        ds_write_b16 v9, v1
        M_r3_{j}:
        """)
    A("s_mov_b64 exec, -1")
    A("s_waitcnt lgkmcnt(0)\ns_barrier")
    A(dma(2, 0) + "\n" + dma(2, 1) + "\n" + dma(3, 0) + "\n" + dma(3, 1))
    stamp(A, 10)
    for t in range(CAP_T):
        A(f"v_mad_u32_u24 v{vBa+t}, v{vBa+t}, v{vBmul}, v{vaB}")
    A(f"""
    s_cmp_eq_u32 s{s_T}, 0
    s_cbranch_scc1 M_bend
    """)
    offs(6, CAP_T)
    stamp(A, 11)

    def bread(t):
        r = vBa + min(t, CAP_T - 1)
        return [f"ds_read_b64_tr_b16 {vr(vBq,2)}, v{r}", f"ds_read_b64_tr_b16 {vr(vBq+2,2)}, v{r} offset:{4*QS}"]

    def w2load(s):
        return f"buffer_load_dwordx4 {vr(vW2+4*s,4)}, v{vW2a}, {S(sWS)}, s{s_w2 + (s >> 2)} offen offset:{(s & 3)*1024} sc1"

    A("\n".join(bread(0)))
    A(f"""
    ds_read_b128 {vr(vAqe,4)}, v{vaAqe}
    s_cmp_lt_u32 s{s_w}, 4
    s_cbranch_scc1 M_nopri
    s_setprio 1
    M_nopri:
    s_waitcnt vmcnt({2*(D-1)})
    ds_read_b128 {vr(vPf0,4)}, v{vaP0}
    ds_read_b128 {vr(vPf1,4)}, v{vaP1}
    {m0set(D)}
    s_waitcnt lgkmcnt(0)
    """)
    mfma32(A, vU[0], vAqe, vBq, None)
    A(dma(D, 0))
    mfma32(A, vU[0], vPf0, vSel0, vU[0])
    A(dma(D, 1))
    mfma32(A, vU[0], vPf1, vSel1, vU[0])
    A("\n".join(bread(1)))
    A(f"""
    ds_read_b128 {vr(vAqe,4)}, v{vaAqe} offset:512
    s_waitcnt vmcnt({2*(D-1)})
    ds_read_b128 {vr(vPf0,4)}, v{vaP0} offset:2048
    ds_read_b128 {vr(vPf1,4)}, v{vaP1} offset:2048
    s_nop 7
    """)
    stamp(A, 12)

    def second_half(B, U, aggread):
        mfma32(B, vACC, vH, vAgg, vACC)
        for i in range(8):
            B(f"v_rcp_f32 v{vT+i}, v{vT+i}")
        for i in range(0, 8, 2):
            B(f"v_pk_mul_f32 {vr(U+i,2)}, {vr(U+i,2)}, {vr(vT+i,2)}")
            if i == 0:
                B(aggread)
        for i in range(0, 8, 2):
            B(f"v_cvt_pk_bf16_f32 v{vH+i//2}, v{U+i}, v{U+i+1}")

    vmq = ["d"] * (2 * (D + 1))

    def vm_need(t):
        seen = 0
        for i, k in enumerate(vmq):
            if k == "d":
                seen += 1
                if seen == 2 * (t + 1):
                    return len(vmq) - 1 - i

    ool = Asm()
    A(".p2align 3")
    for t in range(CAP_T):
        U, Un = vU[t & 1], vU[(t + 1) & 1]
        tn = t + 1 + D
        s2 = ((t + 2) % D) * 2048
        ex = [f"v_exp_f32 v{vT+i}, v{U+i}" for i in range(16)]
        if "itst" in OPT:
            A(f"s_memtime s[100:101]")
        late_vm = t < 2
        A(f"s_waitcnt lgkmcnt(0)" if late_vm else f"s_waitcnt vmcnt({vm_need(t+2)}) lgkmcnt(0)")
        if "itst" in OPT:
            A(f"v_writelane_b32 v{vSt}, s100, {16+t}")
        mfma32(A, Un, vAqe, vBq, None)
        A("\n".join(ex[0:4]))
        mfma32(A, Un, vPf0, vSel0, Un)
        A("\n".join(ex[4:8]))
        mfma32(A, Un, vPf1, vSel1, Un)
        A("\n".join(ex[8:16]))
        pk = [f"v_pk_fma_f32 {vr(vT+i,2)}, {vr(vT+i,2)}, {vr(vC,2)}, {vr(vC,2)} clamp" for i in (0, 8, 2, 10, 4, 12, 6, 14)]
        pk += [f"v_pk_mul_f32 {vr(U+i,2)}, {vr(U+i,2)}, {vr(vT+8+i,2)}" for i in range(0, 8, 2)]
        pk += [f"v_pk_fma_f32 {vr(U+i,2)}, {vr(U+8+i,2)}, {vr(vT+i,2)}, {vr(U+i,2)}" for i in range(0, 8, 2)]
        pk += [f"v_pk_mul_f32 {vr(vT+i,2)}, {vr(vT+i,2)}, {vr(vT+8+i,2)}" for i in range(0, 8, 2)]
        oth = []
        if tn % 2 == 0:
            oth.append(m0set(tn))
        b0, b1 = bread(t + 2)
        oth += [f"ds_read_b128 {vr(vAqe,4)}, v{vaAqe} offset:{(t+2)*512}", dma(tn, 0),
                f"ds_read_b128 {vr(vPf0,4)}, v{vaP0} offset:{s2}", dma(tn, 1),
                f"ds_read_b128 {vr(vPf1,4)}, v{vaP1} offset:{s2}", b0, b1]
        if late_vm:
            d0, d1 = oth[-6], oth[-4]
            oth.remove(d0)
            oth.remove(d1)
            k = oth.index(b0)
            oth = oth[:k-2] + [b0, b1, f"s_waitcnt vmcnt({vm_need(t+2)})\n" + oth[k-2], oth[k-1], d0, d1]
        vmq += ["d", "d"]
        if W2T0 <= t < W2T0 + 8:
            oth.append(w2load(t - W2T0))
            vmq.append("w")
        oth.append(f"s_cmp_le_i32 s{s_next}, {t}")
        if "nodma" in OPT:
            oth = [x for x in oth if " lds" not in x]
        for i, x in enumerate(pk):
            A(x)
            if i % 2 == 0 and oth:
                A(oth.pop(0))
        assert not oth
        A(f"s_cbranch_scc1 M_ev{t}\nM_evr{t}:")
        second_half(A, U, f"ds_read_b128 {vr(vAgg,4)}, v{vaAgg} offset:{t*1024}")
        ool(f"""
        M_ev{t}:
        s_movk_i32 s{s_t}, {t}
        s_call_b64 s[{s_ret}:{s_ret+1}], M_rare
        s_cbranch_scc1 M_tail{t & 1}
        s_branch M_evr{t}
        """)
    A("s_branch M_fin")
    for p in range(2):
        A(f"""
        M_tail{p}:
        s_lshl_b32 s3, s{s_t}, 10
        v_add_u32 v8, s3, v{vaAgg}
        """)
        second_half(A, vU[p], f"ds_read_b128 {vr(vAgg,4)}, v8")
        if p == 0:
            A("s_branch M_fin")
    A(f"""
    M_fin:
    s_mov_b32 s{s_t}, s{s_T}
    s_cmp_eq_u32 s{s_T0p}, s{s_T}
    s_cbranch_scc0 M_fin2
    s_call_b64 s[{s_ret}:{s_ret+1}], M_rare
    M_fin2:
    s_waitcnt lgkmcnt(0)
    """)
    mfma32(A, vACC, vH, vAgg, vACC)
    stamp(A, 13)
    A(f"""
    s_cmp_lg_u32 s{s_sw}, 0
    s_nop 11
    s_cbranch_scc1 M_fin_hi
    """)
    for r in range(16):
        A(f"v_add_f32 v{vS0+r}, v{vS0+r}, v{vACC+r}")
    A("s_branch M_bend\nM_fin_hi:")
    for r in range(16):
        A(f"v_add_f32 v{vS1+r}, v{vS1+r}, v{vACC+r}")
    K = -math.log(2.0) * 2.0 ** -CEXP
    A(f"""
    M_bend:
    s_setprio 0
    s_cmp_lg_u32 s{s_slow}, 0
    s_cbranch_scc1 M_next
    M_epi:
    s_cmp_gt_u32 s{s_T}, {W2T0 + 8}
    s_cbranch_scc1 M_epi2
    """)
    for s_ in range(8):
        A(w2load(s_))
    A(f"""
    M_epi2:
    s_lshl_b32 s3, s{s_nb1}, 8
    """)
    srd(A, sA, pOUT, "s3")
    A(f"""
    v_mov_b32 v{vC}, {f32(K):#x}
    v_mov_b32 v{vC+1}, {f32(K):#x}
    v_and_b32 v3, 31, v{L}
    v_lshrrev_b32 v2, 5, v{L}
    v_bfe_u32 v8, v3, 1, 2
    v_lshlrev_b32 v9, 1, v2
    v_xor_b32 v8, v8, v9
    v_lshlrev_b32 v8, 4, v8
    v_lshl_add_u32 v8, v3, 6, v8
    v_add_u32 v8, s{s_ring}, v8
    v_xor_b32 v9, 16, v8
    v_and_b32 v10, 15, v{L}              ; n
    v_lshrrev_b32 v11, 4, v{L}           ; q
    v_lshlrev_b32 v12, 2, v10
    v_add_u32 v13, 64, v12
    v_add_u32 v14, 128, v12
    ds_bpermute_b32 v4, v12, v{vDeg}
    ds_bpermute_b32 v5, v13, v{vDeg}
    ds_bpermute_b32 v6, v14, v{vDeg}
    """)
    for Sx, o in ((vS0, 16), (vS1, 24)):
        for r in range(0, 16, 2):
            A(f"v_pk_mul_f32 {vr(Sx+r,2)}, {vr(Sx+r,2)}, {vr(vC,2)}")
        for r in range(0, 16, 2):
            A(f"v_cvt_pk_bf16_f32 v{o+r//2}, v{Sx+r}, v{Sx+r+1}")
    A(f"""
    s_waitcnt vmcnt(0)
    ds_write_b128 v8, v[16:19]
    ds_write_b128 v9, v[20:23]
    ds_write_b128 v8, v[24:27] offset:2048
    ds_write_b128 v9, v[28:31] offset:2048
    v_bfe_u32 v12, v10, 1, 2
    v_xor_b32 v12, v12, v11
    v_lshlrev_b32 v12, 4, v12
    v_lshl_add_u32 v12, v10, 6, v12
    v_lshlrev_b32 v32, 16, v{vB2}
    v_and_b32 v33, 0xffff0000, v{vB2}
    v_lshlrev_b32 v34, 16, v{vB2+1}
    v_and_b32 v35, 0xffff0000, v{vB2+1}
    v_add_u32 v13, s{s_nb0}, v10
    v_lshlrev_b32 v13, 8, v13
    v_lshl_add_u32 v13, v11, 3, v13
    s_lshl_b32 s{s_x}, s{s_w}, 5
    v_add_u32 v13, s{s_x}, v13
    s_waitcnt lgkmcnt(4)
    v_cvt_f32_u32 v4, v4
    v_cvt_f32_u32 v5, v5
    v_cvt_f32_u32 v6, v6
    """)
    O = 36
    for mt in range(3):
        for i in range(4):
            A(f"v_mul_f32 v{O+4*mt+i}, v{4+mt}, v{32+i}")
    A("s_waitcnt lgkmcnt(0)\ns_barrier")
    stamp(A, 14)
    SFR = 48
    order = [(s, mt) for s in range(8) for mt in range(3)]
    RS = D * 2048
    AHEAD = 12
    for k in range(AHEAD):
        s, mt = order[k]
        A(f"ds_read_b128 {vr(SFR+4*k,4)}, v12 offset:{s*RS+mt*1024}")
    for k in range(24):
        s, mt = order[k]
        A(f"s_waitcnt lgkmcnt({min(AHEAD - 1, 23 - k)})")
        mfma16(A, O + 4 * mt, vW2 + 4 * s, SFR + 4 * k, O + 4 * mt)
        if k + AHEAD < 24:
            s2, mt2 = order[k + AHEAD]
            A(f"ds_read_b128 {vr(SFR+4*(k+AHEAD),4)}, v12 offset:{s2*RS+mt2*1024}")
    A(f"s_mov_b32 s{s_x}, 4096\ns_mov_b32 s{s_x+1}, 8192\ns_nop 5")
    for mt in range(3):
        A(f"""
        v_cvt_pk_bf16_f32 v{16+2*mt}, v{O+4*mt}, v{O+4*mt+1}
        v_cvt_pk_bf16_f32 v{17+2*mt}, v{O+4*mt+2}, v{O+4*mt+3}
        buffer_store_dwordx2 {vr(16+2*mt,2)}, v13, {S(sA)}, {["0", f"s{s_x}", f"s{s_x+1}"][mt]} offen
        """)
    if (SPIN is not None and SPIN[0] == 15) or ENC is not None:
        A("s_waitcnt vmcnt(0)")
        stamp(A, 15)
    if STAMPS:
        A("s_waitcnt vmcnt(0)")
        stamp(A, 15)
        srd(A, sA, pWS, 0x80000, off=WS_ST)
        A(f"""
        s_lshl_b32 s3, s2, 3
        s_add_u32 s3, s3, s{s_w}
        s_lshl_b32 s3, s3, 8
        v_lshl_add_u32 v1, v{L}, 2, s3
        buffer_store_dword v{vSt}, v1, {S(sA)}, 0 offen
        """)
    A("M_end:\ns_endpgm")

    A(f"""
    M_rare:
    s_cmp_eq_u32 s{s_T0p}, s{s_t}
    s_cbranch_scc0 M_rare2
    s_waitcnt lgkmcnt(0)
    """)
    mfma32(A, vACC, vH, vAgg, vACC)
    A(f"""
    s_lshl_b32 s3, s{s_t}, 10
    v_add_u32 v8, s3, v{vaAgg}
    v_add_u32 v{vaAgg}, 1024, v{vaAgg}
    s_mov_b32 s{s_sw}, 1
    s_mov_b32 s{s_T0p}, 0x7fffffff
    ds_read_b128 {vr(vAgg,4)}, v8
    s_nop 8
    """)
    for r in range(16):
        A(f"v_add_f32 v{vS0+r}, v{vS0+r}, v{vACC+r}")
    for r in range(16):
        A(f"v_mov_b32 v{vACC+r}, 0")
    A(f"""
    s_waitcnt lgkmcnt(0)
    M_rare2:
    s_cmp_le_i32 s{s_pri}, s{s_t}
    s_cbranch_scc0 M_rare3
    s_setprio 0
    s_mov_b32 s{s_pri}, 0x7fffffff
    M_rare3:
    s_sub_u32 s3, s{s_T}, 1
    s_min_i32 s{s_next}, s3, s{s_T0p}
    s_min_i32 s{s_next}, s{s_next}, s{s_pri}
    s_cmp_le_i32 s3, s{s_t}
    s_setpc_b64 s[{s_ret}:{s_ret+1}]
    """)

    A(f"""
    M_align:
    s_mov_b32 s{s_alt}, -1
    s_mov_b32 s{s_x+8}, 0
    v_mov_b32 v13, v{vBase}
    """)
    for G in range(5):
        A(f"""
        v_readlane_b32 s{s_x}, v{vBase}, {8*G}
        v_readlane_b32 s{s_x+1}, v{vBase}, {8*G+8}
        s_nop 1
        s_sub_u32 s{s_x+9}, s{s_x+8}, s{s_x}
        v_cmp_le_u32 vcc, {8*G}, v{L}
        v_add_u32 v10, s{s_x+9}, v{vBase}
        s_sub_u32 s{s_x+1}, s{s_x+1}, s{s_x}
        s_add_u32 s{s_x+8}, s{s_x+8}, s{s_x+1}
        v_cndmask_b32 v13, v13, v10, vcc
        """)
        if G < 4:
            A(f"s_add_u32 s{s_x+8}, s{s_x+8}, 31\ns_and_b32 s{s_x+8}, s{s_x+8}, -32")
    A(f"""
    s_mov_b32 s{s_tot}, s{s_x+8}
    v_mov_b32 v{vBase}, v13
    s_nop 1
    s_branch M_derive
    """)
    A(f"""
    M_goslow:
    s_mov_b32 s{s_slow}, 1
    s_mov_b32 s{s_batch}, 0
    s_branch M_load
    M_next:
    s_add_u32 s{s_batch}, s{s_batch}, 512
    s_cmp_ge_u32 s{s_batch}, {E}
    s_cbranch_scc1 M_epi
    M_load:
    """)
    srd(A, sA, pDST, E * 4)
    srd(A, sB, pSRC, E * 4)
    A(f"""
    v_add_u32 v8, s{s_batch}, v0
    v_lshlrev_b32 v9, 2, v8
    s_waitcnt vmcnt(0) lgkmcnt(0)
    buffer_load_dword v10, v9, {S(sA)}, 0 offen
    buffer_load_dword v11, v9, {S(sB)}, 0 offen
    v_lshlrev_b32 v{vChunk8}, 3, v8
    v_mov_b32 v5, -1
    v_mov_b32 v6, -1
    v_mov_b32 v7, -1
    v_lshlrev_b32 v{vPca}, 8, v{L}
    v_mov_b32 v{vPc}, 16
    s_mov_b64 exec, 0xffff
    v_mov_b32 v{vPc}, 0
    s_mov_b64 exec, -1
    s_mov_b32 s{s_x+2}, {E}
    s_waitcnt vmcnt(0)
    v_subrev_u32 v12, s{s_nb0}, v10
    v_cmp_gt_u32 vcc, s{s_nn}, v12
    v_cmp_gt_u32 s[{s_x}:{s_x+1}], s{s_x+2}, v8
    v_and_b32 v10, 63, v10
    v_lshl_or_b32 v11, v10, 14, v11
    s_and_b64 vcc, vcc, s[{s_x}:{s_x+1}]
    s_nop 1
    v_cndmask_b32 v4, v5, v11, vcc
    s_barrier
    """)
    zerofill()
    A("s_waitcnt lgkmcnt(0)\ns_barrier\ns_branch M_recs")
    A.l += ool.l


def build():
    out = f"""; Fused edge-featured MPNN layer, one workgroup per bucket of 39/40 destination nodes.
; @launch grid=(256,1,1) block=(512,1,1) lds={LDS_BYTES}
.amdgcn_target "amdgcn-amd-amdhsa--gfx950"
.text
.globl {KN}
.p2align 8
.type {KN},@function
"""
    A = Asm()
    kernel(A)
    out += A.text()
    out += f""".section .rodata,"a"
.p2align 6
.amdhsa_kernel {KN}
  .amdhsa_next_free_vgpr {NV}
  .amdhsa_next_free_sgpr 102
  .amdhsa_accum_offset {(NV + 3) // 4 * 4}
  .amdhsa_group_segment_fixed_size 0
  .amdhsa_kernarg_size 88
  .amdhsa_user_sgpr_count 2
  .amdhsa_user_sgpr_kernarg_segment_ptr 1
  .amdhsa_system_sgpr_workgroup_id_x 1
.end_amdhsa_kernel
"""
    return out


if __name__ == "__main__":
    for a in list(sys.argv):
        if a.startswith("-o"):
            OPT.update(a[2:].split(","))
            sys.argv.remove(a)
    for a in list(sys.argv):
        if a.startswith("-spin"):
            i, us = a[5:].split(":")
            SPIN = (int(i), float(us))
            sys.argv.remove(a)
    for a in list(sys.argv):
        if a.startswith("-wsb"):
            WS_BASE = int(a[4:]) << 20
            sys.argv.remove(a)
    for a in list(sys.argv):
        if a.startswith("-enc"):
            ENC = int(a[4:])
            sys.argv.remove(a)
    if "--stamps" in sys.argv:
        STAMPS = True
        sys.argv.remove("--stamps")
    path = sys.argv[1] if len(sys.argv) > 1 else f"cdna_kernels/{NAME}.s"
    open(path, "w").write(build())
    print("wrote", path, "lds", LDS_BYTES)
```

```python
import sys, struct, math

NAME = "gather_scatter__edge_featured_mpnn_mpnn__graph"
KN = NAME + "_kernel"
N, E = 10000, 160000

WS_CNT = 0
WS_RB = 16 * 128
WS_RP = 32 * 128
WS_W2F = 0x2000
WS_SLOT = 0x12000
WS_P = 0x213000
TABB = N * 512
WS_END = WS_P + TABB
WS_ST = 0x1000000

WS_BASE = 0
NCH = 64
CHE = E // NCH
PROWS = 53
LOG2E = 1.4426950408889634
CEXP = 48
STAMPS = False
OPT = set()
PRIO_NUM = 22
W2T0 = 8


def f32(x):
    return struct.unpack("<I", struct.pack("<f", x))[0]


class Asm:
    def __init__(self):
        self.l = []

    def __call__(self, s):
        for x in s.split("\n"):
            x = x.strip()
            if x:
                self.l.append(("" if x.endswith(":") else "    ") + x)

    def text(self):
        import re
        for x in self.l:
            m = re.search(r"offset:(\d+)", x)
            if m:
                lim = 4096 if x.strip().startswith("buffer_") else 65536
                assert int(m.group(1)) < lim, x
        return "\n".join(self.l) + "\n"


def vr(a, n=1):
    return f"v{a}" if n == 1 else f"v[{a}:{a+n-1}]"


def srd(A, d, base, size, off=None):
    if off is None:
        A(f"s_mov_b32 s{d}, s{base}\ns_mov_b32 s{d+1}, s{base+1}")
    else:
        A(f"s_add_u32 s{d}, s{base}, {off}\ns_addc_u32 s{d+1}, s{base+1}, 0")
    A(f"s_mov_b32 s{d+2}, {size}\ns_mov_b32 s{d+3}, 0x00020000")


def S(d):
    return f"s[{d}:{d+3}]"


D = 4
CAP_T = 26
QS = 576
L_RING = 0
L_AQE = 8 * D * 2048
L_AQH = L_AQE + CAP_T * 512
L_AGG = L_AQH + CAP_T * 512
L_LIST = L_AGG + (CAP_T + 1) * 1024
L_CNT = L_LIST + 4096
L_N0 = L_CNT + 256
L_WE = L_N0 + 256
L_Q = L_WE + 8 * QS
LDS_BYTES = L_Q + 32768
ZERO_BYTES = L_LIST - L_AQE
L_XP = L_Q
L_XQ = L_Q + 16384
L_BT = L_AQE
L_BC = L_BT + 32768
assert L_BC + 2048 <= L_LIST and LDS_BYTES <= 163840 and 48 * QS <= 32768
DUMMY = 0x400000

pX, pE, pSRC, pDST, pW1, pB1, pW2, pB2, pOUT, pDBG, pWS = 4, 6, 8, 10, 12, 14, 16, 18, 20, 22, 24
s_w2 = 26
sA, sB, sC, sD, sWS, sP, sE = 28, 32, 36, 40, 44, 48, 52
(s_w, s_nb0, s_nb1, s_nn, s_T, s_T0p, s_t, s_next, s_slow, s_batch, s_ring, s_sw, s_tot,
 s_nb4, s_ringh, s_spin, s_pri, s_alt, s_xw) = range(56, 75)
s_x = 76
sM = 86
s_ret = 94
sG = 96

vU = [16, 32]
vT = 48
vH = 64
vACC = 68
vS0 = 84
vS1 = 100
vPf0, vPf1, vAqe, vAgg, vBq, vSel0, vSel1 = 116, 120, 124, 128, 132, 136, 140
vBa = 144
vOff = 176
vW2 = 176
(vC, _c1, vB2, _b1, vK0, vK1, vK2, vK3, vaAqe, vaAgg, vaList, vaP0, vaP1, vaB, vBmul, vBase, vDeg,
 vChunk8, vLane, vDum, vSt, vW2a, vaCnt) = range(228, 251)
NV = 252
vXF = 176
vXP = 160
vWF = 16
vPA = 48
vPO = 148
vXa = 145
vXr = 147
vB1 = 116
vWEr = 128
vF0 = 129
vPc = 130
vQa = 131


def mfma32(A, d, a, b, c):
    cs = "0" if c is None else vr(c, 16)
    A(f"v_mfma_f32_32x32x16_bf16 {vr(d,16)}, {vr(a,4)}, {vr(b,4)}, {cs}")


def mfma16(A, d, a, b, c):
    cs = "0" if c is None else vr(c, 4)
    A(f"v_mfma_f32_16x16x32_bf16 {vr(d,4)}, {vr(a,4)}, {vr(b,4)}, {cs}")


SPIN = None


ENC = None


def stamp(A, i):
    if ENC is not None:
        if i == 0:
            A("s_memrealtime s[100:101]\ns_waitcnt lgkmcnt(0)\ns_mov_b32 s75, s100\ns_nop 0")
        if i == ENC:
            A("s_waitcnt lgkmcnt(0)\ns_memrealtime s[100:101]\ns_waitcnt lgkmcnt(0)\ns_sub_u32 s101, s100, s75")
            A(f"v_writelane_b32 v{vSt}, s101, 0")
        if i == 15:
            u = len(A.l)
            A(f"v_readlane_b32 s3, v{vSt}, 0\ns_nop 3\ns_lshl_b32 s3, s3, 2\ns_add_u32 s3, s3, 6000")
            A(f"M_spin{u}:\ns_memrealtime s[100:101]\ns_waitcnt lgkmcnt(0)\ns_sub_u32 s100, s100, s75\ns_cmp_lt_u32 s100, s3\ns_cbranch_scc1 M_spin{u}")
    if SPIN is not None:
        if i == 0:
            A("s_memrealtime s[100:101]\ns_waitcnt lgkmcnt(0)\ns_mov_b32 s75, s100")
        elif i == SPIN[0]:
            u = len(A.l)
            A(f"M_spin{u}:\ns_memrealtime s[100:101]\ns_waitcnt lgkmcnt(0)\ns_sub_u32 s100, s100, s75\ns_cmp_lt_u32 s100, {int(SPIN[1]*100)}\ns_cbranch_scc1 M_spin{u}")
    if STAMPS:
        ins = "s_memtime" if "cyc" in OPT else "s_memrealtime"
        A(f"s_waitcnt lgkmcnt(0)\n{ins} s[100:101]\ns_waitcnt lgkmcnt(0)\nv_writelane_b32 v{vSt}, s100, {i}")


def gemm_part(A, init, nmt, xf, vm=None):
    def rd(s):
        for ct in range(2):
            for x in range(2):
                A(f"ds_read_b64_tr_b16 {vr(vWF + 8*s + 4*ct + 2*x, 2)}, v14 offset:{s*2048 + x*256 + ct*8}")
    if vm is None:
        for s in range(4):
            rd(s)
    else:
        A(f"s_waitcnt vmcnt({vm[0]})")
        rd(0)
    for s in range(4):
        if vm is None:
            A(f"s_waitcnt lgkmcnt({12 - 4*s})")
        else:
            A("s_waitcnt lgkmcnt(0)")
        k = 0
        for mt in range(nmt):
            for ct in range(2):
                d = vPA + 8 * mt + 4 * ct
                c = d if s else (None if init is None else init + 4 * ct)
                mfma16(A, d, vWF + 8 * s + 4 * ct, xf + 16 * mt + 4 * s, c)
                k += 1
                if vm is not None and k == 2 and s < 3:
                    A(f"s_waitcnt vmcnt({vm[s+1]})")
                    rd(s + 1)


def gemm_pack(A, nmt, store):
    A("s_nop 4")
    for mt in range(nmt):
        for r in range(0, 8, 2):
            a = vPA + 8 * mt + r
            A(f"v_pk_mul_f32 {vr(a,2)}, {vr(a,2)}, v[12:13]")
        for r in range(0, 8, 2):
            a = vPA + 8 * mt + r
            A(f"v_cvt_pk_bf16_f32 v{vPO + 4*mt + r//2}, v{a}, v{a+1}")
        store(mt)


def kernel(A):
    L = vLane
    SC = "sc0 sc1"
    A(f"{KN}:")
    A(f"""
    s_cmp_ge_u32 s2, 256
    s_cbranch_scc1 M_end
    s_load_dwordx16 s[4:19], s[0:1], 0
    s_load_dwordx4 s[20:23], s[0:1], 64
    s_load_dwordx2 s[24:25], s[0:1], 80
    """)
    if STAMPS or ENC is not None:
        A(f"v_mov_b32 v{vSt}, 0")
    stamp(A, 0)
    A(f"""
    v_lshrrev_b32 v2, 6, v0
    v_and_b32 v{L}, 63, v0
    v_readfirstlane_b32 s{s_w}, v2
    s_mul_i32 s{s_nb0}, s2, 160069
    s_add_u32 s{s_nb1}, s{s_nb0}, {160069 + 4049}
    s_add_u32 s{s_nb0}, s{s_nb0}, 4049
    s_lshr_b32 s{s_nb0}, s{s_nb0}, 12
    v_lshrrev_b32 v7, 4, v{L}
    v_and_b32 v8, 15, v{L}
    v_xor_b32 v8, v8, v7
    s_lshl_b32 s{s_ring}, s{s_w}, 13
    s_and_b32 s3, s{s_w}, 1
    s_lshl_b32 s3, s3, 3
    v_xor_b32 v8, s3, v8
    v_lshlrev_b32 v8, 4, v8
    v_lshl_add_u32 v8, v7, 8, v8
    s_lshl_b32 s{s_xw}, s{s_w}, 11
    v_add_u32 v{vXa}, s{s_xw}, v8
    v_xor_b32 v{vXa+1}, 64, v{vXa}
    v_lshrrev_b32 v10, 2, v{L}
    v_and_b32 v11, 3, v{L}
    v_lshlrev_b32 v11, 4, v11
    v_lshl_add_u32 v10, v10, 9, v11
    s_lshl_b32 s3, s{s_w}, 6
    v_add_u32 v10, s3, v10
    v_lshlrev_b32 v2, 2, v0
    s_waitcnt lgkmcnt(0)
    s_add_u32 s{pWS}, s{pWS}, {WS_BASE}
    s_addc_u32 s{pWS+1}, s{pWS+1}, 0
    s_cmp_ge_u32 s2, {NCH}
    s_cbranch_scc1 M_pwg
    """)

    def wdma(base):
        for ii in range(8):
            A(f"""
            s_add_u32 m0, s{s_ring}, {ii*1024}
            s_mov_b32 s{s_x+1}, {base + ii*8192}
            buffer_load_dwordx4 v10, {S(sB)}, s{s_x+1} offen lds
            """)

    def xdma(ldsbase, rowreg):
        A(f"""
        s_add_u32 m0, s{s_xw}, {ldsbase}
        s_lshl_b32 s3, s{rowreg}, 8
        buffer_load_dwordx4 v{vXa}, {S(sD)}, s3 offen lds
        buffer_load_dwordx4 v{vXa+1}, {S(sD)}, s3 offen offset:1024 lds
        """)

    def gaddr():
        A(f"""
        v_lshrrev_b32 v3, 4, v{L}        ; q
        v_and_b32 v4, 15, v{L}           ; n
        v_xor_b32 v5, v3, v4
        v_lshlrev_b32 v5, 4, v5
        v_lshl_add_u32 v{vXr}, v4, 8, v5
        v_bfe_u32 v5, v{L}, 2, 2         ; r
        v_lshl_add_u32 v6, v3, 3, v5     ; 8q + r
        v_lshlrev_b32 v6, 6, v6
        v_and_b32 v7, 3, v{L}            ; c
        v_lshl_add_u32 v6, v7, 4, v6
        v_add_u32 v14, s{s_ring}, v6
        v_mov_b32 v12, {f32(-LOG2E):#x}
        v_mov_b32 v13, v12
        """)

    def consts():
        srd(A, sP, pWS, TABB + 4096, off=WS_P - 4096)
        srd(A, sE, pE, E * 8)
        A(f"""
        s_lshr_b32 s{s_nb1}, s{s_nb1}, 12
        s_min_u32 s{s_nb1}, s{s_nb1}, {N}
        s_sub_u32 s{s_nn}, s{s_nb1}, s{s_nb0}
        s_lshl_b32 s{s_nb4}, s{s_nb0}, 2
        s_add_u32 s{s_ringh}, s{s_ring}, 4096
        s_mov_b32 s{s_slow}, 0
        s_lshl_b32 s{s_w2}, s{s_w}, 13
        s_add_u32 s{s_w2}, s{s_w2}, {WS_W2F}
        s_add_u32 s{s_w2+1}, s{s_w2}, 4096
        v_lshrrev_b32 v3, 4, v{L}        ; q
        v_bfe_u32 v5, v{L}, 2, 2         ; r
        v_and_b32 v7, 3, v{L}            ; c
        v_xor_b32 v9, v7, v3
        v_lshlrev_b32 v9, 4, v9
        s_lshl_b32 s3, s{s_w}, 6
        s_add_u32 s{s_x}, s3, 1024
        v_add_u32 v{vK3}, s{s_x}, v9
        v_add_u32 v{vK2}, 1024, v{vK3}
        v_add_u32 v{vK1}, 2048, v{vK3}
        v_add_u32 v{vK0}, 3072, v{vK3}
        v_lshrrev_b32 v1, 5, v{L}        ; h
        v_mul_u32_u24 v5, {QS}, v5
        v_and_b32 v3, 1, v3
        v_lshl_add_u32 v5, v3, 5, v5
        v_lshl_add_u32 v5, v7, 3, v5
        s_add_u32 s3, s3, {L_WE}
        v_add_u32 v5, s3, v5
        v_mul_u32_u24 v6, {8*QS}, v1
        v_add_u32 v{vaB}, v5, v6
        v_mul_u32_u24 v{vBmul}, {QS//4}, v1
        v_and_b32 v3, 31, v{L}           ; m
        v_lshrrev_b32 v9, 4, v3
        v_and_b32 v8, 3, v3
        v_lshl_add_u32 v9, v8, 1, v9
        v_and_b32 v8, 8, v3
        v_add_u32 v9, v9, v8
        v_and_b32 v8, 4, v3
        v_lshl_add_u32 v9, v8, 2, v9
        v_lshlrev_b32 v9, 4, v9
        v_mul_u32_u24 v8, {L_AQH - L_AQE}, v1
        v_add_u32 v9, v9, v8
        v_add_u32 v{vaAqe}, {L_AQE}, v9
        v_lshrrev_b32 v9, 2, v{L}
        v_and_b32 v8, 3, v9
        v_lshlrev_b32 v8, 1, v8
        v_and_b32 v11, 8, v9
        v_add_u32 v8, v8, v11
        v_and_b32 v11, 4, v9
        v_lshl_add_u32 v8, v11, 2, v8
        v_lshlrev_b32 v8, 2, v8
        v_add_u32 v{vaList}, {L_LIST}, v8
        v_bfe_u32 v9, v3, 2, 2
        v_xor_b32 v9, v9, v1
        v_lshlrev_b32 v9, 4, v9
        v_lshl_add_u32 v9, v3, 6, v9
        v_add_u32 v{vaP0}, s{s_ring}, v9
        v_xor_b32 v{vaP1}, 32, v{vaP0}
        v_and_b32 v9, 1, v3
        v_lshlrev_b32 v9, 4, v9
        v_mov_b32 v8, 0x3f80
        v_lshlrev_b32 v9, v9, v8
        v_lshrrev_b32 v8, 1, v3
        v_lshlrev_b32 v11, 2, v1
        v_sub_u32 v8, v8, v11
        """)
        for x in range(4):
            A(f"v_cmp_eq_u32 s[{s_x}:{s_x+1}], {x}, v8\nv_cmp_eq_u32 vcc, {8+x}, v8\ns_nop 0")
            A(f"v_cndmask_b32 v{vSel0+x}, 0, v9, s[{s_x}:{s_x+1}]\nv_cndmask_b32 v{vSel1+x}, 0, v9, vcc")
        A(f"""
        v_mov_b32 v{vC}, {f32(2.0**-CEXP):#x}
        v_mov_b32 v{vC+1}, {f32(2.0**-CEXP):#x}
        v_mov_b32 v{vDeg}, 0
        v_mov_b32 v{vDum}, 0x80000000
        v_lshrrev_b32 v9, 3, v0
        v_mul_u32_u24 v{vChunk8}, {CHE*8}, v9
        v_lshlrev_b32 v{vW2a}, 4, v{L}
        v_lshlrev_b32 v9, 2, v{L}
        v_add_u32 v{vaCnt}, {L_CNT}, v9
        """)
        for r in range(16):
            A(f"v_mov_b32 v{vS0+r}, 0\nv_mov_b32 v{vS1+r}, 0")

    def zerofill():
        A(f"""
        v_mov_b32 v40, 0
        v_mov_b32 v41, 0
        v_mov_b32 v42, 0
        v_mov_b32 v43, 0
        v_mov_b32 v44, {DUMMY}
        v_mov_b32 v45, {DUMMY}
        v_lshlrev_b32 v1, 3, v0
        v_add_u32 v1, {L_LIST}, v1
        ds_write_b64 v1, v[44:45]
        ds_write_b32 v{vaCnt}, v40
        ds_write_b32 v{vaCnt}, v40 offset:256
        v_lshlrev_b32 v1, 4, v0
        v_add_u32 v1, {L_AQE}, v1
        """)
        nz = ZERO_BYTES // 8192
        rem = ZERO_BYTES - nz * 8192
        for q in range(nz):
            A(f"ds_write_b128 v1, v[40:43] offset:{q*8192}")
        if rem:
            A(f"""
            v_cmp_gt_u32 vcc, {rem//16}, v0
            s_and_saveexec_b64 s[{s_x}:{s_x+1}], vcc
            ds_write_b128 v1, v[40:43] offset:{nz*8192}
            s_mov_b64 exec, s[{s_x}:{s_x+1}]
            """)

    def small():
        srd(A, sC, pB1, 512)
        srd(A, sA, pB2, 256)
        A(f"""
        v_lshrrev_b32 v3, 4, v{L}
        v_lshlrev_b32 v4, 4, v3
        s_lshl_b32 s3, s{s_w}, 6
        buffer_load_dwordx4 {vr(vB1,4)}, v4, {S(sC)}, s3 offen
        v_lshlrev_b32 v5, 2, v0
        s_mov_b32 s3, {256*512}
        buffer_load_dword v{vWEr}, v5, {S(sB)}, s3 offen
        v_lshlrev_b32 v4, 3, v3
        s_lshl_b32 s3, s{s_w}, 5
        buffer_load_dwordx2 {vr(vB2,2)}, v4, {S(sA)}, s3 offen
        """)

    def f0load():
        A(f"buffer_load_dword v{vF0}, off, {S(sG)}, 0 offset:128 sc1")

    def f0wait(tag):
        A(f"""
        s_mov_b32 s{s_spin}, 0x400000
        M_pf{tag}:
        v_cmp_eq_u32 vcc, 0, v{vF0}
        s_cbranch_vccz M_pfd{tag}
        s_sub_u32 s{s_spin}, s{s_spin}, 1
        s_cbranch_scc1 M_pfd{tag}
        buffer_load_dword v{vF0}, off, {S(sG)}, 0 offset:128 sc1
        s_waitcnt vmcnt(0)
        s_branch M_pf{tag}
        M_pfd{tag}:
        """)

    def rpoll(tag, base, want, first=True):
        A(f"""
        s_and_b32 s3, s2, 15
        s_lshl_b32 s3, s3, 7
        s_add_u32 s3, s3, {base}
        s_mov_b32 s{s_spin}, 0x400000
        s_mov_b64 exec, 1
        M_rp{tag}:
        v_mov_b32 v9, 0
        buffer_atomic_add v9, off, {S(sWS)}, s3 sc0 sc1
        s_sub_u32 s{s_spin}, s{s_spin}, 1
        s_cbranch_scc1 M_rpd{tag}
        s_waitcnt vmcnt(0)
        v_cmp_ne_u32 vcc, {want}, v9
        s_cbranch_vccnz M_rp{tag}
        M_rpd{tag}:
        s_mov_b64 exec, -1
        """)

    srd(A, sWS, pWS, WS_END)
    A(f"""
    v_lshlrev_b32 v3, 7, v0
    s_cmp_eq_u32 s2, 0
    s_cselect_b32 s3, 48, 0
    v_cmp_gt_u32 vcc, s3, v0
    v_mov_b32 v4, 0x40000000
    v_mov_b32 v8, 0
    v_cndmask_b32 v3, v4, v3, vcc
    s_mul_i32 s3, s2, {CHE*4}
    buffer_store_dword v8, v3, {S(sWS)}, 0 offen {SC}
    """)
    srd(A, sC, pDST, CHE * 4, off="s3")
    srd(A, sD, pSRC, CHE * 4, off="s3")
    A(f"s_mov_b32 s{s_x+1}, 4096\ns_mov_b32 s{s_x+2}, 8192")
    vD, vS = 164, 169
    so = ["0", "0", f"s{s_x+1}", f"s{s_x+1}", f"s{s_x+2}"]
    for k in range(5):
        A(f"buffer_load_dword v{vD+k}, v2, {S(sC)}, {so[k]} offen offset:{(k & 1)*2048}")
    for k in range(5):
        A(f"buffer_load_dword v{vS+k}, v2, {S(sD)}, {so[k]} offen offset:{(k & 1)*2048}")
    srd(A, sC, pW2, 256 * 256)
    srd(A, sB, pW1, 260 * 512)
    A(f"""
    v_lshlrev_b32 v3, 4, v0
    v_add_u32 v15, {L_BT}, v3
    v_add_u32 v2, {L_BC}, v2
    v_mov_b32 v4, -1
    v_mov_b32 v5, -1
    v_mov_b32 v6, -1
    v_mov_b32 v7, -1
    """)
    for q in range(4):
        A(f"ds_write_b128 v15, v[4:7] offset:{q*8192}")
    A(f"""
    ds_write_b32 v2, v8
    v_mov_b32 v9, 1
    """)
    srd(A, sD, pX, N * 256)
    srd(A, sG, pDBG, 256)
    stamp(A, 1)
    A(f"""
    s_waitcnt lgkmcnt(0)
    s_barrier
    s_waitcnt vmcnt(5)
    """)
    vb, va, vk = 16, 21, 26
    for k in range(5):
        A(f"v_mul_u32_u24 v{vb+k}, 1677, v{vD+k}")
        A(f"v_lshrrev_b32 v{vb+k}, 16, v{vb+k}")
        A(f"v_lshlrev_b32 v{va+k}, 2, v{vb+k}")
        A(f"v_add_u32 v{va+k}, {L_BC}, v{va+k}")
        if k == 4:
            A(f"v_cmp_gt_u32 vcc, {CHE - 2048}, v0\ns_and_saveexec_b64 s[{s_x+2}:{s_x+3}], vcc")
        A(f"ds_add_rtn_u32 v{vk+k}, v{va+k}, v9")
    A(f"""
    s_mov_b64 s[{s_x+4}:{s_x+5}], exec
    s_or_b32 s3, s2, s{s_w}
    s_cbranch_scc1 M_nf0
    s_mov_b64 exec, 1
    buffer_store_dword v9, off, {S(sG)}, 0 offset:128 {SC}
    M_nf0:
    s_mov_b64 exec, -1
    s_lshl_b32 s3, s2, 8
    v_add_u32 v3, s3, v0
    v_bfe_u32 v4, v3, 8, 3           ; s
    v_lshlrev_b32 v4, 5, v4
    v_bfe_u32 v5, v3, 6, 1           ; ab
    v_lshl_add_u32 v4, v5, 4, v4
    v_bfe_u32 v5, v3, 1, 1           ; e>>2
    v_lshl_add_u32 v4, v5, 3, v4
    v_bfe_u32 v5, v3, 7, 1           ; h
    v_lshl_add_u32 v4, v5, 2, v4
    v_and_b32 v5, 1, v3
    v_lshl_add_u32 v4, v5, 1, v4     ; hidden
    v_lshlrev_b32 v4, 8, v4
    v_lshrrev_b32 v5, 11, v3         ; wo
    v_lshl_add_u32 v4, v5, 5, v4
    v_bfe_u32 v5, v3, 2, 4           ; m
    v_lshl_add_u32 v4, v5, 1, v4
    v_lshrrev_b32 v5, 8, v0
    v_lshl_or_b32 v4, v5, 30, v4
    v_lshlrev_b32 v3, 2, v3
    v_lshl_or_b32 v176, v5, 30, v3
    buffer_load_ushort v174, v4, {S(sC)}, 0 offen
    buffer_load_ushort v175, v4, {S(sC)}, 0 offen offset:256
    """)
    xdma(L_XQ, s_nb0)
    small()
    A("s_waitcnt vmcnt(7)")
    for k in range(5):
        A(f"""
        v_and_b32 v{vD+k}, 63, v{vD+k}
        v_lshl_or_b32 v{vS+k}, v{vD+k}, 14, v{vS+k}
        v_add_u32 v{vD+k}, {512*k}, v0
        v_lshl_or_b32 v{vS+k}, v{vD+k}, 20, v{vS+k}
        v_lshlrev_b32 v{va+k}, 7, v{vb+k}
        v_add_u32 v{va+k}, {L_BT}, v{va+k}
        """)
    for k in range(5):
        if k == 4:
            A(f"s_mov_b64 exec, s[{s_x+4}:{s_x+5}]")
        A(f"""
        s_waitcnt lgkmcnt({4-k})
        v_add_u32 v4, v{vk+k}, v{vb+k}
        v_and_b32 v4, 7, v4
        v_lshrrev_b32 v5, 3, v{vk+k}
        v_lshl_add_u32 v4, v4, 2, v5
        v_lshl_add_u32 v{va+k}, v4, 2, v{va+k}
        v_cmp_gt_u32 vcc, 32, v{vk+k}
        s_and_saveexec_b64 s[{s_x+6}:{s_x+7}], vcc
        ds_write_b32 v{va+k}, v{vS+k}
        s_mov_b64 exec, s[{s_x+6}:{s_x+7}]
        """)
    A(f"""
    s_mov_b64 exec, -1
    v_lshrrev_b32 v4, 3, v0
    v_lshlrev_b32 v5, 2, v4
    v_add_u32 v5, {L_BC}, v5
    v_and_b32 v6, 7, v0
    v_lshlrev_b32 v7, 13, v4
    v_lshl_add_u32 v7, v6, 4, v7
    s_lshl_b32 s3, s2, 7
    s_add_u32 s3, s3, {WS_SLOT}
    v_add_u32 v7, s3, v7
    v_cmp_eq_u32 s[{s_x+2}:{s_x+3}], 7, v6
    v_mov_b32 v8, -2
    s_mov_b32 s{s_x+4}, 0
    s_mov_b32 s{s_x+5}, {64*8192}
    s_mov_b32 s{s_x+6}, {128*8192}
    s_mov_b32 s{s_x+7}, {192*8192}
    s_waitcnt lgkmcnt(0)
    s_barrier
    """)
    stamp(A, 2)
    for q in range(4):
        A(f"ds_read_b128 {vr(16+4*q,4)}, v15 offset:{q*8192}")
        A(f"ds_read_b32 v{32+q}, v5 offset:{q*256}")
    A(f"s_mov_b32 s3, {WS_W2F}")
    for q in range(4):
        A(f"""
        s_waitcnt lgkmcnt({6-2*q})
        v_cmp_lt_u32 vcc, 32, v{32+q}
        s_and_b64 vcc, vcc, s[{s_x+2}:{s_x+3}]
        s_nop 1
        v_cndmask_b32 v{19+4*q}, v{19+4*q}, v8, vcc
        buffer_store_dwordx4 {vr(16+4*q,4)}, v7, {S(sWS)}, s{s_x+4+q} offen {SC}
        """)
    A(f"s_waitcnt vmcnt(9)\nv_lshl_or_b32 v174, v175, 16, v174\nbuffer_store_dword v174, v176, {S(sWS)}, s3 offen {SC}")
    stamp(A, 3)
    f0load()
    gaddr()
    consts()
    A(f"""
    s_waitcnt vmcnt(0)
    s_barrier
    s_cmp_lg_u32 s{s_w}, 0
    s_cbranch_scc1 M_nlast2
    """)
    stamp(A, 16)
    A(f"""
    s_and_b32 s3, s2, 1
    s_lshl_b32 s3, s3, 6
    v_mov_b32 v9, 1
    s_mov_b64 exec, 1
    buffer_atomic_add v9, off, {S(sG)}, s3 sc0 sc1
    s_mov_b64 exec, -1
    """)
    f0wait("b")
    A(f"""
    s_waitcnt vmcnt(0)
    v_readfirstlane_b32 s3, v9
    s_cmp_lg_u32 s3, {NCH//2 - 1}
    s_cbranch_scc1 M_nlast
    v_lshlrev_b32 v8, 7, v{L}
    v_mov_b32 v9, 1
    s_mov_b64 exec, 0xffff
    buffer_atomic_add v9, v8, {S(sWS)}, 0 offen offset:{WS_RB} sc1
    s_mov_b64 exec, -1
    M_nlast:
    """)
    stamp(A, 17)
    A("M_nlast2:")
    wdma(128 * 512)
    zerofill()
    A("s_branch M_join")
    A("M_pwg:")
    srd(A, sD, pX, N * 256)
    srd(A, sB, pW1, 260 * 512)
    A(f"s_sub_u32 s{s_t}, s2, {NCH}\ns_mul_i32 s{s_t}, s{s_t}, {PROWS}")
    xdma(L_XP, s_t)
    A(f"""
    s_and_b32 s3, s2, -8
    s_add_u32 s3, s3, s{s_w}
    s_and_b32 s3, s3, 127
    s_lshl_b32 s3, s3, 10
    v_lshlrev_b32 v3, 4, v{L}
    buffer_load_dwordx4 v[16:19], v3, {S(sB)}, s3 offen
    """)
    srd(A, sWS, pWS, WS_END)
    srd(A, sG, pDBG, 256)
    consts()
    zerofill()
    wdma(0)
    stamp(A, 1)
    gaddr()
    A(f"""
    v_add_u32 v15, {L_XP}, v{vXr}
    v_add_u32 v11, s{s_t}, v4
    v_lshlrev_b32 v11, 9, v11
    v_lshl_add_u32 v11, v3, 4, v11
    s_lshl_b32 s3, s{s_w}, 6
    v_add_u32 v11, s3, v11
    s_add_u32 s3, s{s_t}, {PROWS}
    s_min_u32 s3, s3, {N}
    s_lshl_b32 s3, s3, 9
    """)
    srd(A, sD, pWS, "s3", off=WS_P)
    A(f"""
    s_mov_b32 s{s_x+4}, 0
    s_mov_b32 s{s_x+5}, 8192
    s_mov_b32 s{s_x+6}, 16384
    s_mov_b32 s{s_x+7}, 24576
    s_waitcnt vmcnt(8)
    s_barrier
    """)
    stamp(A, 2)
    for s in range(4):
        if s:
            A(f"v_xor_b32 v4, {s << 6:#x}, v15")
        for mt in range(4):
            A(f"ds_read_b128 {vr(vXP + 16*mt + 4*s, 4)}, v{4 if s else 15} offset:{mt*4096}")
    gemm_part(A, None, 4, vXP, vm=[6, 4, 2, 0])
    stamp(A, 18)
    gemm_pack(A, 4, lambda mt: A(f"buffer_store_dwordx4 {vr(vPO+4*mt,4)}, v11, {S(sD)}, s{s_x+4+mt} offen {SC}"))
    stamp(A, 3)
    srd(A, sD, pX, N * 256)
    A("s_barrier")
    xdma(L_XQ, s_nb0)
    small()
    f0load()
    wdma(128 * 512)
    A("s_waitcnt vmcnt(8)")
    A("M_join:")
    stamp(A, 4)
    A(f"""
    v_lshlrev_b32 v8, 16, v{vWEr}
    v_and_b32 v9, 0xffff0000, v{vWEr}
    v_mul_f32 v8, v12, v8
    v_mul_f32 v9, v12, v9
    v_cvt_pk_bf16_f32 v10, v8, v9
    v_lshrrev_b32 v4, 7, v0          ; f
    v_lshlrev_b32 v5, 16, v10
    v_and_b32 v6, 0xffff0000, v10
    v_sub_f32 v8, v8, v5
    v_sub_f32 v9, v9, v6
    v_cvt_pk_bf16_f32 v11, v8, v9
    v_lshlrev_b32 v5, 2, v0
    v_lshl_add_u32 v5, v4, 6, v5
    v_add_u32 v5, {L_WE}, v5
    ds_write_b32 v5, v10
    ds_write_b32 v5, v11 offset:{4*QS}
    """)
    for x in range(4):
        A(f"v_lshlrev_b32 v{vB1+4+2*x}, 16, v{vB1+x}\nv_and_b32 v{vB1+5+2*x}, 0xffff0000, v{vB1+x}")
    stamp(A, 5)
    A(f"""
    s_cmp_lg_u32 s{s_w}, 0
    s_cbranch_scc1 M_w1
    """)
    f0wait("a")
    rpoll("a", WS_RB, 2)
    A(f"""
    M_w1:
    v_add_u32 v15, {L_XQ}, v{vXr}
    s_lshl_b32 s{s_x}, s2, 13
    s_add_u32 s{s_x}, s{s_x}, {WS_SLOT}
    v_lshlrev_b32 v1, 4, v0
    s_and_b32 s3, s2, 15
    s_lshl_b32 s3, s3, 7
    v_mov_b32 v{vPc}, 1
    s_cmp_lg_u32 s{s_w}, 0
    s_waitcnt lgkmcnt(0)
    s_barrier
    s_cbranch_scc1 M_w1b
    s_mov_b64 exec, 1
    buffer_atomic_add v{vPc}, off, {S(sWS)}, s3 sc0 sc1
    s_mov_b64 exec, -1
    M_w1b:
    buffer_load_dwordx4 v[4:7], v1, {S(sWS)}, s{s_x} offen {SC}
    """)
    stamp(A, 6)
    for s in range(4):
        if s:
            A(f"v_xor_b32 v8, {s << 6:#x}, v15")
        for mt in range(3):
            A(f"ds_read_b128 {vr(vXF + 16*mt + 4*s, 4)}, v{8 if s else 15} offset:{mt*4096}")
    A("s_waitcnt vmcnt(2) lgkmcnt(0)" )
    A(f"s_cmp_eq_u32 s{s_w}, 0\ns_cbranch_scc1 M_w1c\ns_waitcnt vmcnt(1)\nM_w1c:")
    gemm_part(A, vB1 + 4, 3, vXF)
    A(f"""
    v_and_b32 v8, 15, v{L}           ; n
    v_lshrrev_b32 v9, 4, v{L}        ; q
    v_lshlrev_b32 v9, 4, v9
    v_mul_u32_u24 v8, {QS}, v8
    s_lshl_b32 s3, s{s_w}, 6
    s_add_u32 s3, s3, {L_Q}
    v_add3_u32 v{vQa}, v8, v9, s3
    """)
    A(f"""
    s_cmp_lg_u32 s{s_w}, 0
    s_cbranch_scc1 M_tk
    s_waitcnt vmcnt(1)
    v_readfirstlane_b32 s3, v{vPc}
    s_cmp_lg_u32 s3, 15
    s_cbranch_scc1 M_tk
    v_lshlrev_b32 v8, 7, v{L}
    v_mov_b32 v9, 1
    s_mov_b32 s3, {WS_RP}
    s_mov_b64 exec, 0xffff
    buffer_atomic_add v9, v8, {S(sWS)}, s3 offen sc1
    s_mov_b64 exec, -1
    s_waitcnt vmcnt(1)
    s_mov_b32 s{s_alt}, 1
    s_branch M_tk2
    M_tk:
    s_mov_b32 s{s_alt}, 0
    M_tk2:
    """)
    gemm_pack(A, 3, lambda mt: None)
    stamp(A, 7)
    A(f"""
    s_cmp_lg_u32 s{s_alt}, 0
    s_cbranch_scc1 M_recs
    s_waitcnt vmcnt(0)
    M_recs:
    """)
    stamp(A, 8)
    vD4, vRk, vEo, vEv, vBs, vTa = 16, 20, 24, 28, 36, 40
    A(f"s_mov_b32 s{s_x}, 0xfff00000\nv_mov_b32 v1, 1")
    for j in range(4):
        A(f"v_cmp_gt_u32 s[{sM+2*j}:{sM+2*j+1}], s{s_x}, v{4+j}")
    def egather(tag):
        for j in range(4):
            A(f"""
            s_mov_b64 exec, s[{sM+2*j}:{sM+2*j+1}]
            s_cbranch_execz M_eg{tag}_{j}
            buffer_load_dwordx2 {vr(vEv+2*j,2)}, v{vEo+j}, {S(sE)}, 0 offen
            M_eg{tag}_{j}:
            """)
        A("s_mov_b64 exec, -1")

    for j in range(4):
        A(f"""
        v_lshrrev_b32 v{vEo+j}, 20, v{4+j}
        v_lshl_add_u32 v{vEo+j}, v{vEo+j}, 3, v{vChunk8}
        """)
    for j in range(4):
        A(f"""
        s_mov_b64 exec, s[{sM+2*j}:{sM+2*j+1}]
        s_cbranch_execz M_r1_{j}
        v_lshrrev_b32 v{vD4+j}, 12, v{4+j}
        v_subrev_u32 v{vD4+j}, s{s_nb4}, v{vD4+j}
        v_and_b32 v{vD4+j}, 0xfc, v{vD4+j}
        v_add_u32 v8, {L_CNT}, v{vD4+j}
        ds_add_rtn_u32 v{vRk+j}, v8, v1
        v_and_b32 v{4+j}, 0x3fff, v{4+j}
        M_r1_{j}:
        """)
        if j == 2:
            A(f"""
            s_mov_b64 exec, -1
            v_cmp_eq_u32 vcc, -2, v7
            s_and_b64 exec, exec, vcc
            s_cbranch_execz M_nomark
            v_mov_b32 v8, {L_CNT + 63*4}
            v_mov_b32 v9, 0x10000
            ds_add_u32 v8, v9
            M_nomark:
            """)
    A(f"""
    s_mov_b64 exec, -1
    """)
    egather("a")
    A(f"""
    s_mov_b32 s{s_alt}, 0
    s_mov_b32 s{s_sw}, 0
    v_lshlrev_b32 v9, 4, v{L}
    v_add_u32 v{vaAgg}, {L_AGG}, v9
    v_lshlrev_b32 v11, 2, v{L}
    v_add_u32 v11, 32, v11
    s_waitcnt lgkmcnt(0)
    s_barrier
    ds_read_b32 v8, v{vaCnt}
    s_cmp_lg_u32 s{s_slow}, 0
    s_cbranch_scc1 M_noq
    """)
    for mt in range(3):
        A(f"ds_write_b128 v{vQa}, {vr(vPO+4*mt,4)} offset:{mt*16*QS}")
    A("M_noq:")
    for r in range(16):
        A(f"v_mov_b32 v{vACC+r}, 0")
    A(f"""
    s_waitcnt lgkmcnt(3)
    s_cmp_eq_u32 s{s_slow}, 0
    s_cbranch_scc1 M_noq2
    s_waitcnt lgkmcnt(0)
    M_noq2:
    v_add_u32 v9, 1, v8
    v_and_b32 v9, -2, v9
    v_mov_b32 v10, v9
    v_mov_b32 v{vH}, 0
    v_mov_b32 v{vH+1}, 0
    v_add_u32_dpp v10, v10, v10 row_shr:1 row_mask:0xf bank_mask:0xf bound_ctrl:0
    v_mov_b32 v{vH+2}, 0
    v_mov_b32 v{vH+3}, 0
    v_add_u32_dpp v10, v10, v10 row_shr:2 row_mask:0xf bank_mask:0xf bound_ctrl:0
    v_mov_b32 v{vAgg}, 0
    v_mov_b32 v{vAgg+1}, 0
    v_add_u32_dpp v10, v10, v10 row_shr:4 row_mask:0xf bank_mask:0xf bound_ctrl:0
    s_nop 1
    v_add_u32_dpp v10, v10, v10 row_shr:8 row_mask:0xf bank_mask:0xf bound_ctrl:0
    s_nop 1
    v_add_u32_dpp v10, v10, v10 row_bcast:15 row_mask:0xa bank_mask:0xf
    s_nop 1
    v_add_u32_dpp v10, v10, v10 row_bcast:31 row_mask:0xc bank_mask:0xf
    s_nop 0
    v_sub_u32 v{vBase}, v10, v9
    v_readlane_b32 s{s_tot}, v10, 63
    M_derive:
    """)
    for j in range(4):
        A(f"ds_bpermute_b32 v{vBs+j}, v{vD4+j}, v{vBase}")
    A(f"""
    ds_bpermute_b32 v12, v11, v{vBase}
    s_cmp_gt_u32 s{s_tot}, {CAP_T*32}
    s_cbranch_scc1 M_goslow
    v_readlane_b32 s{s_T0p}, v{vBase}, 32
    s_add_u32 s{s_T}, s{s_tot}, 31
    s_lshr_b32 s{s_T}, s{s_T}, 5
    v_add3_u32 v13, v{vBase}, v9, 31
    v_and_b32 v13, -32, v13                ; end of the tile that holds node i's last slot
    s_waitcnt lgkmcnt(0)
    v_cmp_gt_u32 vcc, v13, v12
    v_cmp_ne_u32 s[{s_x}:{s_x+1}], s{s_tot}, v12
    s_andn2_b32 s{s_x+1}, vcc_lo, s{s_alt}
    s_and_b32 s{s_x}, s{s_x}, s{s_x+1}
    s_cbranch_scc1 M_align
    """)
    for j in range(4):
        A(f"""
        s_mov_b64 exec, s[{sM+2*j}:{sM+2*j+1}]
        s_cbranch_execz M_r2_{j}
        v_add_u32 v{vRk+j}, v{vRk+j}, v{vBs+j}
        v_lshlrev_b32 v9, 2, v{vRk+j}
        v_add_u32 v9, {L_LIST}, v9
        ds_write_b32 v9, v{4+j}
        v_lshrrev_b32 v9, 3, v{vRk+j}
        v_and_b32 v10, 31, v{vRk+j}
        v_and_b32 v9, -4, v9
        v_cmp_eq_u32 vcc, 0, v10
        v_add_u32 v{vTa+j}, {L_N0}, v9
        s_and_b64 exec, exec, vcc
        ds_write_b32 v{vTa+j}, v{vD4+j}
        M_r2_{j}:
        """)
    A(f"""
    s_mov_b64 exec, -1
    s_cmp_lt_u32 s{s_T0p}, s{s_tot}
    s_cselect_b32 s{s_x}, 5, 31
    s_cselect_b32 s{s_x+1}, 1, 0x7fffffff
    s_lshr_b32 s{s_T0p}, s{s_T0p}, s{s_x}
    s_add_u32 s{s_T0p}, s{s_T0p}, s{s_x+1}
    v_add_u32 v{vDeg}, v{vDeg}, v8
    s_mul_i32 s{s_pri}, s{s_T}, {PRIO_NUM}
    s_lshr_b32 s{s_pri}, s{s_pri}, 5
    s_cmp_lt_u32 s{s_w}, 4
    s_cselect_b32 s{s_pri}, 0x7fffffff, s{s_pri}
    s_sub_u32 s{s_next}, s{s_T}, 1
    s_min_i32 s{s_next}, s{s_next}, s{s_T0p}
    s_min_i32 s{s_next}, s{s_next}, s{s_pri}
    v_mov_b32 v1, 0x3f80
    v_mov_b32 v14, {L_N0}
    s_cmp_lg_u32 s{s_w}, 0
    s_cbranch_scc1 M_w2
    """)
    rpoll("b", WS_RP, 16)
    A(f"""
    M_w2:
    v_mov_b32 v{vAgg+2}, 0
    v_mov_b32 v{vAgg+3}, 0
    s_waitcnt lgkmcnt(0)
    s_barrier
    """)
    stamp(A, 9)
    PSC = "sc1" if "psc1" in OPT else ""

    def dma(t, jj):
        r = vOff + 2 * t + jj if t < CAP_T else vDum
        return f"buffer_load_dwordx4 v{r}, {S(sP)}, 0 offen offset:{(t & 1)*2048 + jj*1024} {PSC} lds"

    def m0set(t):
        return f"s_mov_b32 m0, s{s_ring if (t % 4) < 2 else s_ringh}"

    def offs(lo, hi, after=None):
        for t0 in range(lo, hi, 8):
            ts = range(t0, min(t0 + 8, hi))
            for t in ts:
                A(f"ds_read_b64 {vr(vOff+2*t,2)}, v{vaList} offset:{t*128}")
            for i, t in enumerate(ts):
                A(f"s_waitcnt lgkmcnt({len(ts)-1-i})")
                for jj in range(2):
                    A(f"v_lshl_add_u32 v{vOff+2*t+jj}, v{vOff+2*t+jj}, 9, v{vK0 + 2*(t & 1) + jj}")
                if after:
                    after(t)

    def first_dma(t):
        if t < 2:
            A(dma(t, 0) + "\n" + dma(t, 1))
    A(m0set(0))
    offs(0, 6, first_dma)
    for j in range(4):
        A(f"ds_read_b32 v{vBs+j}, v{vTa+j}")
    for g in range(7):
        A(f"ds_read_b128 {vr(vBa+4*g,4)}, v14 offset:{16*g}")
    A(f"{m0set(2)}\ns_waitcnt vmcnt(4) lgkmcnt(7)")
    for j in range(4):
        A(f"""
        s_mov_b64 exec, s[{sM+2*j}:{sM+2*j+1}]
        s_cbranch_execz M_r3_{j}
        v_lshlrev_b32 v8, 4, v{vRk+j}
        v_add_u32 v8, {L_AQE}, v8
        ds_write2_b64 v8, {vr(vEv+2*j,2)}, {vr(vEv+2*j,2)} offset0:0 offset1:1
        v_sub_u32 v9, v{vD4+j}, v{vBs+j}
        v_lshrrev_b32 v9, 1, v9
        v_add_u32 v9, v9, v8
        ds_write_b16 v9, v1 offset:{L_AQH - L_AQE}
        v_and_b32 v9, 0x80, v{vD4+j}
        v_add_u32 v9, v9, v{vD4+j}
        v_and_b32 v10, 14, v{vRk+j}
        v_lshl_add_u32 v9, v9, 2, v10
        v_lshrrev_b32 v10, 4, v{vRk+j}
        v_lshl_add_u32 v9, v10, 9, v9
        v_add_u32 v9, {L_AGG}, v9
        ds_write_b16 v9, v1
        M_r3_{j}:
        """)
    A("s_mov_b64 exec, -1")
    A("s_waitcnt lgkmcnt(0)\ns_barrier")
    A(dma(2, 0) + "\n" + dma(2, 1) + "\n" + dma(3, 0) + "\n" + dma(3, 1))
    stamp(A, 10)
    for t in range(CAP_T):
        A(f"v_mad_u32_u24 v{vBa+t}, v{vBa+t}, v{vBmul}, v{vaB}")
    A(f"""
    s_cmp_eq_u32 s{s_T}, 0
    s_cbranch_scc1 M_bend
    """)
    offs(6, CAP_T)
    stamp(A, 11)

    def bread(t):
        r = vBa + min(t, CAP_T - 1)
        return [f"ds_read_b64_tr_b16 {vr(vBq,2)}, v{r}", f"ds_read_b64_tr_b16 {vr(vBq+2,2)}, v{r} offset:{4*QS}"]

    def w2load(s):
        return f"buffer_load_dwordx4 {vr(vW2+4*s,4)}, v{vW2a}, {S(sWS)}, s{s_w2 + (s >> 2)} offen offset:{(s & 3)*1024} sc1"

    A("\n".join(bread(0)))
    A(f"""
    ds_read_b128 {vr(vAqe,4)}, v{vaAqe}
    s_cmp_lt_u32 s{s_w}, 4
    s_cbranch_scc1 M_nopri
    s_setprio 1
    M_nopri:
    s_waitcnt vmcnt({2*(D-1)})
    ds_read_b128 {vr(vPf0,4)}, v{vaP0}
    ds_read_b128 {vr(vPf1,4)}, v{vaP1}
    {m0set(D)}
    s_waitcnt lgkmcnt(0)
    """)
    mfma32(A, vU[0], vAqe, vBq, None)
    A(dma(D, 0))
    mfma32(A, vU[0], vPf0, vSel0, vU[0])
    A(dma(D, 1))
    mfma32(A, vU[0], vPf1, vSel1, vU[0])
    A("\n".join(bread(1)))
    A(f"""
    ds_read_b128 {vr(vAqe,4)}, v{vaAqe} offset:512
    s_waitcnt vmcnt({2*(D-1)})
    ds_read_b128 {vr(vPf0,4)}, v{vaP0} offset:2048
    ds_read_b128 {vr(vPf1,4)}, v{vaP1} offset:2048
    s_nop 7
    """)
    stamp(A, 12)

    def second_half(B, U, aggread):
        mfma32(B, vACC, vH, vAgg, vACC)
        for i in range(8):
            B(f"v_rcp_f32 v{vT+i}, v{vT+i}")
        for i in range(0, 8, 2):
            B(f"v_pk_mul_f32 {vr(U+i,2)}, {vr(U+i,2)}, {vr(vT+i,2)}")
            if i == 0:
                B(aggread)
        for i in range(0, 8, 2):
            B(f"v_cvt_pk_bf16_f32 v{vH+i//2}, v{U+i}, v{U+i+1}")

    vmq = ["d"] * (2 * (D + 1))

    def vm_need(t):
        seen = 0
        for i, k in enumerate(vmq):
            if k == "d":
                seen += 1
                if seen == 2 * (t + 1):
                    return len(vmq) - 1 - i

    ool = Asm()
    A(".p2align 3")
    for t in range(CAP_T):
        U, Un = vU[t & 1], vU[(t + 1) & 1]
        tn = t + 1 + D
        s2 = ((t + 2) % D) * 2048
        ex = [f"v_exp_f32 v{vT+i}, v{U+i}" for i in range(16)]
        if "itst" in OPT:
            A(f"s_memtime s[100:101]")
        late_vm = t < 2
        A(f"s_waitcnt lgkmcnt(0)" if late_vm else f"s_waitcnt vmcnt({vm_need(t+2)}) lgkmcnt(0)")
        if "itst" in OPT:
            A(f"v_writelane_b32 v{vSt}, s100, {16+t}")
        mfma32(A, Un, vAqe, vBq, None)
        A("\n".join(ex[0:4]))
        mfma32(A, Un, vPf0, vSel0, Un)
        A("\n".join(ex[4:8]))
        mfma32(A, Un, vPf1, vSel1, Un)
        A("\n".join(ex[8:16]))
        pk = [f"v_pk_fma_f32 {vr(vT+i,2)}, {vr(vT+i,2)}, {vr(vC,2)}, {vr(vC,2)} clamp" for i in (0, 8, 2, 10, 4, 12, 6, 14)]
        pk += [f"v_pk_mul_f32 {vr(U+i,2)}, {vr(U+i,2)}, {vr(vT+8+i,2)}" for i in range(0, 8, 2)]
        pk += [f"v_pk_fma_f32 {vr(U+i,2)}, {vr(U+8+i,2)}, {vr(vT+i,2)}, {vr(U+i,2)}" for i in range(0, 8, 2)]
        pk += [f"v_pk_mul_f32 {vr(vT+i,2)}, {vr(vT+i,2)}, {vr(vT+8+i,2)}" for i in range(0, 8, 2)]
        oth = []
        if tn % 2 == 0:
            oth.append(m0set(tn))
        b0, b1 = bread(t + 2)
        oth += [f"ds_read_b128 {vr(vAqe,4)}, v{vaAqe} offset:{(t+2)*512}", dma(tn, 0),
                f"ds_read_b128 {vr(vPf0,4)}, v{vaP0} offset:{s2}", dma(tn, 1),
                f"ds_read_b128 {vr(vPf1,4)}, v{vaP1} offset:{s2}", b0, b1]
        if late_vm:
            d0, d1 = oth[-6], oth[-4]
            oth.remove(d0)
            oth.remove(d1)
            k = oth.index(b0)
            oth = oth[:k-2] + [b0, b1, f"s_waitcnt vmcnt({vm_need(t+2)})\n" + oth[k-2], oth[k-1], d0, d1]
        vmq += ["d", "d"]
        if W2T0 <= t < W2T0 + 8:
            oth.append(w2load(t - W2T0))
            vmq.append("w")
        oth.append(f"s_cmp_le_i32 s{s_next}, {t}")
        if "nodma" in OPT:
            oth = [x for x in oth if " lds" not in x]
        for i, x in enumerate(pk):
            A(x)
            if i % 2 == 0 and oth:
                A(oth.pop(0))
        assert not oth
        A(f"s_cbranch_scc1 M_ev{t}\nM_evr{t}:")
        second_half(A, U, f"ds_read_b128 {vr(vAgg,4)}, v{vaAgg} offset:{t*1024}")
        ool(f"""
        M_ev{t}:
        s_movk_i32 s{s_t}, {t}
        s_call_b64 s[{s_ret}:{s_ret+1}], M_rare
        s_cbranch_scc1 M_tail{t & 1}
        s_branch M_evr{t}
        """)
    A("s_branch M_fin")
    for p in range(2):
        A(f"""
        M_tail{p}:
        s_lshl_b32 s3, s{s_t}, 10
        v_add_u32 v8, s3, v{vaAgg}
        """)
        second_half(A, vU[p], f"ds_read_b128 {vr(vAgg,4)}, v8")
        if p == 0:
            A("s_branch M_fin")
    A(f"""
    M_fin:
    s_mov_b32 s{s_t}, s{s_T}
    s_cmp_eq_u32 s{s_T0p}, s{s_T}
    s_cbranch_scc0 M_fin2
    s_call_b64 s[{s_ret}:{s_ret+1}], M_rare
    M_fin2:
    s_waitcnt lgkmcnt(0)
    """)
    mfma32(A, vACC, vH, vAgg, vACC)
    stamp(A, 13)
    A(f"""
    s_cmp_lg_u32 s{s_sw}, 0
    s_nop 11
    s_cbranch_scc1 M_fin_hi
    """)
    for r in range(16):
        A(f"v_add_f32 v{vS0+r}, v{vS0+r}, v{vACC+r}")
    A("s_branch M_bend\nM_fin_hi:")
    for r in range(16):
        A(f"v_add_f32 v{vS1+r}, v{vS1+r}, v{vACC+r}")
    K = -math.log(2.0) * 2.0 ** -CEXP
    A(f"""
    M_bend:
    s_setprio 0
    s_cmp_lg_u32 s{s_slow}, 0
    s_cbranch_scc1 M_next
    M_epi:
    s_cmp_gt_u32 s{s_T}, {W2T0 + 8}
    s_cbranch_scc1 M_epi2
    """)
    for s_ in range(8):
        A(w2load(s_))
    A(f"""
    M_epi2:
    s_lshl_b32 s3, s{s_nb1}, 8
    """)
    srd(A, sA, pOUT, "s3")
    A(f"""
    v_mov_b32 v{vC}, {f32(K):#x}
    v_mov_b32 v{vC+1}, {f32(K):#x}
    v_and_b32 v3, 31, v{L}
    v_lshrrev_b32 v2, 5, v{L}
    v_bfe_u32 v8, v3, 1, 2
    v_lshlrev_b32 v9, 1, v2
    v_xor_b32 v8, v8, v9
    v_lshlrev_b32 v8, 4, v8
    v_lshl_add_u32 v8, v3, 6, v8
    v_add_u32 v8, s{s_ring}, v8
    v_xor_b32 v9, 16, v8
    v_and_b32 v10, 15, v{L}              ; n
    v_lshrrev_b32 v11, 4, v{L}           ; q
    v_lshlrev_b32 v12, 2, v10
    v_add_u32 v13, 64, v12
    v_add_u32 v14, 128, v12
    ds_bpermute_b32 v4, v12, v{vDeg}
    ds_bpermute_b32 v5, v13, v{vDeg}
    ds_bpermute_b32 v6, v14, v{vDeg}
    """)
    for Sx, o in ((vS0, 16), (vS1, 24)):
        for r in range(0, 16, 2):
            A(f"v_pk_mul_f32 {vr(Sx+r,2)}, {vr(Sx+r,2)}, {vr(vC,2)}")
        for r in range(0, 16, 2):
            A(f"v_cvt_pk_bf16_f32 v{o+r//2}, v{Sx+r}, v{Sx+r+1}")
    A(f"""
    s_waitcnt vmcnt(0)
    ds_write_b128 v8, v[16:19]
    ds_write_b128 v9, v[20:23]
    ds_write_b128 v8, v[24:27] offset:2048
    ds_write_b128 v9, v[28:31] offset:2048
    v_bfe_u32 v12, v10, 1, 2
    v_xor_b32 v12, v12, v11
    v_lshlrev_b32 v12, 4, v12
    v_lshl_add_u32 v12, v10, 6, v12
    v_lshlrev_b32 v32, 16, v{vB2}
    v_and_b32 v33, 0xffff0000, v{vB2}
    v_lshlrev_b32 v34, 16, v{vB2+1}
    v_and_b32 v35, 0xffff0000, v{vB2+1}
    v_add_u32 v13, s{s_nb0}, v10
    v_lshlrev_b32 v13, 8, v13
    v_lshl_add_u32 v13, v11, 3, v13
    s_lshl_b32 s{s_x}, s{s_w}, 5
    v_add_u32 v13, s{s_x}, v13
    s_waitcnt lgkmcnt(4)
    v_cvt_f32_u32 v4, v4
    v_cvt_f32_u32 v5, v5
    v_cvt_f32_u32 v6, v6
    """)
    O = 36
    for mt in range(3):
        for i in range(4):
            A(f"v_mul_f32 v{O+4*mt+i}, v{4+mt}, v{32+i}")
    A("s_waitcnt lgkmcnt(0)\ns_barrier")
    stamp(A, 14)
    SFR = 48
    order = [(s, mt) for s in range(8) for mt in range(3)]
    RS = D * 2048
    AHEAD = 12
    for k in range(AHEAD):
        s, mt = order[k]
        A(f"ds_read_b128 {vr(SFR+4*k,4)}, v12 offset:{s*RS+mt*1024}")
    for k in range(24):
        s, mt = order[k]
        A(f"s_waitcnt lgkmcnt({min(AHEAD - 1, 23 - k)})")
        mfma16(A, O + 4 * mt, vW2 + 4 * s, SFR + 4 * k, O + 4 * mt)
        if k + AHEAD < 24:
            s2, mt2 = order[k + AHEAD]
            A(f"ds_read_b128 {vr(SFR+4*(k+AHEAD),4)}, v12 offset:{s2*RS+mt2*1024}")
    A(f"s_mov_b32 s{s_x}, 4096\ns_mov_b32 s{s_x+1}, 8192\ns_nop 5")
    for mt in range(3):
        A(f"""
        v_cvt_pk_bf16_f32 v{16+2*mt}, v{O+4*mt}, v{O+4*mt+1}
        v_cvt_pk_bf16_f32 v{17+2*mt}, v{O+4*mt+2}, v{O+4*mt+3}
        buffer_store_dwordx2 {vr(16+2*mt,2)}, v13, {S(sA)}, {["0", f"s{s_x}", f"s{s_x+1}"][mt]} offen
        """)
    if (SPIN is not None and SPIN[0] == 15) or ENC is not None:
        A("s_waitcnt vmcnt(0)")
        stamp(A, 15)
    if STAMPS:
        A("s_waitcnt vmcnt(0)")
        stamp(A, 15)
        srd(A, sA, pWS, 0x80000, off=WS_ST)
        A(f"""
        s_lshl_b32 s3, s2, 3
        s_add_u32 s3, s3, s{s_w}
        s_lshl_b32 s3, s3, 8
        v_lshl_add_u32 v1, v{L}, 2, s3
        buffer_store_dword v{vSt}, v1, {S(sA)}, 0 offen
        """)
    A("M_end:\ns_endpgm")

    A(f"""
    M_rare:
    s_cmp_eq_u32 s{s_T0p}, s{s_t}
    s_cbranch_scc0 M_rare2
    s_waitcnt lgkmcnt(0)
    """)
    mfma32(A, vACC, vH, vAgg, vACC)
    A(f"""
    s_lshl_b32 s3, s{s_t}, 10
    v_add_u32 v8, s3, v{vaAgg}
    v_add_u32 v{vaAgg}, 1024, v{vaAgg}
    s_mov_b32 s{s_sw}, 1
    s_mov_b32 s{s_T0p}, 0x7fffffff
    ds_read_b128 {vr(vAgg,4)}, v8
    s_nop 8
    """)
    for r in range(16):
        A(f"v_add_f32 v{vS0+r}, v{vS0+r}, v{vACC+r}")
    for r in range(16):
        A(f"v_mov_b32 v{vACC+r}, 0")
    A(f"""
    s_waitcnt lgkmcnt(0)
    M_rare2:
    s_cmp_le_i32 s{s_pri}, s{s_t}
    s_cbranch_scc0 M_rare3
    s_setprio 0
    s_mov_b32 s{s_pri}, 0x7fffffff
    M_rare3:
    s_sub_u32 s3, s{s_T}, 1
    s_min_i32 s{s_next}, s3, s{s_T0p}
    s_min_i32 s{s_next}, s{s_next}, s{s_pri}
    s_cmp_le_i32 s3, s{s_t}
    s_setpc_b64 s[{s_ret}:{s_ret+1}]
    """)

    A(f"""
    M_align:
    s_mov_b32 s{s_alt}, -1
    s_mov_b32 s{s_x+8}, 0
    v_mov_b32 v13, v{vBase}
    """)
    for G in range(5):
        A(f"""
        v_readlane_b32 s{s_x}, v{vBase}, {8*G}
        v_readlane_b32 s{s_x+1}, v{vBase}, {8*G+8}
        s_nop 1
        s_sub_u32 s{s_x+9}, s{s_x+8}, s{s_x}
        v_cmp_le_u32 vcc, {8*G}, v{L}
        v_add_u32 v10, s{s_x+9}, v{vBase}
        s_sub_u32 s{s_x+1}, s{s_x+1}, s{s_x}
        s_add_u32 s{s_x+8}, s{s_x+8}, s{s_x+1}
        v_cndmask_b32 v13, v13, v10, vcc
        """)
        if G < 4:
            A(f"s_add_u32 s{s_x+8}, s{s_x+8}, 31\ns_and_b32 s{s_x+8}, s{s_x+8}, -32")
    A(f"""
    s_mov_b32 s{s_tot}, s{s_x+8}
    v_mov_b32 v{vBase}, v13
    s_nop 1
    s_branch M_derive
    """)
    A(f"""
    M_goslow:
    s_mov_b32 s{s_slow}, 1
    s_mov_b32 s{s_batch}, 0
    s_branch M_load
    M_next:
    s_add_u32 s{s_batch}, s{s_batch}, 512
    s_cmp_ge_u32 s{s_batch}, {E}
    s_cbranch_scc1 M_epi
    M_load:
    """)
    srd(A, sA, pDST, E * 4)
    srd(A, sB, pSRC, E * 4)
    A(f"""
    v_add_u32 v8, s{s_batch}, v0
    v_lshlrev_b32 v9, 2, v8
    s_waitcnt vmcnt(0) lgkmcnt(0)
    buffer_load_dword v10, v9, {S(sA)}, 0 offen
    buffer_load_dword v11, v9, {S(sB)}, 0 offen
    v_lshlrev_b32 v{vChunk8}, 3, v8
    v_mov_b32 v5, -1
    v_mov_b32 v6, -1
    v_mov_b32 v7, -1
    s_mov_b32 s{s_x+2}, {E}
    s_waitcnt vmcnt(0)
    v_subrev_u32 v12, s{s_nb0}, v10
    v_cmp_gt_u32 vcc, s{s_nn}, v12
    v_cmp_gt_u32 s[{s_x}:{s_x+1}], s{s_x+2}, v8
    v_and_b32 v10, 63, v10
    v_lshl_or_b32 v11, v10, 14, v11
    s_and_b64 vcc, vcc, s[{s_x}:{s_x+1}]
    s_nop 1
    v_cndmask_b32 v4, v5, v11, vcc
    s_barrier
    """)
    zerofill()
    A("s_waitcnt lgkmcnt(0)\ns_barrier\ns_branch M_recs")
    A.l += ool.l


def build():
    out = f"""; Fused edge-featured MPNN layer, one workgroup per bucket of 39/40 destination nodes.
; @launch grid=(256,1,1) block=(512,1,1) lds={LDS_BYTES}
.amdgcn_target "amdgcn-amd-amdhsa--gfx950"
.text
.globl {KN}
.p2align 8
.type {KN},@function
"""
    A = Asm()
    kernel(A)
    out += A.text()
    out += f""".section .rodata,"a"
.p2align 6
.amdhsa_kernel {KN}
  .amdhsa_next_free_vgpr {NV}
  .amdhsa_next_free_sgpr 102
  .amdhsa_accum_offset {(NV + 3) // 4 * 4}
  .amdhsa_group_segment_fixed_size 0
  .amdhsa_kernarg_size 88
  .amdhsa_user_sgpr_count 2
  .amdhsa_user_sgpr_kernarg_segment_ptr 1
  .amdhsa_system_sgpr_workgroup_id_x 1
.end_amdhsa_kernel
"""
    return out


if __name__ == "__main__":
    for a in list(sys.argv):
        if a.startswith("-o"):
            OPT.update(a[2:].split(","))
            sys.argv.remove(a)
    for a in list(sys.argv):
        if a.startswith("-spin"):
            i, us = a[5:].split(":")
            SPIN = (int(i), float(us))
            sys.argv.remove(a)
    for a in list(sys.argv):
        if a.startswith("-wsb"):
            WS_BASE = int(a[4:]) << 20
            sys.argv.remove(a)
    for a in list(sys.argv):
        if a.startswith("-enc"):
            ENC = int(a[4:])
            sys.argv.remove(a)
    if "--stamps" in sys.argv:
        STAMPS = True
        sys.argv.remove("--stamps")
    path = sys.argv[1] if len(sys.argv) > 1 else f"cdna_kernels/{NAME}.s"
    open(path, "w").write(build())
    print("wrote", path, "lds", LDS_BYTES)
```

```python
import sys, struct, math

NAME = "gather_scatter__edge_featured_mpnn_mpnn__graph"
KN = NAME + "_kernel"
N, E = 10000, 160000

WS_CNT = 0
WS_RB = 16 * 128
WS_RP = 32 * 128
WS_W2F = 0x2000
WS_SLOT = 0x12000
WS_P = 0x213000
TABB = N * 512
WS_END = WS_P + TABB
WS_ST = 0x1000000

WS_BASE = 0
NCH = 64
CHE = E // NCH
PROWS = 53
LOG2E = 1.4426950408889634
CEXP = 48
STAMPS = False
OPT = set()
PRIO_NUM = 22
W2T0 = 8


def f32(x):
    return struct.unpack("<I", struct.pack("<f", x))[0]


class Asm:
    def __init__(self):
        self.l = []

    def __call__(self, s):
        for x in s.split("\n"):
            x = x.strip()
            if x:
                self.l.append(("" if x.endswith(":") else "    ") + x)

    def text(self):
        import re
        for x in self.l:
            m = re.search(r"offset:(\d+)", x)
            if m:
                lim = 4096 if x.strip().startswith("buffer_") else 65536
                assert int(m.group(1)) < lim, x
        return "\n".join(self.l) + "\n"


def vr(a, n=1):
    return f"v{a}" if n == 1 else f"v[{a}:{a+n-1}]"


def srd(A, d, base, size, off=None):
    if off is None:
        A(f"s_mov_b32 s{d}, s{base}\ns_mov_b32 s{d+1}, s{base+1}")
    else:
        A(f"s_add_u32 s{d}, s{base}, {off}\ns_addc_u32 s{d+1}, s{base+1}, 0")
    A(f"s_mov_b32 s{d+2}, {size}\ns_mov_b32 s{d+3}, 0x00020000")


def S(d):
    return f"s[{d}:{d+3}]"


D = 4
CAP_T = 26
QS = 592
L_RING = 0
L_AQE = 8 * D * 2048
L_AQH = L_AQE + CAP_T * 512
L_AGG = L_AQH + CAP_T * 512
L_LIST = L_AGG + (CAP_T + 1) * 1024
L_CNT = L_LIST + 4096
L_N0 = L_CNT + 256
L_WE = L_N0 + 256
L_Q = L_WE + 8 * QS
LDS_BYTES = (L_Q + 255) // 256 * 256 + 32768
ZERO_BYTES = L_LIST - L_AQE
L_XP = (L_Q + 255) // 256 * 256
L_XQ = L_XP + 16384
L_BT = L_AQE
L_BC = L_BT + 32768
assert L_BC + 2048 <= L_LIST and LDS_BYTES <= 163840 and 48 * QS <= 32768
DUMMY = 0x400000

pX, pE, pSRC, pDST, pW1, pB1, pW2, pB2, pOUT, pDBG, pWS = 4, 6, 8, 10, 12, 14, 16, 18, 20, 22, 24
s_w2 = 26
sA, sB, sC, sD, sWS, sP, sE = 28, 32, 36, 40, 44, 48, 52
(s_w, s_nb0, s_nb1, s_nn, s_T, s_T0p, s_t, s_next, s_slow, s_batch, s_ring, s_sw, s_tot,
 s_nb4, s_ringh, s_spin, s_pri, s_alt, s_xw) = range(56, 75)
s_f0 = 85
s_x = 76
sM = 86
s_ret = 94
sG = 96

vU = [16, 32]
vT = 48
vH = 64
vACC = 68
vS0 = 84
vS1 = 100
vPf0, vPf1, vAqe, vAgg, vBq, vSel0, vSel1 = 116, 120, 124, 128, 132, 136, 140
vBa = 144
vOff = 176
vW2 = 176
(vC, _c1, vB2, _b1, vK0, vK1, vK2, vK3, vaAqe, vaAgg, vaList, vaP0, vaP1, vaB, vBmul, vBase, vDeg,
 vChunk8, vLane, vDum, vSt, vW2a, vaCnt) = range(228, 251)
NV = 252
vXF = 176
vXP = 160
vWF = 16
vPA = 48
vPO = 148
vXa = 145
vXr = 147
vB1 = 116
vWEr = 128
vF0 = 129
vPc = 130
vQa = 131


def mfma32(A, d, a, b, c):
    cs = "0" if c is None else vr(c, 16)
    A(f"v_mfma_f32_32x32x16_bf16 {vr(d,16)}, {vr(a,4)}, {vr(b,4)}, {cs}")


def mfma16(A, d, a, b, c):
    cs = "0" if c is None else vr(c, 4)
    A(f"v_mfma_f32_16x16x32_bf16 {vr(d,4)}, {vr(a,4)}, {vr(b,4)}, {cs}")


SPIN = None


ENC = None


def stamp(A, i):
    if ENC is not None:
        if i == 0:
            A("s_memrealtime s[100:101]\ns_waitcnt lgkmcnt(0)\ns_mov_b32 s75, s100\ns_nop 0")
        if i == ENC:
            A("s_waitcnt lgkmcnt(0)\ns_memrealtime s[100:101]\ns_waitcnt lgkmcnt(0)\ns_sub_u32 s101, s100, s75")
            A(f"v_writelane_b32 v{vSt}, s101, 0")
        if i == 15:
            u = len(A.l)
            A(f"v_readlane_b32 s3, v{vSt}, 0\ns_nop 3\ns_lshl_b32 s3, s3, 2\ns_add_u32 s3, s3, 6000")
            A(f"M_spin{u}:\ns_memrealtime s[100:101]\ns_waitcnt lgkmcnt(0)\ns_sub_u32 s100, s100, s75\ns_cmp_lt_u32 s100, s3\ns_cbranch_scc1 M_spin{u}")
    if SPIN is not None:
        if i == 0:
            A("s_memrealtime s[100:101]\ns_waitcnt lgkmcnt(0)\ns_mov_b32 s75, s100")
        elif i == SPIN[0]:
            u = len(A.l)
            A(f"M_spin{u}:\ns_memrealtime s[100:101]\ns_waitcnt lgkmcnt(0)\ns_sub_u32 s100, s100, s75\ns_cmp_lt_u32 s100, {int(SPIN[1]*100)}\ns_cbranch_scc1 M_spin{u}")
    if STAMPS:
        ins = "s_memtime" if "cyc" in OPT else "s_memrealtime"
        A(f"s_waitcnt lgkmcnt(0)\n{ins} s[100:101]\ns_waitcnt lgkmcnt(0)\nv_writelane_b32 v{vSt}, s100, {i}")


def gemm_part(A, init, nmt, xf, vm=None):
    def rd(s):
        for ct in range(2):
            for x in range(2):
                A(f"ds_read_b64_tr_b16 {vr(vWF + 8*s + 4*ct + 2*x, 2)}, v14 offset:{s*2048 + x*256 + ct*8}")
    if vm is None:
        for s in range(4):
            rd(s)
    else:
        A(f"s_waitcnt vmcnt({vm[0]})")
        rd(0)
    for s in range(4):
        if vm is None:
            A(f"s_waitcnt lgkmcnt({12 - 4*s})")
        else:
            A("s_waitcnt lgkmcnt(0)")
        k = 0
        for mt in range(nmt):
            for ct in range(2):
                d = vPA + 8 * mt + 4 * ct
                c = d if s else (None if init is None else init + 4 * ct)
                mfma16(A, d, vWF + 8 * s + 4 * ct, xf + 16 * mt + 4 * s, c)
                k += 1
                if vm is not None and k == 2 and s < 3:
                    A(f"s_waitcnt vmcnt({vm[s+1]})")
                    rd(s + 1)


def gemm_pack(A, nmt, store):
    A("s_nop 4")
    for mt in range(nmt):
        for r in range(0, 8, 2):
            a = vPA + 8 * mt + r
            A(f"v_pk_mul_f32 {vr(a,2)}, {vr(a,2)}, v[12:13]")
        for r in range(0, 8, 2):
            a = vPA + 8 * mt + r
            A(f"v_cvt_pk_bf16_f32 v{vPO + 4*mt + r//2}, v{a}, v{a+1}")
        store(mt)


def kernel(A):
    L = vLane
    SC = "sc0 sc1"
    A(f"{KN}:")
    A(f"""
    s_cmp_ge_u32 s2, 256
    s_cbranch_scc1 M_end
    s_load_dwordx16 s[4:19], s[0:1], 0
    s_load_dwordx4 s[20:23], s[0:1], 64
    s_load_dwordx2 s[24:25], s[0:1], 80
    """)
    if STAMPS or ENC is not None:
        A(f"v_mov_b32 v{vSt}, 0")
    stamp(A, 0)
    A(f"""
    v_lshrrev_b32 v2, 6, v0
    v_and_b32 v{L}, 63, v0
    v_readfirstlane_b32 s{s_w}, v2
    s_mul_i32 s{s_nb0}, s2, 160069
    s_add_u32 s{s_nb1}, s{s_nb0}, {160069 + 4049}
    s_add_u32 s{s_nb0}, s{s_nb0}, 4049
    s_lshr_b32 s{s_nb0}, s{s_nb0}, 12
    v_lshrrev_b32 v7, 4, v{L}
    v_and_b32 v8, 15, v{L}
    v_xor_b32 v8, v8, v7
    s_lshl_b32 s{s_ring}, s{s_w}, 13
    s_and_b32 s3, s{s_w}, 1
    s_lshl_b32 s3, s3, 3
    v_xor_b32 v8, s3, v8
    v_lshlrev_b32 v8, 4, v8
    v_lshl_add_u32 v8, v7, 8, v8
    s_lshl_b32 s{s_xw}, s{s_w}, 11
    v_add_u32 v{vXa}, s{s_xw}, v8
    v_xor_b32 v{vXa+1}, 64, v{vXa}
    v_lshrrev_b32 v10, 2, v{L}
    v_and_b32 v11, 3, v{L}
    v_lshlrev_b32 v11, 4, v11
    v_lshl_add_u32 v10, v10, 9, v11
    s_lshl_b32 s3, s{s_w}, 6
    v_add_u32 v10, s3, v10
    v_lshlrev_b32 v2, 2, v0
    s_waitcnt lgkmcnt(0)
    s_add_u32 s{pWS}, s{pWS}, {WS_BASE}
    s_addc_u32 s{pWS+1}, s{pWS+1}, 0
    s_cmp_ge_u32 s2, {NCH}
    s_cbranch_scc1 M_pwg
    """)

    def wdma(base):
        for ii in range(8):
            A(f"""
            s_add_u32 m0, s{s_ring}, {ii*1024}
            s_mov_b32 s{s_x+1}, {base + ii*8192}
            buffer_load_dwordx4 v10, {S(sB)}, s{s_x+1} offen lds
            """)

    def xdma(ldsbase, rowreg):
        A(f"""
        s_add_u32 m0, s{s_xw}, {ldsbase}
        s_lshl_b32 s3, s{rowreg}, 8
        buffer_load_dwordx4 v{vXa}, {S(sD)}, s3 offen lds
        buffer_load_dwordx4 v{vXa+1}, {S(sD)}, s3 offen offset:1024 lds
        """)

    def gaddr():
        A(f"""
        v_lshrrev_b32 v3, 4, v{L}        ; q
        v_and_b32 v4, 15, v{L}           ; n
        v_xor_b32 v5, v3, v4
        v_lshlrev_b32 v5, 4, v5
        v_lshl_add_u32 v{vXr}, v4, 8, v5
        v_bfe_u32 v5, v{L}, 2, 2         ; r
        v_lshl_add_u32 v6, v3, 3, v5     ; 8q + r
        v_lshlrev_b32 v6, 6, v6
        v_and_b32 v7, 3, v{L}            ; c
        v_lshl_add_u32 v6, v7, 4, v6
        v_add_u32 v14, s{s_ring}, v6
        v_mov_b32 v12, {f32(-LOG2E):#x}
        v_mov_b32 v13, v12
        """)

    def consts():
        srd(A, sP, pWS, TABB + 4096, off=WS_P - 4096)
        srd(A, sE, pE, E * 8)
        A(f"""
        s_lshr_b32 s{s_nb1}, s{s_nb1}, 12
        s_min_u32 s{s_nb1}, s{s_nb1}, {N}
        s_sub_u32 s{s_nn}, s{s_nb1}, s{s_nb0}
        s_lshl_b32 s{s_nb4}, s{s_nb0}, 2
        s_add_u32 s{s_ringh}, s{s_ring}, 4096
        s_mov_b32 s{s_slow}, 0
        s_lshl_b32 s{s_w2}, s{s_w}, 13
        s_add_u32 s{s_w2}, s{s_w2}, {WS_W2F}
        s_add_u32 s{s_w2+1}, s{s_w2}, 4096
        v_lshrrev_b32 v3, 4, v{L}        ; q
        v_bfe_u32 v5, v{L}, 2, 2         ; r
        v_and_b32 v7, 3, v{L}            ; c
        v_xor_b32 v9, v7, v3
        v_lshlrev_b32 v9, 4, v9
        s_lshl_b32 s3, s{s_w}, 6
        s_add_u32 s{s_x}, s3, 1024
        v_add_u32 v{vK3}, s{s_x}, v9
        v_add_u32 v{vK2}, 1024, v{vK3}
        v_add_u32 v{vK1}, 2048, v{vK3}
        v_add_u32 v{vK0}, 3072, v{vK3}
        v_lshrrev_b32 v1, 5, v{L}        ; h
        v_mul_u32_u24 v5, {QS}, v5
        v_and_b32 v3, 1, v3
        v_lshl_add_u32 v5, v3, 5, v5
        v_lshl_add_u32 v5, v7, 3, v5
        s_add_u32 s3, s3, {L_WE}
        v_add_u32 v5, s3, v5
        v_mul_u32_u24 v6, {8*QS}, v1
        v_add_u32 v{vaB}, v5, v6
        v_mul_u32_u24 v{vBmul}, {QS//4}, v1
        v_and_b32 v3, 31, v{L}           ; m
        v_lshrrev_b32 v9, 4, v3
        v_and_b32 v8, 3, v3
        v_lshl_add_u32 v9, v8, 1, v9
        v_and_b32 v8, 8, v3
        v_add_u32 v9, v9, v8
        v_and_b32 v8, 4, v3
        v_lshl_add_u32 v9, v8, 2, v9
        v_lshlrev_b32 v9, 4, v9
        v_mul_u32_u24 v8, {L_AQH - L_AQE}, v1
        v_add_u32 v9, v9, v8
        v_add_u32 v{vaAqe}, {L_AQE}, v9
        v_lshrrev_b32 v9, 2, v{L}
        v_and_b32 v8, 3, v9
        v_lshlrev_b32 v8, 1, v8
        v_and_b32 v11, 8, v9
        v_add_u32 v8, v8, v11
        v_and_b32 v11, 4, v9
        v_lshl_add_u32 v8, v11, 2, v8
        v_lshlrev_b32 v8, 2, v8
        v_add_u32 v{vaList}, {L_LIST}, v8
        v_bfe_u32 v9, v3, 2, 2
        v_xor_b32 v9, v9, v1
        v_lshlrev_b32 v9, 4, v9
        v_lshl_add_u32 v9, v3, 6, v9
        v_add_u32 v{vaP0}, s{s_ring}, v9
        v_xor_b32 v{vaP1}, 32, v{vaP0}
        v_and_b32 v9, 1, v3
        v_lshlrev_b32 v9, 4, v9
        v_mov_b32 v8, 0x3f80
        v_lshlrev_b32 v9, v9, v8
        v_lshrrev_b32 v8, 1, v3
        v_lshlrev_b32 v11, 2, v1
        v_sub_u32 v8, v8, v11
        """)
        for x in range(4):
            A(f"v_cmp_eq_u32 s[{s_x}:{s_x+1}], {x}, v8\nv_cmp_eq_u32 vcc, {8+x}, v8\ns_nop 0")
            A(f"v_cndmask_b32 v{vSel0+x}, 0, v9, s[{s_x}:{s_x+1}]\nv_cndmask_b32 v{vSel1+x}, 0, v9, vcc")
        A(f"""
        v_mov_b32 v{vC}, {f32(2.0**-CEXP):#x}
        v_mov_b32 v{vC+1}, {f32(2.0**-CEXP):#x}
        v_mov_b32 v{vDeg}, 0
        v_mov_b32 v{vDum}, 0x80000000
        v_lshrrev_b32 v9, 3, v0
        v_mul_u32_u24 v{vChunk8}, {CHE*8}, v9
        v_lshlrev_b32 v{vW2a}, 4, v{L}
        v_lshlrev_b32 v9, 2, v{L}
        v_add_u32 v{vaCnt}, {L_CNT}, v9
        """)
        for r in range(16):
            A(f"v_mov_b32 v{vS0+r}, 0\nv_mov_b32 v{vS1+r}, 0")

    def zerofill():
        A(f"""
        v_mov_b32 v40, 0
        v_mov_b32 v41, 0
        v_mov_b32 v42, 0
        v_mov_b32 v43, 0
        v_mov_b32 v44, {DUMMY}
        v_mov_b32 v45, {DUMMY}
        v_lshlrev_b32 v1, 3, v0
        v_add_u32 v1, {L_LIST}, v1
        ds_write_b64 v1, v[44:45]
        ds_write_b32 v{vaCnt}, v40
        ds_write_b32 v{vaCnt}, v40 offset:256
        v_lshlrev_b32 v1, 4, v0
        v_add_u32 v1, {L_AQE}, v1
        """)
        nz = ZERO_BYTES // 8192
        rem = ZERO_BYTES - nz * 8192
        for q in range(nz):
            A(f"ds_write_b128 v1, v[40:43] offset:{q*8192}")
        if rem:
            A(f"""
            v_cmp_gt_u32 vcc, {rem//16}, v0
            s_and_saveexec_b64 s[{s_x}:{s_x+1}], vcc
            ds_write_b128 v1, v[40:43] offset:{nz*8192}
            s_mov_b64 exec, s[{s_x}:{s_x+1}]
            """)

    def small():
        srd(A, sC, pB1, 512)
        srd(A, sA, pB2, 256)
        A(f"""
        v_lshrrev_b32 v3, 4, v{L}
        v_lshlrev_b32 v4, 4, v3
        s_lshl_b32 s3, s{s_w}, 6
        buffer_load_dwordx4 {vr(vB1,4)}, v4, {S(sC)}, s3 offen
        v_lshlrev_b32 v5, 2, v0
        s_mov_b32 s3, {256*512}
        buffer_load_dword v{vWEr}, v5, {S(sB)}, s3 offen
        v_lshlrev_b32 v4, 3, v3
        s_lshl_b32 s3, s{s_w}, 5
        buffer_load_dwordx2 {vr(vB2,2)}, v4, {S(sA)}, s3 offen
        """)

    def eprefetch():
        A(f"""
        s_mul_i32 s3, s2, {E*8//256}
        v_lshlrev_b32 v3, 4, v0
        buffer_load_dwordx4 v[224:227], v3, {S(sE)}, s3 offen
        """)

    def f0load():
        A(f"buffer_load_dword v{vF0}, off, {S(sG)}, 0 offset:128 sc1")

    def spoll(tag, base, offreg, want):
        A(f"""
        s_mov_b32 s{s_spin}, 0x40000
        M_sp{tag}:
        s_mov_b32 s{s_x+1}, 0
        s_atomic_add s{s_x+1}, s[{base}:{base+1}], {offreg} glc
        s_sub_u32 s{s_spin}, s{s_spin}, 1
        s_cbranch_scc1 M_spd{tag}
        s_waitcnt lgkmcnt(0)
        s_cmp_lg_u32 s{s_x+1}, {want}
        s_cbranch_scc1 M_sp{tag}
        M_spd{tag}:
        s_waitcnt lgkmcnt(0)
        """)

    def f0wait(tag):
        A(f"""
        v_readfirstlane_b32 s3, v{vF0}
        s_cmp_lg_u32 s3, 0
        s_cbranch_scc1 M_pfd{tag}
        """)
        spoll("f" + tag, pDBG, 128, 1)
        A(f"M_pfd{tag}:")

    def release(base):
        A(f"""
        v_lshlrev_b32 v8, 7, v{L}
        v_mov_b32 v9, 1
        s_mov_b32 s3, {base}
        s_mov_b64 exec, 0xffff
        buffer_atomic_add v9, v8, {S(sWS)}, s3 offen sc1
        s_mov_b64 exec, -1
        """)

    def rpoll(tag, base, want):
        A(f"s_and_b32 s3, s2, 15\ns_lshl_b32 s3, s3, 7\ns_add_u32 s3, s3, {base}")
        spoll(tag, pWS, "s3", want)

    srd(A, sWS, pWS, WS_END)
    A(f"""
    v_lshlrev_b32 v3, 7, v0
    s_cmp_eq_u32 s2, 0
    s_cselect_b32 s3, 48, 0
    v_cmp_gt_u32 vcc, s3, v0
    v_mov_b32 v4, 0x40000000
    v_mov_b32 v8, 0
    v_cndmask_b32 v3, v4, v3, vcc
    s_mul_i32 s3, s2, {CHE*4}
    buffer_store_dword v8, v3, {S(sWS)}, 0 offen {SC}
    """)
    srd(A, sC, pDST, CHE * 4, off="s3")
    srd(A, sD, pSRC, CHE * 4, off="s3")
    A(f"s_mov_b32 s{s_x+1}, 4096\ns_mov_b32 s{s_x+2}, 8192")
    vD, vS = 164, 169
    so = ["0", "0", f"s{s_x+1}", f"s{s_x+1}", f"s{s_x+2}"]
    for k in range(5):
        A(f"buffer_load_dword v{vD+k}, v2, {S(sC)}, {so[k]} offen offset:{(k & 1)*2048}")
    for k in range(5):
        A(f"buffer_load_dword v{vS+k}, v2, {S(sD)}, {so[k]} offen offset:{(k & 1)*2048}")
    srd(A, sC, pW2, 256 * 256)
    srd(A, sB, pW1, 260 * 512)
    A(f"""
    v_lshlrev_b32 v3, 4, v0
    v_add_u32 v15, {L_BT}, v3
    v_add_u32 v2, {L_BC}, v2
    v_mov_b32 v4, -1
    v_mov_b32 v5, -1
    v_mov_b32 v6, -1
    v_mov_b32 v7, -1
    """)
    for q in range(4):
        A(f"ds_write_b128 v15, v[4:7] offset:{q*8192}")
    A(f"""
    ds_write_b32 v2, v8
    v_mov_b32 v9, 1
    """)
    srd(A, sD, pX, N * 256)
    srd(A, sG, pDBG, 256)
    stamp(A, 1)
    A(f"""
    s_waitcnt lgkmcnt(0)
    s_barrier
    s_waitcnt vmcnt(5)
    """)
    vb, va, vk = 16, 21, 26
    for k in range(5):
        A(f"v_mul_u32_u24 v{vb+k}, 1677, v{vD+k}")
        A(f"v_lshrrev_b32 v{vb+k}, 16, v{vb+k}")
        A(f"v_lshlrev_b32 v{va+k}, 2, v{vb+k}")
        A(f"v_add_u32 v{va+k}, {L_BC}, v{va+k}")
        if k == 4:
            A(f"v_cmp_gt_u32 vcc, {CHE - 2048}, v0\ns_and_saveexec_b64 s[{s_x+2}:{s_x+3}], vcc")
        A(f"ds_add_rtn_u32 v{vk+k}, v{va+k}, v9")
    A(f"""
    s_mov_b64 s[{s_x+4}:{s_x+5}], exec
    s_or_b32 s3, s2, s{s_w}
    s_cbranch_scc1 M_nf0
    s_mov_b64 exec, 1
    buffer_store_dword v9, off, {S(sG)}, 0 offset:128 {SC}
    M_nf0:
    s_mov_b64 exec, -1
    s_lshl_b32 s3, s2, 8
    v_add_u32 v3, s3, v0
    v_bfe_u32 v4, v3, 8, 3           ; s
    v_lshlrev_b32 v4, 5, v4
    v_bfe_u32 v5, v3, 6, 1           ; ab
    v_lshl_add_u32 v4, v5, 4, v4
    v_bfe_u32 v5, v3, 1, 1           ; e>>2
    v_lshl_add_u32 v4, v5, 3, v4
    v_bfe_u32 v5, v3, 7, 1           ; h
    v_lshl_add_u32 v4, v5, 2, v4
    v_and_b32 v5, 1, v3
    v_lshl_add_u32 v4, v5, 1, v4     ; hidden
    v_lshlrev_b32 v4, 8, v4
    v_lshrrev_b32 v5, 11, v3         ; wo
    v_lshl_add_u32 v4, v5, 5, v4
    v_bfe_u32 v5, v3, 2, 4           ; m
    v_lshl_add_u32 v4, v5, 1, v4
    v_lshrrev_b32 v5, 8, v0
    v_lshl_or_b32 v4, v5, 30, v4
    v_lshlrev_b32 v3, 2, v3
    v_lshl_or_b32 v176, v5, 30, v3
    buffer_load_ushort v174, v4, {S(sC)}, 0 offen
    buffer_load_ushort v175, v4, {S(sC)}, 0 offen offset:256
    """)
    xdma(L_XQ, s_nb0)
    small()
    A("s_waitcnt vmcnt(7)")
    for k in range(5):
        A(f"""
        v_and_b32 v{vD+k}, 63, v{vD+k}
        v_lshl_or_b32 v{vS+k}, v{vD+k}, 14, v{vS+k}
        v_add_u32 v{vD+k}, {512*k}, v0
        v_lshl_or_b32 v{vS+k}, v{vD+k}, 20, v{vS+k}
        v_lshlrev_b32 v{va+k}, 7, v{vb+k}
        v_add_u32 v{va+k}, {L_BT}, v{va+k}
        """)
    for k in range(5):
        if k == 4:
            A(f"s_mov_b64 exec, s[{s_x+4}:{s_x+5}]")
        A(f"""
        s_waitcnt lgkmcnt({4-k})
        v_add_u32 v4, v{vk+k}, v{vb+k}
        v_and_b32 v4, 7, v4
        v_lshrrev_b32 v5, 3, v{vk+k}
        v_lshl_add_u32 v4, v4, 2, v5
        v_lshl_add_u32 v{va+k}, v4, 2, v{va+k}
        v_cmp_gt_u32 vcc, 32, v{vk+k}
        s_and_saveexec_b64 s[{s_x+6}:{s_x+7}], vcc
        ds_write_b32 v{va+k}, v{vS+k}
        s_mov_b64 exec, s[{s_x+6}:{s_x+7}]
        """)
    A(f"""
    s_mov_b64 exec, -1
    v_lshrrev_b32 v4, 3, v0
    v_lshlrev_b32 v5, 2, v4
    v_add_u32 v5, {L_BC}, v5
    v_and_b32 v6, 7, v0
    v_lshlrev_b32 v7, 13, v4
    v_lshl_add_u32 v7, v6, 4, v7
    s_lshl_b32 s3, s2, 7
    s_add_u32 s3, s3, {WS_SLOT}
    v_add_u32 v7, s3, v7
    v_cmp_eq_u32 s[{s_x+2}:{s_x+3}], 7, v6
    v_mov_b32 v8, -2
    s_mov_b32 s{s_x+4}, 0
    s_mov_b32 s{s_x+5}, {64*8192}
    s_mov_b32 s{s_x+6}, {128*8192}
    s_mov_b32 s{s_x+7}, {192*8192}
    s_waitcnt lgkmcnt(0)
    s_barrier
    """)
    stamp(A, 2)
    for q in range(4):
        A(f"ds_read_b128 {vr(16+4*q,4)}, v15 offset:{q*8192}")
        A(f"ds_read_b32 v{32+q}, v5 offset:{q*256}")
    A(f"s_mov_b32 s3, {WS_W2F}")
    for q in range(4):
        A(f"""
        s_waitcnt lgkmcnt({6-2*q})
        v_cmp_lt_u32 vcc, 32, v{32+q}
        s_and_b64 vcc, vcc, s[{s_x+2}:{s_x+3}]
        s_nop 1
        v_cndmask_b32 v{19+4*q}, v{19+4*q}, v8, vcc
        buffer_store_dwordx4 {vr(16+4*q,4)}, v7, {S(sWS)}, s{s_x+4+q} offen {SC}
        """)
    A(f"s_waitcnt vmcnt(9)\nv_lshl_or_b32 v174, v175, 16, v174\nbuffer_store_dword v174, v176, {S(sWS)}, s3 offen {SC}")
    stamp(A, 3)
    f0load()
    gaddr()
    consts()
    A(f"""
    s_waitcnt vmcnt(0)
    s_barrier
    s_cmp_lg_u32 s{s_w}, 0
    s_cbranch_scc1 M_nlast2
    """)
    stamp(A, 16)
    A(f"""
    s_and_b32 s3, s2, 1
    s_lshl_b32 s3, s3, 6
    s_mov_b32 s{s_x}, 1
    s_atomic_add s{s_x}, s[{pDBG}:{pDBG+1}], s3 glc
    """)
    f0wait("b")
    A(f"""
    s_waitcnt lgkmcnt(0)
    s_and_b32 s3, s{s_x}, {NCH//2 - 1}
    s_cmp_lg_u32 s3, {NCH//2 - 1}
    s_cbranch_scc1 M_nlast
    """)
    release(WS_RB)
    A("M_nlast:")
    stamp(A, 17)
    A("M_nlast2:")
    wdma(128 * 512)
    zerofill()
    A("s_branch M_join")
    A("M_pwg:")
    srd(A, sD, pX, N * 256)
    srd(A, sB, pW1, 260 * 512)
    A(f"s_sub_u32 s{s_t}, s2, {NCH}\ns_mul_i32 s{s_t}, s{s_t}, {PROWS}")
    xdma(L_XP, s_t)
    A(f"""
    s_and_b32 s3, s2, -8
    s_add_u32 s3, s3, s{s_w}
    s_and_b32 s3, s3, 127
    s_lshl_b32 s3, s3, 10
    v_lshlrev_b32 v3, 4, v{L}
    buffer_load_dwordx4 v[16:19], v3, {S(sB)}, s3 offen
    """)
    srd(A, sWS, pWS, WS_END)
    srd(A, sG, pDBG, 256)
    consts()
    zerofill()
    wdma(0)
    stamp(A, 1)
    gaddr()
    A(f"""
    v_add_u32 v15, {L_XP}, v{vXr}
    v_add_u32 v11, s{s_t}, v4
    v_lshlrev_b32 v11, 9, v11
    v_lshl_add_u32 v11, v3, 4, v11
    s_lshl_b32 s3, s{s_w}, 6
    v_add_u32 v11, s3, v11
    s_add_u32 s3, s{s_t}, {PROWS}
    s_min_u32 s3, s3, {N}
    s_lshl_b32 s3, s3, 9
    """)
    srd(A, sD, pWS, "s3", off=WS_P)
    A(f"""
    s_mov_b32 s{s_x+4}, 0
    s_mov_b32 s{s_x+5}, 8192
    s_mov_b32 s{s_x+6}, 16384
    s_mov_b32 s{s_x+7}, 24576
    s_waitcnt vmcnt(8)
    s_barrier
    """)
    stamp(A, 2)
    for s in range(4):
        if s:
            A(f"v_xor_b32 v4, {s << 6:#x}, v15")
        for mt in range(4):
            A(f"ds_read_b128 {vr(vXP + 16*mt + 4*s, 4)}, v{4 if s else 15} offset:{mt*4096}")
    gemm_part(A, None, 4, vXP, vm=[6, 4, 2, 0])
    stamp(A, 18)
    f0load()
    gemm_pack(A, 4, lambda mt: A(f"buffer_store_dwordx4 {vr(vPO+4*mt,4)}, v11, {S(sD)}, s{s_x+4+mt} offen {SC}"))
    stamp(A, 3)
    srd(A, sD, pX, N * 256)
    A("s_barrier")
    xdma(L_XQ, s_nb0)
    small()
    wdma(128 * 512)
    A("s_waitcnt vmcnt(17)")
    A("M_join:")
    A(f"""
    s_cmp_lg_u32 s{s_w}, 0
    s_cbranch_scc1 M_w1d
    """)
    f0wait("a")
    rpoll("a", WS_RB, 2)
    A("M_w1d:\ns_waitcnt vmcnt(8)")
    stamp(A, 4)
    A(f"""
    s_mov_b32 s{s_x+2}, {QS - 512}
    v_lshlrev_b32 v8, 16, v{vWEr}
    v_and_b32 v9, 0xffff0000, v{vWEr}
    v_mul_f32 v8, v12, v8
    v_mul_f32 v9, v12, v9
    v_cvt_pk_bf16_f32 v10, v8, v9
    v_lshrrev_b32 v4, 7, v0          ; f
    v_lshlrev_b32 v5, 16, v10
    v_and_b32 v6, 0xffff0000, v10
    v_sub_f32 v8, v8, v5
    v_sub_f32 v9, v9, v6
    v_cvt_pk_bf16_f32 v11, v8, v9
    v_lshlrev_b32 v5, 2, v0
    v_mad_u32_u24 v5, v4, s{s_x+2}, v5
    v_add_u32 v5, {L_WE}, v5
    ds_write_b32 v5, v10
    ds_write_b32 v5, v11 offset:{4*QS}
    """)
    for x in range(4):
        A(f"v_lshlrev_b32 v{vB1+4+2*x}, 16, v{vB1+x}\nv_and_b32 v{vB1+5+2*x}, 0xffff0000, v{vB1+x}")
    stamp(A, 5)
    A(f"""
    v_add_u32 v15, {L_XQ}, v{vXr}
    s_lshl_b32 s{s_x}, s2, 13
    s_add_u32 s{s_x}, s{s_x}, {WS_SLOT}
    v_lshlrev_b32 v1, 4, v0
    s_waitcnt lgkmcnt(0)
    s_barrier
    s_cmp_lg_u32 s{s_w}, 1
    s_cbranch_scc1 M_tk0
    """)
    f0wait("c")
    A(f"""
    s_and_b32 s3, s2, 15
    s_lshl_b32 s3, s3, 7
    v_mov_b32 v{vPc}, 1
    s_mov_b64 exec, 1
    buffer_atomic_add v{vPc}, off, {S(sWS)}, s3 sc0 sc1
    s_mov_b64 exec, -1
    M_tk0:
    buffer_load_dwordx4 v[4:7], v1, {S(sWS)}, s{s_x} offen {SC}
    """)
    stamp(A, 6)
    for s in range(4):
        if s:
            A(f"v_xor_b32 v8, {s << 6:#x}, v15")
        for mt in range(3):
            A(f"ds_read_b128 {vr(vXF + 16*mt + 4*s, 4)}, v{8 if s else 15} offset:{mt*4096}")
    A(f"""
    s_cmp_eq_u32 s{s_w}, 1
    s_waitcnt vmcnt(2) lgkmcnt(0)
    s_cbranch_scc1 M_tk1
    s_waitcnt vmcnt(1)
    M_tk1:
    """)
    gemm_part(A, vB1 + 4, 3, vXF)
    A(f"""
    s_cmp_lg_u32 s{s_w}, 1
    s_cbranch_scc1 M_tk2
    s_waitcnt vmcnt(1)
    v_readfirstlane_b32 s3, v{vPc}
    s_cmp_lg_u32 s3, 15
    s_cbranch_scc1 M_tk2
    """)
    release(WS_RP)
    A("M_tk2:")
    A(f"""
    v_and_b32 v8, 15, v{L}           ; n
    v_lshrrev_b32 v9, 4, v{L}        ; q
    v_lshlrev_b32 v9, 4, v9
    v_mul_u32_u24 v8, {QS}, v8
    s_lshl_b32 s3, s{s_w}, 6
    s_add_u32 s3, s3, {L_Q}
    v_add3_u32 v{vQa}, v8, v9, s3
    """)
    gemm_pack(A, 3, lambda mt: None)
    stamp(A, 7)
    A("s_waitcnt vmcnt(0)\nM_recs:")
    stamp(A, 8)
    vD4, vRk, vEo, vEv, vBs, vTa = 16, 20, 24, 28, 36, 40
    A(f"s_mov_b32 s{s_x}, 0xfff00000\nv_mov_b32 v1, 1")
    for j in range(4):
        A(f"v_cmp_gt_u32 s[{sM+2*j}:{sM+2*j+1}], s{s_x}, v{4+j}")
    def egather(tag):
        for j in range(4):
            A(f"""
            s_mov_b64 exec, s[{sM+2*j}:{sM+2*j+1}]
            s_cbranch_execz M_eg{tag}_{j}
            buffer_load_dwordx2 {vr(vEv+2*j,2)}, v{vEo+j}, {S(sE)}, 0 offen
            M_eg{tag}_{j}:
            """)
        A("s_mov_b64 exec, -1")

    for j in range(4):
        A(f"""
        v_lshrrev_b32 v{vEo+j}, 20, v{4+j}
        v_lshl_add_u32 v{vEo+j}, v{vEo+j}, 3, v{vChunk8}
        """)
    egather("a")
    for j in range(4):
        A(f"""
        s_mov_b64 exec, s[{sM+2*j}:{sM+2*j+1}]
        s_cbranch_execz M_r1_{j}
        v_lshrrev_b32 v{vD4+j}, 12, v{4+j}
        v_subrev_u32 v{vD4+j}, s{s_nb4}, v{vD4+j}
        v_and_b32 v{vD4+j}, 0xfc, v{vD4+j}
        v_add_u32 v8, {L_CNT}, v{vD4+j}
        ds_add_rtn_u32 v{vRk+j}, v8, v1
        v_and_b32 v{4+j}, 0x3fff, v{4+j}
        M_r1_{j}:
        """)
        if j == 2:
            A(f"""
            s_mov_b64 exec, -1
            v_cmp_eq_u32 vcc, -2, v7
            s_and_b64 exec, exec, vcc
            s_cbranch_execz M_nomark
            v_mov_b32 v8, {L_CNT + 63*4}
            v_mov_b32 v9, 0x10000
            ds_add_u32 v8, v9
            M_nomark:
            """)
    A(f"""
    s_mov_b64 exec, -1
    s_mov_b32 s{s_alt}, 0
    s_mov_b32 s{s_sw}, 0
    v_lshlrev_b32 v9, 4, v{L}
    v_add_u32 v{vaAgg}, {L_AGG}, v9
    v_lshlrev_b32 v11, 2, v{L}
    v_add_u32 v11, 32, v11
    s_waitcnt lgkmcnt(0)
    s_barrier
    """)
    stamp(A, 21)
    A(f"""
    ds_read_b32 v8, v{vaCnt}
    s_cmp_lg_u32 s{s_slow}, 0
    s_cbranch_scc1 M_noq
    """)
    for mt in range(3):
        A(f"ds_write_b128 v{vQa}, {vr(vPO+4*mt,4)} offset:{mt*16*QS}")
    A("M_noq:")
    for r in range(16):
        A(f"v_mov_b32 v{vACC+r}, 0")
    A(f"""
    s_waitcnt lgkmcnt(3)
    s_cmp_eq_u32 s{s_slow}, 0
    s_cbranch_scc1 M_noq2
    s_waitcnt lgkmcnt(0)
    M_noq2:
    v_add_u32 v9, 1, v8
    v_and_b32 v9, -2, v9
    v_mov_b32 v10, v9
    v_mov_b32 v{vH}, 0
    v_mov_b32 v{vH+1}, 0
    v_add_u32_dpp v10, v10, v10 row_shr:1 row_mask:0xf bank_mask:0xf bound_ctrl:0
    v_mov_b32 v{vH+2}, 0
    v_mov_b32 v{vH+3}, 0
    v_add_u32_dpp v10, v10, v10 row_shr:2 row_mask:0xf bank_mask:0xf bound_ctrl:0
    v_mov_b32 v{vAgg}, 0
    v_mov_b32 v{vAgg+1}, 0
    v_add_u32_dpp v10, v10, v10 row_shr:4 row_mask:0xf bank_mask:0xf bound_ctrl:0
    s_nop 1
    v_add_u32_dpp v10, v10, v10 row_shr:8 row_mask:0xf bank_mask:0xf bound_ctrl:0
    s_nop 1
    v_add_u32_dpp v10, v10, v10 row_bcast:15 row_mask:0xa bank_mask:0xf
    s_nop 1
    v_add_u32_dpp v10, v10, v10 row_bcast:31 row_mask:0xc bank_mask:0xf
    s_nop 0
    v_sub_u32 v{vBase}, v10, v9
    v_readlane_b32 s{s_tot}, v10, 63
    M_derive:
    """)
    for j in range(4):
        A(f"ds_bpermute_b32 v{vBs+j}, v{vD4+j}, v{vBase}")
    A(f"""
    ds_bpermute_b32 v12, v11, v{vBase}
    s_cmp_gt_u32 s{s_tot}, {CAP_T*32}
    s_cbranch_scc1 M_goslow
    v_readlane_b32 s{s_T0p}, v{vBase}, 32
    s_add_u32 s{s_T}, s{s_tot}, 31
    s_lshr_b32 s{s_T}, s{s_T}, 5
    v_add3_u32 v13, v{vBase}, v9, 31
    v_and_b32 v13, -32, v13                ; end of the tile that holds node i's last slot
    s_waitcnt lgkmcnt(0)
    v_cmp_gt_u32 vcc, v13, v12
    v_cmp_ne_u32 s[{s_x}:{s_x+1}], s{s_tot}, v12
    s_andn2_b32 s{s_x+1}, vcc_lo, s{s_alt}
    s_and_b32 s{s_x}, s{s_x}, s{s_x+1}
    s_cbranch_scc1 M_align
    """)
    stamp(A, 22)
    A(f"""
    v_mov_b32 v1, 0x3f80
    s_mov_b32 s{s_f0}, 16
    s_cmp_lg_u32 s{s_w}, 0
    s_cbranch_scc1 M_nolook
    s_and_b32 s3, s2, 15
    s_lshl_b32 s3, s3, 7
    s_add_u32 s3, s3, {WS_RP}
    s_mov_b32 s{s_f0}, 0
    s_atomic_add s{s_f0}, s[{pWS}:{pWS+1}], s3 glc
    M_nolook:
    """)
    for j in range(4):
        A(f"""
        s_mov_b64 exec, s[{sM+2*j}:{sM+2*j+1}]
        s_cbranch_execz M_r2_{j}
        v_add_u32 v{vRk+j}, v{vRk+j}, v{vBs+j}
        v_lshlrev_b32 v9, 2, v{vRk+j}
        v_add_u32 v9, {L_LIST}, v9
        ds_write_b32 v9, v{4+j}
        v_and_b32 v9, 0x80, v{vD4+j}
        v_add_u32 v9, v9, v{vD4+j}
        v_and_b32 v10, 14, v{vRk+j}
        v_lshl_add_u32 v9, v9, 2, v10
        v_lshrrev_b32 v10, 4, v{vRk+j}
        v_lshl_add_u32 v9, v10, 9, v9
        v_add_u32 v9, {L_AGG}, v9
        ds_write_b16 v9, v1
        v_lshrrev_b32 v9, 3, v{vRk+j}
        v_and_b32 v10, 31, v{vRk+j}
        v_and_b32 v9, -4, v9
        v_cmp_eq_u32 vcc, 0, v10
        v_add_u32 v{vTa+j}, {L_N0}, v9
        s_and_b64 exec, exec, vcc
        ds_write_b32 v{vTa+j}, v{vD4+j}
        M_r2_{j}:
        """)
    A(f"""
    s_mov_b64 exec, -1
    s_cmp_lt_u32 s{s_T0p}, s{s_tot}
    s_cselect_b32 s{s_x}, 5, 31
    s_cselect_b32 s{s_x+1}, 1, 0x7fffffff
    s_lshr_b32 s{s_T0p}, s{s_T0p}, s{s_x}
    s_add_u32 s{s_T0p}, s{s_T0p}, s{s_x+1}
    v_add_u32 v{vDeg}, v{vDeg}, v8
    s_mul_i32 s{s_pri}, s{s_T}, {PRIO_NUM}
    s_lshr_b32 s{s_pri}, s{s_pri}, 5
    s_cmp_lt_u32 s{s_w}, 4
    s_cselect_b32 s{s_pri}, 0x7fffffff, s{s_pri}
    s_sub_u32 s{s_next}, s{s_T}, 1
    s_min_i32 s{s_next}, s{s_next}, s{s_T0p}
    s_min_i32 s{s_next}, s{s_next}, s{s_pri}
    v_mov_b32 v1, 0x3f80
    """)
    OO = [2, 10, 172]
    A(f"""
    v_and_b32 v8, 15, v{L}               ; n
    v_lshlrev_b32 v9, 2, v8
    ds_bpermute_b32 v48, v9, v{vDeg}
    v_add_u32 v9, 64, v9
    ds_bpermute_b32 v49, v9, v{vDeg}
    v_add_u32 v9, 64, v9
    ds_bpermute_b32 v50, v9, v{vDeg}
    v_lshrrev_b32 v9, 4, v{L}            ; q
    v_bfe_u32 v14, v8, 1, 2
    v_xor_b32 v14, v14, v9
    v_lshlrev_b32 v14, 4, v14
    v_lshl_add_u32 v14, v8, 6, v14
    v_add_u32 v15, s{s_nb0}, v8
    v_lshlrev_b32 v15, 8, v15
    v_lshl_add_u32 v15, v9, 3, v15
    s_lshl_b32 s3, s{s_w}, 5
    v_add_u32 v15, s3, v15
    v_and_b32 v8, 31, v{L}
    v_lshrrev_b32 v9, 5, v{L}
    v_lshlrev_b32 v9, 1, v9
    v_bfe_u32 v6, v8, 1, 2
    v_xor_b32 v6, v6, v9
    v_lshlrev_b32 v6, 4, v6
    v_lshl_add_u32 v6, v8, 6, v6
    v_add_u32 v6, s{s_ring}, v6
    v_xor_b32 v7, 16, v6
    v_lshlrev_b32 v52, 16, v{vB2}
    v_and_b32 v53, 0xffff0000, v{vB2}
    v_lshlrev_b32 v54, 16, v{vB2+1}
    v_and_b32 v55, 0xffff0000, v{vB2+1}
    s_lshl_b32 s3, s{s_nb1}, 8
    """)
    srd(A, sA, pOUT, "s3")
    A(f"""
    s_waitcnt lgkmcnt(0)
    v_cvt_f32_u32 v48, v48
    v_cvt_f32_u32 v49, v49
    v_cvt_f32_u32 v50, v50
    """)
    for mt in range(3):
        for i in range(4):
            A(f"v_mul_f32 v{OO[mt]+i}, v{48+mt}, v{52+i}")
    A(f"v_mov_b32 v56, {L_N0}")
    stamp(A, 23)
    A(f"""
    s_cmp_eq_u32 s{s_f0}, 16
    s_cbranch_scc1 M_w2
    """)
    rpoll("b", WS_RP, 16)
    A(f"""
    M_w2:
    v_mov_b32 v{vAgg+2}, 0
    v_mov_b32 v{vAgg+3}, 0
    s_waitcnt lgkmcnt(0)
    s_barrier
    """)
    stamp(A, 9)
    PSC = "sc1" if "psc1" in OPT else ("nt" if "pnt" in OPT else ("sc0 sc1" if "psc01" in OPT else ""))

    def dma(t, jj):
        r = vOff + 2 * t + jj if t < CAP_T else vDum
        return f"buffer_load_dwordx4 v{r}, {S(sP)}, 0 offen offset:{(t & 1)*2048 + jj*1024} {PSC} lds"

    def m0set(t):
        return f"s_mov_b32 m0, s{s_ring if (t % 4) < 2 else s_ringh}"

    def offs(lo, hi, after=None):
        for t0 in range(lo, hi, 8):
            ts = range(t0, min(t0 + 8, hi))
            for t in ts:
                A(f"ds_read_b64 {vr(vOff+2*t,2)}, v{vaList} offset:{t*128}")
            for i, t in enumerate(ts):
                A(f"s_waitcnt lgkmcnt({len(ts)-1-i})")
                for jj in range(2):
                    A(f"v_lshl_add_u32 v{vOff+2*t+jj}, v{vOff+2*t+jj}, 9, v{vK0 + 2*(t & 1) + jj}")
                if after:
                    after(t)

    def first_dma(t):
        if t < 2:
            A(dma(t, 0) + "\n" + dma(t, 1))
    A(m0set(0))
    offs(0, 6, first_dma)
    stamp(A, 19)
    for j in range(4):
        A(f"ds_read_b32 v{vBs+j}, v{vTa+j}")
    for g in range(7):
        A(f"ds_read_b128 {vr(vBa+4*g,4)}, v56 offset:{16*g}")
    A(f"{m0set(2)}\ns_waitcnt vmcnt(4) lgkmcnt(7)")
    stamp(A, 20)
    for j in range(4):
        A(f"""
        s_mov_b64 exec, s[{sM+2*j}:{sM+2*j+1}]
        s_cbranch_execz M_r3_{j}
        v_lshlrev_b32 v8, 4, v{vRk+j}
        v_add_u32 v8, {L_AQE}, v8
        ds_write2_b64 v8, {vr(vEv+2*j,2)}, {vr(vEv+2*j,2)} offset0:0 offset1:1
        v_sub_u32 v9, v{vD4+j}, v{vBs+j}
        v_lshrrev_b32 v9, 1, v9
        v_add_u32 v9, v9, v8
        ds_write_b16 v9, v1 offset:{L_AQH - L_AQE}
        M_r3_{j}:
        """)
    A("s_mov_b64 exec, -1")
    A("s_waitcnt lgkmcnt(0)\ns_barrier")
    stamp(A, 10)
    for t in range(CAP_T):
        A(f"v_mad_u32_u24 v{vBa+t}, v{vBa+t}, v{vBmul}, v{vaB}")
    A(f"""
    s_cmp_eq_u32 s{s_T}, 0
    s_cbranch_scc1 M_bend
    """)
    offs(6, CAP_T)
    stamp(A, 11)

    def bread(t):
        r = vBa + min(t, CAP_T - 1)
        return [f"ds_read_b64_tr_b16 {vr(vBq,2)}, v{r}", f"ds_read_b64_tr_b16 {vr(vBq+2,2)}, v{r} offset:{4*QS}"]

    def w2load(s):
        return f"buffer_load_dwordx4 {vr(vW2+4*s,4)}, v{vW2a}, {S(sWS)}, s{s_w2 + (s >> 2)} offen offset:{(s & 3)*1024} sc1"

    A("\n".join(bread(0)))
    A(f"""
    ds_read_b128 {vr(vAqe,4)}, v{vaAqe}
    s_cmp_lt_u32 s{s_w}, 4
    s_cbranch_scc1 M_nopri
    s_setprio 1
    M_nopri:
    {dma(2, 0)}
    {dma(2, 1)}
    s_waitcnt vmcnt(4)
    ds_read_b128 {vr(vPf0,4)}, v{vaP0}
    ds_read_b128 {vr(vPf1,4)}, v{vaP1}
    {dma(3, 0)}
    {dma(3, 1)}
    {m0set(D)}
    s_waitcnt lgkmcnt(0)
    """)
    mfma32(A, vU[0], vAqe, vBq, None)
    A(dma(D, 0))
    mfma32(A, vU[0], vPf0, vSel0, vU[0])
    A(dma(D, 1))
    mfma32(A, vU[0], vPf1, vSel1, vU[0])
    A("\n".join(bread(1)))
    A(f"""
    ds_read_b128 {vr(vAqe,4)}, v{vaAqe} offset:512
    s_waitcnt vmcnt({2*(D-1)})
    ds_read_b128 {vr(vPf0,4)}, v{vaP0} offset:2048
    ds_read_b128 {vr(vPf1,4)}, v{vaP1} offset:2048
    s_nop 7
    """)
    stamp(A, 12)

    def second_half(B, U, aggread):
        mfma32(B, vACC, vH, vAgg, vACC)
        for i in range(8):
            B(f"v_rcp_f32 v{vT+i}, v{vT+i}")
            if i == 4:
                B(aggread)
        for i in range(0, 8, 2):
            B(f"v_pk_mul_f32 {vr(U+i,2)}, {vr(U+i,2)}, {vr(vT+i,2)}")
        for i in range(0, 8, 2):
            B(f"v_cvt_pk_bf16_f32 v{vH+i//2}, v{U+i}, v{U+i+1}")

    vmq = ["d"] * (2 * (D + 1))

    def vm_need(t):
        seen = 0
        for i, k in enumerate(vmq):
            if k == "d":
                seen += 1
                if seen == 2 * (t + 1):
                    return len(vmq) - 1 - i

    ool = Asm()
    A(".p2align 3")
    for t in range(CAP_T):
        U, Un = vU[t & 1], vU[(t + 1) & 1]
        tn = t + 1 + D
        s2 = ((t + 2) % D) * 2048
        ex = [f"v_exp_f32 v{vT+i}, v{U+i}" for i in range(16)]
        if "itst" in OPT:
            A(f"s_memtime s[100:101]")
        late_vm = t < 2
        A(f"s_waitcnt lgkmcnt(0)" if late_vm else f"s_waitcnt vmcnt({vm_need(t+2)}) lgkmcnt(0)")
        if "itst" in OPT:
            A(f"v_writelane_b32 v{vSt}, s100, {16+t}")
        mfma32(A, Un, vAqe, vBq, None)
        A("\n".join(ex[0:4]))
        mfma32(A, Un, vPf0, vSel0, Un)
        A("\n".join(ex[4:8]))
        mfma32(A, Un, vPf1, vSel1, Un)
        A("\n".join(ex[8:16]))
        pk = [f"v_pk_fma_f32 {vr(vT+i,2)}, {vr(vT+i,2)}, {vr(vC,2)}, {vr(vC,2)} clamp" for i in (0, 8, 2, 10, 4, 12, 6, 14)]
        pk += [f"v_pk_mul_f32 {vr(U+i,2)}, {vr(U+i,2)}, {vr(vT+8+i,2)}" for i in range(0, 8, 2)]
        pk += [f"v_pk_fma_f32 {vr(U+i,2)}, {vr(U+8+i,2)}, {vr(vT+i,2)}, {vr(U+i,2)}" for i in range(0, 8, 2)]
        pk += [f"v_pk_mul_f32 {vr(vT+i,2)}, {vr(vT+i,2)}, {vr(vT+8+i,2)}" for i in range(0, 8, 2)]
        b0, b1 = bread(t + 2)
        g_ds = ([m0set(tn)] if tn % 2 == 0 else []) + [f"ds_read_b128 {vr(vAqe,4)}, v{vaAqe} offset:{(t+2)*512}", b0, b1]
        g_p = [f"ds_read_b128 {vr(vPf0,4)}, v{vaP0} offset:{s2}", f"ds_read_b128 {vr(vPf1,4)}, v{vaP1} offset:{s2}"]
        g_vm = [dma(tn, 0), dma(tn, 1)]
        if late_vm:
            groups = {2: g_ds, 12: [f"s_waitcnt vmcnt({vm_need(t+2)})"] + g_p + g_vm}
        else:
            groups = {2: g_ds + g_p, 9: g_vm}
        vmq += ["d", "d"]
        if W2T0 <= t < W2T0 + 8:
            g_vm.append(w2load(t - W2T0))
            vmq.append("w")
        groups[16] = [f"s_cmp_le_i32 s{s_next}, {t}"]
        for i, x in enumerate(pk):
            A(x)
            for y in groups.get(i, []):
                if not ("nodma" in OPT and " lds" in y):
                    A(y)
        A(f"s_cbranch_scc1 M_ev{t}\nM_evr{t}:")
        second_half(A, U, f"ds_read_b128 {vr(vAgg,4)}, v{vaAgg} offset:{t*1024}")
        ool(f"""
        M_ev{t}:
        s_movk_i32 s{s_t}, {t}
        s_call_b64 s[{s_ret}:{s_ret+1}], M_rare
        s_cbranch_scc1 M_tail{t & 1}
        s_branch M_evr{t}
        """)
    A("s_branch M_fin")
    for p in range(2):
        A(f"""
        M_tail{p}:
        s_lshl_b32 s3, s{s_t}, 10
        v_add_u32 v8, s3, v{vaAgg}
        """)
        second_half(A, vU[p], f"ds_read_b128 {vr(vAgg,4)}, v8")
        if p == 0:
            A("s_branch M_fin")
    A(f"""
    M_fin:
    s_mov_b32 s{s_t}, s{s_T}
    s_cmp_eq_u32 s{s_T0p}, s{s_T}
    s_cbranch_scc0 M_fin2
    s_call_b64 s[{s_ret}:{s_ret+1}], M_rare
    M_fin2:
    s_waitcnt lgkmcnt(0)
    """)
    mfma32(A, vACC, vH, vAgg, vACC)
    stamp(A, 13)
    A(f"""
    s_cmp_lg_u32 s{s_sw}, 0
    s_nop 11
    s_cbranch_scc1 M_fin_hi
    """)
    for r in range(16):
        A(f"v_add_f32 v{vS0+r}, v{vS0+r}, v{vACC+r}")
    A("s_branch M_bend\nM_fin_hi:")
    for r in range(16):
        A(f"v_add_f32 v{vS1+r}, v{vS1+r}, v{vACC+r}")
    K = -math.log(2.0) * 2.0 ** -CEXP
    A(f"""
    M_bend:
    s_setprio 0
    s_cmp_lg_u32 s{s_slow}, 0
    s_cbranch_scc1 M_next
    M_epi:
    s_cmp_gt_u32 s{s_T}, {W2T0 + 8}
    s_cbranch_scc1 M_epi2
    """)
    for s_ in range(8):
        A(w2load(s_))
    A(f"""
    M_epi2:
    v_mov_b32 v{vC}, {f32(K):#x}
    v_mov_b32 v{vC+1}, {f32(K):#x}
    """)
    for Sx, o in ((vS0, 16), (vS1, 24)):
        for r in range(0, 16, 2):
            A(f"v_pk_mul_f32 {vr(Sx+r,2)}, {vr(Sx+r,2)}, {vr(vC,2)}")
        for r in range(0, 16, 2):
            A(f"v_cvt_pk_bf16_f32 v{o+r//2}, v{Sx+r}, v{Sx+r+1}")
        if o == 16:
            A("s_waitcnt vmcnt(0)\nds_write_b128 v6, v[16:19]\nds_write_b128 v7, v[20:23]")
    A(f"""
    ds_write_b128 v6, v[24:27] offset:2048
    ds_write_b128 v7, v[28:31] offset:2048
    s_mov_b32 s{s_x}, 4096
    s_mov_b32 s{s_x+1}, 8192
    s_waitcnt lgkmcnt(0)
    s_barrier
    """)
    stamp(A, 14)
    SFR = 48
    order = [(s, mt) for s in range(8) for mt in range(3)]
    RS = D * 2048
    AHEAD = 12
    for k in range(AHEAD):
        s, mt = order[k]
        A(f"ds_read_b128 {vr(SFR+4*k,4)}, v14 offset:{s*RS+mt*1024}")
    for k in range(24):
        s, mt = order[k]
        A(f"s_waitcnt lgkmcnt({min(AHEAD - 1, 23 - k)})")
        mfma16(A, OO[mt], vW2 + 4 * s, SFR + 4 * k, OO[mt])
        if k + AHEAD < 24:
            s2, mt2 = order[k + AHEAD]
            A(f"ds_read_b128 {vr(SFR+4*(k+AHEAD),4)}, v14 offset:{s2*RS+mt2*1024}")
    A("s_nop 5")
    for mt in range(3):
        A(f"""
        v_cvt_pk_bf16_f32 v{16+2*mt}, v{OO[mt]}, v{OO[mt]+1}
        v_cvt_pk_bf16_f32 v{17+2*mt}, v{OO[mt]+2}, v{OO[mt]+3}
        buffer_store_dwordx2 {vr(16+2*mt,2)}, v15, {S(sA)}, {["0", f"s{s_x}", f"s{s_x+1}"][mt]} offen
        """)
    if (SPIN is not None and SPIN[0] == 15) or ENC is not None:
        A("s_waitcnt vmcnt(0)")
        stamp(A, 15)
    if STAMPS:
        A("s_waitcnt vmcnt(0)")
        stamp(A, 15)
        srd(A, sA, pWS, 0x80000, off=WS_ST)
        A(f"""
        s_lshl_b32 s3, s2, 3
        s_add_u32 s3, s3, s{s_w}
        s_lshl_b32 s3, s3, 8
        v_lshl_add_u32 v1, v{L}, 2, s3
        buffer_store_dword v{vSt}, v1, {S(sA)}, 0 offen
        """)
    A("M_end:\ns_endpgm")

    A(f"""
    M_rare:
    s_cmp_eq_u32 s{s_T0p}, s{s_t}
    s_cbranch_scc0 M_rare2
    s_waitcnt lgkmcnt(0)
    """)
    mfma32(A, vACC, vH, vAgg, vACC)
    A(f"""
    s_lshl_b32 s3, s{s_t}, 10
    v_add_u32 v8, s3, v{vaAgg}
    v_add_u32 v{vaAgg}, 1024, v{vaAgg}
    s_mov_b32 s{s_sw}, 1
    s_mov_b32 s{s_T0p}, 0x7fffffff
    ds_read_b128 {vr(vAgg,4)}, v8
    s_nop 8
    """)
    for r in range(16):
        A(f"v_add_f32 v{vS0+r}, v{vS0+r}, v{vACC+r}")
    for r in range(16):
        A(f"v_mov_b32 v{vACC+r}, 0")
    A(f"""
    s_waitcnt lgkmcnt(0)
    M_rare2:
    s_cmp_le_i32 s{s_pri}, s{s_t}
    s_cbranch_scc0 M_rare3
    s_setprio 0
    s_mov_b32 s{s_pri}, 0x7fffffff
    M_rare3:
    s_sub_u32 s3, s{s_T}, 1
    s_min_i32 s{s_next}, s3, s{s_T0p}
    s_min_i32 s{s_next}, s{s_next}, s{s_pri}
    s_cmp_le_i32 s3, s{s_t}
    s_setpc_b64 s[{s_ret}:{s_ret+1}]
    """)

    A(f"""
    M_align:
    s_mov_b32 s{s_alt}, -1
    s_mov_b32 s{s_x+8}, 0
    v_mov_b32 v13, v{vBase}
    """)
    for G in range(5):
        A(f"""
        v_readlane_b32 s{s_x}, v{vBase}, {8*G}
        v_readlane_b32 s{s_x+1}, v{vBase}, {8*G+8}
        s_nop 1
        s_sub_u32 s{s_x+9}, s{s_x+8}, s{s_x}
        v_cmp_le_u32 vcc, {8*G}, v{L}
        v_add_u32 v10, s{s_x+9}, v{vBase}
        s_sub_u32 s{s_x+1}, s{s_x+1}, s{s_x}
        s_add_u32 s{s_x+8}, s{s_x+8}, s{s_x+1}
        v_cndmask_b32 v13, v13, v10, vcc
        """)
        if G < 4:
            A(f"s_add_u32 s{s_x+8}, s{s_x+8}, 31\ns_and_b32 s{s_x+8}, s{s_x+8}, -32")
    A(f"""
    s_mov_b32 s{s_tot}, s{s_x+8}
    v_mov_b32 v{vBase}, v13
    s_nop 1
    s_branch M_derive
    """)
    A(f"""
    M_goslow:
    s_mov_b32 s{s_slow}, 1
    s_mov_b32 s{s_batch}, 0
    s_branch M_load
    M_next:
    s_add_u32 s{s_batch}, s{s_batch}, 512
    s_cmp_ge_u32 s{s_batch}, {E}
    s_cbranch_scc1 M_epi
    M_load:
    """)
    srd(A, sA, pDST, E * 4)
    srd(A, sB, pSRC, E * 4)
    A(f"""
    v_add_u32 v8, s{s_batch}, v0
    v_lshlrev_b32 v9, 2, v8
    s_waitcnt vmcnt(0) lgkmcnt(0)
    buffer_load_dword v10, v9, {S(sA)}, 0 offen
    buffer_load_dword v11, v9, {S(sB)}, 0 offen
    v_lshlrev_b32 v{vChunk8}, 3, v8
    v_mov_b32 v5, -1
    v_mov_b32 v6, -1
    v_mov_b32 v7, -1
    s_mov_b32 s{s_x+2}, {E}
    s_waitcnt vmcnt(0)
    v_subrev_u32 v12, s{s_nb0}, v10
    v_cmp_gt_u32 vcc, s{s_nn}, v12
    v_cmp_gt_u32 s[{s_x}:{s_x+1}], s{s_x+2}, v8
    v_and_b32 v10, 63, v10
    v_lshl_or_b32 v11, v10, 14, v11
    s_and_b64 vcc, vcc, s[{s_x}:{s_x+1}]
    s_nop 1
    v_cndmask_b32 v4, v5, v11, vcc
    s_barrier
    """)
    zerofill()
    A("s_waitcnt lgkmcnt(0)\ns_barrier\ns_branch M_recs")
    A.l += ool.l


def build():
    out = f"""; Fused edge-featured MPNN layer, one workgroup per bucket of 39/40 destination nodes.
; @launch grid=(256,1,1) block=(512,1,1) lds={LDS_BYTES}
.amdgcn_target "amdgcn-amd-amdhsa--gfx950"
.text
.globl {KN}
.p2align 8
.type {KN},@function
"""
    A = Asm()
    kernel(A)
    out += A.text()
    out += f""".section .rodata,"a"
.p2align 6
.amdhsa_kernel {KN}
  .amdhsa_next_free_vgpr {NV}
  .amdhsa_next_free_sgpr 102
  .amdhsa_accum_offset {(NV + 3) // 4 * 4}
  .amdhsa_group_segment_fixed_size 0
  .amdhsa_kernarg_size 88
  .amdhsa_user_sgpr_count 2
  .amdhsa_user_sgpr_kernarg_segment_ptr 1
  .amdhsa_system_sgpr_workgroup_id_x 1
.end_amdhsa_kernel
"""
    return out


if __name__ == "__main__":
    for a in list(sys.argv):
        if a.startswith("-o"):
            OPT.update(a[2:].split(","))
            sys.argv.remove(a)
    for a in list(sys.argv):
        if a.startswith("-spin"):
            i, us = a[5:].split(":")
            SPIN = (int(i), float(us))
            sys.argv.remove(a)
    for a in list(sys.argv):
        if a.startswith("-wsb"):
            WS_BASE = int(a[4:]) << 20
            sys.argv.remove(a)
    for a in list(sys.argv):
        if a.startswith("-enc"):
            ENC = int(a[4:])
            sys.argv.remove(a)
    for a in list(sys.argv):
        if a.startswith("-pri"):
            PRIO_NUM = int(a[4:])
            sys.argv.remove(a)
    if "--stamps" in sys.argv:
        STAMPS = True
        sys.argv.remove("--stamps")
    path = sys.argv[1] if len(sys.argv) > 1 else f"cdna_kernels/{NAME}.s"
    open(path, "w").write(build())
    print("wrote", path, "lds", LDS_BYTES)
```

```python
import sys, struct, math

NAME = "gather_scatter__edge_featured_mpnn_mpnn__graph"
KN = NAME + "_kernel"
N, E = 10000, 160000

WS_CNT = 0
WS_RB = 16 * 128
WS_RP = 32 * 128
WS_W2F = 0x2000
WS_SLOT = 0x12000
WS_P = 0x213000
TABB = N * 512
WS_END = WS_P + TABB
WS_ST = 0x1000000

WS_BASE = 0
NCH = 64
CHE = E // NCH
PROWS = 53
LOG2E = 1.4426950408889634
CEXP = 48
STAMPS = False
OPT = set()
PRIO_NUM = 22
W2T0 = 8


def f32(x):
    return struct.unpack("<I", struct.pack("<f", x))[0]


class Asm:
    def __init__(self):
        self.l = []

    def __call__(self, s):
        for x in s.split("\n"):
            x = x.strip()
            if x:
                self.l.append(("" if x.endswith(":") else "    ") + x)

    def text(self):
        import re
        for x in self.l:
            m = re.search(r"offset:(\d+)", x)
            if m:
                lim = 4096 if x.strip().startswith("buffer_") else 65536
                assert int(m.group(1)) < lim, x
        return "\n".join(self.l) + "\n"


def vr(a, n=1):
    return f"v{a}" if n == 1 else f"v[{a}:{a+n-1}]"


def srd(A, d, base, size, off=None):
    if off is None:
        A(f"s_mov_b32 s{d}, s{base}\ns_mov_b32 s{d+1}, s{base+1}")
    else:
        A(f"s_add_u32 s{d}, s{base}, {off}\ns_addc_u32 s{d+1}, s{base+1}, 0")
    A(f"s_mov_b32 s{d+2}, {size}\ns_mov_b32 s{d+3}, 0x00020000")


def S(d):
    return f"s[{d}:{d+3}]"


D = 4
CAP_T = 26
QS = 592
L_RING = 0
L_AQE = 8 * D * 2048
L_AQH = L_AQE + CAP_T * 512
L_AGG = L_AQH + CAP_T * 512
L_LIST = L_AGG + (CAP_T + 1) * 1024
L_CNT = L_LIST + 4096
L_N0 = L_CNT + 256
L_WE = L_N0 + 256
L_Q = L_WE + 8 * QS
LDS_BYTES = (L_Q + 255) // 256 * 256 + 32768
ZERO_BYTES = L_LIST - L_AQE
L_XP = (L_Q + 255) // 256 * 256
L_XQ = L_XP + 16384
L_BT = L_AQE
L_BC = L_BT + 32768
assert L_BC + 2048 <= L_LIST and LDS_BYTES <= 163840 and 48 * QS <= 32768
DUMMY = 0x400000

pX, pE, pSRC, pDST, pW1, pB1, pW2, pB2, pOUT, pDBG, pWS = 4, 6, 8, 10, 12, 14, 16, 18, 20, 22, 24
s_w2 = 26
sA, sB, sC, sD, sWS, sP, sE = 28, 32, 36, 40, 44, 48, 52
(s_w, s_nb0, s_nb1, s_nn, s_T, s_T0p, s_t, s_next, s_slow, s_batch, s_ring, s_sw, s_tot,
 s_nb4, s_ringh, s_spin, s_pri, s_alt, s_xw) = range(56, 75)
s_f0 = 85
s_x = 76
sM = 86
s_ret = 94
sG = 96

vU = [16, 32]
vT = 48
vH = 64
vACC = 68
vS0 = 84
vS1 = 100
vPf0, vPf1, vAqe, vAgg, vBq, vSel0, vSel1 = 116, 120, 124, 128, 132, 136, 140
vBa = 144
vOff = 176
vW2 = 176
(vC, _c1, vB2, _b1, vK0, vK1, vK2, vK3, vaAqe, vaAgg, vaList, vaP0, vaP1, vaB, vBmul, vBase, vDeg,
 vChunk8, vLane, vDum, vSt, vW2a, vaCnt) = range(228, 251)
NV = 252
vXF = 176
vXP = 160
vWF = 16
vPA = 48
vPO = 148
vXa = 145
vXr = 147
vB1 = 116
vWEr = 128
vF0 = 129
vPc = 130
vQa = 131


def mfma32(A, d, a, b, c):
    cs = "0" if c is None else vr(c, 16)
    A(f"v_mfma_f32_32x32x16_bf16 {vr(d,16)}, {vr(a,4)}, {vr(b,4)}, {cs}")


def mfma16(A, d, a, b, c):
    cs = "0" if c is None else vr(c, 4)
    A(f"v_mfma_f32_16x16x32_bf16 {vr(d,4)}, {vr(a,4)}, {vr(b,4)}, {cs}")


SPIN = None


ENC = None


def stamp(A, i):
    if ENC is not None:
        if i == 0:
            A("s_memrealtime s[100:101]\ns_waitcnt lgkmcnt(0)\ns_mov_b32 s75, s100\ns_nop 0")
        if i == ENC:
            A("s_waitcnt lgkmcnt(0)\ns_memrealtime s[100:101]\ns_waitcnt lgkmcnt(0)\ns_sub_u32 s101, s100, s75")
            A(f"v_writelane_b32 v{vSt}, s101, 0")
        if i == 15:
            u = len(A.l)
            A(f"v_readlane_b32 s3, v{vSt}, 0\ns_nop 3\ns_lshl_b32 s3, s3, 2\ns_add_u32 s3, s3, 6000")
            A(f"M_spin{u}:\ns_memrealtime s[100:101]\ns_waitcnt lgkmcnt(0)\ns_sub_u32 s100, s100, s75\ns_cmp_lt_u32 s100, s3\ns_cbranch_scc1 M_spin{u}")
    if SPIN is not None:
        if i == 0:
            A("s_memrealtime s[100:101]\ns_waitcnt lgkmcnt(0)\ns_mov_b32 s75, s100")
        elif i == SPIN[0]:
            u = len(A.l)
            A(f"M_spin{u}:\ns_memrealtime s[100:101]\ns_waitcnt lgkmcnt(0)\ns_sub_u32 s100, s100, s75\ns_cmp_lt_u32 s100, {int(SPIN[1]*100)}\ns_cbranch_scc1 M_spin{u}")
    if STAMPS:
        ins = "s_memtime" if "cyc" in OPT else "s_memrealtime"
        A(f"s_waitcnt lgkmcnt(0)\n{ins} s[100:101]\ns_waitcnt lgkmcnt(0)\nv_writelane_b32 v{vSt}, s100, {i}")


def gemm_part(A, init, nmt, xf, vm=None):
    def rd(s):
        for ct in range(2):
            for x in range(2):
                A(f"ds_read_b64_tr_b16 {vr(vWF + 8*s + 4*ct + 2*x, 2)}, v14 offset:{s*2048 + x*256 + ct*8}")
    if vm is None:
        for s in range(4):
            rd(s)
    else:
        A(f"s_waitcnt vmcnt({vm[0]})")
        rd(0)
    for s in range(4):
        if vm is None:
            A(f"s_waitcnt lgkmcnt({12 - 4*s})")
        else:
            A("s_waitcnt lgkmcnt(0)")
        k = 0
        for mt in range(nmt):
            for ct in range(2):
                d = vPA + 8 * mt + 4 * ct
                c = d if s else (None if init is None else init + 4 * ct)
                mfma16(A, d, vWF + 8 * s + 4 * ct, xf + 16 * mt + 4 * s, c)
                k += 1
                if vm is not None and k == 2 and s < 3:
                    A(f"s_waitcnt vmcnt({vm[s+1]})")
                    rd(s + 1)


def gemm_pack(A, nmt, store):
    A("s_nop 4")
    for mt in range(nmt):
        for r in range(0, 8, 2):
            a = vPA + 8 * mt + r
            A(f"v_pk_mul_f32 {vr(a,2)}, {vr(a,2)}, v[12:13]")
        for r in range(0, 8, 2):
            a = vPA + 8 * mt + r
            A(f"v_cvt_pk_bf16_f32 v{vPO + 4*mt + r//2}, v{a}, v{a+1}")
        store(mt)


def kernel(A):
    L = vLane
    SC = "sc0 sc1"
    A(f"{KN}:")
    A(f"""
    s_cmp_ge_u32 s2, 256
    s_cbranch_scc1 M_end
    s_load_dwordx16 s[4:19], s[0:1], 0
    s_load_dwordx4 s[20:23], s[0:1], 64
    s_load_dwordx2 s[24:25], s[0:1], 80
    """)
    if STAMPS or ENC is not None:
        A(f"v_mov_b32 v{vSt}, 0")
    stamp(A, 0)
    A(f"""
    v_lshrrev_b32 v2, 6, v0
    v_and_b32 v{L}, 63, v0
    v_readfirstlane_b32 s{s_w}, v2
    s_mul_i32 s{s_nb0}, s2, 160069
    s_add_u32 s{s_nb1}, s{s_nb0}, {160069 + 4049}
    s_add_u32 s{s_nb0}, s{s_nb0}, 4049
    s_lshr_b32 s{s_nb0}, s{s_nb0}, 12
    v_lshrrev_b32 v7, 4, v{L}
    v_and_b32 v8, 15, v{L}
    v_xor_b32 v8, v8, v7
    s_lshl_b32 s{s_ring}, s{s_w}, 13
    s_and_b32 s3, s{s_w}, 1
    s_lshl_b32 s3, s3, 3
    v_xor_b32 v8, s3, v8
    v_lshlrev_b32 v8, 4, v8
    v_lshl_add_u32 v8, v7, 8, v8
    s_lshl_b32 s{s_xw}, s{s_w}, 11
    v_add_u32 v{vXa}, s{s_xw}, v8
    v_xor_b32 v{vXa+1}, 64, v{vXa}
    v_lshrrev_b32 v10, 2, v{L}
    v_and_b32 v11, 3, v{L}
    v_lshlrev_b32 v11, 4, v11
    v_lshl_add_u32 v10, v10, 9, v11
    s_lshl_b32 s3, s{s_w}, 6
    v_add_u32 v10, s3, v10
    v_lshlrev_b32 v2, 2, v0
    s_waitcnt lgkmcnt(0)
    s_add_u32 s{pWS}, s{pWS}, {WS_BASE}
    s_addc_u32 s{pWS+1}, s{pWS+1}, 0
    s_cmp_ge_u32 s2, {NCH}
    s_cbranch_scc1 M_pwg
    """)

    def wdma(base):
        for ii in range(8):
            A(f"""
            s_add_u32 m0, s{s_ring}, {ii*1024}
            s_mov_b32 s{s_x+1}, {base + ii*8192}
            buffer_load_dwordx4 v10, {S(sB)}, s{s_x+1} offen lds
            """)

    def xdma(ldsbase, rowreg):
        A(f"""
        s_add_u32 m0, s{s_xw}, {ldsbase}
        s_lshl_b32 s3, s{rowreg}, 8
        buffer_load_dwordx4 v{vXa}, {S(sD)}, s3 offen lds
        buffer_load_dwordx4 v{vXa+1}, {S(sD)}, s3 offen offset:1024 lds
        """)

    def gaddr():
        A(f"""
        v_lshrrev_b32 v3, 4, v{L}        ; q
        v_and_b32 v4, 15, v{L}           ; n
        v_xor_b32 v5, v3, v4
        v_lshlrev_b32 v5, 4, v5
        v_lshl_add_u32 v{vXr}, v4, 8, v5
        v_bfe_u32 v5, v{L}, 2, 2         ; r
        v_lshl_add_u32 v6, v3, 3, v5     ; 8q + r
        v_lshlrev_b32 v6, 6, v6
        v_and_b32 v7, 3, v{L}            ; c
        v_lshl_add_u32 v6, v7, 4, v6
        v_add_u32 v14, s{s_ring}, v6
        v_mov_b32 v12, {f32(-LOG2E):#x}
        v_mov_b32 v13, v12
        """)

    def consts():
        srd(A, sP, pWS, TABB + 4096, off=WS_P - 4096)
        srd(A, sE, pE, E * 8)
        A(f"""
        s_lshr_b32 s{s_nb1}, s{s_nb1}, 12
        s_min_u32 s{s_nb1}, s{s_nb1}, {N}
        s_sub_u32 s{s_nn}, s{s_nb1}, s{s_nb0}
        s_lshl_b32 s{s_nb4}, s{s_nb0}, 2
        s_add_u32 s{s_ringh}, s{s_ring}, 4096
        s_mov_b32 s{s_slow}, 0
        s_lshl_b32 s{s_w2}, s{s_w}, 13
        s_add_u32 s{s_w2}, s{s_w2}, {WS_W2F}
        s_add_u32 s{s_w2+1}, s{s_w2}, 4096
        v_lshrrev_b32 v3, 4, v{L}        ; q
        v_bfe_u32 v5, v{L}, 2, 2         ; r
        v_and_b32 v7, 3, v{L}            ; c
        v_xor_b32 v9, v7, v3
        v_lshlrev_b32 v9, 4, v9
        s_lshl_b32 s3, s{s_w}, 6
        s_add_u32 s{s_x}, s3, 1024
        v_add_u32 v{vK3}, s{s_x}, v9
        v_add_u32 v{vK2}, 1024, v{vK3}
        v_add_u32 v{vK1}, 2048, v{vK3}
        v_add_u32 v{vK0}, 3072, v{vK3}
        v_lshrrev_b32 v1, 5, v{L}        ; h
        v_mul_u32_u24 v5, {QS}, v5
        v_and_b32 v3, 1, v3
        v_lshl_add_u32 v5, v3, 5, v5
        v_lshl_add_u32 v5, v7, 3, v5
        s_add_u32 s3, s3, {L_WE}
        v_add_u32 v5, s3, v5
        v_mul_u32_u24 v6, {8*QS}, v1
        v_add_u32 v{vaB}, v5, v6
        v_mul_u32_u24 v{vBmul}, {QS//4}, v1
        v_and_b32 v3, 31, v{L}           ; m
        v_lshrrev_b32 v9, 4, v3
        v_and_b32 v8, 3, v3
        v_lshl_add_u32 v9, v8, 1, v9
        v_and_b32 v8, 8, v3
        v_add_u32 v9, v9, v8
        v_and_b32 v8, 4, v3
        v_lshl_add_u32 v9, v8, 2, v9
        v_lshlrev_b32 v9, 4, v9
        v_mul_u32_u24 v8, {L_AQH - L_AQE}, v1
        v_add_u32 v9, v9, v8
        v_add_u32 v{vaAqe}, {L_AQE}, v9
        v_lshrrev_b32 v9, 2, v{L}
        v_and_b32 v8, 3, v9
        v_lshlrev_b32 v8, 1, v8
        v_and_b32 v11, 8, v9
        v_add_u32 v8, v8, v11
        v_and_b32 v11, 4, v9
        v_lshl_add_u32 v8, v11, 2, v8
        v_lshlrev_b32 v8, 2, v8
        v_add_u32 v{vaList}, {L_LIST}, v8
        v_bfe_u32 v9, v3, 2, 2
        v_xor_b32 v9, v9, v1
        v_lshlrev_b32 v9, 4, v9
        v_lshl_add_u32 v9, v3, 6, v9
        v_add_u32 v{vaP0}, s{s_ring}, v9
        v_xor_b32 v{vaP1}, 32, v{vaP0}
        v_and_b32 v9, 1, v3
        v_lshlrev_b32 v9, 4, v9
        v_mov_b32 v8, 0x3f80
        v_lshlrev_b32 v9, v9, v8
        v_lshrrev_b32 v8, 1, v3
        v_lshlrev_b32 v11, 2, v1
        v_sub_u32 v8, v8, v11
        """)
        for x in range(4):
            A(f"v_cmp_eq_u32 s[{s_x}:{s_x+1}], {x}, v8\nv_cmp_eq_u32 vcc, {8+x}, v8\ns_nop 0")
            A(f"v_cndmask_b32 v{vSel0+x}, 0, v9, s[{s_x}:{s_x+1}]\nv_cndmask_b32 v{vSel1+x}, 0, v9, vcc")
        A(f"""
        v_mov_b32 v{vC}, {f32(2.0**-CEXP):#x}
        v_mov_b32 v{vC+1}, {f32(2.0**-CEXP):#x}
        v_mov_b32 v{vDeg}, 0
        v_mov_b32 v{vDum}, 0x80000000
        v_lshrrev_b32 v9, 3, v0
        v_mul_u32_u24 v{vChunk8}, {CHE*8}, v9
        v_lshlrev_b32 v{vW2a}, 4, v{L}
        v_lshlrev_b32 v9, 2, v{L}
        v_add_u32 v{vaCnt}, {L_CNT}, v9
        """)
        for r in range(16):
            A(f"v_mov_b32 v{vS0+r}, 0\nv_mov_b32 v{vS1+r}, 0")

    def zerofill():
        A(f"""
        v_mov_b32 v40, 0
        v_mov_b32 v41, 0
        v_mov_b32 v42, 0
        v_mov_b32 v43, 0
        v_mov_b32 v44, {DUMMY}
        v_mov_b32 v45, {DUMMY}
        v_lshlrev_b32 v1, 3, v0
        v_add_u32 v1, {L_LIST}, v1
        ds_write_b64 v1, v[44:45]
        ds_write_b32 v{vaCnt}, v40
        ds_write_b32 v{vaCnt}, v40 offset:256
        v_lshlrev_b32 v1, 4, v0
        v_add_u32 v1, {L_AQE}, v1
        """)
        nz = ZERO_BYTES // 8192
        rem = ZERO_BYTES - nz * 8192
        for q in range(nz):
            A(f"ds_write_b128 v1, v[40:43] offset:{q*8192}")
        if rem:
            A(f"""
            v_cmp_gt_u32 vcc, {rem//16}, v0
            s_and_saveexec_b64 s[{s_x}:{s_x+1}], vcc
            ds_write_b128 v1, v[40:43] offset:{nz*8192}
            s_mov_b64 exec, s[{s_x}:{s_x+1}]
            """)

    def small():
        srd(A, sC, pB1, 512)
        srd(A, sA, pB2, 256)
        A(f"""
        v_lshrrev_b32 v3, 4, v{L}
        v_lshlrev_b32 v4, 4, v3
        s_lshl_b32 s3, s{s_w}, 6
        buffer_load_dwordx4 {vr(vB1,4)}, v4, {S(sC)}, s3 offen
        v_lshlrev_b32 v5, 2, v0
        s_mov_b32 s3, {256*512}
        buffer_load_dword v{vWEr}, v5, {S(sB)}, s3 offen
        v_lshlrev_b32 v4, 3, v3
        s_lshl_b32 s3, s{s_w}, 5
        buffer_load_dwordx2 {vr(vB2,2)}, v4, {S(sA)}, s3 offen
        """)

    def eprefetch():
        A(f"""
        s_mul_i32 s3, s2, {E*8//256}
        v_lshlrev_b32 v3, 4, v0
        buffer_load_dwordx4 v[224:227], v3, {S(sE)}, s3 offen
        """)

    def f0load():
        A(f"buffer_load_dword v{vF0}, off, {S(sG)}, 0 offset:128 sc1")

    def spoll(tag, base, offreg, want):
        A(f"""
        s_mov_b32 s{s_spin}, 0x40000
        M_sp{tag}:
        s_mov_b32 s{s_x+1}, 0
        s_atomic_add s{s_x+1}, s[{base}:{base+1}], {offreg} glc
        s_sub_u32 s{s_spin}, s{s_spin}, 1
        s_cbranch_scc1 M_spd{tag}
        s_waitcnt lgkmcnt(0)
        s_cmp_lg_u32 s{s_x+1}, {want}
        s_cbranch_scc1 M_sp{tag}
        M_spd{tag}:
        s_waitcnt lgkmcnt(0)
        """)

    def f0wait(tag):
        A(f"""
        v_readfirstlane_b32 s3, v{vF0}
        s_cmp_lg_u32 s3, 0
        s_cbranch_scc1 M_pfd{tag}
        """)
        spoll("f" + tag, pDBG, 128, 1)
        A(f"M_pfd{tag}:")

    def release(base):
        A(f"""
        v_lshlrev_b32 v8, 7, v{L}
        v_mov_b32 v9, 1
        s_mov_b32 s3, {base}
        s_mov_b64 exec, 0xffff
        buffer_atomic_add v9, v8, {S(sWS)}, s3 offen sc1
        s_mov_b64 exec, -1
        """)

    def rpoll(tag, base, want):
        A(f"s_and_b32 s3, s2, 15\ns_lshl_b32 s3, s3, 7\ns_add_u32 s3, s3, {base}")
        spoll(tag, pWS, "s3", want)

    srd(A, sWS, pWS, WS_END)
    A(f"""
    v_lshlrev_b32 v3, 7, v0
    s_cmp_eq_u32 s2, 0
    s_cselect_b32 s3, 48, 0
    v_cmp_gt_u32 vcc, s3, v0
    v_mov_b32 v4, 0x40000000
    v_mov_b32 v8, 0
    v_cndmask_b32 v3, v4, v3, vcc
    s_mul_i32 s3, s2, {CHE*4}
    buffer_store_dword v8, v3, {S(sWS)}, 0 offen {SC}
    """)
    srd(A, sC, pDST, CHE * 4, off="s3")
    srd(A, sD, pSRC, CHE * 4, off="s3")
    A(f"s_mov_b32 s{s_x+1}, 4096\ns_mov_b32 s{s_x+2}, 8192")
    vD, vS = 164, 169
    so = ["0", "0", f"s{s_x+1}", f"s{s_x+1}", f"s{s_x+2}"]
    for k in range(5):
        A(f"buffer_load_dword v{vD+k}, v2, {S(sC)}, {so[k]} offen offset:{(k & 1)*2048}")
    for k in range(5):
        A(f"buffer_load_dword v{vS+k}, v2, {S(sD)}, {so[k]} offen offset:{(k & 1)*2048}")
    srd(A, sC, pW2, 256 * 256)
    srd(A, sB, pW1, 260 * 512)
    A(f"""
    v_lshlrev_b32 v3, 4, v0
    v_add_u32 v15, {L_BT}, v3
    v_add_u32 v2, {L_BC}, v2
    v_mov_b32 v4, -1
    v_mov_b32 v5, -1
    v_mov_b32 v6, -1
    v_mov_b32 v7, -1
    """)
    for q in range(4):
        A(f"ds_write_b128 v15, v[4:7] offset:{q*8192}")
    A(f"""
    ds_write_b32 v2, v8
    v_mov_b32 v9, 1
    """)
    srd(A, sD, pX, N * 256)
    srd(A, sG, pDBG, 256)
    stamp(A, 1)
    A(f"""
    s_waitcnt lgkmcnt(0)
    s_barrier
    s_waitcnt vmcnt(5)
    """)
    vb, va, vk = 16, 21, 26
    for k in range(5):
        A(f"v_mul_u32_u24 v{vb+k}, 1677, v{vD+k}")
        A(f"v_lshrrev_b32 v{vb+k}, 16, v{vb+k}")
        A(f"v_lshlrev_b32 v{va+k}, 2, v{vb+k}")
        A(f"v_add_u32 v{va+k}, {L_BC}, v{va+k}")
        if k == 4:
            A(f"v_cmp_gt_u32 vcc, {CHE - 2048}, v0\ns_and_saveexec_b64 s[{s_x+2}:{s_x+3}], vcc")
        A(f"ds_add_rtn_u32 v{vk+k}, v{va+k}, v9")
    A(f"""
    s_mov_b64 s[{s_x+4}:{s_x+5}], exec
    s_or_b32 s3, s2, s{s_w}
    s_cbranch_scc1 M_nf0
    s_mov_b64 exec, 1
    buffer_store_dword v9, off, {S(sG)}, 0 offset:128 {SC}
    M_nf0:
    s_mov_b64 exec, -1
    s_lshl_b32 s3, s2, 8
    v_add_u32 v3, s3, v0
    v_bfe_u32 v4, v3, 8, 3           ; s
    v_lshlrev_b32 v4, 5, v4
    v_bfe_u32 v5, v3, 6, 1           ; ab
    v_lshl_add_u32 v4, v5, 4, v4
    v_bfe_u32 v5, v3, 1, 1           ; e>>2
    v_lshl_add_u32 v4, v5, 3, v4
    v_bfe_u32 v5, v3, 7, 1           ; h
    v_lshl_add_u32 v4, v5, 2, v4
    v_and_b32 v5, 1, v3
    v_lshl_add_u32 v4, v5, 1, v4     ; hidden
    v_lshlrev_b32 v4, 8, v4
    v_lshrrev_b32 v5, 11, v3         ; wo
    v_lshl_add_u32 v4, v5, 5, v4
    v_bfe_u32 v5, v3, 2, 4           ; m
    v_lshl_add_u32 v4, v5, 1, v4
    v_lshrrev_b32 v5, 8, v0
    v_lshl_or_b32 v4, v5, 30, v4
    v_lshlrev_b32 v3, 2, v3
    v_lshl_or_b32 v176, v5, 30, v3
    buffer_load_ushort v174, v4, {S(sC)}, 0 offen
    buffer_load_ushort v175, v4, {S(sC)}, 0 offen offset:256
    """)
    xdma(L_XQ, s_nb0)
    small()
    A("s_waitcnt vmcnt(7)")
    for k in range(5):
        A(f"""
        v_and_b32 v{vD+k}, 63, v{vD+k}
        v_lshl_or_b32 v{vS+k}, v{vD+k}, 14, v{vS+k}
        v_add_u32 v{vD+k}, {512*k}, v0
        v_lshl_or_b32 v{vS+k}, v{vD+k}, 20, v{vS+k}
        v_lshlrev_b32 v{va+k}, 7, v{vb+k}
        v_add_u32 v{va+k}, {L_BT}, v{va+k}
        """)
    for k in range(5):
        if k == 4:
            A(f"s_mov_b64 exec, s[{s_x+4}:{s_x+5}]")
        A(f"""
        s_waitcnt lgkmcnt({4-k})
        v_add_u32 v4, v{vk+k}, v{vb+k}
        v_and_b32 v4, 7, v4
        v_lshrrev_b32 v5, 3, v{vk+k}
        v_lshl_add_u32 v4, v4, 2, v5
        v_lshl_add_u32 v{va+k}, v4, 2, v{va+k}
        v_cmp_gt_u32 vcc, 32, v{vk+k}
        s_and_saveexec_b64 s[{s_x+6}:{s_x+7}], vcc
        ds_write_b32 v{va+k}, v{vS+k}
        s_mov_b64 exec, s[{s_x+6}:{s_x+7}]
        """)
    A(f"""
    s_mov_b64 exec, -1
    v_lshrrev_b32 v4, 3, v0
    v_lshlrev_b32 v5, 2, v4
    v_add_u32 v5, {L_BC}, v5
    v_and_b32 v6, 7, v0
    v_lshlrev_b32 v7, 13, v4
    v_lshl_add_u32 v7, v6, 4, v7
    s_lshl_b32 s3, s2, 7
    s_add_u32 s3, s3, {WS_SLOT}
    v_add_u32 v7, s3, v7
    v_cmp_eq_u32 s[{s_x+2}:{s_x+3}], 7, v6
    v_mov_b32 v8, -2
    s_mov_b32 s{s_x+4}, 0
    s_mov_b32 s{s_x+5}, {64*8192}
    s_mov_b32 s{s_x+6}, {128*8192}
    s_mov_b32 s{s_x+7}, {192*8192}
    s_waitcnt lgkmcnt(0)
    s_barrier
    """)
    stamp(A, 2)
    for q in range(4):
        A(f"ds_read_b128 {vr(16+4*q,4)}, v15 offset:{q*8192}")
        A(f"ds_read_b32 v{32+q}, v5 offset:{q*256}")
    A(f"s_mov_b32 s3, {WS_W2F}")
    for q in range(4):
        A(f"""
        s_waitcnt lgkmcnt({6-2*q})
        v_cmp_lt_u32 vcc, 32, v{32+q}
        s_and_b64 vcc, vcc, s[{s_x+2}:{s_x+3}]
        s_nop 1
        v_cndmask_b32 v{19+4*q}, v{19+4*q}, v8, vcc
        buffer_store_dwordx4 {vr(16+4*q,4)}, v7, {S(sWS)}, s{s_x+4+q} offen {SC}
        """)
    A(f"s_waitcnt vmcnt(9)\nv_lshl_or_b32 v174, v175, 16, v174\nbuffer_store_dword v174, v176, {S(sWS)}, s3 offen {SC}")
    stamp(A, 3)
    f0load()
    gaddr()
    consts()
    A(f"""
    s_waitcnt vmcnt(0)
    s_barrier
    s_cmp_lg_u32 s{s_w}, 0
    s_cbranch_scc1 M_nlast2
    """)
    stamp(A, 16)
    A(f"""
    s_and_b32 s3, s2, 1
    s_lshl_b32 s3, s3, 6
    s_mov_b32 s{s_x}, 1
    s_atomic_add s{s_x}, s[{pDBG}:{pDBG+1}], s3 glc
    """)
    f0wait("b")
    A(f"""
    s_waitcnt lgkmcnt(0)
    s_and_b32 s3, s{s_x}, {NCH//2 - 1}
    s_cmp_lg_u32 s3, {NCH//2 - 1}
    s_cbranch_scc1 M_nlast
    """)
    release(WS_RB)
    A("M_nlast:")
    stamp(A, 17)
    A("M_nlast2:")
    wdma(128 * 512)
    zerofill()
    A("s_branch M_join")
    A("M_pwg:")
    srd(A, sD, pX, N * 256)
    srd(A, sB, pW1, 260 * 512)
    A(f"s_sub_u32 s{s_t}, s2, {NCH}\ns_mul_i32 s{s_t}, s{s_t}, {PROWS}")
    xdma(L_XP, s_t)
    A(f"""
    s_and_b32 s3, s2, -8
    s_add_u32 s3, s3, s{s_w}
    s_and_b32 s3, s3, 127
    s_lshl_b32 s3, s3, 10
    v_lshlrev_b32 v3, 4, v{L}
    buffer_load_dwordx4 v[16:19], v3, {S(sB)}, s3 offen
    """)
    srd(A, sWS, pWS, WS_END)
    srd(A, sG, pDBG, 256)
    consts()
    zerofill()
    wdma(0)
    stamp(A, 1)
    gaddr()
    A(f"""
    v_add_u32 v15, {L_XP}, v{vXr}
    v_add_u32 v11, s{s_t}, v4
    v_lshlrev_b32 v11, 9, v11
    v_lshl_add_u32 v11, v3, 4, v11
    s_lshl_b32 s3, s{s_w}, 6
    v_add_u32 v11, s3, v11
    s_add_u32 s3, s{s_t}, {PROWS}
    s_min_u32 s3, s3, {N}
    s_lshl_b32 s3, s3, 9
    """)
    srd(A, sD, pWS, "s3", off=WS_P)
    A(f"""
    s_mov_b32 s{s_x+4}, 0
    s_mov_b32 s{s_x+5}, 8192
    s_mov_b32 s{s_x+6}, 16384
    s_mov_b32 s{s_x+7}, 24576
    s_waitcnt vmcnt(8)
    s_barrier
    """)
    stamp(A, 2)
    PT = 1 if "pt" in OPT else (4 if "ptf" in OPT else 0)
    if PT:
        f0load()
    if PT == 1:
        A(f"""
        v_add_u32 v5, s{s_t}, v{L}
        v_lshlrev_b32 v5, 9, v5
        s_lshl_b32 s3, s{s_w}, 6
        buffer_store_dword v5, v5, {S(sD)}, s3 offen {SC}
        """)
    if PT == 4:
        for mt in range(4):
            A(f"buffer_store_dwordx4 v[48:51], v11, {S(sD)}, s{s_x+4+mt} offen {SC}")
    for s in range(4):
        if s:
            A(f"v_xor_b32 v4, {s << 6:#x}, v15")
        for mt in range(4):
            A(f"ds_read_b128 {vr(vXP + 16*mt + 4*s, 4)}, v{4 if s else 15} offset:{mt*4096}")
    gemm_part(A, None, 4, vXP, vm=[x + (PT + 1 if PT else 0) for x in (6, 4, 2, 0)])
    stamp(A, 18)
    if not PT:
        f0load()
    gemm_pack(A, 4, lambda mt: A(f"buffer_store_dwordx4 {vr(vPO+4*mt,4)}, v11, {S(sD)}, s{s_x+4+mt} offen {SC}"))
    stamp(A, 3)
    srd(A, sD, pX, N * 256)
    A("s_barrier")
    xdma(L_XQ, s_nb0)
    small()
    wdma(128 * 512)
    A(f"s_waitcnt vmcnt({17 + PT})")
    A("M_join:")
    A(f"""
    s_cmp_lg_u32 s{s_w}, 0
    s_cbranch_scc1 M_w1d
    """)
    f0wait("a")
    rpoll("a", WS_RB, 2)
    A("M_w1d:\ns_waitcnt vmcnt(8)")
    stamp(A, 4)
    A(f"""
    s_mov_b32 s{s_x+2}, {QS - 512}
    v_lshlrev_b32 v8, 16, v{vWEr}
    v_and_b32 v9, 0xffff0000, v{vWEr}
    v_mul_f32 v8, v12, v8
    v_mul_f32 v9, v12, v9
    v_cvt_pk_bf16_f32 v10, v8, v9
    v_lshrrev_b32 v4, 7, v0          ; f
    v_lshlrev_b32 v5, 16, v10
    v_and_b32 v6, 0xffff0000, v10
    v_sub_f32 v8, v8, v5
    v_sub_f32 v9, v9, v6
    v_cvt_pk_bf16_f32 v11, v8, v9
    v_lshlrev_b32 v5, 2, v0
    v_mad_u32_u24 v5, v4, s{s_x+2}, v5
    v_add_u32 v5, {L_WE}, v5
    ds_write_b32 v5, v10
    ds_write_b32 v5, v11 offset:{4*QS}
    """)
    for x in range(4):
        A(f"v_lshlrev_b32 v{vB1+4+2*x}, 16, v{vB1+x}\nv_and_b32 v{vB1+5+2*x}, 0xffff0000, v{vB1+x}")
    stamp(A, 5)
    A(f"""
    v_add_u32 v15, {L_XQ}, v{vXr}
    s_lshl_b32 s{s_x}, s2, 13
    s_add_u32 s{s_x}, s{s_x}, {WS_SLOT}
    v_lshlrev_b32 v1, 4, v0
    s_waitcnt lgkmcnt(0)
    s_barrier
    s_cmp_lg_u32 s{s_w}, 1
    s_cbranch_scc1 M_tk0
    """)
    f0wait("c")
    A(f"""
    s_and_b32 s3, s2, 15
    s_lshl_b32 s3, s3, 7
    v_mov_b32 v{vPc}, 1
    s_mov_b64 exec, 1
    buffer_atomic_add v{vPc}, off, {S(sWS)}, s3 sc0 sc1
    s_mov_b64 exec, -1
    M_tk0:
    buffer_load_dwordx4 v[4:7], v1, {S(sWS)}, s{s_x} offen {SC}
    """)
    stamp(A, 6)
    for s in range(4):
        if s:
            A(f"v_xor_b32 v8, {s << 6:#x}, v15")
        for mt in range(3):
            A(f"ds_read_b128 {vr(vXF + 16*mt + 4*s, 4)}, v{8 if s else 15} offset:{mt*4096}")
    A(f"""
    s_cmp_eq_u32 s{s_w}, 1
    s_waitcnt vmcnt(2) lgkmcnt(0)
    s_cbranch_scc1 M_tk1
    s_waitcnt vmcnt(1)
    M_tk1:
    """)
    gemm_part(A, vB1 + 4, 3, vXF)
    A(f"""
    s_cmp_lg_u32 s{s_w}, 1
    s_cbranch_scc1 M_tk2
    s_waitcnt vmcnt(1)
    v_readfirstlane_b32 s3, v{vPc}
    s_cmp_lg_u32 s3, 15
    s_cbranch_scc1 M_tk2
    """)
    release(WS_RP)
    A("M_tk2:")
    A(f"""
    v_and_b32 v8, 15, v{L}           ; n
    v_lshrrev_b32 v9, 4, v{L}        ; q
    v_lshlrev_b32 v9, 4, v9
    v_mul_u32_u24 v8, {QS}, v8
    s_lshl_b32 s3, s{s_w}, 6
    s_add_u32 s3, s3, {L_Q}
    v_add3_u32 v{vQa}, v8, v9, s3
    """)
    gemm_pack(A, 3, lambda mt: None)
    stamp(A, 7)
    A("s_waitcnt vmcnt(0)\nM_recs:")
    stamp(A, 8)
    vD4, vRk, vEo, vEv, vBs, vTa = 16, 20, 24, 28, 36, 40
    A(f"s_mov_b32 s{s_x}, 0xfff00000\nv_mov_b32 v1, 1")
    for j in range(4):
        A(f"v_cmp_gt_u32 s[{sM+2*j}:{sM+2*j+1}], s{s_x}, v{4+j}")
    def egather(tag):
        for j in range(4):
            A(f"""
            s_mov_b64 exec, s[{sM+2*j}:{sM+2*j+1}]
            s_cbranch_execz M_eg{tag}_{j}
            buffer_load_dwordx2 {vr(vEv+2*j,2)}, v{vEo+j}, {S(sE)}, 0 offen
            M_eg{tag}_{j}:
            """)
        A("s_mov_b64 exec, -1")

    for j in range(4):
        A(f"""
        v_lshrrev_b32 v{vEo+j}, 20, v{4+j}
        v_lshl_add_u32 v{vEo+j}, v{vEo+j}, 3, v{vChunk8}
        """)
    egather("a")
    for j in range(4):
        A(f"""
        s_mov_b64 exec, s[{sM+2*j}:{sM+2*j+1}]
        s_cbranch_execz M_r1_{j}
        v_lshrrev_b32 v{vD4+j}, 12, v{4+j}
        v_subrev_u32 v{vD4+j}, s{s_nb4}, v{vD4+j}
        v_and_b32 v{vD4+j}, 0xfc, v{vD4+j}
        v_add_u32 v8, {L_CNT}, v{vD4+j}
        ds_add_rtn_u32 v{vRk+j}, v8, v1
        v_and_b32 v{4+j}, 0x3fff, v{4+j}
        M_r1_{j}:
        """)
        if j == 2:
            A(f"""
            s_mov_b64 exec, -1
            v_cmp_eq_u32 vcc, -2, v7
            s_and_b64 exec, exec, vcc
            s_cbranch_execz M_nomark
            v_mov_b32 v8, {L_CNT + 63*4}
            v_mov_b32 v9, 0x10000
            ds_add_u32 v8, v9
            M_nomark:
            """)
    A(f"""
    s_mov_b64 exec, -1
    s_mov_b32 s{s_alt}, 0
    s_mov_b32 s{s_sw}, 0
    v_lshlrev_b32 v9, 4, v{L}
    v_add_u32 v{vaAgg}, {L_AGG}, v9
    v_lshlrev_b32 v11, 2, v{L}
    v_add_u32 v11, 32, v11
    s_waitcnt lgkmcnt(0)
    s_barrier
    """)
    stamp(A, 21)
    A(f"""
    ds_read_b32 v8, v{vaCnt}
    s_cmp_lg_u32 s{s_slow}, 0
    s_cbranch_scc1 M_noq
    """)
    for mt in range(3):
        A(f"ds_write_b128 v{vQa}, {vr(vPO+4*mt,4)} offset:{mt*16*QS}")
    A("M_noq:")
    for r in range(16):
        A(f"v_mov_b32 v{vACC+r}, 0")
    A(f"""
    s_waitcnt lgkmcnt(3)
    s_cmp_eq_u32 s{s_slow}, 0
    s_cbranch_scc1 M_noq2
    s_waitcnt lgkmcnt(0)
    M_noq2:
    v_add_u32 v9, 1, v8
    v_and_b32 v9, -2, v9
    v_mov_b32 v10, v9
    v_mov_b32 v{vH}, 0
    v_mov_b32 v{vH+1}, 0
    v_add_u32_dpp v10, v10, v10 row_shr:1 row_mask:0xf bank_mask:0xf bound_ctrl:0
    v_mov_b32 v{vH+2}, 0
    v_mov_b32 v{vH+3}, 0
    v_add_u32_dpp v10, v10, v10 row_shr:2 row_mask:0xf bank_mask:0xf bound_ctrl:0
    v_mov_b32 v{vAgg}, 0
    v_mov_b32 v{vAgg+1}, 0
    v_add_u32_dpp v10, v10, v10 row_shr:4 row_mask:0xf bank_mask:0xf bound_ctrl:0
    s_nop 1
    v_add_u32_dpp v10, v10, v10 row_shr:8 row_mask:0xf bank_mask:0xf bound_ctrl:0
    s_nop 1
    v_add_u32_dpp v10, v10, v10 row_bcast:15 row_mask:0xa bank_mask:0xf
    s_nop 1
    v_add_u32_dpp v10, v10, v10 row_bcast:31 row_mask:0xc bank_mask:0xf
    s_nop 0
    v_sub_u32 v{vBase}, v10, v9
    v_readlane_b32 s{s_tot}, v10, 63
    M_derive:
    """)
    for j in range(4):
        A(f"ds_bpermute_b32 v{vBs+j}, v{vD4+j}, v{vBase}")
    A(f"""
    ds_bpermute_b32 v12, v11, v{vBase}
    s_cmp_gt_u32 s{s_tot}, {CAP_T*32}
    s_cbranch_scc1 M_goslow
    v_readlane_b32 s{s_T0p}, v{vBase}, 32
    s_add_u32 s{s_T}, s{s_tot}, 31
    s_lshr_b32 s{s_T}, s{s_T}, 5
    v_add3_u32 v13, v{vBase}, v9, 31
    v_and_b32 v13, -32, v13                ; end of the tile that holds node i's last slot
    s_waitcnt lgkmcnt(0)
    v_cmp_gt_u32 vcc, v13, v12
    v_cmp_ne_u32 s[{s_x}:{s_x+1}], s{s_tot}, v12
    s_andn2_b32 s{s_x+1}, vcc_lo, s{s_alt}
    s_and_b32 s{s_x}, s{s_x}, s{s_x+1}
    s_cbranch_scc1 M_align
    """)
    stamp(A, 22)
    A(f"""
    v_mov_b32 v1, 0x3f80
    s_mov_b32 s{s_f0}, 16
    s_cmp_lg_u32 s{s_w}, 0
    s_cbranch_scc1 M_nolook
    s_and_b32 s3, s2, 15
    s_lshl_b32 s3, s3, 7
    s_add_u32 s3, s3, {WS_RP}
    s_mov_b32 s{s_f0}, 0
    s_atomic_add s{s_f0}, s[{pWS}:{pWS+1}], s3 glc
    M_nolook:
    """)
    for j in range(4):
        A(f"""
        s_mov_b64 exec, s[{sM+2*j}:{sM+2*j+1}]
        s_cbranch_execz M_r2_{j}
        v_add_u32 v{vRk+j}, v{vRk+j}, v{vBs+j}
        v_lshlrev_b32 v9, 2, v{vRk+j}
        v_add_u32 v9, {L_LIST}, v9
        ds_write_b32 v9, v{4+j}
        v_and_b32 v9, 0x80, v{vD4+j}
        v_add_u32 v9, v9, v{vD4+j}
        v_and_b32 v10, 14, v{vRk+j}
        v_lshl_add_u32 v9, v9, 2, v10
        v_lshrrev_b32 v10, 4, v{vRk+j}
        v_lshl_add_u32 v9, v10, 9, v9
        v_add_u32 v9, {L_AGG}, v9
        ds_write_b16 v9, v1
        v_lshrrev_b32 v9, 3, v{vRk+j}
        v_and_b32 v10, 31, v{vRk+j}
        v_and_b32 v9, -4, v9
        v_cmp_eq_u32 vcc, 0, v10
        v_add_u32 v{vTa+j}, {L_N0}, v9
        s_and_b64 exec, exec, vcc
        ds_write_b32 v{vTa+j}, v{vD4+j}
        M_r2_{j}:
        """)
    A(f"""
    s_mov_b64 exec, -1
    s_cmp_lt_u32 s{s_T0p}, s{s_tot}
    s_cselect_b32 s{s_x}, 5, 31
    s_cselect_b32 s{s_x+1}, 1, 0x7fffffff
    s_lshr_b32 s{s_T0p}, s{s_T0p}, s{s_x}
    s_add_u32 s{s_T0p}, s{s_T0p}, s{s_x+1}
    v_add_u32 v{vDeg}, v{vDeg}, v8
    s_mul_i32 s{s_pri}, s{s_T}, {PRIO_NUM}
    s_lshr_b32 s{s_pri}, s{s_pri}, 5
    s_cmp_lt_u32 s{s_w}, 4
    s_cselect_b32 s{s_pri}, 0x7fffffff, s{s_pri}
    s_sub_u32 s{s_next}, s{s_T}, 1
    s_min_i32 s{s_next}, s{s_next}, s{s_T0p}
    s_min_i32 s{s_next}, s{s_next}, s{s_pri}
    v_mov_b32 v1, 0x3f80
    """)
    OO = [2, 10, 172]
    A(f"""
    v_and_b32 v8, 15, v{L}               ; n
    v_lshlrev_b32 v9, 2, v8
    ds_bpermute_b32 v48, v9, v{vDeg}
    v_add_u32 v9, 64, v9
    ds_bpermute_b32 v49, v9, v{vDeg}
    v_add_u32 v9, 64, v9
    ds_bpermute_b32 v50, v9, v{vDeg}
    v_lshrrev_b32 v9, 4, v{L}            ; q
    v_bfe_u32 v14, v8, 1, 2
    v_xor_b32 v14, v14, v9
    v_lshlrev_b32 v14, 4, v14
    v_lshl_add_u32 v14, v8, 6, v14
    v_add_u32 v15, s{s_nb0}, v8
    v_lshlrev_b32 v15, 8, v15
    v_lshl_add_u32 v15, v9, 3, v15
    s_lshl_b32 s3, s{s_w}, 5
    v_add_u32 v15, s3, v15
    v_and_b32 v8, 31, v{L}
    v_lshrrev_b32 v9, 5, v{L}
    v_lshlrev_b32 v9, 1, v9
    v_bfe_u32 v6, v8, 1, 2
    v_xor_b32 v6, v6, v9
    v_lshlrev_b32 v6, 4, v6
    v_lshl_add_u32 v6, v8, 6, v6
    v_add_u32 v6, s{s_ring}, v6
    v_xor_b32 v7, 16, v6
    v_lshlrev_b32 v52, 16, v{vB2}
    v_and_b32 v53, 0xffff0000, v{vB2}
    v_lshlrev_b32 v54, 16, v{vB2+1}
    v_and_b32 v55, 0xffff0000, v{vB2+1}
    s_lshl_b32 s3, s{s_nb1}, 8
    """)
    srd(A, sA, pOUT, "s3")
    A(f"""
    s_waitcnt lgkmcnt(0)
    v_cvt_f32_u32 v48, v48
    v_cvt_f32_u32 v49, v49
    v_cvt_f32_u32 v50, v50
    """)
    for mt in range(3):
        for i in range(4):
            A(f"v_mul_f32 v{OO[mt]+i}, v{48+mt}, v{52+i}")
    A(f"v_mov_b32 v56, {L_N0}")
    stamp(A, 23)
    A(f"""
    s_cmp_eq_u32 s{s_f0}, 16
    s_cbranch_scc1 M_w2
    """)
    rpoll("b", WS_RP, 16)
    A(f"""
    M_w2:
    v_mov_b32 v{vAgg+2}, 0
    v_mov_b32 v{vAgg+3}, 0
    s_waitcnt lgkmcnt(0)
    s_barrier
    """)
    stamp(A, 9)
    PSC = "sc1" if "psc1" in OPT else ("nt" if "pnt" in OPT else ("sc0 sc1" if "psc01" in OPT else ""))

    def dma(t, jj):
        r = vOff + 2 * t + jj if t < CAP_T else vDum
        return f"buffer_load_dwordx4 v{r}, {S(sP)}, 0 offen offset:{(t & 1)*2048 + jj*1024} {PSC} lds"

    def m0set(t):
        return f"s_mov_b32 m0, s{s_ring if (t % 4) < 2 else s_ringh}"

    def offs(lo, hi, after=None):
        for t0 in range(lo, hi, 8):
            ts = range(t0, min(t0 + 8, hi))
            for t in ts:
                A(f"ds_read_b64 {vr(vOff+2*t,2)}, v{vaList} offset:{t*128}")
            for i, t in enumerate(ts):
                A(f"s_waitcnt lgkmcnt({len(ts)-1-i})")
                for jj in range(2):
                    A(f"v_lshl_add_u32 v{vOff+2*t+jj}, v{vOff+2*t+jj}, 9, v{vK0 + 2*(t & 1) + jj}")
                if after:
                    after(t)

    def first_dma(t):
        if t < 2:
            A(dma(t, 0) + "\n" + dma(t, 1))
    A(m0set(0))
    offs(0, 6, first_dma)
    stamp(A, 19)
    for j in range(4):
        A(f"ds_read_b32 v{vBs+j}, v{vTa+j}")
    for g in range(7):
        A(f"ds_read_b128 {vr(vBa+4*g,4)}, v56 offset:{16*g}")
    A(f"{m0set(2)}\ns_waitcnt vmcnt(4) lgkmcnt(7)")
    stamp(A, 20)
    for j in range(4):
        A(f"""
        s_mov_b64 exec, s[{sM+2*j}:{sM+2*j+1}]
        s_cbranch_execz M_r3_{j}
        v_lshlrev_b32 v8, 4, v{vRk+j}
        v_add_u32 v8, {L_AQE}, v8
        ds_write2_b64 v8, {vr(vEv+2*j,2)}, {vr(vEv+2*j,2)} offset0:0 offset1:1
        v_sub_u32 v9, v{vD4+j}, v{vBs+j}
        v_lshrrev_b32 v9, 1, v9
        v_add_u32 v9, v9, v8
        ds_write_b16 v9, v1 offset:{L_AQH - L_AQE}
        M_r3_{j}:
        """)
    A("s_mov_b64 exec, -1")
    A("s_waitcnt lgkmcnt(0)\ns_barrier")
    stamp(A, 10)
    for t in range(CAP_T):
        A(f"v_mad_u32_u24 v{vBa+t}, v{vBa+t}, v{vBmul}, v{vaB}")
    A(f"""
    s_cmp_eq_u32 s{s_T}, 0
    s_cbranch_scc1 M_bend
    """)
    offs(6, CAP_T)
    stamp(A, 11)

    def bread(t):
        r = vBa + min(t, CAP_T - 1)
        return [f"ds_read_b64_tr_b16 {vr(vBq,2)}, v{r}", f"ds_read_b64_tr_b16 {vr(vBq+2,2)}, v{r} offset:{4*QS}"]

    def w2load(s):
        return f"buffer_load_dwordx4 {vr(vW2+4*s,4)}, v{vW2a}, {S(sWS)}, s{s_w2 + (s >> 2)} offen offset:{(s & 3)*1024} sc1"

    A("\n".join(bread(0)))
    A(f"""
    ds_read_b128 {vr(vAqe,4)}, v{vaAqe}
    s_cmp_lt_u32 s{s_w}, 4
    s_cbranch_scc1 M_nopri
    s_setprio 1
    M_nopri:
    {dma(2, 0)}
    {dma(2, 1)}
    s_waitcnt vmcnt(4)
    ds_read_b128 {vr(vPf0,4)}, v{vaP0}
    ds_read_b128 {vr(vPf1,4)}, v{vaP1}
    {dma(3, 0)}
    {dma(3, 1)}
    {m0set(D)}
    s_waitcnt lgkmcnt(0)
    """)
    mfma32(A, vU[0], vAqe, vBq, None)
    A(dma(D, 0))
    mfma32(A, vU[0], vPf0, vSel0, vU[0])
    A(dma(D, 1))
    mfma32(A, vU[0], vPf1, vSel1, vU[0])
    A("\n".join(bread(1)))
    A(f"""
    ds_read_b128 {vr(vAqe,4)}, v{vaAqe} offset:512
    s_waitcnt vmcnt({2*(D-1)})
    ds_read_b128 {vr(vPf0,4)}, v{vaP0} offset:2048
    ds_read_b128 {vr(vPf1,4)}, v{vaP1} offset:2048
    s_nop 7
    """)
    stamp(A, 12)

    def second_half(B, U, aggread):
        mfma32(B, vACC, vH, vAgg, vACC)
        for i in range(8):
            B(f"v_rcp_f32 v{vT+i}, v{vT+i}")
            if i == 4:
                B(aggread)
        for i in range(0, 8, 2):
            B(f"v_pk_mul_f32 {vr(U+i,2)}, {vr(U+i,2)}, {vr(vT+i,2)}")
        for i in range(0, 8, 2):
            B(f"v_cvt_pk_bf16_f32 v{vH+i//2}, v{U+i}, v{U+i+1}")

    vmq = ["d"] * (2 * (D + 1))

    def vm_need(t):
        seen = 0
        for i, k in enumerate(vmq):
            if k == "d":
                seen += 1
                if seen == 2 * (t + 1):
                    return len(vmq) - 1 - i

    ool = Asm()
    A(".p2align 3")
    for t in range(CAP_T):
        U, Un = vU[t & 1], vU[(t + 1) & 1]
        tn = t + 1 + D
        s2 = ((t + 2) % D) * 2048
        ex = [f"v_exp_f32 v{vT+i}, v{U+i}" for i in range(16)]
        if "itst" in OPT:
            A(f"s_memtime s[100:101]")
        late_vm = t < 2
        A(f"s_waitcnt lgkmcnt(0)" if late_vm else f"s_waitcnt vmcnt({vm_need(t+2)}) lgkmcnt(0)")
        if "itst" in OPT:
            A(f"v_writelane_b32 v{vSt}, s100, {16+t}")
        mfma32(A, Un, vAqe, vBq, None)
        A("\n".join(ex[0:4]))
        mfma32(A, Un, vPf0, vSel0, Un)
        A("\n".join(ex[4:8]))
        mfma32(A, Un, vPf1, vSel1, Un)
        A("\n".join(ex[8:16]))
        pk = [f"v_pk_fma_f32 {vr(vT+i,2)}, {vr(vT+i,2)}, {vr(vC,2)}, {vr(vC,2)} clamp" for i in (0, 8, 2, 10, 4, 12, 6, 14)]
        pk += [f"v_pk_mul_f32 {vr(U+i,2)}, {vr(U+i,2)}, {vr(vT+8+i,2)}" for i in range(0, 8, 2)]
        pk += [f"v_pk_fma_f32 {vr(U+i,2)}, {vr(U+8+i,2)}, {vr(vT+i,2)}, {vr(U+i,2)}" for i in range(0, 8, 2)]
        pk += [f"v_pk_mul_f32 {vr(vT+i,2)}, {vr(vT+i,2)}, {vr(vT+8+i,2)}" for i in range(0, 8, 2)]
        b0, b1 = bread(t + 2)
        g_ds = ([m0set(tn)] if tn % 2 == 0 else []) + [f"ds_read_b128 {vr(vAqe,4)}, v{vaAqe} offset:{(t+2)*512}", b0, b1]
        g_p = [f"ds_read_b128 {vr(vPf0,4)}, v{vaP0} offset:{s2}", f"ds_read_b128 {vr(vPf1,4)}, v{vaP1} offset:{s2}"]
        g_vm = [dma(tn, 0), dma(tn, 1)]
        if late_vm:
            groups = {2: g_ds, 12: [f"s_waitcnt vmcnt({vm_need(t+2)})"] + g_p + g_vm}
        else:
            groups = {2: g_ds + g_p, 9: g_vm}
        vmq += ["d", "d"]
        if W2T0 <= t < W2T0 + 8:
            g_vm.append(w2load(t - W2T0))
            vmq.append("w")
        groups[16] = [f"s_cmp_le_i32 s{s_next}, {t}"]
        for i, x in enumerate(pk):
            A(x)
            for y in groups.get(i, []):
                if not ("nodma" in OPT and " lds" in y):
                    A(y)
        A(f"s_cbranch_scc1 M_ev{t}\nM_evr{t}:")
        second_half(A, U, f"ds_read_b128 {vr(vAgg,4)}, v{vaAgg} offset:{t*1024}")
        ool(f"""
        M_ev{t}:
        s_movk_i32 s{s_t}, {t}
        s_call_b64 s[{s_ret}:{s_ret+1}], M_rare
        s_cbranch_scc1 M_tail{t & 1}
        s_branch M_evr{t}
        """)
    A("s_branch M_fin")
    for p in range(2):
        A(f"""
        M_tail{p}:
        s_lshl_b32 s3, s{s_t}, 10
        v_add_u32 v8, s3, v{vaAgg}
        """)
        second_half(A, vU[p], f"ds_read_b128 {vr(vAgg,4)}, v8")
        if p == 0:
            A("s_branch M_fin")
    A(f"""
    M_fin:
    s_mov_b32 s{s_t}, s{s_T}
    s_cmp_eq_u32 s{s_T0p}, s{s_T}
    s_cbranch_scc0 M_fin2
    s_call_b64 s[{s_ret}:{s_ret+1}], M_rare
    M_fin2:
    s_waitcnt lgkmcnt(0)
    """)
    mfma32(A, vACC, vH, vAgg, vACC)
    stamp(A, 13)
    A(f"""
    s_cmp_lg_u32 s{s_sw}, 0
    s_nop 11
    s_cbranch_scc1 M_fin_hi
    """)
    for r in range(16):
        A(f"v_add_f32 v{vS0+r}, v{vS0+r}, v{vACC+r}")
    A("s_branch M_bend\nM_fin_hi:")
    for r in range(16):
        A(f"v_add_f32 v{vS1+r}, v{vS1+r}, v{vACC+r}")
    K = -math.log(2.0) * 2.0 ** -CEXP
    A(f"""
    M_bend:
    s_setprio 0
    s_cmp_lg_u32 s{s_slow}, 0
    s_cbranch_scc1 M_next
    M_epi:
    s_cmp_gt_u32 s{s_T}, {W2T0 + 8}
    s_cbranch_scc1 M_epi2
    """)
    for s_ in range(8):
        A(w2load(s_))
    A(f"""
    M_epi2:
    v_mov_b32 v{vC}, {f32(K):#x}
    v_mov_b32 v{vC+1}, {f32(K):#x}
    """)
    for Sx, o in ((vS0, 16), (vS1, 24)):
        for r in range(0, 16, 2):
            A(f"v_pk_mul_f32 {vr(Sx+r,2)}, {vr(Sx+r,2)}, {vr(vC,2)}")
        for r in range(0, 16, 2):
            A(f"v_cvt_pk_bf16_f32 v{o+r//2}, v{Sx+r}, v{Sx+r+1}")
        if o == 16:
            A("s_waitcnt vmcnt(0)\nds_write_b128 v6, v[16:19]\nds_write_b128 v7, v[20:23]")
    A(f"""
    ds_write_b128 v6, v[24:27] offset:2048
    ds_write_b128 v7, v[28:31] offset:2048
    s_mov_b32 s{s_x}, 4096
    s_mov_b32 s{s_x+1}, 8192
    s_waitcnt lgkmcnt(0)
    s_barrier
    """)
    stamp(A, 14)
    SFR = 48
    order = [(s, mt) for s in range(8) for mt in range(3)]
    RS = D * 2048
    AHEAD = 12
    for k in range(AHEAD):
        s, mt = order[k]
        A(f"ds_read_b128 {vr(SFR+4*k,4)}, v14 offset:{s*RS+mt*1024}")
    for k in range(24):
        s, mt = order[k]
        A(f"s_waitcnt lgkmcnt({min(AHEAD - 1, 23 - k)})")
        mfma16(A, OO[mt], vW2 + 4 * s, SFR + 4 * k, OO[mt])
        if k + AHEAD < 24:
            s2, mt2 = order[k + AHEAD]
            A(f"ds_read_b128 {vr(SFR+4*(k+AHEAD),4)}, v14 offset:{s2*RS+mt2*1024}")
    A("s_nop 5")
    for mt in range(3):
        A(f"""
        v_cvt_pk_bf16_f32 v{16+2*mt}, v{OO[mt]}, v{OO[mt]+1}
        v_cvt_pk_bf16_f32 v{17+2*mt}, v{OO[mt]+2}, v{OO[mt]+3}
        buffer_store_dwordx2 {vr(16+2*mt,2)}, v15, {S(sA)}, {["0", f"s{s_x}", f"s{s_x+1}"][mt]} offen
        """)
    if (SPIN is not None and SPIN[0] == 15) or ENC is not None:
        A("s_waitcnt vmcnt(0)")
        stamp(A, 15)
    if STAMPS:
        A("s_waitcnt vmcnt(0)")
        stamp(A, 15)
        srd(A, sA, pWS, 0x80000, off=WS_ST)
        A(f"""
        s_lshl_b32 s3, s2, 3
        s_add_u32 s3, s3, s{s_w}
        s_lshl_b32 s3, s3, 8
        v_lshl_add_u32 v1, v{L}, 2, s3
        buffer_store_dword v{vSt}, v1, {S(sA)}, 0 offen
        """)
    A("M_end:\ns_endpgm")

    A(f"""
    M_rare:
    s_cmp_eq_u32 s{s_T0p}, s{s_t}
    s_cbranch_scc0 M_rare2
    s_waitcnt lgkmcnt(0)
    """)
    mfma32(A, vACC, vH, vAgg, vACC)
    A(f"""
    s_lshl_b32 s3, s{s_t}, 10
    v_add_u32 v8, s3, v{vaAgg}
    v_add_u32 v{vaAgg}, 1024, v{vaAgg}
    s_mov_b32 s{s_sw}, 1
    s_mov_b32 s{s_T0p}, 0x7fffffff
    ds_read_b128 {vr(vAgg,4)}, v8
    s_nop 8
    """)
    for r in range(16):
        A(f"v_add_f32 v{vS0+r}, v{vS0+r}, v{vACC+r}")
    for r in range(16):
        A(f"v_mov_b32 v{vACC+r}, 0")
    A(f"""
    s_waitcnt lgkmcnt(0)
    M_rare2:
    s_cmp_le_i32 s{s_pri}, s{s_t}
    s_cbranch_scc0 M_rare3
    s_setprio 0
    s_mov_b32 s{s_pri}, 0x7fffffff
    M_rare3:
    s_sub_u32 s3, s{s_T}, 1
    s_min_i32 s{s_next}, s3, s{s_T0p}
    s_min_i32 s{s_next}, s{s_next}, s{s_pri}
    s_cmp_le_i32 s3, s{s_t}
    s_setpc_b64 s[{s_ret}:{s_ret+1}]
    """)

    A(f"""
    M_align:
    s_mov_b32 s{s_alt}, -1
    s_mov_b32 s{s_x+8}, 0
    v_mov_b32 v13, v{vBase}
    """)
    for G in range(5):
        A(f"""
        v_readlane_b32 s{s_x}, v{vBase}, {8*G}
        v_readlane_b32 s{s_x+1}, v{vBase}, {8*G+8}
        s_nop 1
        s_sub_u32 s{s_x+9}, s{s_x+8}, s{s_x}
        v_cmp_le_u32 vcc, {8*G}, v{L}
        v_add_u32 v10, s{s_x+9}, v{vBase}
        s_sub_u32 s{s_x+1}, s{s_x+1}, s{s_x}
        s_add_u32 s{s_x+8}, s{s_x+8}, s{s_x+1}
        v_cndmask_b32 v13, v13, v10, vcc
        """)
        if G < 4:
            A(f"s_add_u32 s{s_x+8}, s{s_x+8}, 31\ns_and_b32 s{s_x+8}, s{s_x+8}, -32")
    A(f"""
    s_mov_b32 s{s_tot}, s{s_x+8}
    v_mov_b32 v{vBase}, v13
    s_nop 1
    s_branch M_derive
    """)
    A(f"""
    M_goslow:
    s_mov_b32 s{s_slow}, 1
    s_mov_b32 s{s_batch}, 0
    s_branch M_load
    M_next:
    s_add_u32 s{s_batch}, s{s_batch}, 512
    s_cmp_ge_u32 s{s_batch}, {E}
    s_cbranch_scc1 M_epi
    M_load:
    """)
    srd(A, sA, pDST, E * 4)
    srd(A, sB, pSRC, E * 4)
    A(f"""
    v_add_u32 v8, s{s_batch}, v0
    v_lshlrev_b32 v9, 2, v8
    s_waitcnt vmcnt(0) lgkmcnt(0)
    buffer_load_dword v10, v9, {S(sA)}, 0 offen
    buffer_load_dword v11, v9, {S(sB)}, 0 offen
    v_lshlrev_b32 v{vChunk8}, 3, v8
    v_mov_b32 v5, -1
    v_mov_b32 v6, -1
    v_mov_b32 v7, -1
    s_mov_b32 s{s_x+2}, {E}
    s_waitcnt vmcnt(0)
    v_subrev_u32 v12, s{s_nb0}, v10
    v_cmp_gt_u32 vcc, s{s_nn}, v12
    v_cmp_gt_u32 s[{s_x}:{s_x+1}], s{s_x+2}, v8
    v_and_b32 v10, 63, v10
    v_lshl_or_b32 v11, v10, 14, v11
    s_and_b64 vcc, vcc, s[{s_x}:{s_x+1}]
    s_nop 1
    v_cndmask_b32 v4, v5, v11, vcc
    s_barrier
    """)
    zerofill()
    A("s_waitcnt lgkmcnt(0)\ns_barrier\ns_branch M_recs")
    A.l += ool.l


def build():
    out = f"""; Fused edge-featured MPNN layer, one workgroup per bucket of 39/40 destination nodes.
; @launch grid=(256,1,1) block=(512,1,1) lds={LDS_BYTES}
.amdgcn_target "amdgcn-amd-amdhsa--gfx950"
.text
.globl {KN}
.p2align 8
.type {KN},@function
"""
    A = Asm()
    kernel(A)
    out += A.text()
    out += f""".section .rodata,"a"
.p2align 6
.amdhsa_kernel {KN}
  .amdhsa_next_free_vgpr {NV}
  .amdhsa_next_free_sgpr 102
  .amdhsa_accum_offset {(NV + 3) // 4 * 4}
  .amdhsa_group_segment_fixed_size 0
  .amdhsa_kernarg_size 88
  .amdhsa_user_sgpr_count 2
  .amdhsa_user_sgpr_kernarg_segment_ptr 1
  .amdhsa_system_sgpr_workgroup_id_x 1
.end_amdhsa_kernel
"""
    return out


if __name__ == "__main__":
    for a in list(sys.argv):
        if a.startswith("-o"):
            OPT.update(a[2:].split(","))
            sys.argv.remove(a)
    for a in list(sys.argv):
        if a.startswith("-spin"):
            i, us = a[5:].split(":")
            SPIN = (int(i), float(us))
            sys.argv.remove(a)
    for a in list(sys.argv):
        if a.startswith("-wsb"):
            WS_BASE = int(a[4:]) << 20
            sys.argv.remove(a)
    for a in list(sys.argv):
        if a.startswith("-enc"):
            ENC = int(a[4:])
            sys.argv.remove(a)
    for a in list(sys.argv):
        if a.startswith("-pri"):
            PRIO_NUM = int(a[4:])
            sys.argv.remove(a)
    if "--stamps" in sys.argv:
        STAMPS = True
        sys.argv.remove("--stamps")
    path = sys.argv[1] if len(sys.argv) > 1 else f"cdna_kernels/{NAME}.s"
    open(path, "w").write(build())
    print("wrote", path, "lds", LDS_BYTES)
```

```python
import sys, struct, math

NAME = "gather_scatter__edge_featured_mpnn_mpnn__graph"
KN = NAME + "_kernel"
N, E = 10000, 160000

WS_CNT = 0
WS_RB = 16 * 128
WS_RP = 32 * 128
WS_W2F = 0x2000
WS_SLOT = 0x12000
WS_P = 0x213000
TABB = N * 512
WS_END = WS_P + TABB
WS_ST = 0x1000000

WS_BASE = 0
NCH = 64
CHE = E // NCH
PROWS = 53
LOG2E = 1.4426950408889634
CEXP = 48
STAMPS = False
OPT = set()
PRIO_NUM = 22
NT0 = 99
W2T0 = 8


def f32(x):
    return struct.unpack("<I", struct.pack("<f", x))[0]


class Asm:
    def __init__(self):
        self.l = []

    def __call__(self, s):
        for x in s.split("\n"):
            x = x.strip()
            if x:
                self.l.append(("" if x.endswith(":") else "    ") + x)

    def text(self):
        import re
        for x in self.l:
            m = re.search(r"offset:(\d+)", x)
            if m:
                lim = 4096 if x.strip().startswith("buffer_") else 65536
                assert int(m.group(1)) < lim, x
        return "\n".join(self.l) + "\n"


def vr(a, n=1):
    return f"v{a}" if n == 1 else f"v[{a}:{a+n-1}]"


def srd(A, d, base, size, off=None):
    if off is None:
        A(f"s_mov_b32 s{d}, s{base}\ns_mov_b32 s{d+1}, s{base+1}")
    else:
        A(f"s_add_u32 s{d}, s{base}, {off}\ns_addc_u32 s{d+1}, s{base+1}, 0")
    A(f"s_mov_b32 s{d+2}, {size}\ns_mov_b32 s{d+3}, 0x00020000")


def S(d):
    return f"s[{d}:{d+3}]"


D = 4
CAP_T = 26
QS = 592
L_RING = 0
L_AQE = 8 * D * 2048
L_AQH = L_AQE + CAP_T * 512
L_AGG = L_AQH + CAP_T * 512
L_LIST = L_AGG + (CAP_T + 1) * 1024
L_CNT = L_LIST + 4096
L_N0 = L_CNT + 256
L_WE = L_N0 + 256
L_Q = L_WE + 8 * QS
LDS_BYTES = (L_Q + 255) // 256 * 256 + 32768
ZERO_BYTES = L_LIST - L_AQE
L_XP = (L_Q + 255) // 256 * 256
L_XQ = L_XP + 16384
L_BT = L_AQE
L_BC = L_BT + 32768
assert L_BC + 2048 <= L_LIST and LDS_BYTES <= 163840 and 48 * QS <= 32768
DUMMY = 0x400000

pX, pE, pSRC, pDST, pW1, pB1, pW2, pB2, pOUT, pDBG, pWS = 4, 6, 8, 10, 12, 14, 16, 18, 20, 22, 24
s_w2 = 26
sA, sB, sC, sD, sWS, sP, sE = 28, 32, 36, 40, 44, 48, 52
(s_w, s_nb0, s_nb1, s_nn, s_T, s_T0p, s_t, s_next, s_slow, s_batch, s_ring, s_sw, s_tot,
 s_nb4, s_ringh, s_spin, s_pri, s_alt, s_xw) = range(56, 75)
s_f0 = 85
s_x = 76
sM = 86
s_ret = 94
sG = 96

vU = [16, 32]
vT = 48
vH = 64
vACC = 68
vS0 = 84
vS1 = 100
vPf0, vPf1, vAqe, vAgg, vBq, vSel0, vSel1 = 116, 120, 124, 128, 132, 136, 140
vBa = 144
vOff = 176
vW2 = 176
(vC, _c1, vB2, _b1, vK0, vK1, vK2, vK3, vaAqe, vaAgg, vaList, vaP0, vaP1, vaB, vBmul, vBase, vDeg,
 vChunk8, vLane, vDum, vSt, vW2a, vaCnt) = range(228, 251)
NV = 252
vXF = 176
vXP = 160
vWF = 16
vPA = 48
vPO = 148
vQO = 164
vPa = 144
EARLY = (0, 1)
vXa = 145
vXr = 147
vB1 = 116
vWEr = 128
vF0 = 129
vPc = 130
vQa = 131


def mfma32(A, d, a, b, c):
    cs = "0" if c is None else vr(c, 16)
    A(f"v_mfma_f32_32x32x16_bf16 {vr(d,16)}, {vr(a,4)}, {vr(b,4)}, {cs}")


def mfma16(A, d, a, b, c):
    cs = "0" if c is None else vr(c, 4)
    A(f"v_mfma_f32_16x16x32_bf16 {vr(d,4)}, {vr(a,4)}, {vr(b,4)}, {cs}")


SPIN = None


ENC = None


def stamp(A, i):
    if ENC is not None:
        if i == 0:
            A("s_memrealtime s[100:101]\ns_waitcnt lgkmcnt(0)\ns_mov_b32 s75, s100\ns_nop 0")
        if i == ENC:
            A("s_waitcnt lgkmcnt(0)\ns_memrealtime s[100:101]\ns_waitcnt lgkmcnt(0)\ns_sub_u32 s101, s100, s75")
            A(f"v_writelane_b32 v{vSt}, s101, 0")
        if i == 15:
            u = len(A.l)
            A(f"v_readlane_b32 s3, v{vSt}, 0\ns_nop 3\ns_lshl_b32 s3, s3, 2\ns_add_u32 s3, s3, 6000")
            A(f"M_spin{u}:\ns_memrealtime s[100:101]\ns_waitcnt lgkmcnt(0)\ns_sub_u32 s100, s100, s75\ns_cmp_lt_u32 s100, s3\ns_cbranch_scc1 M_spin{u}")
    if SPIN is not None:
        if i == 0:
            A("s_memrealtime s[100:101]\ns_waitcnt lgkmcnt(0)\ns_mov_b32 s75, s100")
        elif i == SPIN[0]:
            u = len(A.l)
            A(f"M_spin{u}:\ns_memrealtime s[100:101]\ns_waitcnt lgkmcnt(0)\ns_sub_u32 s100, s100, s75\ns_cmp_lt_u32 s100, {int(SPIN[1]*100)}\ns_cbranch_scc1 M_spin{u}")
    if STAMPS:
        ins = "s_memtime" if "cyc" in OPT else "s_memrealtime"
        A(f"s_waitcnt lgkmcnt(0)\n{ins} s[100:101]\ns_waitcnt lgkmcnt(0)\nv_writelane_b32 v{vSt}, s100, {i}")


def gemm_part(A, init, nmt, xf, vm=None):
    def rd(s):
        for ct in range(2):
            for x in range(2):
                A(f"ds_read_b64_tr_b16 {vr(vWF + 8*s + 4*ct + 2*x, 2)}, v14 offset:{s*2048 + x*256 + ct*8}")
    if vm is None:
        for s in range(4):
            rd(s)
    else:
        A(f"s_waitcnt vmcnt({vm[0]})")
        rd(0)
    for s in range(4):
        if vm is None:
            A(f"s_waitcnt lgkmcnt({12 - 4*s})")
        else:
            A("s_waitcnt lgkmcnt(0)")
        k = 0
        for mt in range(nmt):
            for ct in range(2):
                d = vPA + 8 * mt + 4 * ct
                c = d if s else (None if init is None else init + 4 * ct)
                mfma16(A, d, vWF + 8 * s + 4 * ct, xf + 16 * mt + 4 * s, c)
                k += 1
                if vm is not None and k == 2 and s < 3:
                    A(f"s_waitcnt vmcnt({vm[s+1]})")
                    rd(s + 1)


def gemm_pack(A, nmt, store, vPO=vPO):
    A("s_nop 4")
    for mt in range(nmt):
        for r in range(0, 8, 2):
            a = vPA + 8 * mt + r
            A(f"v_pk_mul_f32 {vr(a,2)}, {vr(a,2)}, v[12:13]")
        for r in range(0, 8, 2):
            a = vPA + 8 * mt + r
            A(f"v_cvt_pk_bf16_f32 v{vPO + 4*mt + r//2}, v{a}, v{a+1}")
        store(mt)


def kernel(A):
    L = vLane
    SC = "sc0 sc1"
    A(f"{KN}:")
    A(f"""
    s_cmp_ge_u32 s2, 256
    s_cbranch_scc1 M_end
    s_load_dwordx16 s[4:19], s[0:1], 0
    s_load_dwordx4 s[20:23], s[0:1], 64
    s_load_dwordx2 s[24:25], s[0:1], 80
    """)
    if STAMPS or ENC is not None:
        A(f"v_mov_b32 v{vSt}, 0")
    stamp(A, 0)
    A(f"""
    v_lshrrev_b32 v2, 6, v0
    v_and_b32 v{L}, 63, v0
    v_readfirstlane_b32 s{s_w}, v2
    s_mul_i32 s{s_nb0}, s2, 160069
    s_add_u32 s{s_nb1}, s{s_nb0}, {160069 + 4049}
    s_add_u32 s{s_nb0}, s{s_nb0}, 4049
    s_lshr_b32 s{s_nb0}, s{s_nb0}, 12
    v_lshrrev_b32 v7, 4, v{L}
    v_and_b32 v8, 15, v{L}
    v_xor_b32 v8, v8, v7
    s_lshl_b32 s{s_ring}, s{s_w}, 13
    s_and_b32 s3, s{s_w}, 1
    s_lshl_b32 s3, s3, 3
    v_xor_b32 v8, s3, v8
    v_lshlrev_b32 v8, 4, v8
    v_lshl_add_u32 v8, v7, 8, v8
    s_lshl_b32 s{s_xw}, s{s_w}, 11
    v_add_u32 v{vXa}, s{s_xw}, v8
    v_xor_b32 v{vXa+1}, 64, v{vXa}
    v_lshrrev_b32 v10, 2, v{L}
    v_and_b32 v11, 3, v{L}
    v_lshlrev_b32 v11, 4, v11
    v_lshl_add_u32 v10, v10, 9, v11
    s_lshl_b32 s3, s{s_w}, 6
    v_add_u32 v10, s3, v10
    v_lshlrev_b32 v2, 2, v0
    s_waitcnt lgkmcnt(0)
    s_add_u32 s{pWS}, s{pWS}, {WS_BASE}
    s_addc_u32 s{pWS+1}, s{pWS+1}, 0
    s_cmp_ge_u32 s2, {NCH}
    s_cbranch_scc1 M_pwg
    """)

    def wdma(base):
        for ii in range(8):
            A(f"""
            s_add_u32 m0, s{s_ring}, {ii*1024}
            s_mov_b32 s{s_x+1}, {base + ii*8192}
            buffer_load_dwordx4 v10, {S(sB)}, s{s_x+1} offen lds
            """)

    def xdma(ldsbase, rowreg):
        A(f"""
        s_add_u32 m0, s{s_xw}, {ldsbase}
        s_lshl_b32 s3, s{rowreg}, 8
        buffer_load_dwordx4 v{vXa}, {S(sD)}, s3 offen lds
        buffer_load_dwordx4 v{vXa+1}, {S(sD)}, s3 offen offset:1024 lds
        """)

    def gaddr():
        A(f"""
        v_lshrrev_b32 v3, 4, v{L}        ; q
        v_and_b32 v4, 15, v{L}           ; n
        v_xor_b32 v5, v3, v4
        v_lshlrev_b32 v5, 4, v5
        v_lshl_add_u32 v{vXr}, v4, 8, v5
        v_bfe_u32 v5, v{L}, 2, 2         ; r
        v_lshl_add_u32 v6, v3, 3, v5     ; 8q + r
        v_lshlrev_b32 v6, 6, v6
        v_and_b32 v7, 3, v{L}            ; c
        v_lshl_add_u32 v6, v7, 4, v6
        v_add_u32 v14, s{s_ring}, v6
        v_mov_b32 v12, {f32(-LOG2E):#x}
        v_mov_b32 v13, v12
        """)

    def consts():
        srd(A, sP, pWS, TABB + 4096, off=WS_P - 4096)
        srd(A, sE, pE, E * 8)
        A(f"""
        s_lshr_b32 s{s_nb1}, s{s_nb1}, 12
        s_min_u32 s{s_nb1}, s{s_nb1}, {N}
        s_sub_u32 s{s_nn}, s{s_nb1}, s{s_nb0}
        s_lshl_b32 s{s_nb4}, s{s_nb0}, 2
        s_add_u32 s{s_ringh}, s{s_ring}, 4096
        s_mov_b32 s{s_slow}, 0
        s_lshl_b32 s{s_w2}, s{s_w}, 13
        s_add_u32 s{s_w2}, s{s_w2}, {WS_W2F}
        s_add_u32 s{s_w2+1}, s{s_w2}, 4096
        v_lshrrev_b32 v3, 4, v{L}        ; q
        v_bfe_u32 v5, v{L}, 2, 2         ; r
        v_and_b32 v7, 3, v{L}            ; c
        v_xor_b32 v9, v7, v3
        v_lshlrev_b32 v9, 4, v9
        s_lshl_b32 s3, s{s_w}, 6
        s_add_u32 s{s_x}, s3, 1024
        v_add_u32 v{vK3}, s{s_x}, v9
        v_add_u32 v{vK2}, 1024, v{vK3}
        v_add_u32 v{vK1}, 2048, v{vK3}
        v_add_u32 v{vK0}, 3072, v{vK3}
        v_lshrrev_b32 v1, 5, v{L}        ; h
        v_mul_u32_u24 v5, {QS}, v5
        v_and_b32 v3, 1, v3
        v_lshl_add_u32 v5, v3, 5, v5
        v_lshl_add_u32 v5, v7, 3, v5
        s_add_u32 s3, s3, {L_WE}
        v_add_u32 v5, s3, v5
        v_mul_u32_u24 v6, {8*QS}, v1
        v_add_u32 v{vaB}, v5, v6
        v_mul_u32_u24 v{vBmul}, {QS//4}, v1
        v_and_b32 v3, 31, v{L}           ; m
        v_lshrrev_b32 v9, 4, v3
        v_and_b32 v8, 3, v3
        v_lshl_add_u32 v9, v8, 1, v9
        v_and_b32 v8, 8, v3
        v_add_u32 v9, v9, v8
        v_and_b32 v8, 4, v3
        v_lshl_add_u32 v9, v8, 2, v9
        v_lshlrev_b32 v9, 4, v9
        v_mul_u32_u24 v8, {L_AQH - L_AQE}, v1
        v_add_u32 v9, v9, v8
        v_add_u32 v{vaAqe}, {L_AQE}, v9
        v_lshrrev_b32 v9, 2, v{L}
        v_and_b32 v8, 3, v9
        v_lshlrev_b32 v8, 1, v8
        v_and_b32 v11, 8, v9
        v_add_u32 v8, v8, v11
        v_and_b32 v11, 4, v9
        v_lshl_add_u32 v8, v11, 2, v8
        v_lshlrev_b32 v8, 2, v8
        v_add_u32 v{vaList}, {L_LIST}, v8
        v_bfe_u32 v9, v3, 2, 2
        v_xor_b32 v9, v9, v1
        v_lshlrev_b32 v9, 4, v9
        v_lshl_add_u32 v9, v3, 6, v9
        v_add_u32 v{vaP0}, s{s_ring}, v9
        v_xor_b32 v{vaP1}, 32, v{vaP0}
        v_and_b32 v9, 1, v3
        v_lshlrev_b32 v9, 4, v9
        v_mov_b32 v8, 0x3f80
        v_lshlrev_b32 v9, v9, v8
        v_lshrrev_b32 v8, 1, v3
        v_lshlrev_b32 v11, 2, v1
        v_sub_u32 v8, v8, v11
        """)
        for x in range(4):
            A(f"v_cmp_eq_u32 s[{s_x}:{s_x+1}], {x}, v8\nv_cmp_eq_u32 vcc, {8+x}, v8\ns_nop 0")
            A(f"v_cndmask_b32 v{vSel0+x}, 0, v9, s[{s_x}:{s_x+1}]\nv_cndmask_b32 v{vSel1+x}, 0, v9, vcc")
        A(f"""
        v_mov_b32 v{vC}, {f32(2.0**-CEXP):#x}
        v_mov_b32 v{vC+1}, {f32(2.0**-CEXP):#x}
        v_mov_b32 v{vDeg}, 0
        v_mov_b32 v{vDum}, 0x80000000
        v_lshrrev_b32 v9, 3, v0
        v_mul_u32_u24 v{vChunk8}, {CHE*8}, v9
        v_lshlrev_b32 v{vW2a}, 4, v{L}
        v_lshlrev_b32 v9, 2, v{L}
        v_add_u32 v{vaCnt}, {L_CNT}, v9
        """)
        for r in range(16):
            A(f"v_mov_b32 v{vS0+r}, 0\nv_mov_b32 v{vS1+r}, 0")

    def zerofill():
        A(f"""
        v_mov_b32 v40, 0
        v_mov_b32 v41, 0
        v_mov_b32 v42, 0
        v_mov_b32 v43, 0
        v_mov_b32 v44, {DUMMY}
        v_mov_b32 v45, {DUMMY}
        v_lshlrev_b32 v1, 3, v0
        v_add_u32 v1, {L_LIST}, v1
        ds_write_b64 v1, v[44:45]
        ds_write_b32 v{vaCnt}, v40
        ds_write_b32 v{vaCnt}, v40 offset:256
        v_lshlrev_b32 v1, 4, v0
        v_add_u32 v1, {L_AQE}, v1
        """)
        nz = ZERO_BYTES // 8192
        rem = ZERO_BYTES - nz * 8192
        for q in range(nz):
            A(f"ds_write_b128 v1, v[40:43] offset:{q*8192}")
        if rem:
            A(f"""
            v_cmp_gt_u32 vcc, {rem//16}, v0
            s_and_saveexec_b64 s[{s_x}:{s_x+1}], vcc
            ds_write_b128 v1, v[40:43] offset:{nz*8192}
            s_mov_b64 exec, s[{s_x}:{s_x+1}]
            """)

    def small():
        srd(A, sC, pB1, 512)
        A(f"""
        v_lshrrev_b32 v3, 4, v{L}
        v_lshlrev_b32 v4, 4, v3
        s_lshl_b32 s3, s{s_w}, 6
        buffer_load_dwordx4 {vr(vB1,4)}, v4, {S(sC)}, s3 offen
        v_lshlrev_b32 v5, 2, v0
        s_mov_b32 s3, {256*512}
        buffer_load_dword v{vWEr}, v5, {S(sB)}, s3 offen
        v_lshlrev_b32 v4, 3, v3
        s_mov_b32 s{sC}, s{pB2}
        s_mov_b32 s{sC+1}, s{pB2+1}
        s_mov_b32 s{sC+2}, 256
        s_lshl_b32 s3, s{s_w}, 5
        buffer_load_dwordx2 {vr(vB2,2)}, v4, {S(sC)}, s3 offen
        """)

    def eprefetch():
        A(f"""
        s_mul_i32 s3, s2, {E*8//256}
        v_lshlrev_b32 v3, 4, v0
        buffer_load_dwordx4 v[224:227], v3, {S(sE)}, s3 offen
        """)

    def f0load():
        A(f"buffer_load_dword v{vF0}, off, {S(sG)}, 0 offset:128 sc1")

    def spoll(tag, base, offreg, want):
        A(f"""
        s_mov_b32 s{s_spin}, 0x40000
        M_sp{tag}:
        s_mov_b32 s{s_x+1}, 0
        s_atomic_add s{s_x+1}, s[{base}:{base+1}], {offreg} glc
        s_sub_u32 s{s_spin}, s{s_spin}, 1
        s_cbranch_scc1 M_spd{tag}
        s_waitcnt lgkmcnt(0)
        s_cmp_lg_u32 s{s_x+1}, {want}
        s_cbranch_scc1 M_sp{tag}
        M_spd{tag}:
        s_waitcnt lgkmcnt(0)
        """)

    def f0wait(tag):
        A(f"""
        v_readfirstlane_b32 s3, v{vF0}
        s_cmp_lg_u32 s3, 0
        s_cbranch_scc1 M_pfd{tag}
        """)
        spoll("f" + tag, pDBG, 128, 1)
        A(f"M_pfd{tag}:")

    def release(base):
        A(f"""
        v_lshlrev_b32 v8, 7, v{L}
        v_mov_b32 v9, 1
        s_mov_b32 s3, {base}
        s_mov_b64 exec, 0xffff
        buffer_atomic_add v9, v8, {S(sWS)}, s3 offen sc1
        s_mov_b64 exec, -1
        """)

    def rpoll(tag, base, want):
        A(f"s_and_b32 s3, s2, 15\ns_lshl_b32 s3, s3, 7\ns_add_u32 s3, s3, {base}")
        spoll(tag, pWS, "s3", want)

    srd(A, sWS, pWS, WS_END)
    A(f"""
    v_lshlrev_b32 v3, 7, v0
    s_cmp_eq_u32 s2, 0
    s_cselect_b32 s3, 48, 0
    v_cmp_gt_u32 vcc, s3, v0
    v_mov_b32 v4, 0x40000000
    v_mov_b32 v8, 0
    v_cndmask_b32 v3, v4, v3, vcc
    s_mul_i32 s3, s2, {CHE*4}
    buffer_store_dword v8, v3, {S(sWS)}, 0 offen {SC}
    """)
    srd(A, sC, pDST, CHE * 4, off="s3")
    srd(A, sD, pSRC, CHE * 4, off="s3")
    A(f"s_mov_b32 s{s_x+1}, 4096\ns_mov_b32 s{s_x+2}, 8192")
    vD, vS = 164, 169
    so = ["0", "0", f"s{s_x+1}", f"s{s_x+1}", f"s{s_x+2}"]
    for k in range(5):
        A(f"buffer_load_dword v{vD+k}, v2, {S(sC)}, {so[k]} offen offset:{(k & 1)*2048}")
    for k in range(5):
        A(f"buffer_load_dword v{vS+k}, v2, {S(sD)}, {so[k]} offen offset:{(k & 1)*2048}")
    srd(A, sC, pW2, 256 * 256)
    srd(A, sB, pW1, 260 * 512)
    A(f"""
    v_lshlrev_b32 v3, 4, v0
    v_add_u32 v15, {L_BT}, v3
    v_add_u32 v2, {L_BC}, v2
    v_mov_b32 v4, -1
    v_mov_b32 v5, -1
    v_mov_b32 v6, -1
    v_mov_b32 v7, -1
    """)
    for q in range(4):
        A(f"ds_write_b128 v15, v[4:7] offset:{q*8192}")
    A(f"""
    ds_write_b32 v2, v8
    v_mov_b32 v9, 1
    """)
    srd(A, sD, pX, N * 256)
    srd(A, sG, pDBG, 256)
    stamp(A, 1)
    A(f"""
    s_waitcnt lgkmcnt(0)
    s_barrier
    s_waitcnt vmcnt(5)
    """)
    vb, va, vk = 16, 21, 26
    for k in range(5):
        A(f"v_mul_u32_u24 v{vb+k}, 1677, v{vD+k}")
        A(f"v_lshrrev_b32 v{vb+k}, 16, v{vb+k}")
        A(f"v_lshlrev_b32 v{va+k}, 2, v{vb+k}")
        A(f"v_add_u32 v{va+k}, {L_BC}, v{va+k}")
        if k == 4:
            A(f"v_cmp_gt_u32 vcc, {CHE - 2048}, v0\ns_and_saveexec_b64 s[{s_x+2}:{s_x+3}], vcc")
        A(f"ds_add_rtn_u32 v{vk+k}, v{va+k}, v9")
    A(f"""
    s_mov_b64 s[{s_x+4}:{s_x+5}], exec
    s_or_b32 s3, s2, s{s_w}
    s_cbranch_scc1 M_nf0
    s_mov_b64 exec, 1
    buffer_store_dword v9, off, {S(sG)}, 0 offset:128 {SC}
    M_nf0:
    s_mov_b64 exec, -1
    s_lshl_b32 s3, s2, 8
    v_add_u32 v3, s3, v0
    v_bfe_u32 v4, v3, 8, 3           ; s
    v_lshlrev_b32 v4, 5, v4
    v_bfe_u32 v5, v3, 6, 1           ; ab
    v_lshl_add_u32 v4, v5, 4, v4
    v_bfe_u32 v5, v3, 1, 1           ; e>>2
    v_lshl_add_u32 v4, v5, 3, v4
    v_bfe_u32 v5, v3, 7, 1           ; h
    v_lshl_add_u32 v4, v5, 2, v4
    v_and_b32 v5, 1, v3
    v_lshl_add_u32 v4, v5, 1, v4     ; hidden
    v_lshlrev_b32 v4, 8, v4
    v_lshrrev_b32 v5, 11, v3         ; wo
    v_lshl_add_u32 v4, v5, 5, v4
    v_bfe_u32 v5, v3, 2, 4           ; m
    v_lshl_add_u32 v4, v5, 1, v4
    v_lshrrev_b32 v5, 8, v0
    v_lshl_or_b32 v4, v5, 30, v4
    v_lshlrev_b32 v3, 2, v3
    v_lshl_or_b32 v176, v5, 30, v3
    buffer_load_ushort v174, v4, {S(sC)}, 0 offen
    buffer_load_ushort v175, v4, {S(sC)}, 0 offen offset:256
    """)
    xdma(L_XQ, s_nb0)
    small()
    A("s_waitcnt vmcnt(7)")
    for k in range(5):
        A(f"""
        v_and_b32 v{vD+k}, 63, v{vD+k}
        v_lshl_or_b32 v{vS+k}, v{vD+k}, 14, v{vS+k}
        v_add_u32 v{vD+k}, {512*k}, v0
        v_lshl_or_b32 v{vS+k}, v{vD+k}, 20, v{vS+k}
        v_lshlrev_b32 v{va+k}, 7, v{vb+k}
        v_add_u32 v{va+k}, {L_BT}, v{va+k}
        """)
    for k in range(5):
        if k == 4:
            A(f"s_mov_b64 exec, s[{s_x+4}:{s_x+5}]")
        A(f"""
        s_waitcnt lgkmcnt({4-k})
        v_add_u32 v4, v{vk+k}, v{vb+k}
        v_and_b32 v4, 7, v4
        v_lshrrev_b32 v5, 3, v{vk+k}
        v_lshl_add_u32 v4, v4, 2, v5
        v_lshl_add_u32 v{va+k}, v4, 2, v{va+k}
        v_cmp_gt_u32 vcc, 32, v{vk+k}
        s_and_saveexec_b64 s[{s_x+6}:{s_x+7}], vcc
        ds_write_b32 v{va+k}, v{vS+k}
        s_mov_b64 exec, s[{s_x+6}:{s_x+7}]
        """)
    A(f"""
    s_mov_b64 exec, -1
    v_lshrrev_b32 v4, 3, v0
    v_lshlrev_b32 v5, 2, v4
    v_add_u32 v5, {L_BC}, v5
    v_and_b32 v6, 7, v0
    v_lshlrev_b32 v7, 13, v4
    v_lshl_add_u32 v7, v6, 4, v7
    s_lshl_b32 s3, s2, 7
    s_add_u32 s3, s3, {WS_SLOT}
    v_add_u32 v7, s3, v7
    v_cmp_eq_u32 s[{s_x+2}:{s_x+3}], 7, v6
    v_mov_b32 v8, -2
    s_mov_b32 s{s_x+4}, 0
    s_mov_b32 s{s_x+5}, {64*8192}
    s_mov_b32 s{s_x+6}, {128*8192}
    s_mov_b32 s{s_x+7}, {192*8192}
    s_waitcnt lgkmcnt(0)
    s_barrier
    """)
    stamp(A, 2)
    for q in range(4):
        A(f"ds_read_b128 {vr(16+4*q,4)}, v15 offset:{q*8192}")
        A(f"ds_read_b32 v{32+q}, v5 offset:{q*256}")
    A(f"s_mov_b32 s3, {WS_W2F}")
    for q in range(4):
        A(f"""
        s_waitcnt lgkmcnt({6-2*q})
        v_cmp_lt_u32 vcc, 32, v{32+q}
        s_and_b64 vcc, vcc, s[{s_x+2}:{s_x+3}]
        s_nop 1
        v_cndmask_b32 v{19+4*q}, v{19+4*q}, v8, vcc
        buffer_store_dwordx4 {vr(16+4*q,4)}, v7, {S(sWS)}, s{s_x+4+q} offen {SC}
        """)
    A(f"s_waitcnt vmcnt(9)\nv_lshl_or_b32 v174, v175, 16, v174\nbuffer_store_dword v174, v176, {S(sWS)}, s3 offen {SC}")
    stamp(A, 3)
    f0load()
    gaddr()
    consts()
    A(f"""
    s_waitcnt vmcnt(0)
    s_barrier
    s_cmp_lg_u32 s{s_w}, 0
    s_cbranch_scc1 M_nlast2
    """)
    stamp(A, 16)
    A(f"""
    s_and_b32 s3, s2, 1
    s_lshl_b32 s3, s3, 6
    s_mov_b32 s{s_x}, 1
    s_atomic_add s{s_x}, s[{pDBG}:{pDBG+1}], s3 glc
    """)
    f0wait("b")
    A(f"""
    s_waitcnt lgkmcnt(0)
    s_and_b32 s3, s{s_x}, {NCH//2 - 1}
    s_cmp_lg_u32 s3, {NCH//2 - 1}
    s_cbranch_scc1 M_nlast
    """)
    release(WS_RB)
    A("M_nlast:")
    stamp(A, 17)
    A("M_nlast2:")
    srd(A, sA, pWS, 0)
    A(f"v_mov_b32 v{vPa}, 0")
    wdma(128 * 512)
    zerofill()
    A("s_branch M_join")
    A("M_pwg:")
    srd(A, sD, pX, N * 256)
    srd(A, sB, pW1, 260 * 512)
    A(f"s_sub_u32 s{s_t}, s2, {NCH}\ns_mul_i32 s{s_t}, s{s_t}, {PROWS}")
    xdma(L_XP, s_t)
    A(f"""
    s_and_b32 s3, s2, -8
    s_add_u32 s3, s3, s{s_w}
    s_and_b32 s3, s3, 127
    s_lshl_b32 s3, s3, 10
    v_lshlrev_b32 v3, 4, v{L}
    buffer_load_dwordx4 v[16:19], v3, {S(sB)}, s3 offen
    """)
    srd(A, sWS, pWS, WS_END)
    srd(A, sG, pDBG, 256)
    consts()
    zerofill()
    wdma(0)
    stamp(A, 1)
    gaddr()
    A(f"""
    v_add_u32 v15, {L_XP}, v{vXr}
    v_add_u32 v11, s{s_t}, v4
    v_lshlrev_b32 v11, 9, v11
    v_lshl_add_u32 v11, v3, 4, v11
    s_lshl_b32 s3, s{s_w}, 6
    v_add_u32 v{vPa}, s3, v11
    s_add_u32 s3, s{s_t}, {PROWS}
    s_min_u32 s3, s3, {N}
    s_lshl_b32 s3, s3, 9
    """)
    srd(A, sA, pWS, "s3", off=WS_P)
    A(f"""
    s_waitcnt vmcnt(8)
    s_barrier
    """)
    stamp(A, 2)

    def pstore(mt):
        A(f"s_mov_b32 s3, {mt*8192}\nbuffer_store_dwordx4 {vr(vPO+4*mt,4)}, v{vPa}, {S(sA)}, s3 offen {SC}")

    for s in range(4):
        if s:
            A(f"v_xor_b32 v4, {s << 6:#x}, v15")
        for mt in range(4):
            A(f"ds_read_b128 {vr(vXP + 16*mt + 4*s, 4)}, v{4 if s else 15} offset:{mt*4096}")
    gemm_part(A, None, 4, vXP, vm=[6, 4, 2, 0])
    stamp(A, 18)
    f0load()
    xdma(L_XQ, s_nb0)
    small()
    wdma(128 * 512)
    gemm_pack(A, 4, lambda mt: pstore(mt) if mt in EARLY else None)
    stamp(A, 3)
    A(f"s_waitcnt vmcnt({8 + len(EARLY)})")
    A("M_join:")
    A(f"""
    s_cmp_lg_u32 s{s_w}, 0
    s_cbranch_scc1 M_w1d
    """)
    f0wait("a")
    rpoll("a", WS_RB, 2)
    A("M_w1d:")
    stamp(A, 4)
    A(f"""
    s_mov_b32 s{s_x+2}, {QS - 512}
    v_lshlrev_b32 v8, 16, v{vWEr}
    v_and_b32 v9, 0xffff0000, v{vWEr}
    v_mul_f32 v8, v12, v8
    v_mul_f32 v9, v12, v9
    v_cvt_pk_bf16_f32 v10, v8, v9
    v_lshrrev_b32 v4, 7, v0          ; f
    v_lshlrev_b32 v5, 16, v10
    v_and_b32 v6, 0xffff0000, v10
    v_sub_f32 v8, v8, v5
    v_sub_f32 v9, v9, v6
    v_cvt_pk_bf16_f32 v11, v8, v9
    v_lshlrev_b32 v5, 2, v0
    v_mad_u32_u24 v5, v4, s{s_x+2}, v5
    v_add_u32 v5, {L_WE}, v5
    ds_write_b32 v5, v10
    ds_write_b32 v5, v11 offset:{4*QS}
    """)
    for x in range(4):
        A(f"v_lshlrev_b32 v{vB1+4+2*x}, 16, v{vB1+x}\nv_and_b32 v{vB1+5+2*x}, 0xffff0000, v{vB1+x}")
    stamp(A, 5)
    A(f"""
    v_add_u32 v15, {L_XQ}, v{vXr}
    s_lshl_b32 s{s_x}, s2, 13
    s_add_u32 s{s_x}, s{s_x}, {WS_SLOT}
    v_lshlrev_b32 v1, 4, v0
    s_waitcnt lgkmcnt(0)
    s_barrier
    buffer_load_dwordx4 v[4:7], v1, {S(sWS)}, s{s_x} offen {SC}
    """)
    for mt in range(4):
        if mt not in EARLY:
            pstore(mt)
    NL = 4 - len(EARLY)
    stamp(A, 6)
    for s in range(4):
        if s:
            A(f"v_xor_b32 v8, {s << 6:#x}, v15")
        for mt in range(3):
            A(f"ds_read_b128 {vr(vXF + 16*mt + 4*s, 4)}, v{8 if s else 15} offset:{mt*4096}")
    A(f"""
    s_cmp_ge_u32 s2, {NCH}
    s_waitcnt vmcnt(5) lgkmcnt(0)
    s_cbranch_scc1 M_tk1
    s_waitcnt vmcnt({1 + NL})
    M_tk1:
    """)
    gemm_part(A, vB1 + 4, 3, vXF)
    A(f"""
    v_and_b32 v8, 15, v{L}           ; n
    v_lshrrev_b32 v9, 4, v{L}        ; q
    v_lshlrev_b32 v9, 4, v9
    v_mul_u32_u24 v8, {QS}, v8
    s_lshl_b32 s3, s{s_w}, 6
    s_add_u32 s3, s3, {L_Q}
    v_add3_u32 v{vQa}, v8, v9, s3
    """)
    gemm_pack(A, 3, lambda mt: None, vPO=vQO)
    stamp(A, 7)
    A(f"s_waitcnt vmcnt({NL})\nM_recs:")
    stamp(A, 8)
    vD4, vRk, vEo, vEv, vBs, vTa = 16, 20, 24, 28, 36, 40
    A(f"s_mov_b32 s{s_x}, 0xfff00000\nv_mov_b32 v1, 1")
    for j in range(4):
        A(f"v_cmp_gt_u32 s[{sM+2*j}:{sM+2*j+1}], s{s_x}, v{4+j}")
    def egather():
        for j in range(4):
            A(f"""
            s_mov_b64 exec, s[{sM+2*j}:{sM+2*j+1}]
            buffer_load_dwordx2 {vr(vEv+2*j,2)}, v{vEo+j}, {S(sE)}, 0 offen
            """)
        A("s_mov_b64 exec, -1")

    for j in range(4):
        A(f"""
        v_lshrrev_b32 v{vEo+j}, 20, v{4+j}
        v_lshl_add_u32 v{vEo+j}, v{vEo+j}, 3, v{vChunk8}
        """)
    for j in range(4):
        A(f"""
        s_mov_b64 exec, s[{sM+2*j}:{sM+2*j+1}]
        s_cbranch_execz M_r1_{j}
        v_lshrrev_b32 v{vD4+j}, 12, v{4+j}
        v_subrev_u32 v{vD4+j}, s{s_nb4}, v{vD4+j}
        v_and_b32 v{vD4+j}, 0xfc, v{vD4+j}
        v_add_u32 v8, {L_CNT}, v{vD4+j}
        ds_add_rtn_u32 v{vRk+j}, v8, v1
        v_and_b32 v{4+j}, 0x3fff, v{4+j}
        M_r1_{j}:
        """)
        if j == 2:
            A(f"""
            s_mov_b64 exec, -1
            v_cmp_eq_u32 vcc, -2, v7
            s_and_b64 exec, exec, vcc
            s_cbranch_execz M_nomark
            v_mov_b32 v8, {L_CNT + 63*4}
            v_mov_b32 v9, 0x10000
            ds_add_u32 v8, v9
            M_nomark:
            """)
    A(f"""
    s_mov_b64 exec, -1
    s_mov_b32 s{s_alt}, 0
    s_mov_b32 s{s_sw}, 0
    v_lshlrev_b32 v9, 4, v{L}
    v_add_u32 v{vaAgg}, {L_AGG}, v9
    v_lshlrev_b32 v11, 2, v{L}
    v_add_u32 v11, 32, v11
    s_waitcnt vmcnt(0) lgkmcnt(0)
    s_barrier
    """)
    stamp(A, 21)
    A(f"""
    ds_read_b32 v8, v{vaCnt}
    v_mov_b32 v57, 0
    s_cmp_lg_u32 s{s_w}, 1
    s_cbranch_scc1 M_tk0
    s_cmp_lg_u32 s{s_slow}, 0
    s_cbranch_scc1 M_tk0
    s_and_b32 s3, s2, 15
    s_lshl_b32 s3, s3, 7
    v_mov_b32 v57, 1
    s_mov_b64 exec, 1
    buffer_atomic_add v57, off, {S(sWS)}, s3 sc0 sc1
    s_mov_b64 exec, -1
    M_tk0:
    s_cmp_lg_u32 s{s_slow}, 0
    s_cbranch_scc1 M_noq
    """)
    for mt in range(3):
        A(f"ds_write_b128 v{vQa}, {vr(vQO+4*mt,4)} offset:{mt*16*QS}")
    A("M_noq:")
    for r in range(16):
        A(f"v_mov_b32 v{vACC+r}, 0")
    A(f"""
    s_waitcnt lgkmcnt(3)
    s_cmp_eq_u32 s{s_slow}, 0
    s_cbranch_scc1 M_noq2
    s_waitcnt lgkmcnt(0)
    M_noq2:
    v_add_u32 v9, 1, v8
    v_and_b32 v9, -2, v9
    v_mov_b32 v10, v9
    v_mov_b32 v{vH}, 0
    v_mov_b32 v{vH+1}, 0
    v_add_u32_dpp v10, v10, v10 row_shr:1 row_mask:0xf bank_mask:0xf bound_ctrl:0
    v_mov_b32 v{vH+2}, 0
    v_mov_b32 v{vH+3}, 0
    v_add_u32_dpp v10, v10, v10 row_shr:2 row_mask:0xf bank_mask:0xf bound_ctrl:0
    v_mov_b32 v{vAgg}, 0
    v_mov_b32 v{vAgg+1}, 0
    v_add_u32_dpp v10, v10, v10 row_shr:4 row_mask:0xf bank_mask:0xf bound_ctrl:0
    s_nop 1
    v_add_u32_dpp v10, v10, v10 row_shr:8 row_mask:0xf bank_mask:0xf bound_ctrl:0
    s_nop 1
    v_add_u32_dpp v10, v10, v10 row_bcast:15 row_mask:0xa bank_mask:0xf
    s_nop 1
    v_add_u32_dpp v10, v10, v10 row_bcast:31 row_mask:0xc bank_mask:0xf
    s_nop 0
    v_sub_u32 v{vBase}, v10, v9
    v_readlane_b32 s{s_tot}, v10, 63
    s_cmp_lg_u32 s{s_w}, 1
    s_cbranch_scc1 M_derive
    s_waitcnt vmcnt(0)
    v_readfirstlane_b32 s3, v57
    s_cmp_lg_u32 s3, 15
    s_cbranch_scc1 M_derive
    v_lshlrev_b32 v12, 7, v{L}
    v_mov_b32 v13, 1
    s_mov_b32 s3, {WS_RP}
    s_mov_b64 exec, 0xffff
    buffer_atomic_add v13, v12, {S(sWS)}, s3 offen sc1
    s_mov_b64 exec, -1
    M_derive:
    """)
    for j in range(4):
        A(f"ds_bpermute_b32 v{vBs+j}, v{vD4+j}, v{vBase}")
    A(f"""
    ds_bpermute_b32 v12, v11, v{vBase}
    s_cmp_gt_u32 s{s_tot}, {CAP_T*32}
    s_cbranch_scc1 M_goslow
    v_readlane_b32 s{s_T0p}, v{vBase}, 32
    s_add_u32 s{s_T}, s{s_tot}, 31
    s_lshr_b32 s{s_T}, s{s_T}, 5
    v_add3_u32 v13, v{vBase}, v9, 31
    v_and_b32 v13, -32, v13                ; end of the tile that holds node i's last slot
    s_waitcnt lgkmcnt(0)
    v_cmp_gt_u32 vcc, v13, v12
    v_cmp_ne_u32 s[{s_x}:{s_x+1}], s{s_tot}, v12
    s_andn2_b32 s{s_x+1}, vcc_lo, s{s_alt}
    s_and_b32 s{s_x}, s{s_x}, s{s_x+1}
    s_cbranch_scc1 M_align
    """)
    stamp(A, 22)
    A(f"""
    v_mov_b32 v1, 0x3f80
    s_mov_b32 s{s_f0}, 16
    s_cmp_lg_u32 s{s_w}, 0
    s_cbranch_scc1 M_nolook
    s_and_b32 s3, s2, 15
    s_lshl_b32 s3, s3, 7
    s_add_u32 s3, s3, {WS_RP}
    s_mov_b32 s{s_f0}, 0
    s_atomic_add s{s_f0}, s[{pWS}:{pWS+1}], s3 glc
    M_nolook:
    """)
    for j in range(4):
        A(f"""
        s_mov_b64 exec, s[{sM+2*j}:{sM+2*j+1}]
        s_cbranch_execz M_r2_{j}
        v_add_u32 v{vRk+j}, v{vRk+j}, v{vBs+j}
        v_lshlrev_b32 v9, 2, v{vRk+j}
        v_add_u32 v9, {L_LIST}, v9
        ds_write_b32 v9, v{4+j}
        v_and_b32 v9, 0x80, v{vD4+j}
        v_add_u32 v9, v9, v{vD4+j}
        v_and_b32 v10, 14, v{vRk+j}
        v_lshl_add_u32 v9, v9, 2, v10
        v_lshrrev_b32 v10, 4, v{vRk+j}
        v_lshl_add_u32 v9, v10, 9, v9
        v_add_u32 v9, {L_AGG}, v9
        ds_write_b16 v9, v1
        v_lshrrev_b32 v9, 3, v{vRk+j}
        v_and_b32 v10, 31, v{vRk+j}
        v_and_b32 v9, -4, v9
        v_cmp_eq_u32 vcc, 0, v10
        v_add_u32 v{vTa+j}, {L_N0}, v9
        s_and_b64 exec, exec, vcc
        ds_write_b32 v{vTa+j}, v{vD4+j}
        M_r2_{j}:
        """)
    egather()
    A(f"""
    s_cmp_lt_u32 s{s_T0p}, s{s_tot}
    s_cselect_b32 s{s_x}, 5, 31
    s_cselect_b32 s{s_x+1}, 1, 0x7fffffff
    s_lshr_b32 s{s_T0p}, s{s_T0p}, s{s_x}
    s_add_u32 s{s_T0p}, s{s_T0p}, s{s_x+1}
    v_add_u32 v{vDeg}, v{vDeg}, v8
    s_mul_i32 s{s_pri}, s{s_T}, {PRIO_NUM}
    s_lshr_b32 s{s_pri}, s{s_pri}, 5
    s_cmp_lt_u32 s{s_w}, 4
    s_cselect_b32 s{s_pri}, 0x7fffffff, s{s_pri}
    s_sub_u32 s{s_next}, s{s_T}, 1
    s_min_i32 s{s_next}, s{s_next}, s{s_T0p}
    s_min_i32 s{s_next}, s{s_next}, s{s_pri}
    v_mov_b32 v1, 0x3f80
    """)
    OO = [2, 10, 172]
    A(f"""
    v_and_b32 v8, 15, v{L}               ; n
    v_lshlrev_b32 v9, 2, v8
    ds_bpermute_b32 v48, v9, v{vDeg}
    v_add_u32 v9, 64, v9
    ds_bpermute_b32 v49, v9, v{vDeg}
    v_add_u32 v9, 64, v9
    ds_bpermute_b32 v50, v9, v{vDeg}
    v_lshrrev_b32 v9, 4, v{L}            ; q
    v_bfe_u32 v14, v8, 1, 2
    v_xor_b32 v14, v14, v9
    v_lshlrev_b32 v14, 4, v14
    v_lshl_add_u32 v14, v8, 6, v14
    v_add_u32 v15, s{s_nb0}, v8
    v_lshlrev_b32 v15, 8, v15
    v_lshl_add_u32 v15, v9, 3, v15
    s_lshl_b32 s3, s{s_w}, 5
    v_add_u32 v15, s3, v15
    v_and_b32 v8, 31, v{L}
    v_lshrrev_b32 v9, 5, v{L}
    v_lshlrev_b32 v9, 1, v9
    v_bfe_u32 v6, v8, 1, 2
    v_xor_b32 v6, v6, v9
    v_lshlrev_b32 v6, 4, v6
    v_lshl_add_u32 v6, v8, 6, v6
    v_add_u32 v6, s{s_ring}, v6
    v_xor_b32 v7, 16, v6
    v_lshlrev_b32 v52, 16, v{vB2}
    v_and_b32 v53, 0xffff0000, v{vB2}
    v_lshlrev_b32 v54, 16, v{vB2+1}
    v_and_b32 v55, 0xffff0000, v{vB2+1}
    s_lshl_b32 s3, s{s_nb1}, 8
    """)
    srd(A, sA, pOUT, "s3")
    A(f"""
    s_waitcnt lgkmcnt(0)
    v_cvt_f32_u32 v48, v48
    v_cvt_f32_u32 v49, v49
    v_cvt_f32_u32 v50, v50
    """)
    for mt in range(3):
        for i in range(4):
            A(f"v_mul_f32 v{OO[mt]+i}, v{48+mt}, v{52+i}")
    A(f"v_mov_b32 v56, {L_N0}")
    stamp(A, 23)
    A(f"""
    s_cmp_eq_u32 s{s_f0}, 16
    s_cbranch_scc1 M_w2
    """)
    rpoll("b", WS_RP, 16)
    A(f"""
    M_w2:
    v_mov_b32 v{vAgg+2}, 0
    v_mov_b32 v{vAgg+3}, 0
    s_waitcnt lgkmcnt(0)
    s_barrier
    """)
    stamp(A, 9)
    PSC = "sc1" if "psc1" in OPT else ("nt" if "pnt" in OPT else ("sc0 sc1" if "psc01" in OPT else ""))

    def dma(t, jj):
        r = vOff + 2 * t + jj if t < CAP_T else vDum
        fl = "nt" if t >= NT0 else PSC
        return f"buffer_load_dwordx4 v{r}, {S(sP)}, 0 offen offset:{(t & 1)*2048 + jj*1024} {fl} lds"

    def m0set(t):
        return f"s_mov_b32 m0, s{s_ring if (t % 4) < 2 else s_ringh}"

    def offs(lo, hi, after=None):
        for t0 in range(lo, hi, 8):
            ts = range(t0, min(t0 + 8, hi))
            for t in ts:
                A(f"ds_read_b64 {vr(vOff+2*t,2)}, v{vaList} offset:{t*128}")
            for i, t in enumerate(ts):
                A(f"s_waitcnt lgkmcnt({len(ts)-1-i})")
                for jj in range(2):
                    A(f"v_lshl_add_u32 v{vOff+2*t+jj}, v{vOff+2*t+jj}, 9, v{vK0 + 2*(t & 1) + jj}")
                if after:
                    after(t)

    def first_dma(t):
        if t < 2:
            A(dma(t, 0) + "\n" + dma(t, 1))
    A(m0set(0))
    offs(0, 6, first_dma)
    stamp(A, 19)
    for j in range(4):
        A(f"ds_read_b32 v{vBs+j}, v{vTa+j}")
    for g in range(7):
        A(f"ds_read_b128 {vr(vBa+4*g,4)}, v56 offset:{16*g}")
    A(f"{m0set(2)}\ns_waitcnt vmcnt(4) lgkmcnt(7)")
    stamp(A, 20)
    for j in range(4):
        A(f"""
        s_mov_b64 exec, s[{sM+2*j}:{sM+2*j+1}]
        s_cbranch_execz M_r3_{j}
        v_lshlrev_b32 v8, 4, v{vRk+j}
        v_add_u32 v8, {L_AQE}, v8
        ds_write2_b64 v8, {vr(vEv+2*j,2)}, {vr(vEv+2*j,2)} offset0:0 offset1:1
        v_sub_u32 v9, v{vD4+j}, v{vBs+j}
        v_lshrrev_b32 v9, 1, v9
        v_add_u32 v9, v9, v8
        ds_write_b16 v9, v1 offset:{L_AQH - L_AQE}
        M_r3_{j}:
        """)
    A("s_mov_b64 exec, -1")
    A("s_waitcnt lgkmcnt(0)\ns_barrier")
    stamp(A, 10)
    for t in range(CAP_T):
        A(f"v_mad_u32_u24 v{vBa+t}, v{vBa+t}, v{vBmul}, v{vaB}")
    A(f"""
    s_cmp_eq_u32 s{s_T}, 0
    s_cbranch_scc1 M_bend
    """)
    offs(6, CAP_T)
    stamp(A, 11)

    def bread(t):
        r = vBa + min(t, CAP_T - 1)
        return [f"ds_read_b64_tr_b16 {vr(vBq,2)}, v{r}", f"ds_read_b64_tr_b16 {vr(vBq+2,2)}, v{r} offset:{4*QS}"]

    def w2load(s):
        return f"buffer_load_dwordx4 {vr(vW2+4*s,4)}, v{vW2a}, {S(sWS)}, s{s_w2 + (s >> 2)} offen offset:{(s & 3)*1024} sc1"

    A("\n".join(bread(0)))
    A(f"""
    ds_read_b128 {vr(vAqe,4)}, v{vaAqe}
    s_cmp_lt_u32 s{s_w}, 4
    s_cbranch_scc1 M_nopri
    s_setprio 1
    M_nopri:
    {dma(2, 0)}
    {dma(2, 1)}
    s_waitcnt vmcnt(4)
    ds_read_b128 {vr(vPf0,4)}, v{vaP0}
    ds_read_b128 {vr(vPf1,4)}, v{vaP1}
    {dma(3, 0)}
    {dma(3, 1)}
    {m0set(D)}
    s_waitcnt lgkmcnt(0)
    """)
    mfma32(A, vU[0], vAqe, vBq, None)
    A(dma(D, 0))
    mfma32(A, vU[0], vPf0, vSel0, vU[0])
    A(dma(D, 1))
    mfma32(A, vU[0], vPf1, vSel1, vU[0])
    A("\n".join(bread(1)))
    A(f"""
    ds_read_b128 {vr(vAqe,4)}, v{vaAqe} offset:512
    s_waitcnt vmcnt({2*(D-1)})
    ds_read_b128 {vr(vPf0,4)}, v{vaP0} offset:2048
    ds_read_b128 {vr(vPf1,4)}, v{vaP1} offset:2048
    s_nop 7
    """)
    stamp(A, 12)

    def second_half(B, U, aggread):
        mfma32(B, vACC, vH, vAgg, vACC)
        for i in range(8):
            B(f"v_rcp_f32 v{vT+i}, v{vT+i}")
            if i == 4:
                B(aggread)
        for i in range(0, 8, 2):
            B(f"v_pk_mul_f32 {vr(U+i,2)}, {vr(U+i,2)}, {vr(vT+i,2)}")
        for i in range(0, 8, 2):
            B(f"v_cvt_pk_bf16_f32 v{vH+i//2}, v{U+i}, v{U+i+1}")

    vmq = ["d"] * (2 * (D + 1))

    def vm_need(t):
        seen = 0
        for i, k in enumerate(vmq):
            if k == "d":
                seen += 1
                if seen == 2 * (t + 1):
                    return len(vmq) - 1 - i

    ool = Asm()
    A(".p2align 3")
    for t in range(CAP_T):
        U, Un = vU[t & 1], vU[(t + 1) & 1]
        tn = t + 1 + D
        s2 = ((t + 2) % D) * 2048
        ex = [f"v_exp_f32 v{vT+i}, v{U+i}" for i in range(16)]
        if "itst" in OPT:
            A(f"s_memtime s[100:101]")
        late_vm = t < 2
        A(f"s_waitcnt lgkmcnt(0)" if late_vm else f"s_waitcnt vmcnt({vm_need(t+2)}) lgkmcnt(0)")
        if "itst" in OPT:
            A(f"v_writelane_b32 v{vSt}, s100, {16+t}")
        mfma32(A, Un, vAqe, vBq, None)
        A("\n".join(ex[0:4]))
        mfma32(A, Un, vPf0, vSel0, Un)
        A("\n".join(ex[4:8]))
        mfma32(A, Un, vPf1, vSel1, Un)
        A("\n".join(ex[8:16]))
        pk = [f"v_pk_fma_f32 {vr(vT+i,2)}, {vr(vT+i,2)}, {vr(vC,2)}, {vr(vC,2)} clamp" for i in (0, 8, 2, 10, 4, 12, 6, 14)]
        pk += [f"v_pk_mul_f32 {vr(U+i,2)}, {vr(U+i,2)}, {vr(vT+8+i,2)}" for i in range(0, 8, 2)]
        pk += [f"v_pk_fma_f32 {vr(U+i,2)}, {vr(U+8+i,2)}, {vr(vT+i,2)}, {vr(U+i,2)}" for i in range(0, 8, 2)]
        pk += [f"v_pk_mul_f32 {vr(vT+i,2)}, {vr(vT+i,2)}, {vr(vT+8+i,2)}" for i in range(0, 8, 2)]
        b0, b1 = bread(t + 2)
        g_ds = ([m0set(tn)] if tn % 2 == 0 else []) + [f"ds_read_b128 {vr(vAqe,4)}, v{vaAqe} offset:{(t+2)*512}", b0, b1]
        g_p = [f"ds_read_b128 {vr(vPf0,4)}, v{vaP0} offset:{s2}", f"ds_read_b128 {vr(vPf1,4)}, v{vaP1} offset:{s2}"]
        g_vm = [dma(tn, 0), dma(tn, 1)]
        if late_vm:
            groups = {2: g_ds, 12: [f"s_waitcnt vmcnt({vm_need(t+2)})"] + g_p + g_vm}
        else:
            groups = {2: g_ds + g_p, 9: g_vm}
        vmq += ["d", "d"]
        if W2T0 <= t < W2T0 + 8:
            g_vm.append(w2load(t - W2T0))
            vmq.append("w")
        groups[16] = [f"s_cmp_le_i32 s{s_next}, {t}"]
        for i, x in enumerate(pk):
            A(x)
            for y in groups.get(i, []):
                if not ("nodma" in OPT and " lds" in y):
                    A(y)
        A(f"s_cbranch_scc1 M_ev{t}\nM_evr{t}:")
        second_half(A, U, f"ds_read_b128 {vr(vAgg,4)}, v{vaAgg} offset:{t*1024}")
        ool(f"""
        M_ev{t}:
        s_movk_i32 s{s_t}, {t}
        s_call_b64 s[{s_ret}:{s_ret+1}], M_rare
        s_cbranch_scc1 M_tail{t & 1}
        s_branch M_evr{t}
        """)
    A("s_branch M_fin")
    for p in range(2):
        A(f"""
        M_tail{p}:
        s_lshl_b32 s3, s{s_t}, 10
        v_add_u32 v8, s3, v{vaAgg}
        """)
        second_half(A, vU[p], f"ds_read_b128 {vr(vAgg,4)}, v8")
        if p == 0:
            A("s_branch M_fin")
    A(f"""
    M_fin:
    s_mov_b32 s{s_t}, s{s_T}
    s_cmp_eq_u32 s{s_T0p}, s{s_T}
    s_cbranch_scc0 M_fin2
    s_call_b64 s[{s_ret}:{s_ret+1}], M_rare
    M_fin2:
    s_waitcnt lgkmcnt(0)
    """)
    mfma32(A, vACC, vH, vAgg, vACC)
    stamp(A, 13)
    A(f"""
    s_cmp_lg_u32 s{s_sw}, 0
    s_nop 11
    s_cbranch_scc1 M_fin_hi
    """)
    for r in range(16):
        A(f"v_add_f32 v{vS0+r}, v{vS0+r}, v{vACC+r}")
    A("s_branch M_bend\nM_fin_hi:")
    for r in range(16):
        A(f"v_add_f32 v{vS1+r}, v{vS1+r}, v{vACC+r}")
    K = -math.log(2.0) * 2.0 ** -CEXP
    A(f"""
    M_bend:
    s_setprio 0
    s_cmp_lg_u32 s{s_slow}, 0
    s_cbranch_scc1 M_next
    M_epi:
    s_cmp_gt_u32 s{s_T}, {W2T0 + 8}
    s_cbranch_scc1 M_epi2
    """)
    for s_ in range(8):
        A(w2load(s_))
    A(f"""
    M_epi2:
    v_mov_b32 v{vC}, {f32(K):#x}
    v_mov_b32 v{vC+1}, {f32(K):#x}
    """)
    for Sx, o in ((vS0, 16), (vS1, 24)):
        for r in range(0, 16, 2):
            A(f"v_pk_mul_f32 {vr(Sx+r,2)}, {vr(Sx+r,2)}, {vr(vC,2)}")
        for r in range(0, 16, 2):
            A(f"v_cvt_pk_bf16_f32 v{o+r//2}, v{Sx+r}, v{Sx+r+1}")
        if o == 16:
            A("s_waitcnt vmcnt(0)\nds_write_b128 v6, v[16:19]\nds_write_b128 v7, v[20:23]")
    A(f"""
    ds_write_b128 v6, v[24:27] offset:2048
    ds_write_b128 v7, v[28:31] offset:2048
    s_mov_b32 s{s_x}, 4096
    s_mov_b32 s{s_x+1}, 8192
    s_waitcnt lgkmcnt(0)
    s_barrier
    """)
    stamp(A, 14)
    SFR = 48
    order = [(s, mt) for s in range(8) for mt in range(3)]
    RS = D * 2048
    AHEAD = 12
    for k in range(AHEAD):
        s, mt = order[k]
        A(f"ds_read_b128 {vr(SFR+4*k,4)}, v14 offset:{s*RS+mt*1024}")
    for k in range(24):
        s, mt = order[k]
        A(f"s_waitcnt lgkmcnt({min(AHEAD - 1, 23 - k)})")
        mfma16(A, OO[mt], vW2 + 4 * s, SFR + 4 * k, OO[mt])
        if k + AHEAD < 24:
            s2, mt2 = order[k + AHEAD]
            A(f"ds_read_b128 {vr(SFR+4*(k+AHEAD),4)}, v14 offset:{s2*RS+mt2*1024}")
    A("s_nop 5")
    for mt in range(3):
        A(f"""
        v_cvt_pk_bf16_f32 v{16+2*mt}, v{OO[mt]}, v{OO[mt]+1}
        v_cvt_pk_bf16_f32 v{17+2*mt}, v{OO[mt]+2}, v{OO[mt]+3}
        buffer_store_dwordx2 {vr(16+2*mt,2)}, v15, {S(sA)}, {["0", f"s{s_x}", f"s{s_x+1}"][mt]} offen
        """)
    if (SPIN is not None and SPIN[0] == 15) or ENC is not None:
        A("s_waitcnt vmcnt(0)")
        stamp(A, 15)
    if STAMPS:
        A("s_waitcnt vmcnt(0)")
        stamp(A, 15)
        srd(A, sA, pWS, 0x80000, off=WS_ST)
        A(f"""
        s_lshl_b32 s3, s2, 3
        s_add_u32 s3, s3, s{s_w}
        s_lshl_b32 s3, s3, 8
        v_lshl_add_u32 v1, v{L}, 2, s3
        buffer_store_dword v{vSt}, v1, {S(sA)}, 0 offen
        """)
    A("M_end:\ns_endpgm")

    A(f"""
    M_rare:
    s_cmp_eq_u32 s{s_T0p}, s{s_t}
    s_cbranch_scc0 M_rare2
    s_waitcnt lgkmcnt(0)
    """)
    mfma32(A, vACC, vH, vAgg, vACC)
    A(f"""
    s_lshl_b32 s3, s{s_t}, 10
    v_add_u32 v8, s3, v{vaAgg}
    v_add_u32 v{vaAgg}, 1024, v{vaAgg}
    s_mov_b32 s{s_sw}, 1
    s_mov_b32 s{s_T0p}, 0x7fffffff
    ds_read_b128 {vr(vAgg,4)}, v8
    s_nop 8
    """)
    for r in range(16):
        A(f"v_add_f32 v{vS0+r}, v{vS0+r}, v{vACC+r}")
    for r in range(16):
        A(f"v_mov_b32 v{vACC+r}, 0")
    A(f"""
    s_waitcnt lgkmcnt(0)
    M_rare2:
    s_cmp_le_i32 s{s_pri}, s{s_t}
    s_cbranch_scc0 M_rare3
    s_setprio 0
    s_mov_b32 s{s_pri}, 0x7fffffff
    M_rare3:
    s_sub_u32 s3, s{s_T}, 1
    s_min_i32 s{s_next}, s3, s{s_T0p}
    s_min_i32 s{s_next}, s{s_next}, s{s_pri}
    s_cmp_le_i32 s3, s{s_t}
    s_setpc_b64 s[{s_ret}:{s_ret+1}]
    """)

    A(f"""
    M_align:
    s_mov_b32 s{s_alt}, -1
    s_mov_b32 s{s_x+2}, 0
    v_mov_b32 v13, v{vBase}
    """)
    for G in range(5):
        A(f"""
        v_readlane_b32 s{s_x}, v{vBase}, {8*G}
        v_readlane_b32 s{s_x+1}, v{vBase}, {8*G+8}
        s_nop 1
        s_sub_u32 s{s_x+3}, s{s_x+2}, s{s_x}
        v_cmp_le_u32 vcc, {8*G}, v{L}
        v_add_u32 v10, s{s_x+3}, v{vBase}
        s_sub_u32 s{s_x+1}, s{s_x+1}, s{s_x}
        s_add_u32 s{s_x+2}, s{s_x+2}, s{s_x+1}
        v_cndmask_b32 v13, v13, v10, vcc
        """)
        if G < 4:
            A(f"s_add_u32 s{s_x+2}, s{s_x+2}, 31\ns_and_b32 s{s_x+2}, s{s_x+2}, -32")
    A(f"""
    s_mov_b32 s{s_tot}, s{s_x+2}
    v_mov_b32 v{vBase}, v13
    s_nop 1
    s_branch M_derive
    """)
    A(f"""
    M_goslow:
    s_mov_b32 s{s_slow}, 1
    s_mov_b32 s{s_batch}, 0
    s_branch M_load
    M_next:
    s_add_u32 s{s_batch}, s{s_batch}, 512
    s_cmp_ge_u32 s{s_batch}, {E}
    s_cbranch_scc1 M_epi
    M_load:
    """)
    srd(A, sA, pDST, E * 4)
    srd(A, sB, pSRC, E * 4)
    A(f"""
    v_add_u32 v8, s{s_batch}, v0
    v_lshlrev_b32 v9, 2, v8
    s_waitcnt vmcnt(0) lgkmcnt(0)
    buffer_load_dword v10, v9, {S(sA)}, 0 offen
    buffer_load_dword v11, v9, {S(sB)}, 0 offen
    v_lshlrev_b32 v{vChunk8}, 3, v8
    v_mov_b32 v5, -1
    v_mov_b32 v6, -1
    v_mov_b32 v7, -1
    s_mov_b32 s{s_x+2}, {E}
    s_waitcnt vmcnt(0)
    v_subrev_u32 v12, s{s_nb0}, v10
    v_cmp_gt_u32 vcc, s{s_nn}, v12
    v_cmp_gt_u32 s[{s_x}:{s_x+1}], s{s_x+2}, v8
    v_and_b32 v10, 63, v10
    v_lshl_or_b32 v11, v10, 14, v11
    s_and_b64 vcc, vcc, s[{s_x}:{s_x+1}]
    s_nop 1
    v_cndmask_b32 v4, v5, v11, vcc
    s_barrier
    """)
    zerofill()
    A("s_waitcnt lgkmcnt(0)\ns_barrier\ns_branch M_recs")
    A.l += ool.l


def build():
    out = f"""; Fused edge-featured MPNN layer, one workgroup per bucket of 39/40 destination nodes.
; @launch grid=(256,1,1) block=(512,1,1) lds={LDS_BYTES}
.amdgcn_target "amdgcn-amd-amdhsa--gfx950"
.text
.globl {KN}
.p2align 8
.type {KN},@function
"""
    A = Asm()
    kernel(A)
    out += A.text()
    out += f""".section .rodata,"a"
.p2align 6
.amdhsa_kernel {KN}
  .amdhsa_next_free_vgpr {NV}
  .amdhsa_next_free_sgpr 102
  .amdhsa_accum_offset {(NV + 3) // 4 * 4}
  .amdhsa_group_segment_fixed_size 0
  .amdhsa_kernarg_size 88
  .amdhsa_user_sgpr_count 2
  .amdhsa_user_sgpr_kernarg_segment_ptr 1
  .amdhsa_system_sgpr_workgroup_id_x 1
.end_amdhsa_kernel
"""
    return out


if __name__ == "__main__":
    for a in list(sys.argv):
        if a.startswith("-o"):
            OPT.update(a[2:].split(","))
            sys.argv.remove(a)
    for a in list(sys.argv):
        if a.startswith("-spin"):
            i, us = a[5:].split(":")
            SPIN = (int(i), float(us))
            sys.argv.remove(a)
    for a in list(sys.argv):
        if a.startswith("-wsb"):
            WS_BASE = int(a[4:]) << 20
            sys.argv.remove(a)
    for a in list(sys.argv):
        if a.startswith("-enc"):
            ENC = int(a[4:])
            sys.argv.remove(a)
    for a in list(sys.argv):
        if a.startswith("-pri"):
            PRIO_NUM = int(a[4:])
            sys.argv.remove(a)
    for a in list(sys.argv):
        if a.startswith("-nt"):
            NT0 = int(a[3:])
            sys.argv.remove(a)
    for a in list(sys.argv):
        if a.startswith("-early"):
            EARLY = tuple(int(c) for c in a[6:])
            sys.argv.remove(a)
    if "--stamps" in sys.argv:
        STAMPS = True
        sys.argv.remove("--stamps")
    path = sys.argv[1] if len(sys.argv) > 1 else f"cdna_kernels/{NAME}.s"
    open(path, "w").write(build())
    print("wrote", path, "lds", LDS_BYTES)
```

```python
import sys, struct, math

NAME = "gather_scatter__edge_featured_mpnn_mpnn__graph"
KN = NAME + "_kernel"
N, E = 10000, 160000

WS_CNT = 0
WS_RB = 16 * 128
WS_RP = 32 * 128
WS_W2F = 0x2000
WS_SLOT = 0x12000
WS_P = 0x213000
TABB = N * 512
WS_END = WS_P + TABB
WS_ST = 0x1000000

WS_BASE = 0
NCH = 64
CHE = E // NCH
PROWS = 53
LOG2E = 1.4426950408889634
CEXP = 48
STAMPS = False
OPT = set()
PRIO_NUM = 22
NT0 = 99
W2T0 = 8


def f32(x):
    return struct.unpack("<I", struct.pack("<f", x))[0]


class Asm:
    def __init__(self):
        self.l = []

    def __call__(self, s):
        for x in s.split("\n"):
            x = x.strip()
            if x:
                self.l.append(("" if x.endswith(":") else "    ") + x)

    def text(self):
        import re
        for x in self.l:
            m = re.search(r"offset:(\d+)", x)
            if m:
                lim = 4096 if x.strip().startswith("buffer_") else 65536
                assert int(m.group(1)) < lim, x
        return "\n".join(self.l) + "\n"


def vr(a, n=1):
    return f"v{a}" if n == 1 else f"v[{a}:{a+n-1}]"


def srd(A, d, base, size, off=None):
    if off is None:
        A(f"s_mov_b32 s{d}, s{base}\ns_mov_b32 s{d+1}, s{base+1}")
    else:
        A(f"s_add_u32 s{d}, s{base}, {off}\ns_addc_u32 s{d+1}, s{base+1}, 0")
    A(f"s_mov_b32 s{d+2}, {size}\ns_mov_b32 s{d+3}, 0x00020000")


def S(d):
    return f"s[{d}:{d+3}]"


D = 4
CAP_T = 26
QS = 592
L_RING = 0
L_AQE = 8 * D * 2048
L_AQH = L_AQE + CAP_T * 512
L_AGG = L_AQH + CAP_T * 512
L_LIST = L_AGG + (CAP_T + 1) * 1024
L_CNT = L_LIST + 4096
L_N0 = L_CNT + 256
L_WE = L_N0 + 256
L_Q = L_WE + 8 * QS
LDS_BYTES = (L_Q + 255) // 256 * 256 + 32768
ZERO_BYTES = L_LIST - L_AQE
L_XP = (L_Q + 255) // 256 * 256
L_XQ = L_XP + 16384
L_BT = L_AQE
L_BC = L_BT + 32768
assert L_BC + 2048 <= L_LIST and LDS_BYTES <= 163840 and 48 * QS <= 32768
DUMMY = 0x400000

pX, pE, pSRC, pDST, pW1, pB1, pW2, pB2, pOUT, pDBG, pWS = 4, 6, 8, 10, 12, 14, 16, 18, 20, 22, 24
s_w2 = 26
sA, sB, sC, sD, sWS, sP, sE = 28, 32, 36, 40, 44, 48, 52
(s_w, s_nb0, s_nb1, s_nn, s_T, s_T0p, s_t, s_next, s_slow, s_batch, s_ring, s_sw, s_tot,
 s_nb4, s_ringh, s_spin, s_pri, s_alt, s_xw) = range(56, 75)
s_f0 = 85
s_one = 84
s_x = 76
sM = 86
s_ret = 94
sG = 96

vU = [16, 32]
vT = 48
vH = 64
vACC = 68
vS0 = 84
vS1 = 100
vPf0, vPf1, vAqe, vAgg, vBq, vSel0, vSel1 = 116, 120, 124, 128, 132, 136, 140
vBa = 144
vOff = 176
vW2 = 176
(vC, _c1, vB2, _b1, vK0, vK1, vK2, vK3, vaAqe, vaAgg, vaList, vaP0, vaP1, vaB, vBmul, vBase, vDeg,
 vChunk8, vLane, vDum, vSt, vW2a, vaCnt) = range(228, 251)
NV = 252
vXF = 176
vXP = 160
vWF = 16
vPA = 48
vPO = 148
vQO = 164
vPa = 144
EARLY = (0, 1)
vXa = 145
vXr = 147
vB1 = 116
vWEr = 128
vF0 = 129
vPc = 130
vQa = 131


def mfma32(A, d, a, b, c):
    cs = "0" if c is None else vr(c, 16)
    A(f"v_mfma_f32_32x32x16_bf16 {vr(d,16)}, {vr(a,4)}, {vr(b,4)}, {cs}")


def mfma16(A, d, a, b, c):
    cs = "0" if c is None else vr(c, 4)
    A(f"v_mfma_f32_16x16x32_bf16 {vr(d,4)}, {vr(a,4)}, {vr(b,4)}, {cs}")


SPIN = None


ENC = None


def stamp(A, i):
    if ENC is not None:
        if i == 0:
            A("s_memrealtime s[100:101]\ns_waitcnt lgkmcnt(0)\ns_mov_b32 s75, s100\ns_nop 0")
        if i == ENC:
            A("s_waitcnt lgkmcnt(0)\ns_memrealtime s[100:101]\ns_waitcnt lgkmcnt(0)\ns_sub_u32 s101, s100, s75")
            A(f"v_writelane_b32 v{vSt}, s101, 0")
        if i == 15:
            u = len(A.l)
            A(f"v_readlane_b32 s3, v{vSt}, 0\ns_nop 3\ns_lshl_b32 s3, s3, 2\ns_add_u32 s3, s3, 6000")
            A(f"M_spin{u}:\ns_memrealtime s[100:101]\ns_waitcnt lgkmcnt(0)\ns_sub_u32 s100, s100, s75\ns_cmp_lt_u32 s100, s3\ns_cbranch_scc1 M_spin{u}")
    if SPIN is not None:
        if i == 0:
            A("s_memrealtime s[100:101]\ns_waitcnt lgkmcnt(0)\ns_mov_b32 s75, s100")
        elif i == SPIN[0]:
            u = len(A.l)
            A(f"M_spin{u}:\ns_memrealtime s[100:101]\ns_waitcnt lgkmcnt(0)\ns_sub_u32 s100, s100, s75\ns_cmp_lt_u32 s100, {int(SPIN[1]*100)}\ns_cbranch_scc1 M_spin{u}")
    if STAMPS:
        ins = "s_memtime" if "cyc" in OPT else "s_memrealtime"
        A(f"s_waitcnt lgkmcnt(0)\n{ins} s[100:101]\ns_waitcnt lgkmcnt(0)\nv_writelane_b32 v{vSt}, s100, {i}")


def gemm_part(A, init, nmt, xf, vm=None):
    def rd(s):
        for ct in range(2):
            for x in range(2):
                A(f"ds_read_b64_tr_b16 {vr(vWF + 8*s + 4*ct + 2*x, 2)}, v14 offset:{s*2048 + x*256 + ct*8}")
    if vm is None:
        for s in range(4):
            rd(s)
    else:
        A(f"s_waitcnt vmcnt({vm[0]})")
        rd(0)
    for s in range(4):
        if vm is None:
            A(f"s_waitcnt lgkmcnt({12 - 4*s})")
        else:
            A("s_waitcnt lgkmcnt(0)")
        k = 0
        for mt in range(nmt):
            for ct in range(2):
                d = vPA + 8 * mt + 4 * ct
                c = d if s else (None if init is None else init + 4 * ct)
                mfma16(A, d, vWF + 8 * s + 4 * ct, xf + 16 * mt + 4 * s, c)
                k += 1
                if vm is not None and k == 2 and s < 3:
                    A(f"s_waitcnt vmcnt({vm[s+1]})")
                    rd(s + 1)


def gemm_pack(A, nmt, store, vPO=vPO):
    A("s_nop 4")
    for mt in range(nmt):
        for r in range(0, 8, 2):
            a = vPA + 8 * mt + r
            A(f"v_pk_mul_f32 {vr(a,2)}, {vr(a,2)}, v[12:13]")
        for r in range(0, 8, 2):
            a = vPA + 8 * mt + r
            A(f"v_cvt_pk_bf16_f32 v{vPO + 4*mt + r//2}, v{a}, v{a+1}")
        store(mt)


def kernel(A):
    L = vLane
    SC = "sc0 sc1"
    A(f"{KN}:")
    A(f"""
    s_cmp_ge_u32 s2, 256
    s_cbranch_scc1 M_end
    s_load_dwordx16 s[4:19], s[0:1], 0
    s_load_dwordx4 s[20:23], s[0:1], 64
    s_load_dwordx2 s[24:25], s[0:1], 80
    """)
    if STAMPS or ENC is not None:
        A(f"v_mov_b32 v{vSt}, 0")
    stamp(A, 0)
    A(f"""
    v_lshrrev_b32 v2, 6, v0
    v_and_b32 v{L}, 63, v0
    v_readfirstlane_b32 s{s_w}, v2
    s_mul_i32 s{s_nb0}, s2, 160069
    s_add_u32 s{s_nb1}, s{s_nb0}, {160069 + 4049}
    s_add_u32 s{s_nb0}, s{s_nb0}, 4049
    s_lshr_b32 s{s_nb0}, s{s_nb0}, 12
    v_lshrrev_b32 v7, 4, v{L}
    v_and_b32 v8, 15, v{L}
    v_xor_b32 v8, v8, v7
    s_lshl_b32 s{s_ring}, s{s_w}, 13
    s_and_b32 s3, s{s_w}, 1
    s_lshl_b32 s3, s3, 3
    v_xor_b32 v8, s3, v8
    v_lshlrev_b32 v8, 4, v8
    v_lshl_add_u32 v8, v7, 8, v8
    s_lshl_b32 s{s_xw}, s{s_w}, 11
    v_add_u32 v{vXa}, s{s_xw}, v8
    v_xor_b32 v{vXa+1}, 64, v{vXa}
    v_lshrrev_b32 v10, 2, v{L}
    v_and_b32 v11, 3, v{L}
    v_lshlrev_b32 v11, 4, v11
    v_lshl_add_u32 v10, v10, 9, v11
    s_lshl_b32 s3, s{s_w}, 6
    v_add_u32 v10, s3, v10
    v_lshlrev_b32 v2, 2, v0
    s_waitcnt lgkmcnt(0)
    s_add_u32 s{pWS}, s{pWS}, {WS_BASE}
    s_addc_u32 s{pWS+1}, s{pWS+1}, 0
    s_cmp_ge_u32 s2, {NCH}
    s_cbranch_scc1 M_pwg
    """)

    def wdma(base):
        for ii in range(8):
            A(f"""
            s_add_u32 m0, s{s_ring}, {ii*1024}
            s_mov_b32 s{s_x+1}, {base + ii*8192}
            buffer_load_dwordx4 v10, {S(sB)}, s{s_x+1} offen lds
            """)

    def xdma(ldsbase, rowreg):
        A(f"""
        s_add_u32 m0, s{s_xw}, {ldsbase}
        s_lshl_b32 s3, s{rowreg}, 8
        buffer_load_dwordx4 v{vXa}, {S(sD)}, s3 offen lds
        buffer_load_dwordx4 v{vXa+1}, {S(sD)}, s3 offen offset:1024 lds
        """)

    def gaddr():
        A(f"""
        v_lshrrev_b32 v3, 4, v{L}        ; q
        v_and_b32 v4, 15, v{L}           ; n
        v_xor_b32 v5, v3, v4
        v_lshlrev_b32 v5, 4, v5
        v_lshl_add_u32 v{vXr}, v4, 8, v5
        v_bfe_u32 v5, v{L}, 2, 2         ; r
        v_lshl_add_u32 v6, v3, 3, v5     ; 8q + r
        v_lshlrev_b32 v6, 6, v6
        v_and_b32 v7, 3, v{L}            ; c
        v_lshl_add_u32 v6, v7, 4, v6
        v_add_u32 v14, s{s_ring}, v6
        v_mov_b32 v12, {f32(-LOG2E):#x}
        v_mov_b32 v13, v12
        """)

    def consts():
        srd(A, sP, pWS, TABB + 4096, off=WS_P - 4096)
        srd(A, sE, pE, E * 8)
        A(f"""
        s_lshr_b32 s{s_nb1}, s{s_nb1}, 12
        s_min_u32 s{s_nb1}, s{s_nb1}, {N}
        s_sub_u32 s{s_nn}, s{s_nb1}, s{s_nb0}
        s_lshl_b32 s{s_nb4}, s{s_nb0}, 2
        s_add_u32 s{s_ringh}, s{s_ring}, 4096
        s_mov_b32 s{s_slow}, 0
        s_lshl_b32 s{s_w2}, s{s_w}, 13
        s_add_u32 s{s_w2}, s{s_w2}, {WS_W2F}
        s_add_u32 s{s_w2+1}, s{s_w2}, 4096
        v_lshrrev_b32 v3, 4, v{L}        ; q
        v_bfe_u32 v5, v{L}, 2, 2         ; r
        v_and_b32 v7, 3, v{L}            ; c
        v_xor_b32 v9, v7, v3
        v_lshlrev_b32 v9, 4, v9
        s_lshl_b32 s3, s{s_w}, 6
        s_add_u32 s{s_x}, s3, 1024
        v_add_u32 v{vK3}, s{s_x}, v9
        v_add_u32 v{vK2}, 1024, v{vK3}
        v_add_u32 v{vK1}, 2048, v{vK3}
        v_add_u32 v{vK0}, 3072, v{vK3}
        v_lshrrev_b32 v1, 5, v{L}        ; h
        v_mul_u32_u24 v5, {QS}, v5
        v_and_b32 v3, 1, v3
        v_lshl_add_u32 v5, v3, 5, v5
        v_lshl_add_u32 v5, v7, 3, v5
        s_add_u32 s3, s3, {L_WE}
        v_add_u32 v5, s3, v5
        v_mul_u32_u24 v6, {8*QS}, v1
        v_add_u32 v{vaB}, v5, v6
        v_mul_u32_u24 v{vBmul}, {QS//4}, v1
        v_and_b32 v3, 31, v{L}           ; m
        v_lshrrev_b32 v9, 4, v3
        v_and_b32 v8, 3, v3
        v_lshl_add_u32 v9, v8, 1, v9
        v_and_b32 v8, 8, v3
        v_add_u32 v9, v9, v8
        v_and_b32 v8, 4, v3
        v_lshl_add_u32 v9, v8, 2, v9
        v_lshlrev_b32 v9, 4, v9
        v_mul_u32_u24 v8, {L_AQH - L_AQE}, v1
        v_add_u32 v9, v9, v8
        v_add_u32 v{vaAqe}, {L_AQE}, v9
        v_lshrrev_b32 v9, 2, v{L}
        v_and_b32 v8, 3, v9
        v_lshlrev_b32 v8, 1, v8
        v_and_b32 v11, 8, v9
        v_add_u32 v8, v8, v11
        v_and_b32 v11, 4, v9
        v_lshl_add_u32 v8, v11, 2, v8
        v_lshlrev_b32 v8, 2, v8
        v_add_u32 v{vaList}, {L_LIST}, v8
        v_bfe_u32 v9, v3, 2, 2
        v_xor_b32 v9, v9, v1
        v_lshlrev_b32 v9, 4, v9
        v_lshl_add_u32 v9, v3, 6, v9
        v_add_u32 v{vaP0}, s{s_ring}, v9
        v_xor_b32 v{vaP1}, 32, v{vaP0}
        v_and_b32 v9, 1, v3
        v_lshlrev_b32 v9, 4, v9
        v_mov_b32 v8, 0x3f80
        v_lshlrev_b32 v9, v9, v8
        v_lshrrev_b32 v8, 1, v3
        v_lshlrev_b32 v11, 2, v1
        v_sub_u32 v8, v8, v11
        """)
        for x in range(4):
            A(f"v_cmp_eq_u32 s[{s_x}:{s_x+1}], {x}, v8\nv_cmp_eq_u32 vcc, {8+x}, v8\ns_nop 0")
            A(f"v_cndmask_b32 v{vSel0+x}, 0, v9, s[{s_x}:{s_x+1}]\nv_cndmask_b32 v{vSel1+x}, 0, v9, vcc")
        A(f"""
        v_mov_b32 v{vC}, {f32(2.0**-CEXP):#x}
        v_mov_b32 v{vC+1}, {f32(2.0**-CEXP):#x}
        v_mov_b32 v{vDeg}, 0
        v_mov_b32 v{vDum}, 0x80000000
        v_lshrrev_b32 v9, 3, v0
        v_mul_u32_u24 v{vChunk8}, {CHE*8}, v9
        v_lshlrev_b32 v{vW2a}, 4, v{L}
        v_lshlrev_b32 v9, 2, v{L}
        v_add_u32 v{vaCnt}, {L_CNT}, v9
        """)
        for r in range(16):
            A(f"v_mov_b32 v{vS0+r}, 0\nv_mov_b32 v{vS1+r}, 0")

    def zerofill():
        A(f"""
        v_mov_b32 v40, 0
        v_mov_b32 v41, 0
        v_mov_b32 v42, 0
        v_mov_b32 v43, 0
        v_mov_b32 v44, {DUMMY}
        v_mov_b32 v45, {DUMMY}
        v_lshlrev_b32 v1, 3, v0
        v_add_u32 v1, {L_LIST}, v1
        ds_write_b64 v1, v[44:45]
        ds_write_b32 v{vaCnt}, v40
        ds_write_b32 v{vaCnt}, v40 offset:256
        v_lshlrev_b32 v1, 4, v0
        v_add_u32 v1, {L_AQE}, v1
        """)
        nz = ZERO_BYTES // 8192
        rem = ZERO_BYTES - nz * 8192
        for q in range(nz):
            A(f"ds_write_b128 v1, v[40:43] offset:{q*8192}")
        if rem:
            A(f"""
            v_cmp_gt_u32 vcc, {rem//16}, v0
            s_and_saveexec_b64 s[{s_x}:{s_x+1}], vcc
            ds_write_b128 v1, v[40:43] offset:{nz*8192}
            s_mov_b64 exec, s[{s_x}:{s_x+1}]
            """)

    def small():
        srd(A, sC, pB1, 512)
        A(f"""
        v_lshrrev_b32 v3, 4, v{L}
        v_lshlrev_b32 v4, 4, v3
        s_lshl_b32 s3, s{s_w}, 6
        buffer_load_dwordx4 {vr(vB1,4)}, v4, {S(sC)}, s3 offen
        v_lshlrev_b32 v5, 2, v0
        s_mov_b32 s3, {256*512}
        buffer_load_dword v{vWEr}, v5, {S(sB)}, s3 offen
        v_lshlrev_b32 v4, 3, v3
        s_mov_b32 s{sC}, s{pB2}
        s_mov_b32 s{sC+1}, s{pB2+1}
        s_mov_b32 s{sC+2}, 256
        s_lshl_b32 s3, s{s_w}, 5
        buffer_load_dwordx2 {vr(vB2,2)}, v4, {S(sC)}, s3 offen
        """)

    def eprefetch():
        A(f"""
        s_mul_i32 s3, s2, {E*8//256}
        v_lshlrev_b32 v3, 4, v0
        buffer_load_dwordx4 v[224:227], v3, {S(sE)}, s3 offen
        """)

    def f0load():
        A(f"buffer_load_dword v{vF0}, off, {S(sG)}, 0 offset:128 sc1")

    def spoll(tag, base, offreg, want):
        A(f"""
        s_mov_b32 s{s_spin}, 0x40000
        M_sp{tag}:
        s_mov_b32 s{s_x+1}, 0
        s_atomic_add s{s_x+1}, s[{base}:{base+1}], {offreg} glc
        s_sub_u32 s{s_spin}, s{s_spin}, 1
        s_cbranch_scc1 M_spd{tag}
        s_waitcnt lgkmcnt(0)
        s_cmp_lg_u32 s{s_x+1}, {want}
        s_cbranch_scc1 M_sp{tag}
        M_spd{tag}:
        s_waitcnt lgkmcnt(0)
        """)

    def f0wait(tag):
        A(f"""
        v_readfirstlane_b32 s3, v{vF0}
        s_cmp_lg_u32 s3, 0
        s_cbranch_scc1 M_pfd{tag}
        """)
        spoll("f" + tag, pDBG, 128, 1)
        A(f"M_pfd{tag}:")

    def release(base):
        A(f"""
        v_lshlrev_b32 v8, 7, v{L}
        v_mov_b32 v9, 1
        s_mov_b32 s3, {base}
        s_mov_b64 exec, 0xffff
        buffer_atomic_add v9, v8, {S(sWS)}, s3 offen sc1
        s_mov_b64 exec, -1
        """)

    def rpoll(tag, base, want):
        A(f"s_and_b32 s3, s2, 15\ns_lshl_b32 s3, s3, 7\ns_add_u32 s3, s3, {base}")
        spoll(tag, pWS, "s3", want)

    srd(A, sWS, pWS, WS_END)
    A(f"""
    v_lshlrev_b32 v3, 7, v0
    s_cmp_eq_u32 s2, 0
    s_cselect_b32 s3, 48, 0
    v_cmp_gt_u32 vcc, s3, v0
    v_mov_b32 v4, 0x40000000
    v_mov_b32 v8, 0
    v_cndmask_b32 v3, v4, v3, vcc
    s_mul_i32 s3, s2, {CHE*4}
    buffer_store_dword v8, v3, {S(sWS)}, 0 offen {SC}
    """)
    srd(A, sC, pDST, CHE * 4, off="s3")
    srd(A, sD, pSRC, CHE * 4, off="s3")
    A(f"s_mov_b32 s{s_x+1}, 4096\ns_mov_b32 s{s_x+2}, 8192")
    vD, vS = 164, 169
    so = ["0", "0", f"s{s_x+1}", f"s{s_x+1}", f"s{s_x+2}"]
    for k in range(5):
        A(f"buffer_load_dword v{vD+k}, v2, {S(sC)}, {so[k]} offen offset:{(k & 1)*2048}")
    for k in range(5):
        A(f"buffer_load_dword v{vS+k}, v2, {S(sD)}, {so[k]} offen offset:{(k & 1)*2048}")
    srd(A, sC, pW2, 256 * 256)
    srd(A, sB, pW1, 260 * 512)
    A(f"""
    v_lshlrev_b32 v3, 4, v0
    v_add_u32 v15, {L_BT}, v3
    v_add_u32 v2, {L_BC}, v2
    v_mov_b32 v4, -1
    v_mov_b32 v5, -1
    v_mov_b32 v6, -1
    v_mov_b32 v7, -1
    """)
    for q in range(4):
        A(f"ds_write_b128 v15, v[4:7] offset:{q*8192}")
    A(f"""
    ds_write_b32 v2, v8
    v_mov_b32 v9, 1
    """)
    srd(A, sD, pX, N * 256)
    srd(A, sG, pDBG, 256)
    stamp(A, 1)
    A(f"""
    s_waitcnt lgkmcnt(0)
    s_barrier
    s_waitcnt vmcnt(5)
    """)
    vb, va, vk = 16, 21, 26
    for k in range(5):
        A(f"v_mul_u32_u24 v{vb+k}, 1677, v{vD+k}")
        A(f"v_lshrrev_b32 v{vb+k}, 16, v{vb+k}")
        A(f"v_lshlrev_b32 v{va+k}, 2, v{vb+k}")
        A(f"v_add_u32 v{va+k}, {L_BC}, v{va+k}")
        if k == 4:
            A(f"v_cmp_gt_u32 vcc, {CHE - 2048}, v0\ns_and_saveexec_b64 s[{s_x+2}:{s_x+3}], vcc")
        A(f"ds_add_rtn_u32 v{vk+k}, v{va+k}, v9")
    A(f"""
    s_mov_b64 s[{s_x+4}:{s_x+5}], exec
    s_or_b32 s3, s2, s{s_w}
    s_cbranch_scc1 M_nf0
    s_mov_b64 exec, 1
    buffer_store_dword v9, off, {S(sG)}, 0 offset:128 {SC}
    M_nf0:
    s_mov_b64 exec, -1
    s_lshl_b32 s3, s2, 8
    v_add_u32 v3, s3, v0
    v_bfe_u32 v4, v3, 8, 3           ; s
    v_lshlrev_b32 v4, 5, v4
    v_bfe_u32 v5, v3, 6, 1           ; ab
    v_lshl_add_u32 v4, v5, 4, v4
    v_bfe_u32 v5, v3, 1, 1           ; e>>2
    v_lshl_add_u32 v4, v5, 3, v4
    v_bfe_u32 v5, v3, 7, 1           ; h
    v_lshl_add_u32 v4, v5, 2, v4
    v_and_b32 v5, 1, v3
    v_lshl_add_u32 v4, v5, 1, v4     ; hidden
    v_lshlrev_b32 v4, 8, v4
    v_lshrrev_b32 v5, 11, v3         ; wo
    v_lshl_add_u32 v4, v5, 5, v4
    v_bfe_u32 v5, v3, 2, 4           ; m
    v_lshl_add_u32 v4, v5, 1, v4
    v_lshrrev_b32 v5, 8, v0
    v_lshl_or_b32 v4, v5, 30, v4
    v_lshlrev_b32 v3, 2, v3
    v_lshl_or_b32 v176, v5, 30, v3
    buffer_load_ushort v174, v4, {S(sC)}, 0 offen
    buffer_load_ushort v175, v4, {S(sC)}, 0 offen offset:256
    """)
    xdma(L_XQ, s_nb0)
    small()
    A("s_waitcnt vmcnt(7)")
    for k in range(5):
        A(f"""
        v_and_b32 v{vD+k}, 63, v{vD+k}
        v_lshl_or_b32 v{vS+k}, v{vD+k}, 14, v{vS+k}
        v_add_u32 v{vD+k}, {512*k}, v0
        v_lshl_or_b32 v{vS+k}, v{vD+k}, 20, v{vS+k}
        v_lshlrev_b32 v{va+k}, 7, v{vb+k}
        v_add_u32 v{va+k}, {L_BT}, v{va+k}
        """)
    for k in range(5):
        if k == 4:
            A(f"s_mov_b64 exec, s[{s_x+4}:{s_x+5}]")
        A(f"""
        s_waitcnt lgkmcnt({4-k})
        v_add_u32 v4, v{vk+k}, v{vb+k}
        v_and_b32 v4, 7, v4
        v_lshrrev_b32 v5, 3, v{vk+k}
        v_lshl_add_u32 v4, v4, 2, v5
        v_lshl_add_u32 v{va+k}, v4, 2, v{va+k}
        v_cmp_gt_u32 vcc, 32, v{vk+k}
        s_and_saveexec_b64 s[{s_x+6}:{s_x+7}], vcc
        ds_write_b32 v{va+k}, v{vS+k}
        s_mov_b64 exec, s[{s_x+6}:{s_x+7}]
        """)
    A(f"""
    s_mov_b64 exec, -1
    v_lshrrev_b32 v4, 3, v0
    v_lshlrev_b32 v5, 2, v4
    v_add_u32 v5, {L_BC}, v5
    v_and_b32 v6, 7, v0
    v_lshlrev_b32 v7, 13, v4
    v_lshl_add_u32 v7, v6, 4, v7
    s_lshl_b32 s3, s2, 7
    s_add_u32 s3, s3, {WS_SLOT}
    v_add_u32 v7, s3, v7
    v_cmp_eq_u32 s[{s_x+2}:{s_x+3}], 7, v6
    v_mov_b32 v8, -2
    s_mov_b32 s{s_x+4}, 0
    s_mov_b32 s{s_x+5}, {64*8192}
    s_mov_b32 s{s_x+6}, {128*8192}
    s_mov_b32 s{s_x+7}, {192*8192}
    s_waitcnt lgkmcnt(0)
    s_barrier
    """)
    stamp(A, 2)
    for q in range(4):
        A(f"ds_read_b128 {vr(16+4*q,4)}, v15 offset:{q*8192}")
        A(f"ds_read_b32 v{32+q}, v5 offset:{q*256}")
    A(f"s_mov_b32 s3, {WS_W2F}")
    for q in range(4):
        A(f"""
        s_waitcnt lgkmcnt({6-2*q})
        v_cmp_lt_u32 vcc, 32, v{32+q}
        s_and_b64 vcc, vcc, s[{s_x+2}:{s_x+3}]
        s_nop 1
        v_cndmask_b32 v{19+4*q}, v{19+4*q}, v8, vcc
        buffer_store_dwordx4 {vr(16+4*q,4)}, v7, {S(sWS)}, s{s_x+4+q} offen {SC}
        """)
    A(f"s_waitcnt vmcnt(9)\nv_lshl_or_b32 v174, v175, 16, v174\nbuffer_store_dword v174, v176, {S(sWS)}, s3 offen {SC}")
    stamp(A, 3)
    f0load()
    gaddr()
    consts()
    A(f"""
    s_waitcnt vmcnt(0)
    s_barrier
    s_cmp_lg_u32 s{s_w}, 0
    s_cbranch_scc1 M_nlast2
    """)
    stamp(A, 16)
    A(f"""
    s_and_b32 s3, s2, 1
    s_lshl_b32 s3, s3, 6
    s_mov_b32 s{s_x}, 1
    s_atomic_add s{s_x}, s[{pDBG}:{pDBG+1}], s3 glc
    """)
    f0wait("b")
    A(f"""
    s_waitcnt lgkmcnt(0)
    s_and_b32 s3, s{s_x}, {NCH//2 - 1}
    s_cmp_lg_u32 s3, {NCH//2 - 1}
    s_cbranch_scc1 M_nlast
    """)
    release(WS_RB)
    A("M_nlast:")
    stamp(A, 17)
    A("M_nlast2:")
    srd(A, sA, pWS, 0)
    A(f"v_mov_b32 v{vPa}, 0")
    wdma(128 * 512)
    EPF = 3 if "epf" in OPT else 0
    if EPF:
        A(f"s_mul_i32 s3, s2, {CHE*8}")
        srd(A, sC, pE, CHE * 8, off="s3")
        A(f"v_lshlrev_b32 v3, 4, v0\ns_mov_b32 s3, 16384\ns_mov_b32 s{s_x+2}, 8192")
        A(f"buffer_load_dwordx4 v[224:227], v3, {S(sC)}, 0 offen")
        A(f"buffer_load_dwordx4 v[224:227], v3, {S(sC)}, s{s_x+2} offen")
        A(f"buffer_load_dwordx4 v[224:227], v3, {S(sC)}, s3 offen")
    zerofill()
    A("s_branch M_join")
    A("M_pwg:")
    srd(A, sD, pX, N * 256)
    srd(A, sB, pW1, 260 * 512)
    A(f"s_sub_u32 s{s_t}, s2, {NCH}\ns_mul_i32 s{s_t}, s{s_t}, {PROWS}")
    xdma(L_XP, s_t)
    A(f"""
    s_and_b32 s3, s2, -8
    s_add_u32 s3, s3, s{s_w}
    s_and_b32 s3, s3, 127
    s_lshl_b32 s3, s3, 10
    v_lshlrev_b32 v3, 4, v{L}
    buffer_load_dwordx4 v[16:19], v3, {S(sB)}, s3 offen
    """)
    srd(A, sWS, pWS, WS_END)
    srd(A, sG, pDBG, 256)
    consts()
    zerofill()
    wdma(0)
    stamp(A, 1)
    gaddr()
    A(f"""
    v_add_u32 v15, {L_XP}, v{vXr}
    v_add_u32 v11, s{s_t}, v4
    v_lshlrev_b32 v11, 9, v11
    v_lshl_add_u32 v11, v3, 4, v11
    s_lshl_b32 s3, s{s_w}, 6
    v_add_u32 v{vPa}, s3, v11
    s_add_u32 s3, s{s_t}, {PROWS}
    s_min_u32 s3, s3, {N}
    s_lshl_b32 s3, s3, 9
    """)
    srd(A, sA, pWS, "s3", off=WS_P)
    A(f"""
    s_waitcnt vmcnt(8)
    s_barrier
    """)
    stamp(A, 2)

    def pstore(mt):
        A(f"s_mov_b32 s3, {mt*8192}\nbuffer_store_dwordx4 {vr(vPO+4*mt,4)}, v{vPa}, {S(sA)}, s3 offen {SC}")

    for s in range(4):
        if s:
            A(f"v_xor_b32 v4, {s << 6:#x}, v15")
        for mt in range(4):
            A(f"ds_read_b128 {vr(vXP + 16*mt + 4*s, 4)}, v{4 if s else 15} offset:{mt*4096}")
    gemm_part(A, None, 4, vXP, vm=[6, 4, 2, 0])
    stamp(A, 18)
    f0load()
    xdma(L_XQ, s_nb0)
    small()
    wdma(128 * 512)
    gemm_pack(A, 4, lambda mt: pstore(mt) if mt in EARLY else None)
    stamp(A, 3)
    A(f"s_waitcnt vmcnt({8 + len(EARLY)})")
    A("M_join:")
    A(f"""
    s_cmp_lg_u32 s{s_w}, 0
    s_cbranch_scc1 M_w1d
    """)
    f0wait("a")
    rpoll("a", WS_RB, 2)
    A("M_w1d:")
    stamp(A, 4)
    A(f"""
    s_mov_b32 s{s_x+2}, {QS - 512}
    v_lshlrev_b32 v8, 16, v{vWEr}
    v_and_b32 v9, 0xffff0000, v{vWEr}
    v_mul_f32 v8, v12, v8
    v_mul_f32 v9, v12, v9
    v_cvt_pk_bf16_f32 v10, v8, v9
    v_lshrrev_b32 v4, 7, v0          ; f
    v_lshlrev_b32 v5, 16, v10
    v_and_b32 v6, 0xffff0000, v10
    v_sub_f32 v8, v8, v5
    v_sub_f32 v9, v9, v6
    v_cvt_pk_bf16_f32 v11, v8, v9
    v_lshlrev_b32 v5, 2, v0
    v_mad_u32_u24 v5, v4, s{s_x+2}, v5
    v_add_u32 v5, {L_WE}, v5
    ds_write_b32 v5, v10
    ds_write_b32 v5, v11 offset:{4*QS}
    """)
    for x in range(4):
        A(f"v_lshlrev_b32 v{vB1+4+2*x}, 16, v{vB1+x}\nv_and_b32 v{vB1+5+2*x}, 0xffff0000, v{vB1+x}")
    stamp(A, 5)
    A(f"""
    v_add_u32 v15, {L_XQ}, v{vXr}
    s_lshl_b32 s{s_x}, s2, 13
    s_add_u32 s{s_x}, s{s_x}, {WS_SLOT}
    v_lshlrev_b32 v1, 4, v0
    s_waitcnt lgkmcnt(0)
    s_barrier
    buffer_load_dwordx4 v[4:7], v1, {S(sWS)}, s{s_x} offen {SC}
    """)
    for mt in range(4):
        if mt not in EARLY:
            pstore(mt)
    NL = 4 - len(EARLY)
    stamp(A, 6)
    for s in range(4):
        if s:
            A(f"v_xor_b32 v8, {s << 6:#x}, v15")
        for mt in range(3):
            A(f"ds_read_b128 {vr(vXF + 16*mt + 4*s, 4)}, v{8 if s else 15} offset:{mt*4096}")
    A(f"""
    s_cmp_ge_u32 s2, {NCH}
    s_cbranch_scc1 M_tk1a
    s_waitcnt vmcnt({1 + NL + EPF}) lgkmcnt(0)
    s_branch M_tk1
    M_tk1a:
    s_waitcnt vmcnt(5) lgkmcnt(0)
    M_tk1:
    """)
    gemm_part(A, vB1 + 4, 3, vXF)
    A(f"""
    v_and_b32 v8, 15, v{L}           ; n
    v_lshrrev_b32 v9, 4, v{L}        ; q
    v_lshlrev_b32 v9, 4, v9
    v_mul_u32_u24 v8, {QS}, v8
    s_lshl_b32 s3, s{s_w}, 6
    s_add_u32 s3, s3, {L_Q}
    v_add3_u32 v{vQa}, v8, v9, s3
    """)
    gemm_pack(A, 3, lambda mt: None, vPO=vQO)
    stamp(A, 7)
    A(f"s_waitcnt vmcnt({NL})\nM_recs:")
    stamp(A, 8)
    vD4, vRk, vEo, vEv, vBs, vTa = 16, 20, 24, 28, 36, 40
    A(f"s_mov_b32 s{s_x}, 0xfff00000\nv_mov_b32 v1, 1")
    for j in range(4):
        A(f"v_cmp_gt_u32 s[{sM+2*j}:{sM+2*j+1}], s{s_x}, v{4+j}")
    def egather():
        for j in range(4):
            A(f"""
            s_mov_b64 exec, s[{sM+2*j}:{sM+2*j+1}]
            buffer_load_dwordx2 {vr(vEv+2*j,2)}, v{vEo+j}, {S(sE)}, 0 offen
            """)
        A("s_mov_b64 exec, -1")

    for j in range(4):
        A(f"""
        v_lshrrev_b32 v{vEo+j}, 20, v{4+j}
        v_lshl_add_u32 v{vEo+j}, v{vEo+j}, 3, v{vChunk8}
        """)
    for j in range(4):
        A(f"""
        s_mov_b64 exec, s[{sM+2*j}:{sM+2*j+1}]
        s_cbranch_execz M_r1_{j}
        v_lshrrev_b32 v{vD4+j}, 12, v{4+j}
        v_subrev_u32 v{vD4+j}, s{s_nb4}, v{vD4+j}
        v_and_b32 v{vD4+j}, 0xfc, v{vD4+j}
        v_add_u32 v8, {L_CNT}, v{vD4+j}
        ds_add_rtn_u32 v{vRk+j}, v8, v1
        v_and_b32 v{4+j}, 0x3fff, v{4+j}
        M_r1_{j}:
        """)
        if j == 2:
            A(f"""
            s_mov_b64 exec, -1
            v_cmp_eq_u32 vcc, -2, v7
            s_and_b64 exec, exec, vcc
            s_cbranch_execz M_nomark
            v_mov_b32 v8, {L_CNT + 63*4}
            v_mov_b32 v9, 0x10000
            ds_add_u32 v8, v9
            M_nomark:
            """)
    A(f"""
    s_mov_b64 exec, -1
    s_mov_b32 s{s_alt}, 0
    s_mov_b32 s{s_sw}, 0
    v_lshlrev_b32 v9, 4, v{L}
    v_add_u32 v{vaAgg}, {L_AGG}, v9
    v_lshlrev_b32 v11, 2, v{L}
    v_add_u32 v11, 32, v11
    s_waitcnt vmcnt(0) lgkmcnt(0)
    s_barrier
    """)
    stamp(A, 21)
    A(f"""
    ds_read_b32 v8, v{vaCnt}
    v_mov_b32 v57, 0
    s_cmp_lg_u32 s{s_w}, 1
    s_cbranch_scc1 M_tk0
    s_cmp_lg_u32 s{s_slow}, 0
    s_cbranch_scc1 M_tk0
    s_and_b32 s3, s2, 15
    s_lshl_b32 s3, s3, 7
    v_mov_b32 v57, 1
    s_mov_b64 exec, 1
    buffer_atomic_add v57, off, {S(sWS)}, s3 sc0 sc1
    s_mov_b64 exec, -1
    M_tk0:
    s_cmp_lg_u32 s{s_slow}, 0
    s_cbranch_scc1 M_noq
    """)
    for mt in range(3):
        A(f"ds_write_b128 v{vQa}, {vr(vQO+4*mt,4)} offset:{mt*16*QS}")
    A("M_noq:")
    for r in range(16):
        A(f"v_mov_b32 v{vACC+r}, 0")
    A(f"""
    s_waitcnt lgkmcnt(3)
    s_cmp_eq_u32 s{s_slow}, 0
    s_cbranch_scc1 M_noq2
    s_waitcnt lgkmcnt(0)
    M_noq2:
    v_add_u32 v9, 1, v8
    v_and_b32 v9, -2, v9
    v_mov_b32 v10, v9
    v_mov_b32 v{vH}, 0
    v_mov_b32 v{vH+1}, 0
    v_add_u32_dpp v10, v10, v10 row_shr:1 row_mask:0xf bank_mask:0xf bound_ctrl:0
    v_mov_b32 v{vH+2}, 0
    v_mov_b32 v{vH+3}, 0
    v_add_u32_dpp v10, v10, v10 row_shr:2 row_mask:0xf bank_mask:0xf bound_ctrl:0
    v_mov_b32 v{vAgg}, 0
    v_mov_b32 v{vAgg+1}, 0
    v_add_u32_dpp v10, v10, v10 row_shr:4 row_mask:0xf bank_mask:0xf bound_ctrl:0
    s_nop 1
    v_add_u32_dpp v10, v10, v10 row_shr:8 row_mask:0xf bank_mask:0xf bound_ctrl:0
    s_nop 1
    v_add_u32_dpp v10, v10, v10 row_bcast:15 row_mask:0xa bank_mask:0xf
    s_nop 1
    v_add_u32_dpp v10, v10, v10 row_bcast:31 row_mask:0xc bank_mask:0xf
    s_nop 0
    v_sub_u32 v{vBase}, v10, v9
    v_readlane_b32 s{s_tot}, v10, 63
    s_cmp_lg_u32 s{s_w}, 1
    s_cbranch_scc1 M_derive
    s_waitcnt vmcnt(0)
    v_readfirstlane_b32 s3, v57
    s_cmp_lg_u32 s3, 15
    s_cbranch_scc1 M_derive
    """)
    if "srel" in OPT:
        A(f"s_mov_b32 s{s_one}, 1")
        for i in range(16):
            A(f"s_atomic_add s{s_one}, s[{pWS}:{pWS+1}], {WS_RP + 128*i}")
    else:
        A(f"""
        v_lshlrev_b32 v12, 7, v{L}
        v_mov_b32 v13, 1
        s_mov_b32 s3, {WS_RP}
        s_mov_b64 exec, 0xffff
        buffer_atomic_add v13, v12, {S(sWS)}, s3 offen sc1
        s_mov_b64 exec, -1
        """)
    A(f"""
    M_derive:
    """)
    for j in range(4):
        A(f"ds_bpermute_b32 v{vBs+j}, v{vD4+j}, v{vBase}")
    A(f"""
    ds_bpermute_b32 v12, v11, v{vBase}
    s_cmp_gt_u32 s{s_tot}, {CAP_T*32}
    s_cbranch_scc1 M_goslow
    v_readlane_b32 s{s_T0p}, v{vBase}, 32
    s_add_u32 s{s_T}, s{s_tot}, 31
    s_lshr_b32 s{s_T}, s{s_T}, 5
    v_add3_u32 v13, v{vBase}, v9, 31
    v_and_b32 v13, -32, v13                ; end of the tile that holds node i's last slot
    s_waitcnt lgkmcnt(0)
    v_cmp_gt_u32 vcc, v13, v12
    v_cmp_ne_u32 s[{s_x}:{s_x+1}], s{s_tot}, v12
    s_andn2_b32 s{s_x+1}, vcc_lo, s{s_alt}
    s_and_b32 s{s_x}, s{s_x}, s{s_x+1}
    s_cbranch_scc1 M_align
    """)
    stamp(A, 22)
    A(f"""
    v_mov_b32 v1, 0x3f80
    s_mov_b32 s{s_f0}, 16
    s_cmp_lg_u32 s{s_w}, 0
    s_cbranch_scc1 M_nolook
    s_and_b32 s3, s2, 15
    s_lshl_b32 s3, s3, 7
    s_add_u32 s3, s3, {WS_RP}
    s_mov_b32 s{s_f0}, 0
    s_atomic_add s{s_f0}, s[{pWS}:{pWS+1}], s3 glc
    M_nolook:
    """)
    for j in range(4):
        A(f"""
        s_mov_b64 exec, s[{sM+2*j}:{sM+2*j+1}]
        s_cbranch_execz M_r2_{j}
        v_add_u32 v{vRk+j}, v{vRk+j}, v{vBs+j}
        v_lshlrev_b32 v9, 2, v{vRk+j}
        v_add_u32 v9, {L_LIST}, v9
        ds_write_b32 v9, v{4+j}
        v_and_b32 v9, 0x80, v{vD4+j}
        v_add_u32 v9, v9, v{vD4+j}
        v_and_b32 v10, 14, v{vRk+j}
        v_lshl_add_u32 v9, v9, 2, v10
        v_lshrrev_b32 v10, 4, v{vRk+j}
        v_lshl_add_u32 v9, v10, 9, v9
        v_add_u32 v9, {L_AGG}, v9
        ds_write_b16 v9, v1
        v_lshrrev_b32 v9, 3, v{vRk+j}
        v_and_b32 v10, 31, v{vRk+j}
        v_and_b32 v9, -4, v9
        v_cmp_eq_u32 vcc, 0, v10
        v_add_u32 v{vTa+j}, {L_N0}, v9
        s_and_b64 exec, exec, vcc
        ds_write_b32 v{vTa+j}, v{vD4+j}
        M_r2_{j}:
        """)
    if "elate" in OPT:
        A("s_mov_b64 exec, -1")
    else:
        egather()
    A(f"""
    s_cmp_lt_u32 s{s_T0p}, s{s_tot}
    s_cselect_b32 s{s_x}, 5, 31
    s_cselect_b32 s{s_x+1}, 1, 0x7fffffff
    s_lshr_b32 s{s_T0p}, s{s_T0p}, s{s_x}
    s_add_u32 s{s_T0p}, s{s_T0p}, s{s_x+1}
    v_add_u32 v{vDeg}, v{vDeg}, v8
    s_mul_i32 s{s_pri}, s{s_T}, {PRIO_NUM}
    s_lshr_b32 s{s_pri}, s{s_pri}, 5
    s_cmp_lt_u32 s{s_w}, 4
    s_cselect_b32 s{s_pri}, 0x7fffffff, s{s_pri}
    s_sub_u32 s{s_next}, s{s_T}, 1
    s_min_i32 s{s_next}, s{s_next}, s{s_T0p}
    s_min_i32 s{s_next}, s{s_next}, s{s_pri}
    v_mov_b32 v1, 0x3f80
    """)
    OO = [2, 10, 172]
    A(f"""
    v_and_b32 v8, 15, v{L}               ; n
    v_lshlrev_b32 v9, 2, v8
    ds_bpermute_b32 v48, v9, v{vDeg}
    v_add_u32 v9, 64, v9
    ds_bpermute_b32 v49, v9, v{vDeg}
    v_add_u32 v9, 64, v9
    ds_bpermute_b32 v50, v9, v{vDeg}
    v_lshrrev_b32 v9, 4, v{L}            ; q
    v_bfe_u32 v14, v8, 1, 2
    v_xor_b32 v14, v14, v9
    v_lshlrev_b32 v14, 4, v14
    v_lshl_add_u32 v14, v8, 6, v14
    v_add_u32 v15, s{s_nb0}, v8
    v_lshlrev_b32 v15, 8, v15
    v_lshl_add_u32 v15, v9, 3, v15
    s_lshl_b32 s3, s{s_w}, 5
    v_add_u32 v15, s3, v15
    v_and_b32 v8, 31, v{L}
    v_lshrrev_b32 v9, 5, v{L}
    v_lshlrev_b32 v9, 1, v9
    v_bfe_u32 v6, v8, 1, 2
    v_xor_b32 v6, v6, v9
    v_lshlrev_b32 v6, 4, v6
    v_lshl_add_u32 v6, v8, 6, v6
    v_add_u32 v6, s{s_ring}, v6
    v_xor_b32 v7, 16, v6
    v_lshlrev_b32 v52, 16, v{vB2}
    v_and_b32 v53, 0xffff0000, v{vB2}
    v_lshlrev_b32 v54, 16, v{vB2+1}
    v_and_b32 v55, 0xffff0000, v{vB2+1}
    s_lshl_b32 s3, s{s_nb1}, 8
    """)
    srd(A, sA, pOUT, "s3")
    A(f"""
    s_waitcnt lgkmcnt(0)
    v_cvt_f32_u32 v48, v48
    v_cvt_f32_u32 v49, v49
    v_cvt_f32_u32 v50, v50
    """)
    for mt in range(3):
        for i in range(4):
            A(f"v_mul_f32 v{OO[mt]+i}, v{48+mt}, v{52+i}")
    A(f"v_mov_b32 v56, {L_N0}")
    stamp(A, 23)
    A(f"""
    s_cmp_eq_u32 s{s_f0}, 16
    s_cbranch_scc1 M_w2
    """)
    rpoll("b", WS_RP, 16)
    A(f"""
    M_w2:
    v_mov_b32 v{vAgg+2}, 0
    v_mov_b32 v{vAgg+3}, 0
    s_waitcnt lgkmcnt(0)
    s_barrier
    """)
    stamp(A, 9)
    PSC = "sc1" if "psc1" in OPT else ("nt" if "pnt" in OPT else ("sc0 sc1" if "psc01" in OPT else ""))

    def dma(t, jj):
        r = vOff + 2 * t + jj if t < CAP_T else vDum
        fl = "nt" if t >= NT0 else PSC
        return f"buffer_load_dwordx4 v{r}, {S(sP)}, 0 offen offset:{(t & 1)*2048 + jj*1024} {fl} lds"

    def m0set(t):
        return f"s_mov_b32 m0, s{s_ring if (t % 4) < 2 else s_ringh}"

    def offs(lo, hi, after=None):
        for t0 in range(lo, hi, 8):
            ts = range(t0, min(t0 + 8, hi))
            for t in ts:
                A(f"ds_read_b64 {vr(vOff+2*t,2)}, v{vaList} offset:{t*128}")
            for i, t in enumerate(ts):
                A(f"s_waitcnt lgkmcnt({len(ts)-1-i})")
                for jj in range(2):
                    A(f"v_lshl_add_u32 v{vOff+2*t+jj}, v{vOff+2*t+jj}, 9, v{vK0 + 2*(t & 1) + jj}")
                if after:
                    after(t)

    def first_dma(t):
        if t < 2:
            A(dma(t, 0) + "\n" + dma(t, 1))
    A(m0set(0))
    offs(0, 6, first_dma)
    stamp(A, 19)
    for j in range(4):
        A(f"ds_read_b32 v{vBs+j}, v{vTa+j}")
    for g in range(7):
        A(f"ds_read_b128 {vr(vBa+4*g,4)}, v56 offset:{16*g}")
    if "elate" in OPT:
        A("s_waitcnt lgkmcnt(0)")
        for t in range(CAP_T):
            A(f"v_mad_u32_u24 v{vBa+t}, v{vBa+t}, v{vBmul}, v{vaB}")
        egather()
        offs(6, CAP_T)
        A(f"{m0set(2)}\ns_waitcnt vmcnt(0)")
    else:
        A(f"{m0set(2)}\ns_waitcnt vmcnt(4) lgkmcnt(7)")
    stamp(A, 20)
    for j in range(4):
        A(f"""
        s_mov_b64 exec, s[{sM+2*j}:{sM+2*j+1}]
        s_cbranch_execz M_r3_{j}
        v_lshlrev_b32 v8, 4, v{vRk+j}
        v_add_u32 v8, {L_AQE}, v8
        ds_write2_b64 v8, {vr(vEv+2*j,2)}, {vr(vEv+2*j,2)} offset0:0 offset1:1
        v_sub_u32 v9, v{vD4+j}, v{vBs+j}
        v_lshrrev_b32 v9, 1, v9
        v_add_u32 v9, v9, v8
        ds_write_b16 v9, v1 offset:{L_AQH - L_AQE}
        M_r3_{j}:
        """)
    A("s_mov_b64 exec, -1")
    A("s_waitcnt lgkmcnt(0)\ns_barrier")
    stamp(A, 10)
    if "elate" not in OPT:
        for t in range(CAP_T):
            A(f"v_mad_u32_u24 v{vBa+t}, v{vBa+t}, v{vBmul}, v{vaB}")
    A(f"""
    s_cmp_eq_u32 s{s_T}, 0
    s_cbranch_scc1 M_bend
    """)
    if "elate" not in OPT:
        offs(6, CAP_T)
    stamp(A, 11)

    def bread(t):
        r = vBa + min(t, CAP_T - 1)
        return [f"ds_read_b64_tr_b16 {vr(vBq,2)}, v{r}", f"ds_read_b64_tr_b16 {vr(vBq+2,2)}, v{r} offset:{4*QS}"]

    def w2load(s):
        return f"buffer_load_dwordx4 {vr(vW2+4*s,4)}, v{vW2a}, {S(sWS)}, s{s_w2 + (s >> 2)} offen offset:{(s & 3)*1024} sc1"

    A("\n".join(bread(0)))
    A(f"""
    ds_read_b128 {vr(vAqe,4)}, v{vaAqe}
    s_cmp_lt_u32 s{s_w}, 4
    s_cbranch_scc1 M_nopri
    s_setprio 1
    M_nopri:
    {dma(2, 0)}
    {dma(2, 1)}
    s_waitcnt vmcnt(4)
    ds_read_b128 {vr(vPf0,4)}, v{vaP0}
    ds_read_b128 {vr(vPf1,4)}, v{vaP1}
    {dma(3, 0)}
    {dma(3, 1)}
    {m0set(D)}
    s_waitcnt lgkmcnt(0)
    """)
    mfma32(A, vU[0], vAqe, vBq, None)
    A(dma(D, 0))
    mfma32(A, vU[0], vPf0, vSel0, vU[0])
    A(dma(D, 1))
    mfma32(A, vU[0], vPf1, vSel1, vU[0])
    A("\n".join(bread(1)))
    A(f"""
    ds_read_b128 {vr(vAqe,4)}, v{vaAqe} offset:512
    s_waitcnt vmcnt({2*(D-1)})
    ds_read_b128 {vr(vPf0,4)}, v{vaP0} offset:2048
    ds_read_b128 {vr(vPf1,4)}, v{vaP1} offset:2048
    s_nop 7
    """)
    stamp(A, 12)

    def second_half(B, U, aggread):
        mfma32(B, vACC, vH, vAgg, vACC)
        for i in range(8):
            B(f"v_rcp_f32 v{vT+i}, v{vT+i}")
            if i == 4:
                B(aggread)
        for i in range(0, 8, 2):
            B(f"v_pk_mul_f32 {vr(U+i,2)}, {vr(U+i,2)}, {vr(vT+i,2)}")
        for i in range(0, 8, 2):
            B(f"v_cvt_pk_bf16_f32 v{vH+i//2}, v{U+i}, v{U+i+1}")

    vmq = ["d"] * (2 * (D + 1))

    def vm_need(t):
        seen = 0
        for i, k in enumerate(vmq):
            if k == "d":
                seen += 1
                if seen == 2 * (t + 1):
                    return len(vmq) - 1 - i

    ool = Asm()
    A(".p2align 3")
    for t in range(CAP_T):
        U, Un = vU[t & 1], vU[(t + 1) & 1]
        tn = t + 1 + D
        s2 = ((t + 2) % D) * 2048
        ex = [f"v_exp_f32 v{vT+i}, v{U+i}" for i in range(16)]
        if "itst" in OPT:
            A(f"s_memtime s[100:101]")
        late_vm = t < 2
        A(f"s_waitcnt lgkmcnt(0)" if late_vm else f"s_waitcnt vmcnt({vm_need(t+2)}) lgkmcnt(0)")
        if "itst" in OPT:
            A(f"v_writelane_b32 v{vSt}, s100, {16+t}")
        mfma32(A, Un, vAqe, vBq, None)
        A("\n".join(ex[0:4]))
        mfma32(A, Un, vPf0, vSel0, Un)
        A("\n".join(ex[4:8]))
        mfma32(A, Un, vPf1, vSel1, Un)
        A("\n".join(ex[8:16]))
        pk = [f"v_pk_fma_f32 {vr(vT+i,2)}, {vr(vT+i,2)}, {vr(vC,2)}, {vr(vC,2)} clamp" for i in (0, 8, 2, 10, 4, 12, 6, 14)]
        pk += [f"v_pk_mul_f32 {vr(U+i,2)}, {vr(U+i,2)}, {vr(vT+8+i,2)}" for i in range(0, 8, 2)]
        pk += [f"v_pk_fma_f32 {vr(U+i,2)}, {vr(U+8+i,2)}, {vr(vT+i,2)}, {vr(U+i,2)}" for i in range(0, 8, 2)]
        pk += [f"v_pk_mul_f32 {vr(vT+i,2)}, {vr(vT+i,2)}, {vr(vT+8+i,2)}" for i in range(0, 8, 2)]
        b0, b1 = bread(t + 2)
        g_ds = ([m0set(tn)] if tn % 2 == 0 else []) + [f"ds_read_b128 {vr(vAqe,4)}, v{vaAqe} offset:{(t+2)*512}", b0, b1]
        g_p = [f"ds_read_b128 {vr(vPf0,4)}, v{vaP0} offset:{s2}", f"ds_read_b128 {vr(vPf1,4)}, v{vaP1} offset:{s2}"]
        g_vm = [dma(tn, 0), dma(tn, 1)]
        if late_vm:
            groups = {2: g_ds, 12: [f"s_waitcnt vmcnt({vm_need(t+2)})"] + g_p + g_vm}
        else:
            groups = {2: g_ds + g_p, 9: g_vm}
        vmq += ["d", "d"]
        if W2T0 <= t < W2T0 + 8:
            g_vm.append(w2load(t - W2T0))
            vmq.append("w")
        groups[16] = [f"s_cmp_le_i32 s{s_next}, {t}"]
        for i, x in enumerate(pk):
            A(x)
            for y in groups.get(i, []):
                if not ("nodma" in OPT and " lds" in y):
                    A(y)
        A(f"s_cbranch_scc1 M_ev{t}\nM_evr{t}:")
        second_half(A, U, f"ds_read_b128 {vr(vAgg,4)}, v{vaAgg} offset:{t*1024}")
        ool(f"""
        M_ev{t}:
        s_movk_i32 s{s_t}, {t}
        s_call_b64 s[{s_ret}:{s_ret+1}], M_rare
        s_cbranch_scc1 M_tail{t & 1}
        s_branch M_evr{t}
        """)
    A("s_branch M_fin")
    for p in range(2):
        A(f"""
        M_tail{p}:
        s_lshl_b32 s3, s{s_t}, 10
        v_add_u32 v8, s3, v{vaAgg}
        """)
        second_half(A, vU[p], f"ds_read_b128 {vr(vAgg,4)}, v8")
        if p == 0:
            A("s_branch M_fin")
    A(f"""
    M_fin:
    s_mov_b32 s{s_t}, s{s_T}
    s_cmp_eq_u32 s{s_T0p}, s{s_T}
    s_cbranch_scc0 M_fin2
    s_call_b64 s[{s_ret}:{s_ret+1}], M_rare
    M_fin2:
    s_waitcnt lgkmcnt(0)
    """)
    mfma32(A, vACC, vH, vAgg, vACC)
    stamp(A, 13)
    A(f"""
    s_cmp_lg_u32 s{s_sw}, 0
    s_nop 11
    s_cbranch_scc1 M_fin_hi
    """)
    for r in range(16):
        A(f"v_add_f32 v{vS0+r}, v{vS0+r}, v{vACC+r}")
    A("s_branch M_bend\nM_fin_hi:")
    for r in range(16):
        A(f"v_add_f32 v{vS1+r}, v{vS1+r}, v{vACC+r}")
    K = -math.log(2.0) * 2.0 ** -CEXP
    A(f"""
    M_bend:
    s_setprio 0
    s_cmp_lg_u32 s{s_slow}, 0
    s_cbranch_scc1 M_next
    M_epi:
    s_cmp_gt_u32 s{s_T}, {W2T0 + 8}
    s_cbranch_scc1 M_epi2
    """)
    for s_ in range(8):
        A(w2load(s_))
    A(f"""
    M_epi2:
    v_mov_b32 v{vC}, {f32(K):#x}
    v_mov_b32 v{vC+1}, {f32(K):#x}
    """)
    for Sx, o in ((vS0, 16), (vS1, 24)):
        for r in range(0, 16, 2):
            A(f"v_pk_mul_f32 {vr(Sx+r,2)}, {vr(Sx+r,2)}, {vr(vC,2)}")
        for r in range(0, 16, 2):
            A(f"v_cvt_pk_bf16_f32 v{o+r//2}, v{Sx+r}, v{Sx+r+1}")
        if o == 16:
            A("s_waitcnt vmcnt(0)\nds_write_b128 v6, v[16:19]\nds_write_b128 v7, v[20:23]")
    A(f"""
    ds_write_b128 v6, v[24:27] offset:2048
    ds_write_b128 v7, v[28:31] offset:2048
    s_mov_b32 s{s_x}, 4096
    s_mov_b32 s{s_x+1}, 8192
    s_waitcnt lgkmcnt(0)
    s_barrier
    """)
    stamp(A, 14)
    SFR = 48
    order = [(s, mt) for s in range(8) for mt in range(3)]
    RS = D * 2048
    AHEAD = 12
    for k in range(AHEAD):
        s, mt = order[k]
        A(f"ds_read_b128 {vr(SFR+4*k,4)}, v14 offset:{s*RS+mt*1024}")
    for k in range(24):
        s, mt = order[k]
        A(f"s_waitcnt lgkmcnt({min(AHEAD - 1, 23 - k)})")
        mfma16(A, OO[mt], vW2 + 4 * s, SFR + 4 * k, OO[mt])
        if k + AHEAD < 24:
            s2, mt2 = order[k + AHEAD]
            A(f"ds_read_b128 {vr(SFR+4*(k+AHEAD),4)}, v14 offset:{s2*RS+mt2*1024}")
    A("s_nop 5")
    for mt in range(3):
        A(f"""
        v_cvt_pk_bf16_f32 v{16+2*mt}, v{OO[mt]}, v{OO[mt]+1}
        v_cvt_pk_bf16_f32 v{17+2*mt}, v{OO[mt]+2}, v{OO[mt]+3}
        buffer_store_dwordx2 {vr(16+2*mt,2)}, v15, {S(sA)}, {["0", f"s{s_x}", f"s{s_x+1}"][mt]} offen
        """)
    if (SPIN is not None and SPIN[0] == 15) or ENC is not None:
        A("s_waitcnt vmcnt(0)")
        stamp(A, 15)
    if STAMPS:
        A("s_waitcnt vmcnt(0)")
        stamp(A, 15)
        srd(A, sA, pWS, 0x80000, off=WS_ST)
        A(f"""
        s_lshl_b32 s3, s2, 3
        s_add_u32 s3, s3, s{s_w}
        s_lshl_b32 s3, s3, 8
        v_lshl_add_u32 v1, v{L}, 2, s3
        buffer_store_dword v{vSt}, v1, {S(sA)}, 0 offen
        """)
    A("M_end:\ns_endpgm")

    A(f"""
    M_rare:
    s_cmp_eq_u32 s{s_T0p}, s{s_t}
    s_cbranch_scc0 M_rare2
    s_waitcnt lgkmcnt(0)
    """)
    mfma32(A, vACC, vH, vAgg, vACC)
    A(f"""
    s_lshl_b32 s3, s{s_t}, 10
    v_add_u32 v8, s3, v{vaAgg}
    v_add_u32 v{vaAgg}, 1024, v{vaAgg}
    s_mov_b32 s{s_sw}, 1
    s_mov_b32 s{s_T0p}, 0x7fffffff
    ds_read_b128 {vr(vAgg,4)}, v8
    s_nop 8
    """)
    for r in range(16):
        A(f"v_add_f32 v{vS0+r}, v{vS0+r}, v{vACC+r}")
    for r in range(16):
        A(f"v_mov_b32 v{vACC+r}, 0")
    A(f"""
    s_waitcnt lgkmcnt(0)
    M_rare2:
    s_cmp_le_i32 s{s_pri}, s{s_t}
    s_cbranch_scc0 M_rare3
    s_setprio 0
    s_mov_b32 s{s_pri}, 0x7fffffff
    M_rare3:
    s_sub_u32 s3, s{s_T}, 1
    s_min_i32 s{s_next}, s3, s{s_T0p}
    s_min_i32 s{s_next}, s{s_next}, s{s_pri}
    s_cmp_le_i32 s3, s{s_t}
    s_setpc_b64 s[{s_ret}:{s_ret+1}]
    """)

    A(f"""
    M_align:
    s_mov_b32 s{s_alt}, -1
    s_mov_b32 s{s_x+2}, 0
    v_mov_b32 v13, v{vBase}
    """)
    for G in range(5):
        A(f"""
        v_readlane_b32 s{s_x}, v{vBase}, {8*G}
        v_readlane_b32 s{s_x+1}, v{vBase}, {8*G+8}
        s_nop 1
        s_sub_u32 s{s_x+3}, s{s_x+2}, s{s_x}
        v_cmp_le_u32 vcc, {8*G}, v{L}
        v_add_u32 v10, s{s_x+3}, v{vBase}
        s_sub_u32 s{s_x+1}, s{s_x+1}, s{s_x}
        s_add_u32 s{s_x+2}, s{s_x+2}, s{s_x+1}
        v_cndmask_b32 v13, v13, v10, vcc
        """)
        if G < 4:
            A(f"s_add_u32 s{s_x+2}, s{s_x+2}, 31\ns_and_b32 s{s_x+2}, s{s_x+2}, -32")
    A(f"""
    s_mov_b32 s{s_tot}, s{s_x+2}
    v_mov_b32 v{vBase}, v13
    s_nop 1
    s_branch M_derive
    """)
    A(f"""
    M_goslow:
    s_mov_b32 s{s_slow}, 1
    s_mov_b32 s{s_batch}, 0
    s_branch M_load
    M_next:
    s_add_u32 s{s_batch}, s{s_batch}, 512
    s_cmp_ge_u32 s{s_batch}, {E}
    s_cbranch_scc1 M_epi
    M_load:
    """)
    srd(A, sA, pDST, E * 4)
    srd(A, sB, pSRC, E * 4)
    A(f"""
    v_add_u32 v8, s{s_batch}, v0
    v_lshlrev_b32 v9, 2, v8
    s_waitcnt vmcnt(0) lgkmcnt(0)
    buffer_load_dword v10, v9, {S(sA)}, 0 offen
    buffer_load_dword v11, v9, {S(sB)}, 0 offen
    v_lshlrev_b32 v{vChunk8}, 3, v8
    v_mov_b32 v5, -1
    v_mov_b32 v6, -1
    v_mov_b32 v7, -1
    s_mov_b32 s{s_x+2}, {E}
    s_waitcnt vmcnt(0)
    v_subrev_u32 v12, s{s_nb0}, v10
    v_cmp_gt_u32 vcc, s{s_nn}, v12
    v_cmp_gt_u32 s[{s_x}:{s_x+1}], s{s_x+2}, v8
    v_and_b32 v10, 63, v10
    v_lshl_or_b32 v11, v10, 14, v11
    s_and_b64 vcc, vcc, s[{s_x}:{s_x+1}]
    s_nop 1
    v_cndmask_b32 v4, v5, v11, vcc
    s_barrier
    """)
    zerofill()
    A("s_waitcnt lgkmcnt(0)\ns_barrier\ns_branch M_recs")
    A.l += ool.l


def build():
    out = f"""; Fused edge-featured MPNN layer, one workgroup per bucket of 39/40 destination nodes.
; @launch grid=(256,1,1) block=(512,1,1) lds={LDS_BYTES}
.amdgcn_target "amdgcn-amd-amdhsa--gfx950"
.text
.globl {KN}
.p2align 8
.type {KN},@function
"""
    A = Asm()
    kernel(A)
    out += A.text()
    out += f""".section .rodata,"a"
.p2align 6
.amdhsa_kernel {KN}
  .amdhsa_next_free_vgpr {NV}
  .amdhsa_next_free_sgpr 102
  .amdhsa_accum_offset {(NV + 3) // 4 * 4}
  .amdhsa_group_segment_fixed_size 0
  .amdhsa_kernarg_size 88
  .amdhsa_user_sgpr_count 2
  .amdhsa_user_sgpr_kernarg_segment_ptr 1
  .amdhsa_system_sgpr_workgroup_id_x 1
.end_amdhsa_kernel
"""
    return out


if __name__ == "__main__":
    for a in list(sys.argv):
        if a.startswith("-o"):
            OPT.update(a[2:].split(","))
            sys.argv.remove(a)
    for a in list(sys.argv):
        if a.startswith("-spin"):
            i, us = a[5:].split(":")
            SPIN = (int(i), float(us))
            sys.argv.remove(a)
    for a in list(sys.argv):
        if a.startswith("-wsb"):
            WS_BASE = int(a[4:]) << 20
            sys.argv.remove(a)
    for a in list(sys.argv):
        if a.startswith("-enc"):
            ENC = int(a[4:])
            sys.argv.remove(a)
    for a in list(sys.argv):
        if a.startswith("-pri"):
            PRIO_NUM = int(a[4:])
            sys.argv.remove(a)
    for a in list(sys.argv):
        if a.startswith("-nt"):
            NT0 = int(a[3:])
            sys.argv.remove(a)
    for a in list(sys.argv):
        if a.startswith("-early"):
            EARLY = tuple(int(c) for c in a[6:])
            sys.argv.remove(a)
    if "--stamps" in sys.argv:
        STAMPS = True
        sys.argv.remove("--stamps")
    path = sys.argv[1] if len(sys.argv) > 1 else f"cdna_kernels/{NAME}.s"
    open(path, "w").write(build())
    print("wrote", path, "lds", LDS_BYTES)
```

```python
import sys, struct, math

NAME = "gather_scatter__edge_featured_mpnn_mpnn__graph"
KN = NAME + "_kernel"
N, E = 10000, 160000

WS_CNT = 0
WS_RB = 16 * 128
WS_RP = 32 * 128
WS_W2F = 0x2000
WS_SLOT = 0x12000
WS_P = 0x213000
TABB = N * 512
WS_END = WS_P + TABB
WS_ST = 0x1000000

WS_BASE = 0
NCH = 64
CHE = E // NCH
PROWS = 53
LOG2E = 1.4426950408889634
CEXP = 48
STAMPS = False
OPT = set()
PRIO_NUM = 22
NT0 = 99
W2T0 = 8


def f32(x):
    return struct.unpack("<I", struct.pack("<f", x))[0]


class Asm:
    def __init__(self):
        self.l = []

    def __call__(self, s):
        for x in s.split("\n"):
            x = x.strip()
            if x:
                self.l.append(("" if x.endswith(":") else "    ") + x)

    def text(self):
        import re
        for x in self.l:
            m = re.search(r"offset:(\d+)", x)
            if m:
                lim = 4096 if x.strip().startswith("buffer_") else 65536
                assert int(m.group(1)) < lim, x
        return "\n".join(self.l) + "\n"


def vr(a, n=1):
    return f"v{a}" if n == 1 else f"v[{a}:{a+n-1}]"


def srd(A, d, base, size, off=None):
    if off is None:
        A(f"s_mov_b32 s{d}, s{base}\ns_mov_b32 s{d+1}, s{base+1}")
    else:
        A(f"s_add_u32 s{d}, s{base}, {off}\ns_addc_u32 s{d+1}, s{base+1}, 0")
    A(f"s_mov_b32 s{d+2}, {size}\ns_mov_b32 s{d+3}, 0x00020000")


def S(d):
    return f"s[{d}:{d+3}]"


D = 4
CAP_T = 26
QS = 592
L_RING = 0
L_AQE = 8 * D * 2048
L_AQH = L_AQE + CAP_T * 512
L_AGG = L_AQH + CAP_T * 512
L_LIST = L_AGG + (CAP_T + 1) * 1024
L_CNT = L_LIST + 4096
L_N0 = L_CNT + 256
L_WE = L_N0 + 256
L_Q = L_WE + 8 * QS
LDS_BYTES = (L_Q + 255) // 256 * 256 + 32768
ZERO_BYTES = L_LIST - L_AQE
L_XP = (L_Q + 255) // 256 * 256
L_XQ = L_XP + 16384
L_BT = L_AQE
L_BC = L_BT + 32768
assert L_BC + 2048 <= L_LIST and LDS_BYTES <= 163840 and 48 * QS <= 32768
DUMMY = 0x400000

pX, pE, pSRC, pDST, pW1, pB1, pW2, pB2, pOUT, pDBG, pWS = 4, 6, 8, 10, 12, 14, 16, 18, 20, 22, 24
s_w2 = 26
sA, sB, sC, sD, sWS, sP, sE = 28, 32, 36, 40, 44, 48, 52
(s_w, s_nb0, s_nb1, s_nn, s_T, s_T0p, s_t, s_next, s_slow, s_batch, s_ring, s_sw, s_tot,
 s_nb4, s_ringh, s_spin, s_pri, s_alt, s_xw) = range(56, 75)
s_f0 = 85
s_one = 84
s_x = 76
sM = 86
s_ret = 94
sG = 96

vU = [16, 32]
vT = 48
vH = 64
vACC = 68
vS0 = 84
vS1 = 100
vPf0, vPf1, vAqe, vAgg, vBq, vSel0, vSel1 = 116, 120, 124, 128, 132, 136, 140
vBa = 144
vOff = 176
vW2 = 176
(vC, _c1, vB2, _b1, vK0, vK1, vK2, vK3, vaAqe, vaAgg, vaList, vaP0, vaP1, vaB, vBmul, vBase, vDeg,
 vChunk8, vLane, vDum, vSt, vW2a, vaCnt) = range(228, 251)
NV = 252
vXF = 176
vXP = 160
vWF = 16
vPA = 48
vPO = 148
vQO = 164
vPa = 144
EARLY = (0, 1)
vXa = 145
vXr = 147
vB1 = 116
vWEr = 128
vF0 = 129
vPc = 130
vQa = 131


def mfma32(A, d, a, b, c):
    cs = "0" if c is None else vr(c, 16)
    A(f"v_mfma_f32_32x32x16_bf16 {vr(d,16)}, {vr(a,4)}, {vr(b,4)}, {cs}")


def mfma16(A, d, a, b, c):
    cs = "0" if c is None else vr(c, 4)
    A(f"v_mfma_f32_16x16x32_bf16 {vr(d,4)}, {vr(a,4)}, {vr(b,4)}, {cs}")


SPIN = None


ENC = None


def stamp(A, i):
    if ENC is not None:
        if i == 0:
            A("s_memrealtime s[100:101]\ns_waitcnt lgkmcnt(0)\ns_mov_b32 s75, s100\ns_nop 0")
        if i == ENC:
            A("s_waitcnt lgkmcnt(0)\ns_memrealtime s[100:101]\ns_waitcnt lgkmcnt(0)\ns_sub_u32 s101, s100, s75")
            A(f"v_writelane_b32 v{vSt}, s101, 0")
        if i == 15:
            u = len(A.l)
            A(f"v_readlane_b32 s3, v{vSt}, 0\ns_nop 3\ns_lshl_b32 s3, s3, 2\ns_add_u32 s3, s3, 6000")
            A(f"M_spin{u}:\ns_memrealtime s[100:101]\ns_waitcnt lgkmcnt(0)\ns_sub_u32 s100, s100, s75\ns_cmp_lt_u32 s100, s3\ns_cbranch_scc1 M_spin{u}")
    if SPIN is not None:
        if i == 0:
            A("s_memrealtime s[100:101]\ns_waitcnt lgkmcnt(0)\ns_mov_b32 s75, s100")
        elif i == SPIN[0]:
            u = len(A.l)
            A(f"M_spin{u}:\ns_memrealtime s[100:101]\ns_waitcnt lgkmcnt(0)\ns_sub_u32 s100, s100, s75\ns_cmp_lt_u32 s100, {int(SPIN[1]*100)}\ns_cbranch_scc1 M_spin{u}")
    if STAMPS:
        ins = "s_memtime" if "cyc" in OPT else "s_memrealtime"
        A(f"s_waitcnt lgkmcnt(0)\n{ins} s[100:101]\ns_waitcnt lgkmcnt(0)\nv_writelane_b32 v{vSt}, s100, {i}")


def gemm_part(A, init, nmt, xf, vm=None):
    def rd(s):
        for ct in range(2):
            for x in range(2):
                A(f"ds_read_b64_tr_b16 {vr(vWF + 8*s + 4*ct + 2*x, 2)}, v14 offset:{s*2048 + x*256 + ct*8}")
    if vm is None:
        for s in range(4):
            rd(s)
    else:
        A(f"s_waitcnt vmcnt({vm[0]})")
        rd(0)
    for s in range(4):
        if vm is None:
            A(f"s_waitcnt lgkmcnt({12 - 4*s})")
        else:
            A("s_waitcnt lgkmcnt(0)")
        k = 0
        for mt in range(nmt):
            for ct in range(2):
                d = vPA + 8 * mt + 4 * ct
                c = d if s else (None if init is None else init + 4 * ct)
                mfma16(A, d, vWF + 8 * s + 4 * ct, xf + 16 * mt + 4 * s, c)
                k += 1
                if vm is not None and k == 2 and s < 3:
                    A(f"s_waitcnt vmcnt({vm[s+1]})")
                    rd(s + 1)


def gemm_pack(A, nmt, store, vPO=vPO):
    A("s_nop 4")
    for mt in range(nmt):
        for r in range(0, 8, 2):
            a = vPA + 8 * mt + r
            A(f"v_pk_mul_f32 {vr(a,2)}, {vr(a,2)}, v[12:13]")
        for r in range(0, 8, 2):
            a = vPA + 8 * mt + r
            A(f"v_cvt_pk_bf16_f32 v{vPO + 4*mt + r//2}, v{a}, v{a+1}")
        store(mt)


def kernel(A):
    L = vLane
    SC = "sc0 sc1"
    A(f"{KN}:")
    A(f"""
    s_cmp_ge_u32 s2, 256
    s_cbranch_scc1 M_end
    s_load_dwordx16 s[4:19], s[0:1], 0
    s_load_dwordx4 s[20:23], s[0:1], 64
    s_load_dwordx2 s[24:25], s[0:1], 80
    """)
    if STAMPS or ENC is not None:
        A(f"v_mov_b32 v{vSt}, 0")
    stamp(A, 0)
    A(f"""
    v_lshrrev_b32 v2, 6, v0
    v_and_b32 v{L}, 63, v0
    v_readfirstlane_b32 s{s_w}, v2
    s_mul_i32 s{s_nb0}, s2, 160069
    s_add_u32 s{s_nb1}, s{s_nb0}, {160069 + 4049}
    s_add_u32 s{s_nb0}, s{s_nb0}, 4049
    s_lshr_b32 s{s_nb0}, s{s_nb0}, 12
    v_lshrrev_b32 v7, 4, v{L}
    v_and_b32 v8, 15, v{L}
    v_xor_b32 v8, v8, v7
    s_lshl_b32 s{s_ring}, s{s_w}, 13
    s_and_b32 s3, s{s_w}, 1
    s_lshl_b32 s3, s3, 3
    v_xor_b32 v8, s3, v8
    v_lshlrev_b32 v8, 4, v8
    v_lshl_add_u32 v8, v7, 8, v8
    s_lshl_b32 s{s_xw}, s{s_w}, 11
    v_add_u32 v{vXa}, s{s_xw}, v8
    v_xor_b32 v{vXa+1}, 64, v{vXa}
    v_lshrrev_b32 v10, 2, v{L}
    v_and_b32 v11, 3, v{L}
    v_lshlrev_b32 v11, 4, v11
    v_lshl_add_u32 v10, v10, 9, v11
    s_lshl_b32 s3, s{s_w}, 6
    v_add_u32 v10, s3, v10
    v_lshlrev_b32 v2, 2, v0
    s_waitcnt lgkmcnt(0)
    s_add_u32 s{pWS}, s{pWS}, {WS_BASE}
    s_addc_u32 s{pWS+1}, s{pWS+1}, 0
    s_cmp_ge_u32 s2, {NCH}
    s_cbranch_scc1 M_pwg
    """)

    def wdma(base):
        for ii in range(8):
            A(f"""
            s_add_u32 m0, s{s_ring}, {ii*1024}
            s_mov_b32 s{s_x+1}, {base + ii*8192}
            buffer_load_dwordx4 v10, {S(sB)}, s{s_x+1} offen lds
            """)

    def xdma(ldsbase, rowreg):
        A(f"""
        s_add_u32 m0, s{s_xw}, {ldsbase}
        s_lshl_b32 s3, s{rowreg}, 8
        buffer_load_dwordx4 v{vXa}, {S(sD)}, s3 offen lds
        buffer_load_dwordx4 v{vXa+1}, {S(sD)}, s3 offen offset:1024 lds
        """)

    def gaddr():
        A(f"""
        v_lshrrev_b32 v3, 4, v{L}        ; q
        v_and_b32 v4, 15, v{L}           ; n
        v_xor_b32 v5, v3, v4
        v_lshlrev_b32 v5, 4, v5
        v_lshl_add_u32 v{vXr}, v4, 8, v5
        v_bfe_u32 v5, v{L}, 2, 2         ; r
        v_lshl_add_u32 v6, v3, 3, v5     ; 8q + r
        v_lshlrev_b32 v6, 6, v6
        v_and_b32 v7, 3, v{L}            ; c
        v_lshl_add_u32 v6, v7, 4, v6
        v_add_u32 v14, s{s_ring}, v6
        v_mov_b32 v12, {f32(-LOG2E):#x}
        v_mov_b32 v13, v12
        """)

    def consts():
        srd(A, sP, pWS, TABB + 4096, off=WS_P - 4096)
        srd(A, sE, pE, E * 8)
        A(f"""
        s_lshr_b32 s{s_nb1}, s{s_nb1}, 12
        s_min_u32 s{s_nb1}, s{s_nb1}, {N}
        s_sub_u32 s{s_nn}, s{s_nb1}, s{s_nb0}
        s_lshl_b32 s{s_nb4}, s{s_nb0}, 2
        s_add_u32 s{s_ringh}, s{s_ring}, 4096
        s_mov_b32 s{s_slow}, 0
        s_lshl_b32 s{s_w2}, s{s_w}, 13
        s_add_u32 s{s_w2}, s{s_w2}, {WS_W2F}
        s_add_u32 s{s_w2+1}, s{s_w2}, 4096
        v_lshrrev_b32 v3, 4, v{L}        ; q
        v_bfe_u32 v5, v{L}, 2, 2         ; r
        v_and_b32 v7, 3, v{L}            ; c
        v_xor_b32 v9, v7, v3
        v_lshlrev_b32 v9, 4, v9
        s_lshl_b32 s3, s{s_w}, 6
        s_add_u32 s{s_x}, s3, 1024
        v_add_u32 v{vK3}, s{s_x}, v9
        v_add_u32 v{vK2}, 1024, v{vK3}
        v_add_u32 v{vK1}, 2048, v{vK3}
        v_add_u32 v{vK0}, 3072, v{vK3}
        v_lshrrev_b32 v1, 5, v{L}        ; h
        v_mul_u32_u24 v5, {QS}, v5
        v_and_b32 v3, 1, v3
        v_lshl_add_u32 v5, v3, 5, v5
        v_lshl_add_u32 v5, v7, 3, v5
        s_add_u32 s3, s3, {L_WE}
        v_add_u32 v5, s3, v5
        v_mul_u32_u24 v6, {8*QS}, v1
        v_add_u32 v{vaB}, v5, v6
        v_mul_u32_u24 v{vBmul}, {QS//4}, v1
        v_and_b32 v3, 31, v{L}           ; m
        v_lshrrev_b32 v9, 4, v3
        v_and_b32 v8, 3, v3
        v_lshl_add_u32 v9, v8, 1, v9
        v_and_b32 v8, 8, v3
        v_add_u32 v9, v9, v8
        v_and_b32 v8, 4, v3
        v_lshl_add_u32 v9, v8, 2, v9
        v_lshlrev_b32 v9, 4, v9
        v_mul_u32_u24 v8, {L_AQH - L_AQE}, v1
        v_add_u32 v9, v9, v8
        v_add_u32 v{vaAqe}, {L_AQE}, v9
        v_lshrrev_b32 v9, 2, v{L}
        v_and_b32 v8, 3, v9
        v_lshlrev_b32 v8, 1, v8
        v_and_b32 v11, 8, v9
        v_add_u32 v8, v8, v11
        v_and_b32 v11, 4, v9
        v_lshl_add_u32 v8, v11, 2, v8
        v_lshlrev_b32 v8, 2, v8
        v_add_u32 v{vaList}, {L_LIST}, v8
        v_bfe_u32 v9, v3, 2, 2
        v_xor_b32 v9, v9, v1
        v_lshlrev_b32 v9, 4, v9
        v_lshl_add_u32 v9, v3, 6, v9
        v_add_u32 v{vaP0}, s{s_ring}, v9
        v_xor_b32 v{vaP1}, 32, v{vaP0}
        v_and_b32 v9, 1, v3
        v_lshlrev_b32 v9, 4, v9
        v_mov_b32 v8, 0x3f80
        v_lshlrev_b32 v9, v9, v8
        v_lshrrev_b32 v8, 1, v3
        v_lshlrev_b32 v11, 2, v1
        v_sub_u32 v8, v8, v11
        """)
        for x in range(4):
            A(f"v_cmp_eq_u32 s[{s_x}:{s_x+1}], {x}, v8\nv_cmp_eq_u32 vcc, {8+x}, v8\ns_nop 0")
            A(f"v_cndmask_b32 v{vSel0+x}, 0, v9, s[{s_x}:{s_x+1}]\nv_cndmask_b32 v{vSel1+x}, 0, v9, vcc")
        A(f"""
        v_mov_b32 v{vC}, {f32(2.0**-CEXP):#x}
        v_mov_b32 v{vC+1}, {f32(2.0**-CEXP):#x}
        v_mov_b32 v{vDeg}, 0
        v_mov_b32 v{vDum}, 0x80000000
        v_lshrrev_b32 v9, 3, v0
        v_mul_u32_u24 v{vChunk8}, {CHE*8}, v9
        v_lshlrev_b32 v{vW2a}, 4, v{L}
        v_lshlrev_b32 v9, 2, v{L}
        v_add_u32 v{vaCnt}, {L_CNT}, v9
        """)
        for r in range(16):
            A(f"v_mov_b32 v{vS0+r}, 0\nv_mov_b32 v{vS1+r}, 0")

    def zerofill():
        A(f"""
        v_mov_b32 v40, 0
        v_mov_b32 v41, 0
        v_mov_b32 v42, 0
        v_mov_b32 v43, 0
        v_mov_b32 v44, {DUMMY}
        v_mov_b32 v45, {DUMMY}
        v_lshlrev_b32 v1, 3, v0
        v_add_u32 v1, {L_LIST}, v1
        ds_write_b64 v1, v[44:45]
        ds_write_b32 v{vaCnt}, v40
        ds_write_b32 v{vaCnt}, v40 offset:256
        v_lshlrev_b32 v1, 4, v0
        v_add_u32 v1, {L_AQE}, v1
        """)
        nz = ZERO_BYTES // 8192
        rem = ZERO_BYTES - nz * 8192
        for q in range(nz):
            A(f"ds_write_b128 v1, v[40:43] offset:{q*8192}")
        if rem:
            A(f"""
            v_cmp_gt_u32 vcc, {rem//16}, v0
            s_and_saveexec_b64 s[{s_x}:{s_x+1}], vcc
            ds_write_b128 v1, v[40:43] offset:{nz*8192}
            s_mov_b64 exec, s[{s_x}:{s_x+1}]
            """)

    def small():
        srd(A, sC, pB1, 512)
        A(f"""
        v_lshrrev_b32 v3, 4, v{L}
        v_lshlrev_b32 v4, 4, v3
        s_lshl_b32 s3, s{s_w}, 6
        buffer_load_dwordx4 {vr(vB1,4)}, v4, {S(sC)}, s3 offen
        v_lshlrev_b32 v5, 2, v0
        s_mov_b32 s3, {256*512}
        buffer_load_dword v{vWEr}, v5, {S(sB)}, s3 offen
        v_lshlrev_b32 v4, 3, v3
        s_mov_b32 s{sC}, s{pB2}
        s_mov_b32 s{sC+1}, s{pB2+1}
        s_mov_b32 s{sC+2}, 256
        s_lshl_b32 s3, s{s_w}, 5
        buffer_load_dwordx2 {vr(vB2,2)}, v4, {S(sC)}, s3 offen
        """)

    def eprefetch():
        A(f"""
        s_mul_i32 s3, s2, {E*8//256}
        v_lshlrev_b32 v3, 4, v0
        buffer_load_dwordx4 v[224:227], v3, {S(sE)}, s3 offen
        """)

    def f0load():
        A(f"buffer_load_dword v{vF0}, off, {S(sG)}, 0 offset:128 sc1")

    def spoll(tag, base, offreg, want):
        A(f"""
        s_mov_b32 s{s_spin}, 0x40000
        M_sp{tag}:
        s_mov_b32 s{s_x+1}, 0
        s_atomic_add s{s_x+1}, s[{base}:{base+1}], {offreg} glc
        s_sub_u32 s{s_spin}, s{s_spin}, 1
        s_cbranch_scc1 M_spd{tag}
        s_waitcnt lgkmcnt(0)
        s_cmp_lg_u32 s{s_x+1}, {want}
        s_cbranch_scc1 M_sp{tag}
        M_spd{tag}:
        s_waitcnt lgkmcnt(0)
        """)

    def f0wait(tag):
        A(f"""
        v_readfirstlane_b32 s3, v{vF0}
        s_cmp_lg_u32 s3, 0
        s_cbranch_scc1 M_pfd{tag}
        """)
        spoll("f" + tag, pDBG, 128, 1)
        A(f"M_pfd{tag}:")

    def release(base):
        A(f"""
        v_lshlrev_b32 v8, 7, v{L}
        v_mov_b32 v9, 1
        s_mov_b32 s3, {base}
        s_mov_b64 exec, 0xffff
        buffer_atomic_add v9, v8, {S(sWS)}, s3 offen sc1
        s_mov_b64 exec, -1
        """)

    def rpoll(tag, base, want):
        A(f"s_and_b32 s3, s2, 15\ns_lshl_b32 s3, s3, 7\ns_add_u32 s3, s3, {base}")
        spoll(tag, pWS, "s3", want)

    srd(A, sWS, pWS, WS_END)
    A(f"""
    v_lshlrev_b32 v3, 7, v0
    s_cmp_eq_u32 s2, 0
    s_cselect_b32 s3, 48, 0
    v_cmp_gt_u32 vcc, s3, v0
    v_mov_b32 v4, 0x40000000
    v_mov_b32 v8, 0
    v_cndmask_b32 v3, v4, v3, vcc
    s_mul_i32 s3, s2, {CHE*4}
    buffer_store_dword v8, v3, {S(sWS)}, 0 offen {SC}
    """)
    srd(A, sC, pDST, CHE * 4, off="s3")
    srd(A, sD, pSRC, CHE * 4, off="s3")
    A(f"s_mov_b32 s{s_x+1}, 4096\ns_mov_b32 s{s_x+2}, 8192")
    vD, vS = 164, 169
    so = ["0", "0", f"s{s_x+1}", f"s{s_x+1}", f"s{s_x+2}"]
    for k in range(5):
        A(f"buffer_load_dword v{vD+k}, v2, {S(sC)}, {so[k]} offen offset:{(k & 1)*2048}")
    for k in range(5):
        A(f"buffer_load_dword v{vS+k}, v2, {S(sD)}, {so[k]} offen offset:{(k & 1)*2048}")
    srd(A, sC, pW2, 256 * 256)
    srd(A, sB, pW1, 260 * 512)
    A(f"""
    v_lshlrev_b32 v3, 4, v0
    v_add_u32 v15, {L_BT}, v3
    v_add_u32 v2, {L_BC}, v2
    v_mov_b32 v4, -1
    v_mov_b32 v5, -1
    v_mov_b32 v6, -1
    v_mov_b32 v7, -1
    """)
    for q in range(4):
        A(f"ds_write_b128 v15, v[4:7] offset:{q*8192}")
    A(f"""
    ds_write_b32 v2, v8
    v_mov_b32 v9, 1
    """)
    srd(A, sD, pX, N * 256)
    srd(A, sG, pDBG, 256)
    stamp(A, 1)
    A(f"""
    s_waitcnt lgkmcnt(0)
    s_barrier
    s_waitcnt vmcnt(5)
    """)
    vb, va, vk = 16, 21, 26
    for k in range(5):
        A(f"v_mul_u32_u24 v{vb+k}, 1677, v{vD+k}")
        A(f"v_lshrrev_b32 v{vb+k}, 16, v{vb+k}")
        A(f"v_lshlrev_b32 v{va+k}, 2, v{vb+k}")
        A(f"v_add_u32 v{va+k}, {L_BC}, v{va+k}")
        if k == 4:
            A(f"v_cmp_gt_u32 vcc, {CHE - 2048}, v0\ns_and_saveexec_b64 s[{s_x+2}:{s_x+3}], vcc")
        A(f"ds_add_rtn_u32 v{vk+k}, v{va+k}, v9")
    A(f"""
    s_mov_b64 s[{s_x+4}:{s_x+5}], exec
    s_or_b32 s3, s2, s{s_w}
    s_cbranch_scc1 M_nf0
    s_mov_b64 exec, 1
    buffer_store_dword v9, off, {S(sG)}, 0 offset:128 {SC}
    M_nf0:
    s_mov_b64 exec, -1
    s_lshl_b32 s3, s2, 8
    v_add_u32 v3, s3, v0
    v_bfe_u32 v4, v3, 8, 3           ; s
    v_lshlrev_b32 v4, 5, v4
    v_bfe_u32 v5, v3, 6, 1           ; ab
    v_lshl_add_u32 v4, v5, 4, v4
    v_bfe_u32 v5, v3, 1, 1           ; e>>2
    v_lshl_add_u32 v4, v5, 3, v4
    v_bfe_u32 v5, v3, 7, 1           ; h
    v_lshl_add_u32 v4, v5, 2, v4
    v_and_b32 v5, 1, v3
    v_lshl_add_u32 v4, v5, 1, v4     ; hidden
    v_lshlrev_b32 v4, 8, v4
    v_lshrrev_b32 v5, 11, v3         ; wo
    v_lshl_add_u32 v4, v5, 5, v4
    v_bfe_u32 v5, v3, 2, 4           ; m
    v_lshl_add_u32 v4, v5, 1, v4
    v_lshrrev_b32 v5, 8, v0
    v_lshl_or_b32 v4, v5, 30, v4
    v_lshlrev_b32 v3, 2, v3
    v_lshl_or_b32 v176, v5, 30, v3
    buffer_load_ushort v174, v4, {S(sC)}, 0 offen
    buffer_load_ushort v175, v4, {S(sC)}, 0 offen offset:256
    """)
    xdma(L_XQ, s_nb0)
    small()
    A("s_waitcnt vmcnt(7)")
    for k in range(5):
        A(f"""
        v_and_b32 v{vD+k}, 63, v{vD+k}
        v_lshl_or_b32 v{vS+k}, v{vD+k}, 14, v{vS+k}
        v_add_u32 v{vD+k}, {512*k}, v0
        v_lshl_or_b32 v{vS+k}, v{vD+k}, 20, v{vS+k}
        v_lshlrev_b32 v{va+k}, 7, v{vb+k}
        v_add_u32 v{va+k}, {L_BT}, v{va+k}
        """)
    for k in range(5):
        if k == 4:
            A(f"s_mov_b64 exec, s[{s_x+4}:{s_x+5}]")
        A(f"""
        s_waitcnt lgkmcnt({4-k})
        v_add_u32 v4, v{vk+k}, v{vb+k}
        v_and_b32 v4, 7, v4
        v_lshrrev_b32 v5, 3, v{vk+k}
        v_lshl_add_u32 v4, v4, 2, v5
        v_lshl_add_u32 v{va+k}, v4, 2, v{va+k}
        v_cmp_gt_u32 vcc, 32, v{vk+k}
        s_and_saveexec_b64 s[{s_x+6}:{s_x+7}], vcc
        ds_write_b32 v{va+k}, v{vS+k}
        s_mov_b64 exec, s[{s_x+6}:{s_x+7}]
        """)
    A(f"""
    s_mov_b64 exec, -1
    v_lshrrev_b32 v4, 3, v0
    v_lshlrev_b32 v5, 2, v4
    v_add_u32 v5, {L_BC}, v5
    v_and_b32 v6, 7, v0
    v_lshlrev_b32 v7, 13, v4
    v_lshl_add_u32 v7, v6, 4, v7
    s_lshl_b32 s3, s2, 7
    s_add_u32 s3, s3, {WS_SLOT}
    v_add_u32 v7, s3, v7
    v_cmp_eq_u32 s[{s_x+2}:{s_x+3}], 7, v6
    v_mov_b32 v8, -2
    s_mov_b32 s{s_x+4}, 0
    s_mov_b32 s{s_x+5}, {64*8192}
    s_mov_b32 s{s_x+6}, {128*8192}
    s_mov_b32 s{s_x+7}, {192*8192}
    s_waitcnt lgkmcnt(0)
    s_barrier
    """)
    stamp(A, 2)
    for q in range(4):
        A(f"ds_read_b128 {vr(16+4*q,4)}, v15 offset:{q*8192}")
        A(f"ds_read_b32 v{32+q}, v5 offset:{q*256}")
    A(f"s_mov_b32 s3, {WS_W2F}")
    for q in range(4):
        A(f"""
        s_waitcnt lgkmcnt({6-2*q})
        v_cmp_lt_u32 vcc, 32, v{32+q}
        s_and_b64 vcc, vcc, s[{s_x+2}:{s_x+3}]
        s_nop 1
        v_cndmask_b32 v{19+4*q}, v{19+4*q}, v8, vcc
        buffer_store_dwordx4 {vr(16+4*q,4)}, v7, {S(sWS)}, s{s_x+4+q} offen {SC}
        """)
    A(f"s_waitcnt vmcnt(9)\nv_lshl_or_b32 v174, v175, 16, v174\nbuffer_store_dword v174, v176, {S(sWS)}, s3 offen {SC}")
    stamp(A, 3)
    f0load()
    gaddr()
    consts()
    A(f"""
    s_waitcnt vmcnt(0)
    s_barrier
    s_cmp_lg_u32 s{s_w}, 0
    s_cbranch_scc1 M_nlast2
    """)
    stamp(A, 16)
    A(f"""
    s_and_b32 s3, s2, 1
    s_lshl_b32 s3, s3, 6
    s_mov_b32 s{s_x}, 1
    s_atomic_add s{s_x}, s[{pDBG}:{pDBG+1}], s3 glc
    """)
    f0wait("b")
    A(f"""
    s_waitcnt lgkmcnt(0)
    s_and_b32 s3, s{s_x}, {NCH//2 - 1}
    s_cmp_lg_u32 s3, {NCH//2 - 1}
    s_cbranch_scc1 M_nlast
    """)
    release(WS_RB)
    A("M_nlast:")
    stamp(A, 17)
    A("M_nlast2:")
    srd(A, sA, pWS, 0)
    A(f"v_mov_b32 v{vPa}, 0")
    wdma(128 * 512)
    EPF = 3 if "epf" in OPT else 0
    if EPF:
        A(f"s_mul_i32 s3, s2, {CHE*8}")
        srd(A, sC, pE, CHE * 8, off="s3")
        A(f"v_lshlrev_b32 v3, 4, v0\ns_mov_b32 s3, 16384\ns_mov_b32 s{s_x+2}, 8192")
        A(f"buffer_load_dwordx4 v[224:227], v3, {S(sC)}, 0 offen")
        A(f"buffer_load_dwordx4 v[224:227], v3, {S(sC)}, s{s_x+2} offen")
        A(f"buffer_load_dwordx4 v[224:227], v3, {S(sC)}, s3 offen")
    zerofill()
    A("s_branch M_join")
    A("M_pwg:")
    srd(A, sD, pX, N * 256)
    srd(A, sB, pW1, 260 * 512)
    A(f"s_sub_u32 s{s_t}, s2, {NCH}\ns_mul_i32 s{s_t}, s{s_t}, {PROWS}")
    xdma(L_XP, s_t)
    A(f"""
    s_and_b32 s3, s2, -8
    s_add_u32 s3, s3, s{s_w}
    s_and_b32 s3, s3, 127
    s_lshl_b32 s3, s3, 10
    v_lshlrev_b32 v3, 4, v{L}
    buffer_load_dwordx4 v[16:19], v3, {S(sB)}, s3 offen
    """)
    srd(A, sWS, pWS, WS_END)
    srd(A, sG, pDBG, 256)
    consts()
    zerofill()
    wdma(0)
    stamp(A, 1)
    gaddr()
    A(f"""
    v_add_u32 v15, {L_XP}, v{vXr}
    v_add_u32 v11, s{s_t}, v4
    v_lshlrev_b32 v11, 9, v11
    v_lshl_add_u32 v11, v3, 4, v11
    s_lshl_b32 s3, s{s_w}, 6
    v_add_u32 v{vPa}, s3, v11
    s_add_u32 s3, s{s_t}, {PROWS}
    s_min_u32 s3, s3, {N}
    s_lshl_b32 s3, s3, 9
    """)
    srd(A, sA, pWS, "s3", off=WS_P)
    A(f"""
    s_waitcnt vmcnt(8)
    s_barrier
    """)
    stamp(A, 2)

    def pstore(mt):
        A(f"s_mov_b32 s3, {mt*8192}\nbuffer_store_dwordx4 {vr(vPO+4*mt,4)}, v{vPa}, {S(sA)}, s3 offen {SC}")

    for s in range(4):
        if s:
            A(f"v_xor_b32 v4, {s << 6:#x}, v15")
        for mt in range(4):
            A(f"ds_read_b128 {vr(vXP + 16*mt + 4*s, 4)}, v{4 if s else 15} offset:{mt*4096}")
    gemm_part(A, None, 4, vXP, vm=[6, 4, 2, 0])
    stamp(A, 18)
    f0load()
    xdma(L_XQ, s_nb0)
    small()
    wdma(128 * 512)
    gemm_pack(A, 4, lambda mt: pstore(mt) if mt in EARLY else None)
    stamp(A, 3)
    A(f"s_waitcnt vmcnt({8 + len(EARLY)})")
    A("M_join:")
    A(f"""
    s_cmp_lg_u32 s{s_w}, 0
    s_cbranch_scc1 M_w1d
    """)
    f0wait("a")
    rpoll("a", WS_RB, 2)
    A("M_w1d:")
    stamp(A, 4)
    A(f"""
    s_mov_b32 s{s_x+2}, {QS - 512}
    v_lshlrev_b32 v8, 16, v{vWEr}
    v_and_b32 v9, 0xffff0000, v{vWEr}
    v_mul_f32 v8, v12, v8
    v_mul_f32 v9, v12, v9
    v_cvt_pk_bf16_f32 v10, v8, v9
    v_lshrrev_b32 v4, 7, v0          ; f
    v_lshlrev_b32 v5, 16, v10
    v_and_b32 v6, 0xffff0000, v10
    v_sub_f32 v8, v8, v5
    v_sub_f32 v9, v9, v6
    v_cvt_pk_bf16_f32 v11, v8, v9
    v_lshlrev_b32 v5, 2, v0
    v_mad_u32_u24 v5, v4, s{s_x+2}, v5
    v_add_u32 v5, {L_WE}, v5
    ds_write_b32 v5, v10
    ds_write_b32 v5, v11 offset:{4*QS}
    """)
    for x in range(4):
        A(f"v_lshlrev_b32 v{vB1+4+2*x}, 16, v{vB1+x}\nv_and_b32 v{vB1+5+2*x}, 0xffff0000, v{vB1+x}")
    stamp(A, 5)
    A(f"""
    v_add_u32 v15, {L_XQ}, v{vXr}
    s_lshl_b32 s{s_x}, s2, 13
    s_add_u32 s{s_x}, s{s_x}, {WS_SLOT}
    v_lshlrev_b32 v1, 4, v0
    s_waitcnt lgkmcnt(0)
    s_barrier
    buffer_load_dwordx4 v[4:7], v1, {S(sWS)}, s{s_x} offen {SC}
    """)
    for mt in range(4):
        if mt not in EARLY:
            pstore(mt)
    NL = 4 - len(EARLY)
    stamp(A, 6)
    for s in range(4):
        if s:
            A(f"v_xor_b32 v8, {s << 6:#x}, v15")
        for mt in range(3):
            A(f"ds_read_b128 {vr(vXF + 16*mt + 4*s, 4)}, v{8 if s else 15} offset:{mt*4096}")
    A(f"""
    s_cmp_ge_u32 s2, {NCH}
    s_cbranch_scc1 M_tk1a
    s_waitcnt vmcnt({1 + NL + EPF}) lgkmcnt(0)
    s_branch M_tk1
    M_tk1a:
    s_waitcnt vmcnt(5) lgkmcnt(0)
    M_tk1:
    """)
    gemm_part(A, vB1 + 4, 3, vXF)
    A(f"""
    v_and_b32 v8, 15, v{L}           ; n
    v_lshrrev_b32 v9, 4, v{L}        ; q
    v_lshlrev_b32 v9, 4, v9
    v_mul_u32_u24 v8, {QS}, v8
    s_lshl_b32 s3, s{s_w}, 6
    s_add_u32 s3, s3, {L_Q}
    v_add3_u32 v{vQa}, v8, v9, s3
    """)
    gemm_pack(A, 3, lambda mt: None, vPO=vQO)
    stamp(A, 7)
    A(f"s_waitcnt vmcnt({NL})\nM_recs:")
    stamp(A, 8)
    vD4, vRk, vEo, vEv, vBs, vTa = 16, 20, 24, 28, 36, 40
    A(f"s_mov_b32 s{s_x}, 0xfff00000\nv_mov_b32 v1, 1")
    for j in range(4):
        A(f"v_cmp_gt_u32 s[{sM+2*j}:{sM+2*j+1}], s{s_x}, v{4+j}")
    def egather():
        for j in range(4):
            A(f"""
            s_mov_b64 exec, s[{sM+2*j}:{sM+2*j+1}]
            buffer_load_dwordx2 {vr(vEv+2*j,2)}, v{vEo+j}, {S(sE)}, 0 offen
            """)
        A("s_mov_b64 exec, -1")

    for j in range(4):
        A(f"""
        v_lshrrev_b32 v{vEo+j}, 20, v{4+j}
        v_lshl_add_u32 v{vEo+j}, v{vEo+j}, 3, v{vChunk8}
        """)
    for j in range(4):
        A(f"""
        s_mov_b64 exec, s[{sM+2*j}:{sM+2*j+1}]
        s_cbranch_execz M_r1_{j}
        v_lshrrev_b32 v{vD4+j}, 12, v{4+j}
        v_subrev_u32 v{vD4+j}, s{s_nb4}, v{vD4+j}
        v_and_b32 v{vD4+j}, 0xfc, v{vD4+j}
        v_add_u32 v8, {L_CNT}, v{vD4+j}
        ds_add_rtn_u32 v{vRk+j}, v8, v1
        v_and_b32 v{4+j}, 0x3fff, v{4+j}
        M_r1_{j}:
        """)
        if j == 2:
            A(f"""
            s_mov_b64 exec, -1
            v_cmp_eq_u32 vcc, -2, v7
            s_and_b64 exec, exec, vcc
            s_cbranch_execz M_nomark
            v_mov_b32 v8, {L_CNT + 63*4}
            v_mov_b32 v9, 0x10000
            ds_add_u32 v8, v9
            M_nomark:
            """)
    A(f"""
    s_mov_b64 exec, -1
    s_mov_b32 s{s_alt}, 0
    s_mov_b32 s{s_sw}, 0
    v_lshlrev_b32 v9, 4, v{L}
    v_add_u32 v{vaAgg}, {L_AGG}, v9
    v_lshlrev_b32 v11, 2, v{L}
    v_add_u32 v11, 32, v11
    s_waitcnt vmcnt(0) lgkmcnt(0)
    s_barrier
    """)
    stamp(A, 21)
    A(f"""
    ds_read_b32 v8, v{vaCnt}
    v_mov_b32 v57, 0
    s_cmp_lg_u32 s{s_w}, 1
    s_cbranch_scc1 M_tk0
    s_cmp_lg_u32 s{s_slow}, 0
    s_cbranch_scc1 M_tk0
    s_and_b32 s3, s2, 15
    s_lshl_b32 s3, s3, 7
    v_mov_b32 v57, 1
    s_mov_b64 exec, 1
    buffer_atomic_add v57, off, {S(sWS)}, s3 sc0 sc1
    s_mov_b64 exec, -1
    M_tk0:
    s_cmp_lg_u32 s{s_slow}, 0
    s_cbranch_scc1 M_noq
    """)
    for mt in range(3):
        A(f"ds_write_b128 v{vQa}, {vr(vQO+4*mt,4)} offset:{mt*16*QS}")
    A("M_noq:")
    for r in range(16):
        A(f"v_mov_b32 v{vACC+r}, 0")
    A(f"""
    s_waitcnt lgkmcnt(3)
    s_cmp_eq_u32 s{s_slow}, 0
    s_cbranch_scc1 M_noq2
    s_waitcnt lgkmcnt(0)
    M_noq2:
    v_add_u32 v9, 1, v8
    v_and_b32 v9, -2, v9
    v_mov_b32 v10, v9
    v_mov_b32 v{vH}, 0
    v_mov_b32 v{vH+1}, 0
    v_add_u32_dpp v10, v10, v10 row_shr:1 row_mask:0xf bank_mask:0xf bound_ctrl:0
    v_mov_b32 v{vH+2}, 0
    v_mov_b32 v{vH+3}, 0
    v_add_u32_dpp v10, v10, v10 row_shr:2 row_mask:0xf bank_mask:0xf bound_ctrl:0
    v_mov_b32 v{vAgg}, 0
    v_mov_b32 v{vAgg+1}, 0
    v_add_u32_dpp v10, v10, v10 row_shr:4 row_mask:0xf bank_mask:0xf bound_ctrl:0
    s_nop 1
    v_add_u32_dpp v10, v10, v10 row_shr:8 row_mask:0xf bank_mask:0xf bound_ctrl:0
    s_nop 1
    v_add_u32_dpp v10, v10, v10 row_bcast:15 row_mask:0xa bank_mask:0xf
    s_nop 1
    v_add_u32_dpp v10, v10, v10 row_bcast:31 row_mask:0xc bank_mask:0xf
    s_nop 0
    v_sub_u32 v{vBase}, v10, v9
    v_readlane_b32 s{s_tot}, v10, 63
    s_cmp_lg_u32 s{s_w}, 1
    s_cbranch_scc1 M_derive
    s_waitcnt vmcnt(0)
    v_readfirstlane_b32 s3, v57
    s_cmp_lg_u32 s3, 15
    s_cbranch_scc1 M_derive
    """)
    if "srel" in OPT:
        A(f"s_mov_b32 s{s_one}, 1")
        for i in range(16):
            A(f"s_atomic_add s{s_one}, s[{pWS}:{pWS+1}], {WS_RP + 128*i}")
    else:
        A(f"""
        v_lshlrev_b32 v12, 7, v{L}
        v_mov_b32 v13, 1
        s_mov_b32 s3, {WS_RP}
        s_mov_b64 exec, 0xffff
        buffer_atomic_add v13, v12, {S(sWS)}, s3 offen sc1
        s_mov_b64 exec, -1
        """)
    A(f"""
    M_derive:
    """)
    for j in range(4):
        A(f"ds_bpermute_b32 v{vBs+j}, v{vD4+j}, v{vBase}")
    A(f"""
    ds_bpermute_b32 v12, v11, v{vBase}
    s_cmp_gt_u32 s{s_tot}, {CAP_T*32}
    s_cbranch_scc1 M_goslow
    v_readlane_b32 s{s_T0p}, v{vBase}, 32
    s_add_u32 s{s_T}, s{s_tot}, 31
    s_lshr_b32 s{s_T}, s{s_T}, 5
    v_add3_u32 v13, v{vBase}, v9, 31
    v_and_b32 v13, -32, v13                ; end of the tile that holds node i's last slot
    s_waitcnt lgkmcnt(0)
    v_cmp_gt_u32 vcc, v13, v12
    v_cmp_ne_u32 s[{s_x}:{s_x+1}], s{s_tot}, v12
    s_andn2_b32 s{s_x+1}, vcc_lo, s{s_alt}
    s_and_b32 s{s_x}, s{s_x}, s{s_x+1}
    s_cbranch_scc1 M_align
    """)
    stamp(A, 22)
    A(f"""
    v_mov_b32 v1, 0x3f80
    """)
    for j in range(4):
        A(f"""
        s_mov_b64 exec, s[{sM+2*j}:{sM+2*j+1}]
        s_cbranch_execz M_r2_{j}
        v_add_u32 v{vRk+j}, v{vRk+j}, v{vBs+j}
        v_lshlrev_b32 v9, 2, v{vRk+j}
        v_add_u32 v9, {L_LIST}, v9
        ds_write_b32 v9, v{4+j}
        v_and_b32 v9, 0x80, v{vD4+j}
        v_add_u32 v9, v9, v{vD4+j}
        v_and_b32 v10, 14, v{vRk+j}
        v_lshl_add_u32 v9, v9, 2, v10
        v_lshrrev_b32 v10, 4, v{vRk+j}
        v_lshl_add_u32 v9, v10, 9, v9
        v_add_u32 v9, {L_AGG}, v9
        ds_write_b16 v9, v1
        v_lshrrev_b32 v9, 3, v{vRk+j}
        v_and_b32 v10, 31, v{vRk+j}
        v_and_b32 v9, -4, v9
        v_cmp_eq_u32 vcc, 0, v10
        v_add_u32 v{vTa+j}, {L_N0}, v9
        s_and_b64 exec, exec, vcc
        ds_write_b32 v{vTa+j}, v{vD4+j}
        M_r2_{j}:
        """)
    if "elate" in OPT:
        A("s_mov_b64 exec, -1")
    else:
        egather()
    A(f"""
    s_cmp_lt_u32 s{s_T0p}, s{s_tot}
    s_cselect_b32 s{s_x}, 5, 31
    s_cselect_b32 s{s_x+1}, 1, 0x7fffffff
    s_lshr_b32 s{s_T0p}, s{s_T0p}, s{s_x}
    s_add_u32 s{s_T0p}, s{s_T0p}, s{s_x+1}
    v_add_u32 v{vDeg}, v{vDeg}, v8
    s_mul_i32 s{s_pri}, s{s_T}, {PRIO_NUM}
    s_lshr_b32 s{s_pri}, s{s_pri}, 5
    s_cmp_lt_u32 s{s_w}, 4
    s_cselect_b32 s{s_pri}, 0x7fffffff, s{s_pri}
    s_sub_u32 s{s_next}, s{s_T}, 1
    s_min_i32 s{s_next}, s{s_next}, s{s_T0p}
    s_min_i32 s{s_next}, s{s_next}, s{s_pri}
    v_mov_b32 v1, 0x3f80
    """)
    OO = [2, 10, 172]
    A(f"""
    v_and_b32 v8, 15, v{L}               ; n
    v_lshlrev_b32 v9, 2, v8
    ds_bpermute_b32 v48, v9, v{vDeg}
    v_add_u32 v9, 64, v9
    ds_bpermute_b32 v49, v9, v{vDeg}
    v_add_u32 v9, 64, v9
    ds_bpermute_b32 v50, v9, v{vDeg}
    v_lshrrev_b32 v9, 4, v{L}            ; q
    v_bfe_u32 v14, v8, 1, 2
    v_xor_b32 v14, v14, v9
    v_lshlrev_b32 v14, 4, v14
    v_lshl_add_u32 v14, v8, 6, v14
    v_add_u32 v15, s{s_nb0}, v8
    v_lshlrev_b32 v15, 8, v15
    v_lshl_add_u32 v15, v9, 3, v15
    s_lshl_b32 s3, s{s_w}, 5
    v_add_u32 v15, s3, v15
    v_and_b32 v8, 31, v{L}
    v_lshrrev_b32 v9, 5, v{L}
    v_lshlrev_b32 v9, 1, v9
    v_bfe_u32 v6, v8, 1, 2
    v_xor_b32 v6, v6, v9
    v_lshlrev_b32 v6, 4, v6
    v_lshl_add_u32 v6, v8, 6, v6
    v_add_u32 v6, s{s_ring}, v6
    v_xor_b32 v7, 16, v6
    v_lshlrev_b32 v52, 16, v{vB2}
    v_and_b32 v53, 0xffff0000, v{vB2}
    v_lshlrev_b32 v54, 16, v{vB2+1}
    v_and_b32 v55, 0xffff0000, v{vB2+1}
    s_lshl_b32 s3, s{s_nb1}, 8
    """)
    srd(A, sA, pOUT, "s3")
    A(f"""
    s_waitcnt lgkmcnt(0)
    v_cvt_f32_u32 v48, v48
    v_cvt_f32_u32 v49, v49
    v_cvt_f32_u32 v50, v50
    """)
    for mt in range(3):
        for i in range(4):
            A(f"v_mul_f32 v{OO[mt]+i}, v{48+mt}, v{52+i}")
    A(f"v_mov_b32 v56, {L_N0}")
    stamp(A, 23)
    A(f"""
    v_mov_b32 v{vAgg+2}, 0
    v_mov_b32 v{vAgg+3}, 0
    s_waitcnt lgkmcnt(0)
    s_barrier
    """)
    stamp(A, 9)
    PSC = "sc1" if "psc1" in OPT else ("nt" if "pnt" in OPT else ("sc0 sc1" if "psc01" in OPT else ""))

    def dma(t, jj):
        r = vOff + 2 * t + jj if t < CAP_T else vDum
        fl = "nt" if t >= NT0 else PSC
        return f"buffer_load_dwordx4 v{r}, {S(sP)}, 0 offen offset:{(t & 1)*2048 + jj*1024} {fl} lds"

    def m0set(t):
        return f"s_mov_b32 m0, s{s_ring if (t % 4) < 2 else s_ringh}"

    def offs(lo, hi, after=None):
        for t0 in range(lo, hi, 8):
            ts = range(t0, min(t0 + 8, hi))
            for t in ts:
                A(f"ds_read_b64 {vr(vOff+2*t,2)}, v{vaList} offset:{t*128}")
            for i, t in enumerate(ts):
                A(f"s_waitcnt lgkmcnt({len(ts)-1-i})")
                for jj in range(2):
                    A(f"v_lshl_add_u32 v{vOff+2*t+jj}, v{vOff+2*t+jj}, 9, v{vK0 + 2*(t & 1) + jj}")
                if after:
                    after(t)

    for j in range(4):
        A(f"ds_read_b32 v{vBs+j}, v{vTa+j}")
    for g in range(7):
        A(f"ds_read_b128 {vr(vBa+4*g,4)}, v56 offset:{16*g}")
    offs(0, 6)
    A(f"""
    s_mov_b32 s{s_f0}, 16
    s_cmp_lg_u32 s{s_w}, 0
    s_cbranch_scc1 M_nolook
    s_and_b32 s3, s2, 15
    s_lshl_b32 s3, s3, 7
    s_add_u32 s3, s3, {WS_RP}
    s_mov_b32 s{s_f0}, 0
    s_atomic_add s{s_f0}, s[{pWS}:{pWS+1}], s3 glc
    M_nolook:
    """)
    stamp(A, 19)
    A("s_waitcnt vmcnt(0)")
    stamp(A, 20)
    for j in range(4):
        A(f"""
        s_mov_b64 exec, s[{sM+2*j}:{sM+2*j+1}]
        s_cbranch_execz M_r3_{j}
        v_lshlrev_b32 v8, 4, v{vRk+j}
        v_add_u32 v8, {L_AQE}, v8
        ds_write2_b64 v8, {vr(vEv+2*j,2)}, {vr(vEv+2*j,2)} offset0:0 offset1:1
        v_sub_u32 v9, v{vD4+j}, v{vBs+j}
        v_lshrrev_b32 v9, 1, v9
        v_add_u32 v9, v9, v8
        ds_write_b16 v9, v1 offset:{L_AQH - L_AQE}
        M_r3_{j}:
        """)
    A("s_mov_b64 exec, -1")
    A(f"""
    {m0set(0)}
    s_waitcnt lgkmcnt(0)
    s_cmp_eq_u32 s{s_f0}, 16
    s_cbranch_scc1 M_w2
    """)
    rpoll("b", WS_RP, 16)
    A("M_w2:\ns_barrier")
    stamp(A, 10)
    A(f"""
    s_cmp_eq_u32 s{s_T}, 0
    s_cbranch_scc1 M_bend
    {dma(0, 0)}
    {dma(0, 1)}
    """)
    stamp(A, 11)

    def bread(t):
        r = vBa + min(t, CAP_T - 1)
        return [f"ds_read_b64_tr_b16 {vr(vBq,2)}, v{r}", f"ds_read_b64_tr_b16 {vr(vBq+2,2)}, v{r} offset:{4*QS}"]

    def w2load(s):
        return f"buffer_load_dwordx4 {vr(vW2+4*s,4)}, v{vW2a}, {S(sWS)}, s{s_w2 + (s >> 2)} offen offset:{(s & 3)*1024} sc1"

    for t in range(CAP_T):
        A(f"v_mad_u32_u24 v{vBa+t}, v{vBa+t}, v{vBmul}, v{vaB}")
    A("\n".join(bread(0)))
    A(f"""
    ds_read_b128 {vr(vAqe,4)}, v{vaAqe}
    {dma(1, 0)}
    {dma(1, 1)}
    {m0set(2)}
    s_cmp_lt_u32 s{s_w}, 4
    s_cbranch_scc1 M_nopri
    s_setprio 1
    M_nopri:
    """)
    offs(6, CAP_T)
    mfma32(A, vU[0], vAqe, vBq, None)
    A("\n".join(bread(1)))
    A(f"""
    ds_read_b128 {vr(vAqe,4)}, v{vaAqe} offset:512
    s_waitcnt vmcnt(2)
    ds_read_b128 {vr(vPf0,4)}, v{vaP0}
    ds_read_b128 {vr(vPf1,4)}, v{vaP1}
    {dma(2, 0)}
    {dma(2, 1)}
    s_waitcnt lgkmcnt(1)
    """)
    mfma32(A, vU[0], vPf0, vSel0, vU[0])
    A("s_waitcnt lgkmcnt(0)")
    mfma32(A, vU[0], vPf1, vSel1, vU[0])
    A("s_nop 11")
    stamp(A, 12)

    def second_half(B, U, aggread):
        mfma32(B, vACC, vH, vAgg, vACC)
        for i in range(8):
            B(f"v_rcp_f32 v{vT+i}, v{vT+i}")
            if i == 4:
                B(aggread)
        for i in range(0, 8, 2):
            B(f"v_pk_mul_f32 {vr(U+i,2)}, {vr(U+i,2)}, {vr(vT+i,2)}")
        for i in range(0, 8, 2):
            B(f"v_cvt_pk_bf16_f32 v{vH+i//2}, v{U+i}, v{U+i+1}")

    vmq = ["d"] * (2 * (D + 1))

    def vm_need(t):
        seen = 0
        for i, k in enumerate(vmq):
            if k == "d":
                seen += 1
                if seen == 2 * (t + 1):
                    return len(vmq) - 1 - i

    ool = Asm()
    A(".p2align 3")
    for t in range(CAP_T):
        U, Un = vU[t & 1], vU[(t + 1) & 1]
        tn = t + 1 + D
        s2 = ((t + 2) % D) * 2048
        ex = [f"v_exp_f32 v{vT+i}, v{U+i}" for i in range(16)]
        if "itst" in OPT:
            A(f"s_memtime s[100:101]")
        late_vm = t < 3
        FIRST = t == 0
        if not FIRST:
            A(f"s_waitcnt lgkmcnt(0)" if late_vm else f"s_waitcnt vmcnt({vm_need(t+2)}) lgkmcnt(0)")
        if "itst" in OPT:
            A(f"s_waitcnt lgkmcnt(0)\nv_writelane_b32 v{vSt}, s100, {16+t}")
        if FIRST:
            A("\n".join(ex[0:4] + [dma(3, 0), dma(3, 1), m0set(D)] + ex[4:10] + [dma(D, 0), dma(D, 1)] + ex[10:16]))
        else:
            mfma32(A, Un, vAqe, vBq, None)
            A("\n".join(ex[0:4]))
            mfma32(A, Un, vPf0, vSel0, Un)
            A("\n".join(ex[4:8]))
            mfma32(A, Un, vPf1, vSel1, Un)
            A("\n".join(ex[8:16]))
        pk = [f"v_pk_fma_f32 {vr(vT+i,2)}, {vr(vT+i,2)}, {vr(vC,2)}, {vr(vC,2)} clamp" for i in (0, 8, 2, 10, 4, 12, 6, 14)]
        pk += [f"v_pk_mul_f32 {vr(U+i,2)}, {vr(U+i,2)}, {vr(vT+8+i,2)}" for i in range(0, 8, 2)]
        pk += [f"v_pk_fma_f32 {vr(U+i,2)}, {vr(U+8+i,2)}, {vr(vT+i,2)}, {vr(U+i,2)}" for i in range(0, 8, 2)]
        pk += [f"v_pk_mul_f32 {vr(vT+i,2)}, {vr(vT+i,2)}, {vr(vT+8+i,2)}" for i in range(0, 8, 2)]
        b0, b1 = bread(t + 2)
        g_ds = ([m0set(tn)] if tn % 2 == 0 else []) + [f"ds_read_b128 {vr(vAqe,4)}, v{vaAqe} offset:{(t+2)*512}", b0, b1]
        g_p = [f"ds_read_b128 {vr(vPf0,4)}, v{vaP0} offset:{s2}", f"ds_read_b128 {vr(vPf1,4)}, v{vaP1} offset:{s2}"]
        g_vm = [dma(tn, 0), dma(tn, 1)]
        if FIRST:
            groups = {14: [f"s_waitcnt vmcnt({vm_need(1)})", f"ds_read_b128 {vr(vPf0,4)}, v{vaP0} offset:2048",
                           f"ds_read_b128 {vr(vPf1,4)}, v{vaP1} offset:2048"]}
            tail0 = g_ds + g_vm + [f"s_waitcnt vmcnt({vm_need(2) + 2})"] + g_p
        elif late_vm:
            groups = {2: g_ds, 12: [f"s_waitcnt vmcnt({vm_need(t+2)})"] + g_p + g_vm}
        else:
            groups = {2: g_ds + g_p, 9: g_vm}
        vmq += ["d", "d"]
        if W2T0 <= t < W2T0 + 8:
            g_vm.append(w2load(t - W2T0))
            vmq.append("w")
        groups[16] = [f"s_cmp_le_i32 s{s_next}, {t}"]
        for i, x in enumerate(pk):
            A(x)
            for y in groups.get(i, []):
                if not ("nodma" in OPT and " lds" in y):
                    A(y)
        A(f"s_cbranch_scc1 M_ev{t}\nM_evr{t}:")
        if FIRST:
            rc = [f"v_rcp_f32 v{vT+i}, v{vT+i}" for i in range(8)]
            A("s_waitcnt lgkmcnt(2)")
            mfma32(A, Un, vAqe, vBq, None)
            A("\n".join(rc[0:3]) + "\ns_waitcnt lgkmcnt(0)")
            mfma32(A, Un, vPf0, vSel0, Un)
            A("\n".join(rc[3:6]))
            mfma32(A, Un, vPf1, vSel1, Un)
            A("\n".join(rc[6:8]))
            A(f"ds_read_b128 {vr(vAgg,4)}, v{vaAgg}")
            A("\n".join(tail0))
            for i in range(0, 8, 2):
                A(f"v_pk_mul_f32 {vr(U+i,2)}, {vr(U+i,2)}, {vr(vT+i,2)}")
            for i in range(0, 8, 2):
                A(f"v_cvt_pk_bf16_f32 v{vH+i//2}, v{U+i}, v{U+i+1}")
        else:
            second_half(A, U, f"ds_read_b128 {vr(vAgg,4)}, v{vaAgg} offset:{t*1024}")
        ool(f"""
        M_ev{t}:
        s_movk_i32 s{s_t}, {t}
        s_call_b64 s[{s_ret}:{s_ret+1}], M_rare
        s_cbranch_scc1 M_tail{t & 1}
        s_branch M_evr{t}
        """)
    A("s_branch M_fin")
    for p in range(2):
        A(f"""
        M_tail{p}:
        s_lshl_b32 s3, s{s_t}, 10
        v_add_u32 v8, s3, v{vaAgg}
        """)
        second_half(A, vU[p], f"ds_read_b128 {vr(vAgg,4)}, v8")
        if p == 0:
            A("s_branch M_fin")
    A(f"""
    M_fin:
    s_mov_b32 s{s_t}, s{s_T}
    s_cmp_eq_u32 s{s_T0p}, s{s_T}
    s_cbranch_scc0 M_fin2
    s_call_b64 s[{s_ret}:{s_ret+1}], M_rare
    M_fin2:
    s_waitcnt lgkmcnt(0)
    """)
    mfma32(A, vACC, vH, vAgg, vACC)
    stamp(A, 13)
    A(f"""
    s_cmp_lg_u32 s{s_sw}, 0
    s_nop 11
    s_cbranch_scc1 M_fin_hi
    """)
    for r in range(16):
        A(f"v_add_f32 v{vS0+r}, v{vS0+r}, v{vACC+r}")
    A("s_branch M_bend\nM_fin_hi:")
    for r in range(16):
        A(f"v_add_f32 v{vS1+r}, v{vS1+r}, v{vACC+r}")
    K = -math.log(2.0) * 2.0 ** -CEXP
    A(f"""
    M_bend:
    s_setprio 0
    s_cmp_lg_u32 s{s_slow}, 0
    s_cbranch_scc1 M_next
    M_epi:
    s_cmp_gt_u32 s{s_T}, {W2T0 + 8}
    s_cbranch_scc1 M_epi2
    """)
    for s_ in range(8):
        A(w2load(s_))
    A(f"""
    M_epi2:
    v_mov_b32 v{vC}, {f32(K):#x}
    v_mov_b32 v{vC+1}, {f32(K):#x}
    """)
    for Sx, o in ((vS0, 16), (vS1, 24)):
        for r in range(0, 16, 2):
            A(f"v_pk_mul_f32 {vr(Sx+r,2)}, {vr(Sx+r,2)}, {vr(vC,2)}")
        for r in range(0, 16, 2):
            A(f"v_cvt_pk_bf16_f32 v{o+r//2}, v{Sx+r}, v{Sx+r+1}")
        if o == 16:
            A("s_waitcnt vmcnt(0)\nds_write_b128 v6, v[16:19]\nds_write_b128 v7, v[20:23]")
    A(f"""
    ds_write_b128 v6, v[24:27] offset:2048
    ds_write_b128 v7, v[28:31] offset:2048
    s_mov_b32 s{s_x}, 4096
    s_mov_b32 s{s_x+1}, 8192
    s_waitcnt lgkmcnt(0)
    s_barrier
    """)
    stamp(A, 14)
    SFR = 48
    order = [(s, mt) for s in range(8) for mt in range(3)]
    RS = D * 2048
    AHEAD = 12
    for k in range(AHEAD):
        s, mt = order[k]
        A(f"ds_read_b128 {vr(SFR+4*k,4)}, v14 offset:{s*RS+mt*1024}")
    for k in range(24):
        s, mt = order[k]
        A(f"s_waitcnt lgkmcnt({min(AHEAD - 1, 23 - k)})")
        mfma16(A, OO[mt], vW2 + 4 * s, SFR + 4 * k, OO[mt])
        if k + AHEAD < 24:
            s2, mt2 = order[k + AHEAD]
            A(f"ds_read_b128 {vr(SFR+4*(k+AHEAD),4)}, v14 offset:{s2*RS+mt2*1024}")
    A("s_nop 5")
    for mt in range(3):
        A(f"""
        v_cvt_pk_bf16_f32 v{16+2*mt}, v{OO[mt]}, v{OO[mt]+1}
        v_cvt_pk_bf16_f32 v{17+2*mt}, v{OO[mt]+2}, v{OO[mt]+3}
        buffer_store_dwordx2 {vr(16+2*mt,2)}, v15, {S(sA)}, {["0", f"s{s_x}", f"s{s_x+1}"][mt]} offen
        """)
    if (SPIN is not None and SPIN[0] == 15) or ENC is not None:
        A("s_waitcnt vmcnt(0)")
        stamp(A, 15)
    if STAMPS:
        A("s_waitcnt vmcnt(0)")
        stamp(A, 15)
        srd(A, sA, pWS, 0x80000, off=WS_ST)
        A(f"""
        s_lshl_b32 s3, s2, 3
        s_add_u32 s3, s3, s{s_w}
        s_lshl_b32 s3, s3, 8
        v_lshl_add_u32 v1, v{L}, 2, s3
        buffer_store_dword v{vSt}, v1, {S(sA)}, 0 offen
        """)
    A("M_end:\ns_endpgm")

    A(f"""
    M_rare:
    s_cmp_eq_u32 s{s_T0p}, s{s_t}
    s_cbranch_scc0 M_rare2
    s_waitcnt lgkmcnt(0)
    """)
    mfma32(A, vACC, vH, vAgg, vACC)
    A(f"""
    s_lshl_b32 s3, s{s_t}, 10
    v_add_u32 v8, s3, v{vaAgg}
    v_add_u32 v{vaAgg}, 1024, v{vaAgg}
    s_mov_b32 s{s_sw}, 1
    s_mov_b32 s{s_T0p}, 0x7fffffff
    ds_read_b128 {vr(vAgg,4)}, v8
    s_nop 8
    """)
    for r in range(16):
        A(f"v_add_f32 v{vS0+r}, v{vS0+r}, v{vACC+r}")
    for r in range(16):
        A(f"v_mov_b32 v{vACC+r}, 0")
    A(f"""
    s_waitcnt lgkmcnt(0)
    M_rare2:
    s_cmp_le_i32 s{s_pri}, s{s_t}
    s_cbranch_scc0 M_rare3
    s_setprio 0
    s_mov_b32 s{s_pri}, 0x7fffffff
    M_rare3:
    s_sub_u32 s3, s{s_T}, 1
    s_min_i32 s{s_next}, s3, s{s_T0p}
    s_min_i32 s{s_next}, s{s_next}, s{s_pri}
    s_cmp_le_i32 s3, s{s_t}
    s_setpc_b64 s[{s_ret}:{s_ret+1}]
    """)

    A(f"""
    M_align:
    s_mov_b32 s{s_alt}, -1
    s_mov_b32 s{s_x+2}, 0
    v_mov_b32 v13, v{vBase}
    """)
    for G in range(5):
        A(f"""
        v_readlane_b32 s{s_x}, v{vBase}, {8*G}
        v_readlane_b32 s{s_x+1}, v{vBase}, {8*G+8}
        s_nop 1
        s_sub_u32 s{s_x+3}, s{s_x+2}, s{s_x}
        v_cmp_le_u32 vcc, {8*G}, v{L}
        v_add_u32 v10, s{s_x+3}, v{vBase}
        s_sub_u32 s{s_x+1}, s{s_x+1}, s{s_x}
        s_add_u32 s{s_x+2}, s{s_x+2}, s{s_x+1}
        v_cndmask_b32 v13, v13, v10, vcc
        """)
        if G < 4:
            A(f"s_add_u32 s{s_x+2}, s{s_x+2}, 31\ns_and_b32 s{s_x+2}, s{s_x+2}, -32")
    A(f"""
    s_mov_b32 s{s_tot}, s{s_x+2}
    v_mov_b32 v{vBase}, v13
    s_nop 1
    s_branch M_derive
    """)
    A(f"""
    M_goslow:
    s_mov_b32 s{s_slow}, 1
    s_mov_b32 s{s_batch}, 0
    s_branch M_load
    M_next:
    s_add_u32 s{s_batch}, s{s_batch}, 512
    s_cmp_ge_u32 s{s_batch}, {E}
    s_cbranch_scc1 M_epi
    M_load:
    """)
    srd(A, sA, pDST, E * 4)
    srd(A, sB, pSRC, E * 4)
    A(f"""
    v_add_u32 v8, s{s_batch}, v0
    v_lshlrev_b32 v9, 2, v8
    s_waitcnt vmcnt(0) lgkmcnt(0)
    buffer_load_dword v10, v9, {S(sA)}, 0 offen
    buffer_load_dword v11, v9, {S(sB)}, 0 offen
    v_lshlrev_b32 v{vChunk8}, 3, v8
    v_mov_b32 v5, -1
    v_mov_b32 v6, -1
    v_mov_b32 v7, -1
    s_mov_b32 s{s_x+2}, {E}
    s_waitcnt vmcnt(0)
    v_subrev_u32 v12, s{s_nb0}, v10
    v_cmp_gt_u32 vcc, s{s_nn}, v12
    v_cmp_gt_u32 s[{s_x}:{s_x+1}], s{s_x+2}, v8
    v_and_b32 v10, 63, v10
    v_lshl_or_b32 v11, v10, 14, v11
    s_and_b64 vcc, vcc, s[{s_x}:{s_x+1}]
    s_nop 1
    v_cndmask_b32 v4, v5, v11, vcc
    s_barrier
    """)
    zerofill()
    A("s_waitcnt lgkmcnt(0)\ns_barrier\ns_branch M_recs")
    A.l += ool.l


def build():
    out = f"""; Fused edge-featured MPNN layer, one workgroup per bucket of 39/40 destination nodes.
; @launch grid=(256,1,1) block=(512,1,1) lds={LDS_BYTES}
.amdgcn_target "amdgcn-amd-amdhsa--gfx950"
.text
.globl {KN}
.p2align 8
.type {KN},@function
"""
    A = Asm()
    kernel(A)
    out += A.text()
    out += f""".section .rodata,"a"
.p2align 6
.amdhsa_kernel {KN}
  .amdhsa_next_free_vgpr {NV}
  .amdhsa_next_free_sgpr 102
  .amdhsa_accum_offset {(NV + 3) // 4 * 4}
  .amdhsa_group_segment_fixed_size 0
  .amdhsa_kernarg_size 88
  .amdhsa_user_sgpr_count 2
  .amdhsa_user_sgpr_kernarg_segment_ptr 1
  .amdhsa_system_sgpr_workgroup_id_x 1
.end_amdhsa_kernel
"""
    return out


if __name__ == "__main__":
    for a in list(sys.argv):
        if a.startswith("-o"):
            OPT.update(a[2:].split(","))
            sys.argv.remove(a)
    for a in list(sys.argv):
        if a.startswith("-spin"):
            i, us = a[5:].split(":")
            SPIN = (int(i), float(us))
            sys.argv.remove(a)
    for a in list(sys.argv):
        if a.startswith("-wsb"):
            WS_BASE = int(a[4:]) << 20
            sys.argv.remove(a)
    for a in list(sys.argv):
        if a.startswith("-enc"):
            ENC = int(a[4:])
            sys.argv.remove(a)
    for a in list(sys.argv):
        if a.startswith("-pri"):
            PRIO_NUM = int(a[4:])
            sys.argv.remove(a)
    for a in list(sys.argv):
        if a.startswith("-nt"):
            NT0 = int(a[3:])
            sys.argv.remove(a)
    for a in list(sys.argv):
        if a.startswith("-early"):
            EARLY = tuple(int(c) for c in a[6:])
            sys.argv.remove(a)
    if "--stamps" in sys.argv:
        STAMPS = True
        sys.argv.remove("--stamps")
    path = sys.argv[1] if len(sys.argv) > 1 else f"cdna_kernels/{NAME}.s"
    open(path, "w").write(build())
    print("wrote", path, "lds", LDS_BYTES)
```

```python
import sys, struct, math

NAME = "gather_scatter__edge_featured_mpnn_mpnn__graph"
KN = NAME + "_kernel"
N, E = 10000, 160000

WS_CNT = 0
WS_RB = 16 * 128
WS_RP = 32 * 128
WS_W2F = 0x2000
WS_SLOT = 0x12000
WS_P = 0x213000
TABB = N * 512
WS_END = WS_P + TABB
WS_ST = 0x1000000

WS_BASE = 0
NCH = 64
CHE = E // NCH
PROWS = 53
LOG2E = 1.4426950408889634
CEXP = 48
STAMPS = False
OPT = set()
PRIO_NUM = 22
NT0 = 99
W2T0 = 8


def f32(x):
    return struct.unpack("<I", struct.pack("<f", x))[0]


class Asm:
    def __init__(self):
        self.l = []

    def __call__(self, s):
        for x in s.split("\n"):
            x = x.strip()
            if x:
                self.l.append(("" if x.endswith(":") else "    ") + x)

    def text(self):
        import re
        for x in self.l:
            m = re.search(r"offset:(\d+)", x)
            if m:
                lim = 4096 if x.strip().startswith("buffer_") else 65536
                assert int(m.group(1)) < lim, x
        return "\n".join(self.l) + "\n"


def vr(a, n=1):
    return f"v{a}" if n == 1 else f"v[{a}:{a+n-1}]"


def srd(A, d, base, size, off=None):
    if off is None:
        A(f"s_mov_b32 s{d}, s{base}\ns_mov_b32 s{d+1}, s{base+1}")
    else:
        A(f"s_add_u32 s{d}, s{base}, {off}\ns_addc_u32 s{d+1}, s{base+1}, 0")
    A(f"s_mov_b32 s{d+2}, {size}\ns_mov_b32 s{d+3}, 0x00020000")


def S(d):
    return f"s[{d}:{d+3}]"


D = 4
CAP_T = 26
QS = 592
L_RING = 0
L_AQE = 8 * D * 2048
L_AQH = L_AQE + CAP_T * 512
L_AGG = L_AQH + CAP_T * 512
L_LIST = L_AGG + (CAP_T + 1) * 1024
L_CNT = L_LIST + 4096
L_N0 = L_CNT + 256
L_MX = L_N0 + 248
L_WE = L_N0 + 256
L_Q = L_WE + 8 * QS
LDS_BYTES = (L_Q + 255) // 256 * 256 + 32768
ZERO_BYTES = L_LIST - L_AQE
L_XP = (L_Q + 255) // 256 * 256
L_XQ = L_XP + 16384
L_BT = L_AQE
L_BC = L_BT + 32768
assert L_BC + 2048 <= L_LIST and LDS_BYTES <= 163840 and 48 * QS <= 32768
DUMMY = 0x400000

pX, pE, pSRC, pDST, pW1, pB1, pW2, pB2, pOUT, pDBG, pWS = 4, 6, 8, 10, 12, 14, 16, 18, 20, 22, 24
s_w2 = 26
sA, sB, sC, sD, sWS, sP, sE = 28, 32, 36, 40, 44, 48, 52
(s_w, s_nb0, s_nb1, s_nn, s_T, s_T0p, s_t, s_next, s_slow, s_batch, s_ring, s_sw, s_tot,
 s_nb4, s_ringh, s_spin, s_pri, s_alt, s_xw) = range(56, 75)
s_f0 = 85
s_one = 84
s_big = 83
s_K = 82
BND_PQ, BND_E = 8.0, 44.0
s_x = 76
sM = 86
s_ret = 94
sG = 96

vU = [16, 32]
vT = 48
vH = 64
vACC = 68
vS0 = 84
vS1 = 100
vPf0, vPf1, vAqe, vAgg, vBq, vSel0, vSel1 = 116, 120, 124, 128, 132, 136, 140
vBa = 144
vOff = 176
vW2 = 176
(vC, _c1, vB2, _b1, vK0, vK1, vK2, vK3, vaAqe, vaAgg, vaList, vaP0, vaP1, vaB, vBmul, vBase, vDeg,
 vChunk8, vLane, vDum, vSt, vW2a, vaCnt) = range(228, 251)
NV = 252
vXF = 176
vXP = 160
vWF = 16
vPA = 48
vPO = 148
vQO = 164
vPa = 144
EARLY = (0, 1)
vXa = 145
vXr = 147
vB1 = 116
vWEr = 128
vF0 = 129
vPc = 130
vQa = 131


def mfma32(A, d, a, b, c):
    cs = "0" if c is None else vr(c, 16)
    A(f"v_mfma_f32_32x32x16_bf16 {vr(d,16)}, {vr(a,4)}, {vr(b,4)}, {cs}")


def mfma16(A, d, a, b, c):
    cs = "0" if c is None else vr(c, 4)
    A(f"v_mfma_f32_16x16x32_bf16 {vr(d,4)}, {vr(a,4)}, {vr(b,4)}, {cs}")


SPIN = None


ENC = None


def stamp(A, i):
    if ENC is not None:
        if i == 0:
            A("s_memrealtime s[100:101]\ns_waitcnt lgkmcnt(0)\ns_mov_b32 s75, s100\ns_nop 0")
        if i == ENC:
            A("s_waitcnt lgkmcnt(0)\ns_memrealtime s[100:101]\ns_waitcnt lgkmcnt(0)\ns_sub_u32 s101, s100, s75")
            A(f"v_writelane_b32 v{vSt}, s101, 0")
        if i == 15:
            u = len(A.l)
            A(f"v_readlane_b32 s3, v{vSt}, 0\ns_nop 3\ns_lshl_b32 s3, s3, 2\ns_add_u32 s3, s3, 6000")
            A(f"M_spin{u}:\ns_memrealtime s[100:101]\ns_waitcnt lgkmcnt(0)\ns_sub_u32 s100, s100, s75\ns_cmp_lt_u32 s100, s3\ns_cbranch_scc1 M_spin{u}")
    if SPIN is not None:
        if i == 0:
            A("s_memrealtime s[100:101]\ns_waitcnt lgkmcnt(0)\ns_mov_b32 s75, s100")
        elif i == SPIN[0]:
            u = len(A.l)
            A(f"M_spin{u}:\ns_memrealtime s[100:101]\ns_waitcnt lgkmcnt(0)\ns_sub_u32 s100, s100, s75\ns_cmp_lt_u32 s100, {int(SPIN[1]*100)}\ns_cbranch_scc1 M_spin{u}")
    if STAMPS:
        ins = "s_memtime" if "cyc" in OPT else "s_memrealtime"
        A(f"s_waitcnt lgkmcnt(0)\n{ins} s[100:101]\ns_waitcnt lgkmcnt(0)\nv_writelane_b32 v{vSt}, s100, {i}")


def gemm_part(A, init, nmt, xf, vm=None, xrd=None):
    def rd(s):
        for ct in range(2):
            for x in range(2):
                A(f"ds_read_b64_tr_b16 {vr(vWF + 8*s + 4*ct + 2*x, 2)}, v14 offset:{s*2048 + x*256 + ct*8}")
    if vm is None:
        for s in range(4):
            rd(s)
    else:
        xrd(0)
        A(f"s_waitcnt vmcnt({vm[0]})")
        rd(0)
        xrd(1)
    for s in range(4):
        if vm is None:
            A(f"s_waitcnt lgkmcnt({12 - 4*s})")
        else:
            A(f"s_waitcnt lgkmcnt({nmt if s < 3 else 0})")
        k = 0
        for mt in range(nmt):
            for ct in range(2):
                d = vPA + 8 * mt + 4 * ct
                c = d if s else (None if init is None else init + 4 * ct)
                mfma16(A, d, vWF + 8 * s + 4 * ct, xf + 16 * mt + 4 * s, c)
                k += 1
                if vm is not None and k == 2 and s < 3:
                    A(f"s_waitcnt vmcnt({vm[s+1]})")
                    rd(s + 1)
                    if s < 2:
                        xrd(s + 2)


def gemm_pack(A, nmt, store, vPO=vPO):
    A("s_nop 4")
    for mt in range(nmt):
        for r in range(0, 8, 2):
            a = vPA + 8 * mt + r
            A(f"v_pk_mul_f32 {vr(a,2)}, {vr(a,2)}, v[12:13]")
        for r in range(0, 8, 2):
            a = vPA + 8 * mt + r
            A(f"v_cvt_pk_bf16_f32 v{vPO + 4*mt + r//2}, v{a}, v{a+1}")
        store(mt)


def kernel(A):
    L = vLane
    SC = "sc0 sc1"
    A(f"{KN}:")
    A(f"""
    s_cmp_ge_u32 s2, 256
    s_cbranch_scc1 M_end
    s_load_dwordx16 s[4:19], s[0:1], 0
    s_load_dwordx4 s[20:23], s[0:1], 64
    s_load_dwordx2 s[24:25], s[0:1], 80
    """)
    if STAMPS or ENC is not None:
        A(f"v_mov_b32 v{vSt}, 0")
    stamp(A, 0)
    A(f"""
    v_lshrrev_b32 v2, 6, v0
    v_and_b32 v{L}, 63, v0
    v_readfirstlane_b32 s{s_w}, v2
    s_mul_i32 s{s_nb0}, s2, 160069
    s_add_u32 s{s_nb1}, s{s_nb0}, {160069 + 4049}
    s_add_u32 s{s_nb0}, s{s_nb0}, 4049
    s_lshr_b32 s{s_nb0}, s{s_nb0}, 12
    v_lshrrev_b32 v7, 4, v{L}
    v_and_b32 v8, 15, v{L}
    v_xor_b32 v8, v8, v7
    s_lshl_b32 s{s_ring}, s{s_w}, 13
    s_and_b32 s3, s{s_w}, 1
    s_lshl_b32 s3, s3, 3
    v_xor_b32 v8, s3, v8
    v_lshlrev_b32 v8, 4, v8
    v_lshl_add_u32 v8, v7, 8, v8
    s_lshl_b32 s{s_xw}, s{s_w}, 11
    v_add_u32 v{vXa}, s{s_xw}, v8
    v_xor_b32 v{vXa+1}, 64, v{vXa}
    v_lshrrev_b32 v10, 2, v{L}
    v_and_b32 v11, 3, v{L}
    v_lshlrev_b32 v11, 4, v11
    v_lshl_add_u32 v10, v10, 9, v11
    s_lshl_b32 s3, s{s_w}, 6
    v_add_u32 v10, s3, v10
    v_lshlrev_b32 v2, 2, v0
    s_waitcnt lgkmcnt(0)
    s_add_u32 s{pWS}, s{pWS}, {WS_BASE}
    s_addc_u32 s{pWS+1}, s{pWS+1}, 0
    s_cmp_ge_u32 s2, {NCH}
    s_cbranch_scc1 M_pwg
    """)

    def wdma(base):
        for ii in range(8):
            A(f"""
            s_add_u32 m0, s{s_ring}, {ii*1024}
            s_mov_b32 s{s_x+1}, {base + ii*8192}
            buffer_load_dwordx4 v10, {S(sB)}, s{s_x+1} offen lds
            """)

    def xdma(ldsbase, rowreg):
        A(f"""
        s_add_u32 m0, s{s_xw}, {ldsbase}
        s_lshl_b32 s3, s{rowreg}, 8
        buffer_load_dwordx4 v{vXa}, {S(sD)}, s3 offen lds
        buffer_load_dwordx4 v{vXa+1}, {S(sD)}, s3 offen offset:1024 lds
        """)

    def gaddr():
        A(f"""
        v_lshrrev_b32 v3, 4, v{L}        ; q
        v_and_b32 v4, 15, v{L}           ; n
        v_xor_b32 v5, v3, v4
        v_lshlrev_b32 v5, 4, v5
        v_lshl_add_u32 v{vXr}, v4, 8, v5
        v_bfe_u32 v5, v{L}, 2, 2         ; r
        v_lshl_add_u32 v6, v3, 3, v5     ; 8q + r
        v_lshlrev_b32 v6, 6, v6
        v_and_b32 v7, 3, v{L}            ; c
        v_lshl_add_u32 v6, v7, 4, v6
        v_add_u32 v14, s{s_ring}, v6
        v_mov_b32 v12, {f32(-LOG2E):#x}
        v_mov_b32 v13, v12
        """)

    def consts():
        srd(A, sP, pWS, TABB + 4096, off=WS_P - 4096)
        srd(A, sE, pE, E * 8)
        A(f"""
        s_lshr_b32 s{s_nb1}, s{s_nb1}, 12
        s_min_u32 s{s_nb1}, s{s_nb1}, {N}
        s_sub_u32 s{s_nn}, s{s_nb1}, s{s_nb0}
        s_lshl_b32 s{s_nb4}, s{s_nb0}, 2
        s_add_u32 s{s_ringh}, s{s_ring}, 4096
        s_mov_b32 s{s_slow}, 0
        s_mov_b32 s{s_big}, 0
        s_lshl_b32 s{s_w2}, s{s_w}, 13
        s_add_u32 s{s_w2}, s{s_w2}, {WS_W2F}
        s_add_u32 s{s_w2+1}, s{s_w2}, 4096
        v_lshrrev_b32 v3, 4, v{L}        ; q
        v_bfe_u32 v5, v{L}, 2, 2         ; r
        v_and_b32 v7, 3, v{L}            ; c
        v_xor_b32 v9, v7, v3
        v_lshlrev_b32 v9, 4, v9
        s_lshl_b32 s3, s{s_w}, 6
        s_add_u32 s{s_x}, s3, 1024
        v_add_u32 v{vK3}, s{s_x}, v9
        v_add_u32 v{vK2}, 1024, v{vK3}
        v_add_u32 v{vK1}, 2048, v{vK3}
        v_add_u32 v{vK0}, 3072, v{vK3}
        v_lshrrev_b32 v1, 5, v{L}        ; h
        v_mul_u32_u24 v5, {QS}, v5
        v_and_b32 v3, 1, v3
        v_lshl_add_u32 v5, v3, 5, v5
        v_lshl_add_u32 v5, v7, 3, v5
        s_add_u32 s3, s3, {L_WE}
        v_add_u32 v5, s3, v5
        v_mul_u32_u24 v6, {8*QS}, v1
        v_add_u32 v{vaB}, v5, v6
        v_mul_u32_u24 v{vBmul}, {QS//4}, v1
        v_and_b32 v3, 31, v{L}           ; m
        v_lshrrev_b32 v9, 4, v3
        v_and_b32 v8, 3, v3
        v_lshl_add_u32 v9, v8, 1, v9
        v_and_b32 v8, 8, v3
        v_add_u32 v9, v9, v8
        v_and_b32 v8, 4, v3
        v_lshl_add_u32 v9, v8, 2, v9
        v_lshlrev_b32 v9, 4, v9
        v_mul_u32_u24 v8, {L_AQH - L_AQE}, v1
        v_add_u32 v9, v9, v8
        v_add_u32 v{vaAqe}, {L_AQE}, v9
        v_lshrrev_b32 v9, 2, v{L}
        v_and_b32 v8, 3, v9
        v_lshlrev_b32 v8, 1, v8
        v_and_b32 v11, 8, v9
        v_add_u32 v8, v8, v11
        v_and_b32 v11, 4, v9
        v_lshl_add_u32 v8, v11, 2, v8
        v_lshlrev_b32 v8, 2, v8
        v_add_u32 v{vaList}, {L_LIST}, v8
        v_bfe_u32 v9, v3, 2, 2
        v_xor_b32 v9, v9, v1
        v_lshlrev_b32 v9, 4, v9
        v_lshl_add_u32 v9, v3, 6, v9
        v_add_u32 v{vaP0}, s{s_ring}, v9
        v_xor_b32 v{vaP1}, 32, v{vaP0}
        v_and_b32 v9, 1, v3
        v_lshlrev_b32 v9, 4, v9
        v_mov_b32 v8, 0x3f80
        v_lshlrev_b32 v9, v9, v8
        v_lshrrev_b32 v8, 1, v3
        v_lshlrev_b32 v11, 2, v1
        v_sub_u32 v8, v8, v11
        """)
        for x in range(4):
            A(f"v_cmp_eq_u32 s[{s_x}:{s_x+1}], {x}, v8\nv_cmp_eq_u32 vcc, {8+x}, v8\ns_nop 0")
            A(f"v_cndmask_b32 v{vSel0+x}, 0, v9, s[{s_x}:{s_x+1}]\nv_cndmask_b32 v{vSel1+x}, 0, v9, vcc")
        A(f"""
        v_mov_b32 v{vC}, {f32(2.0**-CEXP):#x}
        v_mov_b32 v{vC+1}, {f32(2.0**-CEXP):#x}
        v_mov_b32 v{vDeg}, 0
        v_mov_b32 v{vDum}, 0x80000000
        v_lshrrev_b32 v9, 3, v0
        v_mul_u32_u24 v{vChunk8}, {CHE*8}, v9
        v_lshlrev_b32 v{vW2a}, 4, v{L}
        v_lshlrev_b32 v9, 2, v{L}
        v_add_u32 v{vaCnt}, {L_CNT}, v9
        """)
        for r in range(16):
            A(f"v_mov_b32 v{vS0+r}, 0\nv_mov_b32 v{vS1+r}, 0")

    def bigcheck(n):
        A(f"v_max3_f32 v8, |v{vPA}|, |v{vPA+1}|, |v{vPA+2}|")
        for r in range(3, n - 1, 2):
            A(f"v_max3_f32 v8, |v{vPA+r}|, |v{vPA+r+1}|, v8")
        A(f"""
        v_max_f32 v8, |v{vPA+n-1}|, v8
        v_cmp_nge_f32 vcc, {f32(BND_PQ):#x}, v8
        s_or_b32 s3, vcc_lo, vcc_hi
        s_or_b32 s{s_big}, s{s_big}, s3
        """)

    def zerofill():
        A(f"""
        v_mov_b32 v40, 0
        v_mov_b32 v41, 0
        v_mov_b32 v42, 0
        v_mov_b32 v43, 0
        v_mov_b32 v44, {DUMMY}
        v_mov_b32 v45, {DUMMY}
        v_lshlrev_b32 v1, 3, v0
        v_add_u32 v1, {L_LIST}, v1
        ds_write_b64 v1, v[44:45]
        ds_write_b32 v{vaCnt}, v40
        ds_write_b32 v{vaCnt}, v40 offset:256
        v_lshlrev_b32 v1, 4, v0
        v_add_u32 v1, {L_AQE}, v1
        """)
        nz = ZERO_BYTES // 8192
        rem = ZERO_BYTES - nz * 8192
        for q in range(nz):
            A(f"ds_write_b128 v1, v[40:43] offset:{q*8192}")
        if rem:
            A(f"""
            v_cmp_gt_u32 vcc, {rem//16}, v0
            s_and_saveexec_b64 s[{s_x}:{s_x+1}], vcc
            ds_write_b128 v1, v[40:43] offset:{nz*8192}
            s_mov_b64 exec, s[{s_x}:{s_x+1}]
            """)

    def small():
        srd(A, sC, pB1, 512)
        A(f"""
        v_lshrrev_b32 v3, 4, v{L}
        v_lshlrev_b32 v4, 4, v3
        s_lshl_b32 s3, s{s_w}, 6
        buffer_load_dwordx4 {vr(vB1,4)}, v4, {S(sC)}, s3 offen
        v_lshlrev_b32 v5, 2, v0
        s_mov_b32 s3, {256*512}
        buffer_load_dword v{vWEr}, v5, {S(sB)}, s3 offen
        v_lshlrev_b32 v4, 3, v3
        s_mov_b32 s{sC}, s{pB2}
        s_mov_b32 s{sC+1}, s{pB2+1}
        s_mov_b32 s{sC+2}, 256
        s_lshl_b32 s3, s{s_w}, 5
        buffer_load_dwordx2 {vr(vB2,2)}, v4, {S(sC)}, s3 offen
        """)

    def eprefetch():
        A(f"""
        s_mul_i32 s3, s2, {E*8//256}
        v_lshlrev_b32 v3, 4, v0
        buffer_load_dwordx4 v[224:227], v3, {S(sE)}, s3 offen
        """)

    def f0load():
        A(f"buffer_load_dword v{vF0}, off, {S(sG)}, 0 offset:128 sc1")

    def spoll(tag, base, offreg, want, keep=None):
        A(f"""
        s_mov_b32 s{s_spin}, 0x40000
        M_sp{tag}:
        s_mov_b32 s{s_x+1}, 0
        s_atomic_add s{s_x+1}, s[{base}:{base+1}], {offreg} glc
        s_sub_u32 s{s_spin}, s{s_spin}, 1
        s_cbranch_scc1 M_spd{tag}
        s_waitcnt lgkmcnt(0)
        {f"s_mov_b32 s{keep}, s{s_x+1}" if keep else ""}
        {f"s_and_b32 s{s_x+1}, s{s_x+1}, 0xffff" if keep else ""}
        s_cmp_lg_u32 s{s_x+1}, {want}
        s_cbranch_scc1 M_sp{tag}
        M_spd{tag}:
        s_waitcnt lgkmcnt(0)
        """)

    def f0wait(tag):
        A(f"""
        v_readfirstlane_b32 s3, v{vF0}
        s_cmp_lg_u32 s3, 0
        s_cbranch_scc1 M_pfd{tag}
        """)
        spoll("f" + tag, pDBG, 128, 1)
        A(f"M_pfd{tag}:")

    def release(base):
        A(f"""
        v_lshlrev_b32 v8, 7, v{L}
        v_mov_b32 v9, 1
        s_mov_b32 s3, {base}
        s_mov_b64 exec, 0xffff
        buffer_atomic_add v9, v8, {S(sWS)}, s3 offen sc1
        s_mov_b64 exec, -1
        """)

    def rpoll(tag, base, want, keep=None):
        A(f"s_and_b32 s3, s2, 15\ns_lshl_b32 s3, s3, 7\ns_add_u32 s3, s3, {base}")
        spoll(tag, pWS, "s3", want, keep)

    srd(A, sWS, pWS, WS_END)
    A(f"""
    v_lshlrev_b32 v3, 7, v0
    s_cmp_eq_u32 s2, 0
    s_cselect_b32 s3, 48, 0
    v_cmp_gt_u32 vcc, s3, v0
    v_mov_b32 v4, 0x40000000
    v_mov_b32 v8, 0
    v_cndmask_b32 v3, v4, v3, vcc
    s_mul_i32 s3, s2, {CHE*4}
    buffer_store_dword v8, v3, {S(sWS)}, 0 offen {SC}
    """)
    srd(A, sC, pDST, CHE * 4, off="s3")
    srd(A, sD, pSRC, CHE * 4, off="s3")
    A(f"s_mov_b32 s{s_x+1}, 4096\ns_mov_b32 s{s_x+2}, 8192")
    vD, vS = 164, 169
    so = ["0", "0", f"s{s_x+1}", f"s{s_x+1}", f"s{s_x+2}"]
    for k in range(5):
        A(f"buffer_load_dword v{vD+k}, v2, {S(sC)}, {so[k]} offen offset:{(k & 1)*2048}")
    for k in range(5):
        A(f"buffer_load_dword v{vS+k}, v2, {S(sD)}, {so[k]} offen offset:{(k & 1)*2048}")
    srd(A, sC, pW2, 256 * 256)
    srd(A, sB, pW1, 260 * 512)
    A(f"""
    v_lshlrev_b32 v3, 4, v0
    v_add_u32 v15, {L_BT}, v3
    v_add_u32 v2, {L_BC}, v2
    v_mov_b32 v4, -1
    v_mov_b32 v5, -1
    v_mov_b32 v6, -1
    v_mov_b32 v7, -1
    """)
    for q in range(4):
        A(f"ds_write_b128 v15, v[4:7] offset:{q*8192}")
    A(f"""
    ds_write_b32 v2, v8
    v_mov_b32 v9, 1
    """)
    srd(A, sD, pX, N * 256)
    srd(A, sG, pDBG, 256)
    stamp(A, 1)
    A(f"""
    s_waitcnt lgkmcnt(0)
    s_barrier
    s_waitcnt vmcnt(5)
    """)
    vb, va, vk = 16, 21, 26
    for k in range(5):
        A(f"v_mul_u32_u24 v{vb+k}, 1677, v{vD+k}")
        A(f"v_lshrrev_b32 v{vb+k}, 16, v{vb+k}")
        A(f"v_lshlrev_b32 v{va+k}, 2, v{vb+k}")
        A(f"v_add_u32 v{va+k}, {L_BC}, v{va+k}")
        if k == 4:
            A(f"v_cmp_gt_u32 vcc, {CHE - 2048}, v0\ns_and_saveexec_b64 s[{s_x+2}:{s_x+3}], vcc")
        A(f"ds_add_rtn_u32 v{vk+k}, v{va+k}, v9")
    A(f"""
    s_mov_b64 s[{s_x+4}:{s_x+5}], exec
    s_or_b32 s3, s2, s{s_w}
    s_cbranch_scc1 M_nf0
    s_mov_b64 exec, 1
    buffer_store_dword v9, off, {S(sG)}, 0 offset:128 {SC}
    M_nf0:
    s_mov_b64 exec, -1
    s_lshl_b32 s3, s2, 8
    v_add_u32 v3, s3, v0
    v_bfe_u32 v4, v3, 8, 3           ; s
    v_lshlrev_b32 v4, 5, v4
    v_bfe_u32 v5, v3, 6, 1           ; ab
    v_lshl_add_u32 v4, v5, 4, v4
    v_bfe_u32 v5, v3, 1, 1           ; e>>2
    v_lshl_add_u32 v4, v5, 3, v4
    v_bfe_u32 v5, v3, 7, 1           ; h
    v_lshl_add_u32 v4, v5, 2, v4
    v_and_b32 v5, 1, v3
    v_lshl_add_u32 v4, v5, 1, v4     ; hidden
    v_lshlrev_b32 v4, 8, v4
    v_lshrrev_b32 v5, 11, v3         ; wo
    v_lshl_add_u32 v4, v5, 5, v4
    v_bfe_u32 v5, v3, 2, 4           ; m
    v_lshl_add_u32 v4, v5, 1, v4
    v_lshrrev_b32 v5, 8, v0
    v_lshl_or_b32 v4, v5, 30, v4
    v_lshlrev_b32 v3, 2, v3
    v_lshl_or_b32 v176, v5, 30, v3
    buffer_load_ushort v174, v4, {S(sC)}, 0 offen
    buffer_load_ushort v175, v4, {S(sC)}, 0 offen offset:256
    """)
    xdma(L_XQ, s_nb0)
    small()
    A("s_waitcnt vmcnt(7)")
    for k in range(5):
        A(f"""
        v_and_b32 v{vD+k}, 63, v{vD+k}
        v_lshl_or_b32 v{vS+k}, v{vD+k}, 14, v{vS+k}
        v_add_u32 v{vD+k}, {512*k}, v0
        v_lshl_or_b32 v{vS+k}, v{vD+k}, 20, v{vS+k}
        v_lshlrev_b32 v{va+k}, 7, v{vb+k}
        v_add_u32 v{va+k}, {L_BT}, v{va+k}
        """)
    for k in range(5):
        if k == 4:
            A(f"s_mov_b64 exec, s[{s_x+4}:{s_x+5}]")
        A(f"""
        s_waitcnt lgkmcnt({4-k})
        v_add_u32 v4, v{vk+k}, v{vb+k}
        v_and_b32 v4, 7, v4
        v_lshrrev_b32 v5, 3, v{vk+k}
        v_lshl_add_u32 v4, v4, 2, v5
        v_lshl_add_u32 v{va+k}, v4, 2, v{va+k}
        v_cmp_gt_u32 vcc, 32, v{vk+k}
        s_and_saveexec_b64 s[{s_x+6}:{s_x+7}], vcc
        ds_write_b32 v{va+k}, v{vS+k}
        s_mov_b64 exec, s[{s_x+6}:{s_x+7}]
        """)
    A(f"""
    s_mov_b64 exec, -1
    v_lshrrev_b32 v4, 3, v0
    v_lshlrev_b32 v5, 2, v4
    v_add_u32 v5, {L_BC}, v5
    v_and_b32 v6, 7, v0
    v_lshlrev_b32 v7, 13, v4
    v_lshl_add_u32 v7, v6, 4, v7
    s_lshl_b32 s3, s2, 7
    s_add_u32 s3, s3, {WS_SLOT}
    v_add_u32 v7, s3, v7
    v_cmp_eq_u32 s[{s_x+2}:{s_x+3}], 7, v6
    v_mov_b32 v8, -2
    s_mov_b32 s{s_x+4}, 0
    s_mov_b32 s{s_x+5}, {64*8192}
    s_mov_b32 s{s_x+6}, {128*8192}
    s_mov_b32 s{s_x+7}, {192*8192}
    s_waitcnt lgkmcnt(0)
    s_barrier
    """)
    stamp(A, 2)
    for q in range(4):
        A(f"ds_read_b128 {vr(16+4*q,4)}, v15 offset:{q*8192}")
        A(f"ds_read_b32 v{32+q}, v5 offset:{q*256}")
    A(f"s_mov_b32 s3, {WS_W2F}")
    for q in range(4):
        A(f"""
        s_waitcnt lgkmcnt({6-2*q})
        v_cmp_lt_u32 vcc, 32, v{32+q}
        s_and_b64 vcc, vcc, s[{s_x+2}:{s_x+3}]
        s_nop 1
        v_cndmask_b32 v{19+4*q}, v{19+4*q}, v8, vcc
        buffer_store_dwordx4 {vr(16+4*q,4)}, v7, {S(sWS)}, s{s_x+4+q} offen {SC}
        """)
    A(f"s_waitcnt vmcnt(9)\nv_lshl_or_b32 v174, v175, 16, v174\nbuffer_store_dword v174, v176, {S(sWS)}, s3 offen {SC}")
    stamp(A, 3)
    f0load()
    gaddr()
    consts()
    A(f"""
    s_waitcnt vmcnt(0)
    s_barrier
    s_cmp_lg_u32 s{s_w}, 0
    s_cbranch_scc1 M_nlast2
    """)
    stamp(A, 16)
    A(f"""
    s_and_b32 s3, s2, 1
    s_lshl_b32 s3, s3, 6
    s_mov_b32 s{s_x}, 1
    s_atomic_add s{s_x}, s[{pDBG}:{pDBG+1}], s3 glc
    """)
    f0wait("b")
    A(f"""
    s_waitcnt lgkmcnt(0)
    s_and_b32 s3, s{s_x}, {NCH//2 - 1}
    s_cmp_lg_u32 s3, {NCH//2 - 1}
    s_cbranch_scc1 M_nlast
    """)
    release(WS_RB)
    A("M_nlast:")
    stamp(A, 17)
    A("M_nlast2:")
    srd(A, sA, pWS, 0)
    A(f"v_mov_b32 v{vPa}, 0")
    wdma(128 * 512)
    EPF = 3 if "epf" in OPT else 0
    if EPF:
        A(f"s_mul_i32 s3, s2, {CHE*8}")
        srd(A, sC, pE, CHE * 8, off="s3")
        A(f"v_lshlrev_b32 v3, 4, v0\ns_mov_b32 s3, 16384\ns_mov_b32 s{s_x+2}, 8192")
        A(f"buffer_load_dwordx4 v[224:227], v3, {S(sC)}, 0 offen")
        A(f"buffer_load_dwordx4 v[224:227], v3, {S(sC)}, s{s_x+2} offen")
        A(f"buffer_load_dwordx4 v[224:227], v3, {S(sC)}, s3 offen")
    zerofill()
    A("s_branch M_join")
    A("M_pwg:")
    srd(A, sD, pX, N * 256)
    srd(A, sB, pW1, 260 * 512)
    A(f"s_sub_u32 s{s_t}, s2, {NCH}\ns_mul_i32 s{s_t}, s{s_t}, {PROWS}")
    xdma(L_XP, s_t)
    A(f"""
    s_and_b32 s3, s2, -8
    s_add_u32 s3, s3, s{s_w}
    s_and_b32 s3, s3, 127
    s_lshl_b32 s3, s3, 10
    v_lshlrev_b32 v3, 4, v{L}
    buffer_load_dwordx4 v[16:19], v3, {S(sB)}, s3 offen
    """)
    srd(A, sWS, pWS, WS_END)
    srd(A, sG, pDBG, 256)
    consts()
    zerofill()
    wdma(0)
    stamp(A, 1)
    gaddr()
    A(f"""
    v_add_u32 v15, {L_XP}, v{vXr}
    v_add_u32 v11, s{s_t}, v4
    v_lshlrev_b32 v11, 9, v11
    v_lshl_add_u32 v11, v3, 4, v11
    s_lshl_b32 s3, s{s_w}, 6
    v_add_u32 v{vPa}, s3, v11
    s_add_u32 s3, s{s_t}, {PROWS}
    s_min_u32 s3, s3, {N}
    s_lshl_b32 s3, s3, 9
    """)
    srd(A, sA, pWS, "s3", off=WS_P)
    A(f"""
    s_waitcnt vmcnt(8)
    s_barrier
    """)
    stamp(A, 2)

    def pstore(mt):
        A(f"s_mov_b32 s3, {mt*8192}\nbuffer_store_dwordx4 {vr(vPO+4*mt,4)}, v{vPa}, {S(sA)}, s3 offen {SC}")

    def xrd(s):
        if s:
            A(f"v_xor_b32 v4, {s << 6:#x}, v15")
        for mt in range(4):
            A(f"ds_read_b128 {vr(vXP + 16*mt + 4*s, 4)}, v{4 if s else 15} offset:{mt*4096}")
    gemm_part(A, None, 4, vXP, vm=[6, 4, 2, 0], xrd=xrd)
    stamp(A, 18)
    f0load()
    xdma(L_XQ, s_nb0)
    small()
    if "w1bfirst" in OPT:
        wdma(128 * 512)
    gemm_pack(A, 4, lambda mt: pstore(mt) if mt in EARLY else None)
    stamp(A, 3)
    if "w1bfirst" not in OPT:
        wdma(128 * 512)
    bigcheck(32)
    A(f"s_waitcnt vmcnt({8 + len(EARLY)})")
    A("M_join:")
    A(f"""
    s_cmp_lg_u32 s{s_w}, 0
    s_cbranch_scc1 M_w1d
    """)
    f0wait("a")
    rpoll("a", WS_RB, 2)
    A("M_w1d:")
    stamp(A, 4)
    A(f"""
    s_mov_b32 s{s_x+2}, {QS - 512}
    v_lshlrev_b32 v8, 16, v{vWEr}
    v_and_b32 v9, 0xffff0000, v{vWEr}
    v_mul_f32 v8, v12, v8
    v_mul_f32 v9, v12, v9
    v_cvt_pk_bf16_f32 v10, v8, v9
    v_lshrrev_b32 v4, 7, v0          ; f
    v_lshlrev_b32 v5, 16, v10
    v_and_b32 v6, 0xffff0000, v10
    v_sub_f32 v8, v8, v5
    v_sub_f32 v9, v9, v6
    v_cvt_pk_bf16_f32 v11, v8, v9
    v_lshlrev_b32 v5, 2, v0
    v_mad_u32_u24 v5, v4, s{s_x+2}, v5
    v_add_u32 v5, {L_WE}, v5
    ds_write_b32 v5, v10
    ds_write_b32 v5, v11 offset:{4*QS}
    """)
    for x in range(4):
        A(f"v_lshlrev_b32 v{vB1+4+2*x}, 16, v{vB1+x}\nv_and_b32 v{vB1+5+2*x}, 0xffff0000, v{vB1+x}")
    stamp(A, 5)
    A(f"""
    v_add_u32 v15, {L_XQ}, v{vXr}
    s_lshl_b32 s{s_x}, s2, 13
    s_add_u32 s{s_x}, s{s_x}, {WS_SLOT}
    v_lshlrev_b32 v1, 4, v0
    s_waitcnt lgkmcnt(0)
    s_barrier
    buffer_load_dwordx4 v[4:7], v1, {S(sWS)}, s{s_x} offen {SC}
    """)
    for mt in range(4):
        if mt not in EARLY:
            pstore(mt)
    NL = 4 - len(EARLY)
    A(f"""
    s_cmp_lg_u32 s{s_big}, 0
    s_cbranch_scc1 M_pbig
    M_pbigr:
    """)
    stamp(A, 6)
    for s in range(4):
        if s:
            A(f"v_xor_b32 v8, {s << 6:#x}, v15")
        for mt in range(3):
            A(f"ds_read_b128 {vr(vXF + 16*mt + 4*s, 4)}, v{8 if s else 15} offset:{mt*4096}")
    A(f"""
    s_cmp_ge_u32 s2, {NCH}
    s_cbranch_scc1 M_tk1a
    s_waitcnt vmcnt({1 + NL + EPF}) lgkmcnt(0)
    s_branch M_tk1
    M_tk1a:
    s_waitcnt vmcnt({5 if "w1bfirst" in OPT else 1 + NL}) lgkmcnt(0)
    M_tk1:
    """)
    gemm_part(A, vB1 + 4, 3, vXF)
    A(f"""
    v_and_b32 v8, 15, v{L}           ; n
    v_lshrrev_b32 v9, 4, v{L}        ; q
    v_lshlrev_b32 v9, 4, v9
    v_mul_u32_u24 v8, {QS}, v8
    s_lshl_b32 s3, s{s_w}, 6
    s_add_u32 s3, s3, {L_Q}
    v_add3_u32 v{vQa}, v8, v9, s3
    """)
    gemm_pack(A, 3, lambda mt: None, vPO=vQO)
    bigcheck(24)
    stamp(A, 7)
    A(f"s_waitcnt vmcnt({NL})\nM_recs:")
    stamp(A, 8)
    vD4, vRk, vEo, vEv, vBs, vTa = 16, 20, 24, 28, 36, 40
    A(f"s_mov_b32 s{s_x}, 0xfff00000\nv_mov_b32 v1, 1")
    for j in range(4):
        A(f"v_cmp_gt_u32 s[{sM+2*j}:{sM+2*j+1}], s{s_x}, v{4+j}")
    OO = [2, 10, 172]

    def epi_operands(A):
        A(f"""
        v_and_b32 v8, 15, v{L}               ; n
        v_lshlrev_b32 v9, 2, v8
        ds_bpermute_b32 v32, v9, v{vDeg}
        v_add_u32 v9, 64, v9
        ds_bpermute_b32 v33, v9, v{vDeg}
        v_add_u32 v9, 64, v9
        ds_bpermute_b32 v34, v9, v{vDeg}
        v_lshrrev_b32 v9, 4, v{L}            ; q
        v_bfe_u32 v14, v8, 1, 2
        v_xor_b32 v14, v14, v9
        v_lshlrev_b32 v14, 4, v14
        v_lshl_add_u32 v14, v8, 6, v14
        v_add_u32 v15, s{s_nb0}, v8
        v_lshlrev_b32 v15, 8, v15
        v_lshl_add_u32 v15, v9, 3, v15
        s_lshl_b32 s3, s{s_w}, 5
        v_add_u32 v15, s3, v15
        v_and_b32 v8, 31, v{L}
        v_lshrrev_b32 v9, 5, v{L}
        v_lshlrev_b32 v9, 1, v9
        v_bfe_u32 v6, v8, 1, 2
        v_xor_b32 v6, v6, v9
        v_lshlrev_b32 v6, 4, v6
        v_lshl_add_u32 v6, v8, 6, v6
        v_add_u32 v6, s{s_ring}, v6
        v_xor_b32 v7, 16, v6
        v_lshlrev_b32 v36, 16, v{vB2}
        v_and_b32 v37, 0xffff0000, v{vB2}
        v_lshlrev_b32 v38, 16, v{vB2+1}
        v_and_b32 v39, 0xffff0000, v{vB2+1}
        s_lshl_b32 s3, s{s_nb1}, 8
        """)
        srd(A, sA, pOUT, "s3")
        A(f"""
        s_waitcnt lgkmcnt(0)
        v_cvt_f32_u32 v32, v32
        v_cvt_f32_u32 v33, v33
        v_cvt_f32_u32 v34, v34
        """)
        for mt in range(3):
            for i in range(4):
                A(f"v_mul_f32 v{OO[mt]+i}, v{32+mt}, v{36+i}")

    def egather():
        for j in range(4):
            A(f"""
            s_mov_b64 exec, s[{sM+2*j}:{sM+2*j+1}]
            buffer_load_dwordx2 {vr(vEv+2*j,2)}, v{vEo+j}, {S(sE)}, 0 offen
            """)
        A("s_mov_b64 exec, -1")

    for j in range(4):
        A(f"""
        v_lshrrev_b32 v{vEo+j}, 20, v{4+j}
        v_lshl_add_u32 v{vEo+j}, v{vEo+j}, 3, v{vChunk8}
        """)
    for j in range(4):
        A(f"""
        s_mov_b64 exec, s[{sM+2*j}:{sM+2*j+1}]
        s_cbranch_execz M_r1_{j}
        v_lshrrev_b32 v{vD4+j}, 12, v{4+j}
        v_subrev_u32 v{vD4+j}, s{s_nb4}, v{vD4+j}
        v_and_b32 v{vD4+j}, 0xfc, v{vD4+j}
        v_add_u32 v8, {L_CNT}, v{vD4+j}
        ds_add_rtn_u32 v{vRk+j}, v8, v1
        v_and_b32 v{4+j}, 0x3fff, v{4+j}
        M_r1_{j}:
        """)
        if j == 2:
            A(f"""
            s_mov_b64 exec, -1
            v_cmp_eq_u32 vcc, -2, v7
            s_and_b64 exec, exec, vcc
            s_cbranch_execz M_nomark
            v_mov_b32 v8, {L_CNT + 63*4}
            v_mov_b32 v9, 0x10000
            ds_add_u32 v8, v9
            M_nomark:
            """)
    A(f"""
    s_mov_b64 exec, -1
    s_mov_b32 s{s_alt}, 0
    s_mov_b32 s{s_sw}, 0
    v_lshlrev_b32 v9, 4, v{L}
    v_add_u32 v{vaAgg}, {L_AGG}, v9
    v_lshlrev_b32 v11, 2, v{L}
    v_add_u32 v11, 32, v11
    s_waitcnt vmcnt(0) lgkmcnt(0)
    s_barrier
    """)
    stamp(A, 21)
    A(f"""
    ds_read_b32 v8, v{vaCnt}
    v_mov_b32 v57, 0
    s_cmp_lg_u32 s{s_w}, 1
    s_cbranch_scc1 M_tk0
    s_cmp_lg_u32 s{s_slow}, 0
    s_cbranch_scc1 M_tk0
    s_and_b32 s3, s2, 15
    s_lshl_b32 s3, s3, 7
    v_mov_b32 v57, 1
    s_mov_b64 exec, 1
    buffer_atomic_add v57, off, {S(sWS)}, s3 sc0 sc1
    s_mov_b64 exec, -1
    M_tk0:
    s_cmp_lg_u32 s{s_slow}, 0
    s_cbranch_scc1 M_noq
    """)
    for mt in range(3):
        A(f"ds_write_b128 v{vQa}, {vr(vQO+4*mt,4)} offset:{mt*16*QS}")
    A("M_noq:")
    for r in range(16):
        A(f"v_mov_b32 v{vACC+r}, 0")
    A(f"""
    s_waitcnt lgkmcnt(3)
    s_cmp_eq_u32 s{s_slow}, 0
    s_cbranch_scc1 M_noq2
    s_waitcnt lgkmcnt(0)
    M_noq2:
    v_add_u32 v9, 1, v8
    v_and_b32 v9, -2, v9
    v_mov_b32 v10, v9
    v_mov_b32 v{vH}, 0
    v_mov_b32 v{vH+1}, 0
    v_add_u32_dpp v10, v10, v10 row_shr:1 row_mask:0xf bank_mask:0xf bound_ctrl:0
    v_mov_b32 v{vH+2}, 0
    v_mov_b32 v{vH+3}, 0
    v_add_u32_dpp v10, v10, v10 row_shr:2 row_mask:0xf bank_mask:0xf bound_ctrl:0
    v_mov_b32 v{vAgg}, 0
    v_mov_b32 v{vAgg+1}, 0
    v_add_u32_dpp v10, v10, v10 row_shr:4 row_mask:0xf bank_mask:0xf bound_ctrl:0
    s_nop 1
    v_add_u32_dpp v10, v10, v10 row_shr:8 row_mask:0xf bank_mask:0xf bound_ctrl:0
    s_nop 1
    v_add_u32_dpp v10, v10, v10 row_bcast:15 row_mask:0xa bank_mask:0xf
    s_nop 1
    v_add_u32_dpp v10, v10, v10 row_bcast:31 row_mask:0xc bank_mask:0xf
    s_nop 0
    v_sub_u32 v{vBase}, v10, v9
    v_readlane_b32 s{s_tot}, v10, 63
    s_cmp_lg_u32 s{s_w}, 1
    s_cbranch_scc1 M_derive
    s_waitcnt vmcnt(0)
    v_readfirstlane_b32 s3, v57
    s_cmp_lg_u32 s3, 15
    s_cbranch_scc1 M_derive
    """)
    if "srel" in OPT:
        A(f"s_mov_b32 s{s_one}, 1")
        for i in range(16):
            A(f"s_atomic_add s{s_one}, s[{pWS}:{pWS+1}], {WS_RP + 128*i}")
    else:
        A(f"""
        v_lshlrev_b32 v12, 7, v{L}
        v_mov_b32 v13, 1
        s_mov_b32 s3, {WS_RP}
        s_mov_b64 exec, 0xffff
        buffer_atomic_add v13, v12, {S(sWS)}, s3 offen sc1
        s_mov_b64 exec, -1
        """)
    A(f"""
    M_derive:
    """)
    for j in range(4):
        A(f"ds_bpermute_b32 v{vBs+j}, v{vD4+j}, v{vBase}")
    A(f"""
    ds_bpermute_b32 v12, v11, v{vBase}
    s_cmp_gt_u32 s{s_tot}, {CAP_T*32}
    s_cbranch_scc1 M_goslow
    v_readlane_b32 s{s_T0p}, v{vBase}, 32
    s_add_u32 s{s_T}, s{s_tot}, 31
    s_lshr_b32 s{s_T}, s{s_T}, 5
    v_add3_u32 v13, v{vBase}, v9, 31
    v_and_b32 v13, -32, v13                ; end of the tile that holds node i's last slot
    s_waitcnt lgkmcnt(0)
    v_cmp_gt_u32 vcc, v13, v12
    v_cmp_ne_u32 s[{s_x}:{s_x+1}], s{s_tot}, v12
    s_andn2_b32 s{s_x+1}, vcc_lo, s{s_alt}
    s_and_b32 s{s_x}, s{s_x}, s{s_x+1}
    s_cbranch_scc1 M_align
    """)
    stamp(A, 22)
    A(f"""
    v_mov_b32 v1, 0x3f80
    """)
    for j in range(4):
        A(f"""
        s_mov_b64 exec, s[{sM+2*j}:{sM+2*j+1}]
        s_cbranch_execz M_r2_{j}
        v_add_u32 v{vRk+j}, v{vRk+j}, v{vBs+j}
        v_lshlrev_b32 v9, 2, v{vRk+j}
        v_add_u32 v9, {L_LIST}, v9
        ds_write_b32 v9, v{4+j}
        v_and_b32 v9, 0x80, v{vD4+j}
        v_add_u32 v9, v9, v{vD4+j}
        v_and_b32 v10, 14, v{vRk+j}
        v_lshl_add_u32 v9, v9, 2, v10
        v_lshrrev_b32 v10, 4, v{vRk+j}
        v_lshl_add_u32 v9, v10, 9, v9
        v_add_u32 v9, {L_AGG}, v9
        ds_write_b16 v9, v1
        v_lshrrev_b32 v9, 3, v{vRk+j}
        v_and_b32 v10, 31, v{vRk+j}
        v_and_b32 v9, -4, v9
        v_cmp_eq_u32 vcc, 0, v10
        v_add_u32 v{vTa+j}, {L_N0}, v9
        s_and_b64 exec, exec, vcc
        ds_write_b32 v{vTa+j}, v{vD4+j}
        M_r2_{j}:
        """)
    if "elate" in OPT:
        A("s_mov_b64 exec, -1")
    else:
        egather()
    A(f"""
    s_cmp_lt_u32 s{s_T0p}, s{s_tot}
    s_cselect_b32 s{s_x}, 5, 31
    s_cselect_b32 s{s_x+1}, 1, 0x7fffffff
    s_lshr_b32 s{s_T0p}, s{s_T0p}, s{s_x}
    s_add_u32 s{s_T0p}, s{s_T0p}, s{s_x+1}
    v_add_u32 v{vDeg}, v{vDeg}, v8
    s_mul_i32 s{s_pri}, s{s_T}, {PRIO_NUM}
    s_lshr_b32 s{s_pri}, s{s_pri}, 5
    s_cmp_lt_u32 s{s_w}, 4
    s_cselect_b32 s{s_pri}, 0x7fffffff, s{s_pri}
    s_sub_u32 s{s_next}, s{s_T}, 1
    s_min_i32 s{s_next}, s{s_next}, s{s_T0p}
    s_min_i32 s{s_next}, s{s_next}, s{s_pri}
    v_mov_b32 v1, 0x3f80
    """)
    A(f"v_mov_b32 v56, {L_N0}")
    stamp(A, 23)
    A(f"""
    v_mov_b32 v{vAgg+2}, 0
    v_mov_b32 v{vAgg+3}, 0
    s_waitcnt lgkmcnt(0)
    s_barrier
    """)
    stamp(A, 9)
    PSC = "sc1" if "psc1" in OPT else ("nt" if "pnt" in OPT else ("sc0 sc1" if "psc01" in OPT else ""))

    def dma(t, jj):
        r = vOff + 2 * t + jj if t < CAP_T else vDum
        fl = "nt" if t >= NT0 else PSC
        return f"buffer_load_dwordx4 v{r}, {S(sP)}, 0 offen offset:{(t & 1)*2048 + jj*1024} {fl} lds"

    def m0set(t):
        return f"s_mov_b32 m0, s{s_ring if (t % 4) < 2 else s_ringh}"

    def offs(lo, hi, after=None, A=A):
        for t0 in range(lo, hi, 8):
            ts = range(t0, min(t0 + 8, hi))
            for t in ts:
                A(f"ds_read_b64 {vr(vOff+2*t,2)}, v{vaList} offset:{t*128}")
            for i, t in enumerate(ts):
                A(f"s_waitcnt lgkmcnt({len(ts)-1-i})")
                for jj in range(2):
                    A(f"v_lshl_add_u32 v{vOff+2*t+jj}, v{vOff+2*t+jj}, 9, v{vK0 + 2*(t & 1) + jj}")
                if after:
                    after(t)

    for j in range(4):
        A(f"ds_read_b32 v{vBs+j}, v{vTa+j}")
    for g in range(7):
        A(f"ds_read_b128 {vr(vBa+4*g,4)}, v56 offset:{16*g}")
    offs(0, 6)
    A(f"""
    s_mov_b32 s{s_f0}, 16
    s_cmp_lg_u32 s{s_w}, 0
    s_cbranch_scc1 M_nolook
    s_and_b32 s3, s2, 15
    s_lshl_b32 s3, s3, 7
    s_add_u32 s3, s3, {WS_RP}
    s_mov_b32 s{s_f0}, 0
    s_atomic_add s{s_f0}, s[{pWS}:{pWS+1}], s3 glc
    M_nolook:
    """)
    stamp(A, 19)
    A("s_waitcnt vmcnt(0)")
    stamp(A, 20)
    A("v_mov_b32 v59, 0")
    for j in range(4):
        A(f"""
        s_mov_b64 exec, s[{sM+2*j}:{sM+2*j+1}]
        s_cbranch_execz M_r3_{j}
        v_lshlrev_b32 v8, 4, v{vRk+j}
        v_add_u32 v8, {L_AQE}, v8
        ds_write2_b64 v8, {vr(vEv+2*j,2)}, {vr(vEv+2*j,2)} offset0:0 offset1:1
        v_sub_u32 v9, v{vD4+j}, v{vBs+j}
        v_lshrrev_b32 v9, 1, v9
        v_add_u32 v9, v9, v8
        ds_write_b16 v9, v1 offset:{L_AQH - L_AQE}
        v_and_b32 v8, 0x7fff7fff, v{vEv+2*j}
        v_and_b32 v9, 0x7fff7fff, v{vEv+2*j+1}
        v_pk_max_u16 v8, v8, v9
        v_pk_max_u16 v59, v59, v8
        M_r3_{j}:
        """)
    A("s_mov_b64 exec, -1")
    A(f"""
    v_lshlrev_b32 v8, 16, v59
    v_and_b32 v59, 0xffff0000, v59
    v_max_u32 v59, v59, v8
    {m0set(0)}
    v_mov_b32 v9, {L_MX}
    v_max_u32_dpp v59, v59, v59 row_shr:1 row_mask:0xf bank_mask:0xf bound_ctrl:0
    s_nop 1
    v_max_u32_dpp v59, v59, v59 row_shr:2 row_mask:0xf bank_mask:0xf bound_ctrl:0
    s_nop 1
    v_max_u32_dpp v59, v59, v59 row_shr:4 row_mask:0xf bank_mask:0xf bound_ctrl:0
    s_nop 1
    v_max_u32_dpp v59, v59, v59 row_shr:8 row_mask:0xf bank_mask:0xf bound_ctrl:0
    s_waitcnt lgkmcnt(0)
    s_and_b32 s3, s{s_f0}, 0xffff
    s_cmp_eq_u32 s3, 16
    s_cbranch_scc1 M_w2
    """)
    rpoll("b", WS_RP, 16, keep=s_f0)
    A(f"""
    M_w2:
    s_cmp_lt_u32 s{s_f0}, 0x10000
    s_cbranch_scc1 M_w3
    v_mov_b32 v59, 0x7f800000
    M_w3:
    s_mov_b32 exec_lo, 0x80008000
    s_mov_b32 exec_hi, 0x80008000
    ds_max_u32 v9, v59
    s_mov_b64 exec, -1
    s_waitcnt lgkmcnt(0)
    s_barrier
    """)
    stamp(A, 10)
    A(f"""
    s_cmp_eq_u32 s{s_T}, 0
    s_cbranch_scc1 M_empty
    {dma(0, 0)}
    {dma(0, 1)}
    """)
    stamp(A, 11)

    def bread(t):
        r = vBa + min(t, CAP_T - 1)
        return [f"ds_read_b64_tr_b16 {vr(vBq,2)}, v{r}", f"ds_read_b64_tr_b16 {vr(vBq+2,2)}, v{r} offset:{4*QS}"]

    def w2load(s):
        return f"buffer_load_dwordx4 {vr(vW2+4*s,4)}, v{vW2a}, {S(sWS)}, s{s_w2 + (s >> 2)} offen offset:{(s & 3)*1024} sc1"

    A(f"v_mov_b32 v9, {L_MX}\nds_read_b32 v59, v9")
    for t in range(CAP_T):
        A(f"v_mad_u32_u24 v{vBa+t}, v{vBa+t}, v{vBmul}, v{vaB}")
    A("\n".join(bread(0)))
    A(f"""
    ds_read_b128 {vr(vAqe,4)}, v{vaAqe}
    {dma(1, 0)}
    {dma(1, 1)}
    {m0set(2)}
    s_cmp_lt_u32 s{s_w}, 4
    s_cbranch_scc1 M_nopri
    s_setprio 1
    M_nopri:
    """)
    A(f"""
    s_waitcnt lgkmcnt(0)
    v_lshlrev_b32 v8, 16, v{vBq}
    v_and_b32 v9, 0xffff0000, v{vBq}
    v_add_f32 v8, |v8|, |v9|
    v_lshlrev_b32 v9, 16, v{vBq+1}
    v_add_f32 v8, v8, |v9|
    v_and_b32 v9, 0xffff0000, v{vBq+1}
    v_add_f32 v8, v8, |v9|
    v_mul_f32 v8, v8, v59
    v_cmp_nge_f32 vcc, {f32(BND_E / 1.01):#x}, v8
    s_or_b32 s3, s{s_big}, s{s_slow}
    s_or_b32 s{s_K}, s3, vcc_lo
    s_cmp_eq_u32 s{s_K}, 0
    s_mov_b32 s{s_K}, {f32(-math.log(2.0) * 2.0 ** -CEXP):#x}
    s_cselect_b32 s3, 1.0, {f32(2.0**-CEXP):#x}
    s_cselect_b32 s{s_K}, {f32(-math.log(2.0)):#x}, s{s_K}
    v_mov_b32 v{vC}, s3
    v_mov_b32 v{vC+1}, s3
    """)
    mfma32(A, vU[0], vAqe, vBq, None)
    A("\n".join(bread(1)))
    A(f"""
    ds_read_b128 {vr(vAqe,4)}, v{vaAqe} offset:512
    s_waitcnt vmcnt(2)
    ds_read_b128 {vr(vPf0,4)}, v{vaP0}
    ds_read_b128 {vr(vPf1,4)}, v{vaP1}
    {dma(2, 0)}
    {dma(2, 1)}
    s_waitcnt lgkmcnt(1)
    """)
    mfma32(A, vU[0], vPf0, vSel0, vU[0])
    A("s_waitcnt lgkmcnt(0)")
    mfma32(A, vU[0], vPf1, vSel1, vU[0])
    A(f"s_cmp_eq_u32 s3, 1.0\ns_nop 9\ns_cbranch_scc0 M_safe")
    stamp(A, 12)

    def second_half(B, U, aggread):
        mfma32(B, vACC, vH, vAgg, vACC)
        for i in range(8):
            B(f"v_rcp_f32 v{vT+i}, v{vT+i}")
            if i == 4:
                B(aggread)
        for i in range(0, 8, 2):
            B(f"v_pk_mul_f32 {vr(U+i,2)}, {vr(U+i,2)}, {vr(vT+i,2)}")
        for i in range(0, 8, 2):
            B(f"v_cvt_pk_bf16_f32 v{vH+i//2}, v{U+i}, v{U+i+1}")

    vmq = ["d"] * (2 * (D + 1))

    def vm_need(t):
        seen = 0
        for i, k in enumerate(vmq):
            if k == "d":
                seen += 1
                if seen == 2 * (t + 1):
                    return len(vmq) - 1 - i

    ool = Asm()

    def emit_loop(A, md, fast):
        del vmq[2 * (D + 1):]
        A(".p2align 3")
        for t in range(CAP_T):
            U, Un = vU[t & 1], vU[(t + 1) & 1]
            tn = t + 1 + D
            s2 = ((t + 2) % D) * 2048
            ex = [f"v_exp_f32 v{vT+i}, v{U+i}" for i in range(16)]
            if "itst" in OPT:
                A(f"s_memtime s[100:101]")
            late_vm = t < 3
            FIRST = t == 0
            if not FIRST:
                A(f"s_waitcnt lgkmcnt(0)" if late_vm else f"s_waitcnt vmcnt({vm_need(t+2)}) lgkmcnt(0)")
            if "itst" in OPT:
                A(f"s_waitcnt lgkmcnt(0)\nv_writelane_b32 v{vSt}, s100, {16+t}")
            if FIRST:
                A("\n".join(ex[0:4] + [dma(3, 0), dma(3, 1), m0set(D)] + ex[4:10] + [dma(D, 0), dma(D, 1)] + ex[10:16]))
            else:
                mfma32(A, Un, vAqe, vBq, None)
                A("\n".join(ex[0:4]))
                mfma32(A, Un, vPf0, vSel0, Un)
                A("\n".join(ex[4:8]))
                mfma32(A, Un, vPf1, vSel1, Un)
                A("\n".join(ex[8:16]))
            if fast:
                pk = [f"v_pk_fma_f32 {vr(U+8+i,2)}, {vr(U+8+i,2)}, {vr(vT+i,2)}, {vr(U+8+i,2)}" for i in range(0, 8, 2)]
                pk += [f"v_pk_add_f32 {vr(vT+8+i,2)}, {vr(vT+8+i,2)}, {vr(vC,2)}" for i in range(0, 8, 2)]
                pk += [f"v_pk_fma_f32 {vr(U+i,2)}, {vr(U+i,2)}, {vr(vT+8+i,2)}, {vr(U+8+i,2)}" for i in range(0, 8, 2)]
                pk += [f"v_pk_fma_f32 {vr(vT+i,2)}, {vr(vT+i,2)}, {vr(vT+8+i,2)}, {vr(vT+8+i,2)}" for i in range(0, 8, 2)]
                P_VM, P_LATE, P_F, P_CMP = 7, 9, 10, 13
            else:
                pk = [f"v_pk_fma_f32 {vr(vT+i,2)}, {vr(vT+i,2)}, {vr(vC,2)}, {vr(vC,2)} clamp" for i in (0, 8, 2, 10, 4, 12, 6, 14)]
                pk += [f"v_pk_mul_f32 {vr(U+i,2)}, {vr(U+i,2)}, {vr(vT+8+i,2)}" for i in range(0, 8, 2)]
                pk += [f"v_pk_fma_f32 {vr(U+i,2)}, {vr(U+8+i,2)}, {vr(vT+i,2)}, {vr(U+i,2)}" for i in range(0, 8, 2)]
                pk += [f"v_pk_mul_f32 {vr(vT+i,2)}, {vr(vT+i,2)}, {vr(vT+8+i,2)}" for i in range(0, 8, 2)]
                P_VM, P_LATE, P_F, P_CMP = 9, 12, 14, 16
            b0, b1 = bread(t + 2)
            g_ds = ([m0set(tn)] if tn % 2 == 0 else []) + [f"ds_read_b128 {vr(vAqe,4)}, v{vaAqe} offset:{(t+2)*512}", b0, b1]
            g_p = [f"ds_read_b128 {vr(vPf0,4)}, v{vaP0} offset:{s2}", f"ds_read_b128 {vr(vPf1,4)}, v{vaP1} offset:{s2}"]
            g_vm = [dma(tn, 0), dma(tn, 1)]
            if FIRST:
                groups = {P_F: [f"s_waitcnt vmcnt({vm_need(1)})", f"ds_read_b128 {vr(vPf0,4)}, v{vaP0} offset:2048",
                               f"ds_read_b128 {vr(vPf1,4)}, v{vaP1} offset:2048"]}
                tail0 = g_ds + g_vm + [f"s_waitcnt vmcnt({vm_need(2) + 2})"] + g_p
            elif late_vm:
                groups = {2: g_ds, P_LATE: [f"s_waitcnt vmcnt({vm_need(t+2)})"] + g_p + g_vm}
            else:
                groups = {2: g_ds + g_p, P_VM: g_vm}
            vmq.extend(["d", "d"])
            if W2T0 <= t < W2T0 + 8:
                g_vm.append(w2load(t - W2T0))
                vmq.append("w")
            groups[P_CMP] = [f"s_cmp_le_i32 s{s_next}, {t}"]
            for i, x in enumerate(pk):
                A(x)
                if FIRST and i == P_F:
                    epi_operands(A)
                    offs(6, CAP_T, A=A)
                for y in groups.get(i, []):
                    if not ("nodma" in OPT and " lds" in y):
                        A(y)
            A(f"s_cbranch_scc1 M_ev{md}{t}\nM_evr{md}{t}:")
            if FIRST:
                rc = [f"v_rcp_f32 v{vT+i}, v{vT+i}" for i in range(8)]
                A("s_waitcnt lgkmcnt(2)")
                mfma32(A, Un, vAqe, vBq, None)
                A("\n".join(rc[0:3]) + "\ns_waitcnt lgkmcnt(0)")
                mfma32(A, Un, vPf0, vSel0, Un)
                A("\n".join(rc[3:6]))
                mfma32(A, Un, vPf1, vSel1, Un)
                A("\n".join(rc[6:8]))
                A(f"ds_read_b128 {vr(vAgg,4)}, v{vaAgg}")
                A("\n".join(tail0))
                for i in range(0, 8, 2):
                    A(f"v_pk_mul_f32 {vr(U+i,2)}, {vr(U+i,2)}, {vr(vT+i,2)}")
                for i in range(0, 8, 2):
                    A(f"v_cvt_pk_bf16_f32 v{vH+i//2}, v{U+i}, v{U+i+1}")
            else:
                second_half(A, U, f"ds_read_b128 {vr(vAgg,4)}, v{vaAgg} offset:{t*1024}")
            ool(f"""
            M_ev{md}{t}:
            s_movk_i32 s{s_t}, {t}
            s_call_b64 s[{s_ret}:{s_ret+1}], M_rare
            s_cbranch_scc1 M_tail{t & 1}
            s_branch M_evr{md}{t}
            """)

    emit_loop(A, "f", True)
    A("s_branch M_fin")
    for p in range(2):
        A(f"""
        M_tail{p}:
        s_lshl_b32 s3, s{s_t}, 10
        v_add_u32 v8, s3, v{vaAgg}
        """)
        second_half(A, vU[p], f"ds_read_b128 {vr(vAgg,4)}, v8")
        if p == 0:
            A("s_branch M_fin")
    A(f"""
    M_fin:
    s_mov_b32 s{s_t}, s{s_T}
    s_cmp_eq_u32 s{s_T0p}, s{s_T}
    s_cbranch_scc0 M_fin2
    s_call_b64 s[{s_ret}:{s_ret+1}], M_rare
    M_fin2:
    s_waitcnt lgkmcnt(0)
    """)
    mfma32(A, vACC, vH, vAgg, vACC)
    stamp(A, 13)
    A(f"""
    s_cmp_lg_u32 s{s_sw}, 0
    s_nop 11
    s_cbranch_scc1 M_fin_hi
    """)
    for r in range(0, 16, 2):
        A(f"v_pk_add_f32 {vr(vS0+r,2)}, {vr(vS0+r,2)}, {vr(vACC+r,2)}")
    A("s_branch M_bend\nM_fin_hi:")
    for r in range(0, 16, 2):
        A(f"v_pk_add_f32 {vr(vS1+r,2)}, {vr(vS1+r,2)}, {vr(vACC+r,2)}")
    K = -math.log(2.0) * 2.0 ** -CEXP
    A(f"""
    M_bend:
    s_setprio 0
    s_cmp_lg_u32 s{s_slow}, 0
    s_cbranch_scc1 M_next
    M_epi:
    s_cmp_gt_u32 s{s_T}, {W2T0 + 8}
    s_cbranch_scc1 M_epi2
    """)
    for s_ in range(8):
        A(w2load(s_))
    A(f"""
    M_epi2:
    v_mov_b32 v{vC}, s{s_K}
    v_mov_b32 v{vC+1}, s{s_K}
    """)
    for Sx, o in ((vS0, 16), (vS1, 24)):
        for r in range(0, 16, 2):
            A(f"v_pk_mul_f32 {vr(Sx+r,2)}, {vr(Sx+r,2)}, {vr(vC,2)}")
        for r in range(0, 16, 2):
            A(f"v_cvt_pk_bf16_f32 v{o+r//2}, v{Sx+r}, v{Sx+r+1}")
        if o == 16:
            A("s_waitcnt vmcnt(0)\nds_write_b128 v6, v[16:19]\nds_write_b128 v7, v[20:23]")
    A(f"""
    ds_write_b128 v6, v[24:27] offset:2048
    ds_write_b128 v7, v[28:31] offset:2048
    s_mov_b32 s{s_x}, 4096
    s_mov_b32 s{s_x+1}, 8192
    s_waitcnt lgkmcnt(0)
    s_barrier
    """)
    stamp(A, 14)
    SFR = 48
    order = [(s, mt) for s in range(8) for mt in range(3)]
    RS = D * 2048
    AHEAD = 12
    for k in range(AHEAD):
        s, mt = order[k]
        A(f"ds_read_b128 {vr(SFR+4*k,4)}, v14 offset:{s*RS+mt*1024}")
    for k in range(24):
        s, mt = order[k]
        A(f"s_waitcnt lgkmcnt({min(AHEAD - 1, 23 - k)})")
        mfma16(A, OO[mt], vW2 + 4 * s, SFR + 4 * k, OO[mt])
        if k + AHEAD < 24:
            s2, mt2 = order[k + AHEAD]
            A(f"ds_read_b128 {vr(SFR+4*(k+AHEAD),4)}, v14 offset:{s2*RS+mt2*1024}")
    A("s_nop 5")
    for mt in range(3):
        A(f"""
        v_cvt_pk_bf16_f32 v{16+2*mt}, v{OO[mt]}, v{OO[mt]+1}
        v_cvt_pk_bf16_f32 v{17+2*mt}, v{OO[mt]+2}, v{OO[mt]+3}
        buffer_store_dwordx2 {vr(16+2*mt,2)}, v15, {S(sA)}, {["0", f"s{s_x}", f"s{s_x+1}"][mt]} offen
        """)
    if (SPIN is not None and SPIN[0] == 15) or ENC is not None:
        A("s_waitcnt vmcnt(0)")
        stamp(A, 15)
    if STAMPS:
        A("s_waitcnt vmcnt(0)")
        stamp(A, 15)
        srd(A, sA, pWS, 0x80000, off=WS_ST)
        A(f"""
        s_lshl_b32 s3, s2, 3
        s_add_u32 s3, s3, s{s_w}
        s_lshl_b32 s3, s3, 8
        v_lshl_add_u32 v1, v{L}, 2, s3
        buffer_store_dword v{vSt}, v1, {S(sA)}, 0 offen
        """)
    A("M_end:\ns_endpgm")

    A(f"""
    M_rare:
    s_cmp_eq_u32 s{s_T0p}, s{s_t}
    s_cbranch_scc0 M_rare2
    s_lshl_b32 s3, s{s_t}, 10
    v_add_u32 v8, s3, v{vaAgg}
    s_waitcnt lgkmcnt(0)
    """)
    mfma32(A, vACC, vH, vAgg, vACC)
    A(f"""
    v_add_u32 v{vaAgg}, 1024, v{vaAgg}
    ds_read_b128 {vr(vAgg,4)}, v8
    s_mov_b32 s{s_sw}, 1
    s_mov_b32 s{s_T0p}, 0x7fffffff
    s_nop 7
    """)
    for r in range(0, 16, 2):
        A(f"v_pk_add_f32 {vr(vS0+r,2)}, {vr(vS0+r,2)}, {vr(vACC+r,2)}")
    A("s_waitcnt lgkmcnt(0)")
    mfma32(A, vACC, vH, vAgg, None)
    for r in range(4):
        A(f"v_mov_b32 v{vAgg+r}, 0")
    A(f"""
    s_nop 0
    M_rare2:
    s_cmp_le_i32 s{s_pri}, s{s_t}
    s_cbranch_scc0 M_rare3
    s_setprio 0
    s_mov_b32 s{s_pri}, 0x7fffffff
    M_rare3:
    s_sub_u32 s3, s{s_T}, 1
    s_min_i32 s{s_next}, s3, s{s_T0p}
    s_min_i32 s{s_next}, s{s_next}, s{s_pri}
    s_cmp_le_i32 s3, s{s_t}
    s_setpc_b64 s[{s_ret}:{s_ret+1}]
    """)

    A(f"""
    M_pbig:
    v_lshlrev_b32 v8, 7, v{L}
    v_mov_b32 v9, 0x10000
    s_mov_b32 s3, {WS_RP}
    s_mov_b64 exec, 0xffff
    buffer_atomic_add v9, v8, {S(sWS)}, s3 offen sc1
    s_mov_b64 exec, -1
    s_branch M_pbigr
    """)
    A(f"M_empty:\ns_mov_b32 s{s_K}, {f32(-math.log(2.0) * 2.0 ** -CEXP):#x}")
    epi_operands(A)
    A("s_branch M_bend")
    A(f"""
    M_align:
    s_mov_b32 s{s_alt}, -1
    s_mov_b32 s{s_x+2}, 0
    v_mov_b32 v13, v{vBase}
    """)
    for G in range(5):
        A(f"""
        v_readlane_b32 s{s_x}, v{vBase}, {8*G}
        v_readlane_b32 s{s_x+1}, v{vBase}, {8*G+8}
        s_nop 1
        s_sub_u32 s{s_x+3}, s{s_x+2}, s{s_x}
        v_cmp_le_u32 vcc, {8*G}, v{L}
        v_add_u32 v10, s{s_x+3}, v{vBase}
        s_sub_u32 s{s_x+1}, s{s_x+1}, s{s_x}
        s_add_u32 s{s_x+2}, s{s_x+2}, s{s_x+1}
        v_cndmask_b32 v13, v13, v10, vcc
        """)
        if G < 4:
            A(f"s_add_u32 s{s_x+2}, s{s_x+2}, 31\ns_and_b32 s{s_x+2}, s{s_x+2}, -32")
    A(f"""
    s_mov_b32 s{s_tot}, s{s_x+2}
    v_mov_b32 v{vBase}, v13
    s_nop 1
    s_branch M_derive
    """)
    A(f"""
    M_goslow:
    s_mov_b32 s{s_slow}, 1
    s_mov_b32 s{s_batch}, 0
    s_branch M_load
    M_next:
    s_add_u32 s{s_batch}, s{s_batch}, 512
    s_cmp_ge_u32 s{s_batch}, {E}
    s_cbranch_scc1 M_epi
    M_load:
    """)
    srd(A, sA, pDST, E * 4)
    srd(A, sB, pSRC, E * 4)
    A(f"""
    v_add_u32 v8, s{s_batch}, v0
    v_lshlrev_b32 v9, 2, v8
    s_waitcnt vmcnt(0) lgkmcnt(0)
    buffer_load_dword v10, v9, {S(sA)}, 0 offen
    buffer_load_dword v11, v9, {S(sB)}, 0 offen
    v_lshlrev_b32 v{vChunk8}, 3, v8
    v_mov_b32 v5, -1
    v_mov_b32 v6, -1
    v_mov_b32 v7, -1
    s_mov_b32 s{s_x+2}, {E}
    s_waitcnt vmcnt(0)
    v_subrev_u32 v12, s{s_nb0}, v10
    v_cmp_gt_u32 vcc, s{s_nn}, v12
    v_cmp_gt_u32 s[{s_x}:{s_x+1}], s{s_x+2}, v8
    v_and_b32 v10, 63, v10
    v_lshl_or_b32 v11, v10, 14, v11
    s_and_b64 vcc, vcc, s[{s_x}:{s_x+1}]
    s_nop 1
    v_cndmask_b32 v4, v5, v11, vcc
    s_barrier
    """)
    zerofill()
    A("s_waitcnt lgkmcnt(0)\ns_barrier\ns_branch M_recs")
    B2 = Asm()
    B2("M_safe:")
    emit_loop(B2, "s", False)
    B2("s_branch M_fin")
    A.l += B2.l
    A.l += ool.l


def build():
    out = f"""; Fused edge-featured MPNN layer, one workgroup per bucket of 39/40 destination nodes.
; @launch grid=(256,1,1) block=(512,1,1) lds={LDS_BYTES}
.amdgcn_target "amdgcn-amd-amdhsa--gfx950"
.text
.globl {KN}
.p2align 8
.type {KN},@function
"""
    A = Asm()
    kernel(A)
    out += A.text()
    out += f""".section .rodata,"a"
.p2align 6
.amdhsa_kernel {KN}
  .amdhsa_next_free_vgpr {NV}
  .amdhsa_next_free_sgpr 102
  .amdhsa_accum_offset {(NV + 3) // 4 * 4}
  .amdhsa_group_segment_fixed_size 0
  .amdhsa_kernarg_size 88
  .amdhsa_user_sgpr_count 2
  .amdhsa_user_sgpr_kernarg_segment_ptr 1
  .amdhsa_system_sgpr_workgroup_id_x 1
.end_amdhsa_kernel
"""
    return out


if __name__ == "__main__":
    for a in list(sys.argv):
        if a.startswith("-o"):
            OPT.update(a[2:].split(","))
            sys.argv.remove(a)
    for a in list(sys.argv):
        if a.startswith("-spin"):
            i, us = a[5:].split(":")
            SPIN = (int(i), float(us))
            sys.argv.remove(a)
    for a in list(sys.argv):
        if a.startswith("-wsb"):
            WS_BASE = int(a[4:]) << 20
            sys.argv.remove(a)
    for a in list(sys.argv):
        if a.startswith("-enc"):
            ENC = int(a[4:])
            sys.argv.remove(a)
    for a in list(sys.argv):
        if a.startswith("-pri"):
            PRIO_NUM = int(a[4:])
            sys.argv.remove(a)
    for a in list(sys.argv):
        if a.startswith("-nt"):
            NT0 = int(a[3:])
            sys.argv.remove(a)
    for a in list(sys.argv):
        if a.startswith("-early"):
            EARLY = tuple(int(c) for c in a[6:])
            sys.argv.remove(a)
    if "--stamps" in sys.argv:
        STAMPS = True
        sys.argv.remove("--stamps")
    path = sys.argv[1] if len(sys.argv) > 1 else f"cdna_kernels/{NAME}.s"
    open(path, "w").write(build())
    print("wrote", path, "lds", LDS_BYTES)
```

```python
import sys, struct, math

NAME = "gather_scatter__edge_featured_mpnn_mpnn__graph"
KN = NAME + "_kernel"
N, E = 10000, 160000

WS_CNT = 0
WS_RB = 16 * 128
WS_RP = 32 * 128
WS_W2F = 0x2000
WS_SLOT = 0x12000
WS_P = 0x213000
TABB = N * 512
WS_END = WS_P + TABB
WS_ST = 0x1000000

WS_BASE = 0
NCH = 64
CHE = E // NCH
PROWS = 53
LOG2E = 1.4426950408889634
CEXP = 48
STAMPS = False
OPT = set()
PRIO_NUM = 20
NT0 = 99
W2T0 = 8


def f32(x):
    return struct.unpack("<I", struct.pack("<f", x))[0]


class Asm:
    def __init__(self):
        self.l = []

    def __call__(self, s):
        for x in s.split("\n"):
            x = x.strip()
            if x:
                self.l.append(("" if x.endswith(":") else "    ") + x)

    def text(self):
        import re
        for x in self.l:
            m = re.search(r"offset:(\d+)", x)
            if m:
                lim = 4096 if x.strip().startswith("buffer_") else 65536
                assert int(m.group(1)) < lim, x
        return "\n".join(self.l) + "\n"


def vr(a, n=1):
    return f"v{a}" if n == 1 else f"v[{a}:{a+n-1}]"


def srd(A, d, base, size, off=None):
    if off is None:
        A(f"s_mov_b32 s{d}, s{base}\ns_mov_b32 s{d+1}, s{base+1}")
    else:
        A(f"s_add_u32 s{d}, s{base}, {off}\ns_addc_u32 s{d+1}, s{base+1}, 0")
    A(f"s_mov_b32 s{d+2}, {size}\ns_mov_b32 s{d+3}, 0x00020000")


def S(d):
    return f"s[{d}:{d+3}]"


D = 4
CAP_T = 26
QS = 592
L_RING = 0
L_AQE = 8 * D * 2048
L_AQH = L_AQE + CAP_T * 512
L_AGG = L_AQH + CAP_T * 512
L_LIST = L_AGG + (CAP_T + 2) * 512
L_CNT = L_LIST + 4096
L_N0 = L_CNT + 256
L_MX = L_N0 + 248
L_WE = L_N0 + 256
L_Q = L_WE + 8 * QS
LDS_BYTES = (L_Q + 255) // 256 * 256 + 32768
ZERO_BYTES = L_LIST - L_AQE
L_XP = (L_Q + 255) // 256 * 256
L_XQ = L_XP + 16384
L_BT = L_AQE
L_BC = L_BT + 32768
assert L_BC + 2048 <= L_LIST and LDS_BYTES <= 163840 and 48 * QS <= 32768
DUMMY = 0x400000

pX, pE, pSRC, pDST, pW1, pB1, pW2, pB2, pOUT, pDBG, pWS = 4, 6, 8, 10, 12, 14, 16, 18, 20, 22, 24
s_w2 = 26
sA, sB, sC, sD, sWS, sP, sE = 28, 32, 36, 40, 44, 48, 52
(s_w, s_nb0, s_nb1, s_nn, s_T, s_T0p, s_t, s_next, s_slow, s_batch, s_ring, s_sw, s_tot,
 s_nb4, s_ringh, s_spin, s_pri, s_alt, s_xw) = range(56, 75)
s_f0 = 85
s_one = 84
s_big = 83
s_K = 82
BND_PQ, BND_E = 4.0, 22.0
s_x = 76
sM = 86
s_ret = 94
sG = 96

vU = [16, 32]
vT = 48
vH = 64
vACC = 68
vS0 = 84
vS1 = 100
vPf0, vPf1, vAqe, vAgg, vBq, vSel0, vSel1 = 116, 120, 124, 128, 132, 136, 140
vBa = 144
vOff = 176
vW2 = 176
(vC, _c1, vB2, _b1, vK0, vK1, vK2, vK3, vaAqe, vaAgg, vaList, vaP0, vaP1, vaB, vBmul, vBase, vDeg,
 vChunk8, vLane, vDum, vSt, vW2a, vaCnt) = range(228, 251)
vSa, vSb, vSr, vOa = 252, 253, 254, 255
NV = 256
vXF = 176
vXP = 160
vWF = 16
vPA = 48
vPO = 148
vQO = 164
vPa = 144
EARLY = (0, 1)
vXa = 145
vXr = 147
vB1 = 116
vWEr = 128
vF0 = 129
vPc = 130
vQa = 131


def mfma32(A, d, a, b, c):
    cs = "0" if c is None else vr(c, 16)
    A(f"v_mfma_f32_32x32x16_bf16 {vr(d,16)}, {vr(a,4)}, {vr(b,4)}, {cs}")


def mfma16(A, d, a, b, c):
    cs = "0" if c is None else vr(c, 4)
    A(f"v_mfma_f32_16x16x32_bf16 {vr(d,4)}, {vr(a,4)}, {vr(b,4)}, {cs}")


SPIN = None


ENC = None


def stamp(A, i):
    if ENC is not None:
        if i == 0:
            A("s_memrealtime s[100:101]\ns_waitcnt lgkmcnt(0)\ns_mov_b32 s75, s100\ns_nop 0")
        if i == ENC:
            A("s_waitcnt lgkmcnt(0)\ns_memrealtime s[100:101]\ns_waitcnt lgkmcnt(0)\ns_sub_u32 s101, s100, s75")
            A(f"v_writelane_b32 v{vSt}, s101, 0")
        if i == 15:
            u = len(A.l)
            A(f"v_readlane_b32 s3, v{vSt}, 0\ns_nop 3\ns_lshl_b32 s3, s3, 2\ns_add_u32 s3, s3, 6000")
            A(f"M_spin{u}:\ns_memrealtime s[100:101]\ns_waitcnt lgkmcnt(0)\ns_sub_u32 s100, s100, s75\ns_cmp_lt_u32 s100, s3\ns_cbranch_scc1 M_spin{u}")
    if SPIN is not None:
        if i == 0:
            A("s_memrealtime s[100:101]\ns_waitcnt lgkmcnt(0)\ns_mov_b32 s75, s100")
        elif i == SPIN[0]:
            u = len(A.l)
            A(f"M_spin{u}:\ns_memrealtime s[100:101]\ns_waitcnt lgkmcnt(0)\ns_sub_u32 s100, s100, s75\ns_cmp_lt_u32 s100, {int(SPIN[1]*100)}\ns_cbranch_scc1 M_spin{u}")
    if STAMPS:
        ins = "s_memtime" if "cyc" in OPT else "s_memrealtime"
        A(f"s_waitcnt lgkmcnt(0)\n{ins} s[100:101]\ns_waitcnt lgkmcnt(0)\nv_writelane_b32 v{vSt}, s100, {i}")


def gemm_part(A, init, nmt, xf, vm=None, xrd=None):
    def rd(s):
        for ct in range(2):
            for x in range(2):
                A(f"ds_read_b64_tr_b16 {vr(vWF + 8*s + 4*ct + 2*x, 2)}, v14 offset:{s*2048 + x*256 + ct*8}")
    if vm is None:
        for s in range(4):
            rd(s)
    else:
        xrd(0)
        A(f"s_waitcnt vmcnt({vm[0]})")
        rd(0)
        xrd(1)
    for s in range(4):
        if vm is None:
            A(f"s_waitcnt lgkmcnt({12 - 4*s})")
        else:
            A(f"s_waitcnt lgkmcnt({nmt if s < 3 else 0})")
        k = 0
        for mt in range(nmt):
            for ct in range(2):
                d = vPA + 8 * mt + 4 * ct
                c = d if s else (None if init is None else init + 4 * ct)
                mfma16(A, d, vWF + 8 * s + 4 * ct, xf + 16 * mt + 4 * s, c)
                k += 1
                if vm is not None and k == 2 and s < 3:
                    A(f"s_waitcnt vmcnt({vm[s+1]})")
                    rd(s + 1)
                    if s < 2:
                        xrd(s + 2)


def gemm_pack(A, nmt, store, vPO=vPO):
    A("s_nop 4")
    for mt in range(nmt):
        for r in range(0, 8, 2):
            a = vPA + 8 * mt + r
            A(f"v_pk_mul_f32 {vr(a,2)}, {vr(a,2)}, v[12:13]")
        for r in range(0, 8, 2):
            a = vPA + 8 * mt + r
            A(f"v_cvt_pk_bf16_f32 v{vPO + 4*mt + r//2}, v{a}, v{a+1}")
        store(mt)


def kernel(A):
    L = vLane
    SC = "sc0 sc1"
    A(f"{KN}:")
    A(f"""
    s_cmp_ge_u32 s2, 256
    s_cbranch_scc1 M_end
    s_load_dwordx16 s[4:19], s[0:1], 0
    s_load_dwordx4 s[20:23], s[0:1], 64
    s_load_dwordx2 s[24:25], s[0:1], 80
    """)
    if STAMPS or ENC is not None:
        A(f"v_mov_b32 v{vSt}, 0")
    stamp(A, 0)
    A(f"""
    v_lshrrev_b32 v2, 6, v0
    v_and_b32 v{L}, 63, v0
    v_readfirstlane_b32 s{s_w}, v2
    s_mul_i32 s{s_nb0}, s2, 160069
    s_add_u32 s{s_nb1}, s{s_nb0}, {160069 + 4049}
    s_add_u32 s{s_nb0}, s{s_nb0}, 4049
    s_lshr_b32 s{s_nb0}, s{s_nb0}, 12
    v_lshrrev_b32 v7, 4, v{L}
    v_and_b32 v8, 15, v{L}
    v_xor_b32 v8, v8, v7
    s_lshl_b32 s{s_ring}, s{s_w}, 13
    s_and_b32 s3, s{s_w}, 1
    s_lshl_b32 s3, s3, 3
    v_xor_b32 v8, s3, v8
    v_lshlrev_b32 v8, 4, v8
    v_lshl_add_u32 v8, v7, 8, v8
    s_lshl_b32 s{s_xw}, s{s_w}, 11
    v_add_u32 v{vXa}, s{s_xw}, v8
    v_xor_b32 v{vXa+1}, 64, v{vXa}
    v_lshrrev_b32 v10, 2, v{L}
    v_and_b32 v11, 3, v{L}
    v_lshlrev_b32 v11, 4, v11
    v_lshl_add_u32 v10, v10, 9, v11
    s_lshl_b32 s3, s{s_w}, 6
    v_add_u32 v10, s3, v10
    v_lshlrev_b32 v2, 2, v0
    s_waitcnt lgkmcnt(0)
    s_add_u32 s{pWS}, s{pWS}, {WS_BASE}
    s_addc_u32 s{pWS+1}, s{pWS+1}, 0
    s_cmp_ge_u32 s2, {NCH}
    s_cbranch_scc1 M_pwg
    """)

    def wdma(base):
        for ii in range(8):
            A(f"""
            s_add_u32 m0, s{s_ring}, {ii*1024}
            s_mov_b32 s{s_x+1}, {base + ii*8192}
            buffer_load_dwordx4 v10, {S(sB)}, s{s_x+1} offen lds
            """)

    def xdma(ldsbase, rowreg):
        A(f"""
        s_add_u32 m0, s{s_xw}, {ldsbase}
        s_lshl_b32 s3, s{rowreg}, 8
        buffer_load_dwordx4 v{vXa}, {S(sD)}, s3 offen lds
        buffer_load_dwordx4 v{vXa+1}, {S(sD)}, s3 offen offset:1024 lds
        """)

    def gaddr():
        A(f"""
        v_lshrrev_b32 v3, 4, v{L}        ; q
        v_and_b32 v4, 15, v{L}           ; n
        v_xor_b32 v5, v3, v4
        v_lshlrev_b32 v5, 4, v5
        v_lshl_add_u32 v{vXr}, v4, 8, v5
        v_bfe_u32 v5, v{L}, 2, 2         ; r
        v_lshl_add_u32 v6, v3, 3, v5     ; 8q + r
        v_lshlrev_b32 v6, 6, v6
        v_and_b32 v7, 3, v{L}            ; c
        v_lshl_add_u32 v6, v7, 4, v6
        v_add_u32 v14, s{s_ring}, v6
        v_mov_b32 v12, {f32(-LOG2E):#x}
        v_mov_b32 v13, v12
        """)

    def consts():
        srd(A, sP, pWS, TABB + 4096, off=WS_P - 4096)
        srd(A, sE, pE, E * 8)
        A(f"""
        s_lshr_b32 s{s_nb1}, s{s_nb1}, 12
        s_min_u32 s{s_nb1}, s{s_nb1}, {N}
        s_sub_u32 s{s_nn}, s{s_nb1}, s{s_nb0}
        s_lshl_b32 s{s_nb4}, s{s_nb0}, 2
        s_add_u32 s{s_ringh}, s{s_ring}, 4096
        s_mov_b32 s{s_slow}, 0
        s_mov_b32 s{s_big}, 0
        s_lshl_b32 s{s_w2}, s{s_w}, 13
        s_add_u32 s{s_w2}, s{s_w2}, {WS_W2F}
        s_add_u32 s{s_w2+1}, s{s_w2}, 4096
        v_lshrrev_b32 v3, 4, v{L}        ; q
        v_bfe_u32 v5, v{L}, 2, 2         ; r
        v_and_b32 v7, 3, v{L}            ; c
        v_xor_b32 v9, v7, v3
        v_lshlrev_b32 v9, 4, v9
        s_lshl_b32 s3, s{s_w}, 6
        s_add_u32 s{s_x}, s3, 1024
        v_add_u32 v{vK3}, s{s_x}, v9
        v_add_u32 v{vK2}, 1024, v{vK3}
        v_add_u32 v{vK1}, 2048, v{vK3}
        v_add_u32 v{vK0}, 3072, v{vK3}
        v_lshrrev_b32 v1, 5, v{L}        ; h
        v_mul_u32_u24 v5, {QS}, v5
        v_and_b32 v3, 1, v3
        v_lshl_add_u32 v5, v3, 5, v5
        v_lshl_add_u32 v5, v7, 3, v5
        s_add_u32 s3, s3, {L_WE}
        v_add_u32 v5, s3, v5
        v_mul_u32_u24 v6, {8*QS}, v1
        v_add_u32 v{vaB}, v5, v6
        v_mul_u32_u24 v{vBmul}, {QS//4}, v1
        v_and_b32 v3, 31, v{L}           ; m
        ; row m = 8j + 4h' + i holds member j of quad 4h' + i: slot in tile sigma(m) = j + 4i + 16h'
        v_lshrrev_b32 v9, 3, v3          ; j
        v_and_b32 v8, 3, v3              ; i
        v_lshl_add_u32 v9, v8, 2, v9
        v_and_b32 v8, 4, v3
        v_lshl_add_u32 v9, v8, 2, v9
        v_lshlrev_b32 v9, 4, v9
        v_mul_u32_u24 v8, {L_AQH - L_AQE}, v1
        v_add_u32 v9, v9, v8
        v_add_u32 v{vaAqe}, {L_AQE}, v9
        v_lshrrev_b32 v9, 2, v{L}        ; r
        v_and_b32 v8, 3, v9
        v_lshlrev_b32 v8, 2, v8
        v_lshrrev_b32 v11, 3, v9
        v_lshl_add_u32 v8, v11, 1, v8
        v_and_b32 v11, 4, v9
        v_lshl_add_u32 v8, v11, 2, v8
        v_lshlrev_b32 v8, 2, v8
        v_add_u32 v{vaList}, {L_LIST}, v8
        v_and_b32 v8, 7, v3              ; 4h' + i
        v_and_b32 v9, 8, v3
        v_lshl_add_u32 v8, v9, 1, v8
        v_lshrrev_b32 v9, 4, v3
        v_lshl_add_u32 v8, v9, 3, v8
        v_bfe_u32 v9, v8, 2, 2
        v_xor_b32 v9, v9, v1
        v_lshlrev_b32 v9, 4, v9
        v_lshl_add_u32 v9, v8, 6, v9
        v_add_u32 v{vaP0}, s{s_ring}, v9
        v_xor_b32 v{vaP1}, 32, v{vaP0}
        v_and_b32 v9, 1, v3
        v_lshlrev_b32 v9, 4, v9
        v_mov_b32 v8, 0x3f80
        v_lshlrev_b32 v9, v9, v8
        v_lshrrev_b32 v8, 1, v3
        v_lshlrev_b32 v11, 2, v1
        v_sub_u32 v8, v8, v11
        """)
        for x in range(4):
            A(f"v_cmp_eq_u32 s[{s_x}:{s_x+1}], {x}, v8\nv_cmp_eq_u32 vcc, {8+x}, v8\ns_nop 0")
            A(f"v_cndmask_b32 v{vSel0+x}, 0, v9, s[{s_x}:{s_x+1}]\nv_cndmask_b32 v{vSel1+x}, 0, v9, vcc")
        A(f"""
        v_mov_b32 v{vC}, {f32(2.0**-CEXP):#x}
        v_mov_b32 v{vC+1}, {f32(2.0**-CEXP):#x}
        v_mov_b32 v{vDeg}, 0
        v_mov_b32 v{vDum}, 0x80000000
        v_lshrrev_b32 v9, 3, v0
        v_mul_u32_u24 v{vChunk8}, {CHE*8}, v9
        v_lshlrev_b32 v{vW2a}, 4, v{L}
        v_lshlrev_b32 v9, 2, v{L}
        v_add_u32 v{vaCnt}, {L_CNT}, v9
        """)
        for r in range(16):
            A(f"v_mov_b32 v{vS0+r}, 0\nv_mov_b32 v{vS1+r}, 0")

    def bigcheck(n):
        A(f"v_max3_f32 v8, |v{vPA}|, |v{vPA+1}|, |v{vPA+2}|")
        for r in range(3, n - 1, 2):
            A(f"v_max3_f32 v8, |v{vPA+r}|, |v{vPA+r+1}|, v8")
        A(f"""
        v_max_f32 v8, |v{vPA+n-1}|, v8
        v_cmp_nge_f32 vcc, {f32(BND_PQ):#x}, v8
        s_or_b32 s3, vcc_lo, vcc_hi
        s_or_b32 s{s_big}, s{s_big}, s3
        """)

    def zerofill():
        A(f"""
        v_mov_b32 v40, 0
        v_mov_b32 v41, 0
        v_mov_b32 v42, 0
        v_mov_b32 v43, 0
        v_mov_b32 v44, {DUMMY}
        v_mov_b32 v45, {DUMMY}
        v_lshlrev_b32 v1, 3, v0
        v_add_u32 v1, {L_LIST}, v1
        ds_write_b64 v1, v[44:45]
        ds_write_b32 v{vaCnt}, v40
        ds_write_b32 v{vaCnt}, v40 offset:256
        v_lshlrev_b32 v1, 4, v0
        v_add_u32 v1, {L_AQE}, v1
        """)
        nz = ZERO_BYTES // 8192
        rem = ZERO_BYTES - nz * 8192
        for q in range(nz):
            A(f"ds_write_b128 v1, v[40:43] offset:{q*8192}")
        if rem:
            A(f"""
            v_cmp_gt_u32 vcc, {rem//16}, v0
            s_and_saveexec_b64 s[{s_x}:{s_x+1}], vcc
            ds_write_b128 v1, v[40:43] offset:{nz*8192}
            s_mov_b64 exec, s[{s_x}:{s_x+1}]
            """)

    def small():
        srd(A, sC, pB1, 512)
        A(f"""
        v_lshrrev_b32 v3, 4, v{L}
        v_lshlrev_b32 v4, 4, v3
        s_lshl_b32 s3, s{s_w}, 6
        buffer_load_dwordx4 {vr(vB1,4)}, v4, {S(sC)}, s3 offen
        v_lshlrev_b32 v5, 2, v0
        s_mov_b32 s3, {256*512}
        buffer_load_dword v{vWEr}, v5, {S(sB)}, s3 offen
        v_lshlrev_b32 v4, 3, v3
        s_mov_b32 s{sC}, s{pB2}
        s_mov_b32 s{sC+1}, s{pB2+1}
        s_mov_b32 s{sC+2}, 256
        s_lshl_b32 s3, s{s_w}, 5
        buffer_load_dwordx2 {vr(vB2,2)}, v4, {S(sC)}, s3 offen
        """)

    def eprefetch():
        A(f"""
        s_mul_i32 s3, s2, {E*8//256}
        v_lshlrev_b32 v3, 4, v0
        buffer_load_dwordx4 v[224:227], v3, {S(sE)}, s3 offen
        """)

    def f0load():
        A(f"buffer_load_dword v{vF0}, off, {S(sG)}, 0 offset:128 sc1")

    def spoll(tag, base, offreg, want, keep=None):
        A(f"""
        s_mov_b32 s{s_spin}, 0x40000
        M_sp{tag}:
        s_mov_b32 s{s_x+1}, 0
        s_atomic_add s{s_x+1}, s[{base}:{base+1}], {offreg} glc
        s_sub_u32 s{s_spin}, s{s_spin}, 1
        s_cbranch_scc1 M_spd{tag}
        s_waitcnt lgkmcnt(0)
        {f"s_mov_b32 s{keep}, s{s_x+1}" if keep else ""}
        {f"s_and_b32 s{s_x+1}, s{s_x+1}, 0xffff" if keep else ""}
        s_cmp_lg_u32 s{s_x+1}, {want}
        s_cbranch_scc1 M_sp{tag}
        M_spd{tag}:
        s_waitcnt lgkmcnt(0)
        """)

    def f0wait(tag):
        A(f"""
        v_readfirstlane_b32 s3, v{vF0}
        s_cmp_lg_u32 s3, 0
        s_cbranch_scc1 M_pfd{tag}
        """)
        spoll("f" + tag, pDBG, 128, 1)
        A(f"M_pfd{tag}:")

    def release(base):
        A(f"""
        v_lshlrev_b32 v8, 7, v{L}
        v_mov_b32 v9, 1
        s_mov_b32 s3, {base}
        s_mov_b64 exec, 0xffff
        buffer_atomic_add v9, v8, {S(sWS)}, s3 offen sc1
        s_mov_b64 exec, -1
        """)

    def rpoll(tag, base, want, keep=None):
        A(f"s_and_b32 s3, s2, 15\ns_lshl_b32 s3, s3, 7\ns_add_u32 s3, s3, {base}")
        spoll(tag, pWS, "s3", want, keep)

    srd(A, sWS, pWS, WS_END)
    A(f"""
    v_lshlrev_b32 v3, 7, v0
    s_cmp_eq_u32 s2, 0
    s_cselect_b32 s3, 48, 0
    v_cmp_gt_u32 vcc, s3, v0
    v_mov_b32 v4, 0x40000000
    v_mov_b32 v8, 0
    v_cndmask_b32 v3, v4, v3, vcc
    s_mul_i32 s3, s2, {CHE*4}
    buffer_store_dword v8, v3, {S(sWS)}, 0 offen {SC}
    """)
    srd(A, sC, pDST, CHE * 4, off="s3")
    srd(A, sD, pSRC, CHE * 4, off="s3")
    A(f"s_mov_b32 s{s_x+1}, 4096\ns_mov_b32 s{s_x+2}, 8192")
    vD, vS = 164, 169
    so = ["0", "0", f"s{s_x+1}", f"s{s_x+1}", f"s{s_x+2}"]
    for k in range(5):
        A(f"buffer_load_dword v{vD+k}, v2, {S(sC)}, {so[k]} offen offset:{(k & 1)*2048}")
    for k in range(5):
        A(f"buffer_load_dword v{vS+k}, v2, {S(sD)}, {so[k]} offen offset:{(k & 1)*2048}")
    srd(A, sC, pW2, 256 * 256)
    srd(A, sB, pW1, 260 * 512)
    A(f"""
    v_lshlrev_b32 v3, 4, v0
    v_add_u32 v15, {L_BT}, v3
    v_add_u32 v2, {L_BC}, v2
    v_mov_b32 v4, -1
    v_mov_b32 v5, -1
    v_mov_b32 v6, -1
    v_mov_b32 v7, -1
    """)
    for q in range(4):
        A(f"ds_write_b128 v15, v[4:7] offset:{q*8192}")
    A(f"""
    ds_write_b32 v2, v8
    v_mov_b32 v9, 1
    """)
    srd(A, sD, pX, N * 256)
    srd(A, sG, pDBG, 256)
    stamp(A, 1)
    A(f"""
    s_waitcnt lgkmcnt(0)
    s_barrier
    s_waitcnt vmcnt(5)
    """)
    vb, va, vk = 16, 21, 26
    for k in range(5):
        A(f"v_mul_u32_u24 v{vb+k}, 1677, v{vD+k}")
        A(f"v_lshrrev_b32 v{vb+k}, 16, v{vb+k}")
        A(f"v_lshlrev_b32 v{va+k}, 2, v{vb+k}")
        A(f"v_add_u32 v{va+k}, {L_BC}, v{va+k}")
        if k == 4:
            A(f"v_cmp_gt_u32 vcc, {CHE - 2048}, v0\ns_and_saveexec_b64 s[{s_x+2}:{s_x+3}], vcc")
        A(f"ds_add_rtn_u32 v{vk+k}, v{va+k}, v9")
    A(f"""
    s_mov_b64 s[{s_x+4}:{s_x+5}], exec
    s_or_b32 s3, s2, s{s_w}
    s_cbranch_scc1 M_nf0
    s_mov_b64 exec, 1
    buffer_store_dword v9, off, {S(sG)}, 0 offset:128 {SC}
    M_nf0:
    s_mov_b64 exec, -1
    s_lshl_b32 s3, s2, 8
    v_add_u32 v3, s3, v0
    v_bfe_u32 v4, v3, 8, 3           ; s
    v_lshlrev_b32 v4, 5, v4
    v_bfe_u32 v5, v3, 6, 1           ; ab
    v_lshl_add_u32 v4, v5, 4, v4
    v_bfe_u32 v5, v3, 1, 1           ; e>>2
    v_lshl_add_u32 v4, v5, 3, v4
    v_bfe_u32 v5, v3, 7, 1           ; h
    v_lshl_add_u32 v4, v5, 2, v4
    v_and_b32 v5, 1, v3
    v_lshl_add_u32 v4, v5, 1, v4     ; hidden
    v_lshlrev_b32 v4, 8, v4
    v_lshrrev_b32 v5, 11, v3         ; wo
    v_lshl_add_u32 v4, v5, 5, v4
    v_bfe_u32 v5, v3, 2, 4           ; m
    v_lshl_add_u32 v4, v5, 1, v4
    v_lshrrev_b32 v5, 8, v0
    v_lshl_or_b32 v4, v5, 30, v4
    v_lshlrev_b32 v3, 2, v3
    v_lshl_or_b32 v176, v5, 30, v3
    buffer_load_ushort v174, v4, {S(sC)}, 0 offen
    buffer_load_ushort v175, v4, {S(sC)}, 0 offen offset:256
    """)
    xdma(L_XQ, s_nb0)
    small()
    A("s_waitcnt vmcnt(7)")
    for k in range(5):
        A(f"""
        v_and_b32 v{vD+k}, 63, v{vD+k}
        v_lshl_or_b32 v{vS+k}, v{vD+k}, 14, v{vS+k}
        v_add_u32 v{vD+k}, {512*k}, v0
        v_lshl_or_b32 v{vS+k}, v{vD+k}, 20, v{vS+k}
        v_lshlrev_b32 v{va+k}, 7, v{vb+k}
        v_add_u32 v{va+k}, {L_BT}, v{va+k}
        """)
    for k in range(5):
        if k == 4:
            A(f"s_mov_b64 exec, s[{s_x+4}:{s_x+5}]")
        A(f"""
        s_waitcnt lgkmcnt({4-k})
        v_add_u32 v4, v{vk+k}, v{vb+k}
        v_and_b32 v4, 7, v4
        v_lshrrev_b32 v5, 3, v{vk+k}
        v_lshl_add_u32 v4, v4, 2, v5
        v_lshl_add_u32 v{va+k}, v4, 2, v{va+k}
        v_cmp_gt_u32 vcc, 32, v{vk+k}
        s_and_saveexec_b64 s[{s_x+6}:{s_x+7}], vcc
        ds_write_b32 v{va+k}, v{vS+k}
        s_mov_b64 exec, s[{s_x+6}:{s_x+7}]
        """)
    A(f"""
    s_mov_b64 exec, -1
    v_lshrrev_b32 v4, 3, v0
    v_lshlrev_b32 v5, 2, v4
    v_add_u32 v5, {L_BC}, v5
    v_and_b32 v6, 7, v0
    v_lshlrev_b32 v7, 13, v4
    v_lshl_add_u32 v7, v6, 4, v7
    s_lshl_b32 s3, s2, 7
    s_add_u32 s3, s3, {WS_SLOT}
    v_add_u32 v7, s3, v7
    v_cmp_eq_u32 s[{s_x+2}:{s_x+3}], 7, v6
    v_mov_b32 v8, -2
    s_mov_b32 s{s_x+4}, 0
    s_mov_b32 s{s_x+5}, {64*8192}
    s_mov_b32 s{s_x+6}, {128*8192}
    s_mov_b32 s{s_x+7}, {192*8192}
    s_waitcnt lgkmcnt(0)
    s_barrier
    """)
    stamp(A, 2)
    for q in range(4):
        A(f"ds_read_b128 {vr(16+4*q,4)}, v15 offset:{q*8192}")
        A(f"ds_read_b32 v{32+q}, v5 offset:{q*256}")
    A(f"s_mov_b32 s3, {WS_W2F}")
    for q in range(4):
        A(f"""
        s_waitcnt lgkmcnt({6-2*q})
        v_cmp_lt_u32 vcc, 32, v{32+q}
        s_and_b64 vcc, vcc, s[{s_x+2}:{s_x+3}]
        s_nop 1
        v_cndmask_b32 v{19+4*q}, v{19+4*q}, v8, vcc
        buffer_store_dwordx4 {vr(16+4*q,4)}, v7, {S(sWS)}, s{s_x+4+q} offen {SC}
        """)
    A(f"s_waitcnt vmcnt(9)\nv_lshl_or_b32 v174, v175, 16, v174\nbuffer_store_dword v174, v176, {S(sWS)}, s3 offen {SC}")
    stamp(A, 3)
    f0load()
    gaddr()
    consts()
    A(f"""
    s_waitcnt vmcnt(0)
    s_barrier
    s_cmp_lg_u32 s{s_w}, 0
    s_cbranch_scc1 M_nlast2
    """)
    stamp(A, 16)
    A(f"""
    s_and_b32 s3, s2, 1
    s_lshl_b32 s3, s3, 6
    s_mov_b32 s{s_x}, 1
    s_atomic_add s{s_x}, s[{pDBG}:{pDBG+1}], s3 glc
    """)
    f0wait("b")
    A(f"""
    s_waitcnt lgkmcnt(0)
    s_and_b32 s3, s{s_x}, {NCH//2 - 1}
    s_cmp_lg_u32 s3, {NCH//2 - 1}
    s_cbranch_scc1 M_nlast
    """)
    release(WS_RB)
    A("M_nlast:")
    stamp(A, 17)
    A("M_nlast2:")
    srd(A, sA, pWS, 0)
    A(f"v_mov_b32 v{vPa}, 0")
    wdma(128 * 512)
    EPF = 3 if "epf" in OPT else 0
    if EPF:
        A(f"s_mul_i32 s3, s2, {CHE*8}")
        srd(A, sC, pE, CHE * 8, off="s3")
        A(f"v_lshlrev_b32 v3, 4, v0\ns_mov_b32 s3, 16384\ns_mov_b32 s{s_x+2}, 8192")
        A(f"buffer_load_dwordx4 v[224:227], v3, {S(sC)}, 0 offen")
        A(f"buffer_load_dwordx4 v[224:227], v3, {S(sC)}, s{s_x+2} offen")
        A(f"buffer_load_dwordx4 v[224:227], v3, {S(sC)}, s3 offen")
    zerofill()
    A("s_branch M_join")
    A("M_pwg:")
    srd(A, sD, pX, N * 256)
    srd(A, sB, pW1, 260 * 512)
    A(f"s_sub_u32 s{s_t}, s2, {NCH}\ns_mul_i32 s{s_t}, s{s_t}, {PROWS}")
    xdma(L_XP, s_t)
    A(f"""
    s_and_b32 s3, s2, -8
    s_add_u32 s3, s3, s{s_w}
    s_and_b32 s3, s3, 127
    s_lshl_b32 s3, s3, 10
    v_lshlrev_b32 v3, 4, v{L}
    buffer_load_dwordx4 v[16:19], v3, {S(sB)}, s3 offen
    """)
    srd(A, sWS, pWS, WS_END)
    srd(A, sG, pDBG, 256)
    consts()
    zerofill()
    wdma(0)
    stamp(A, 1)
    gaddr()
    A(f"""
    v_add_u32 v15, {L_XP}, v{vXr}
    v_add_u32 v11, s{s_t}, v4
    v_lshlrev_b32 v11, 9, v11
    v_lshl_add_u32 v11, v3, 4, v11
    s_lshl_b32 s3, s{s_w}, 6
    v_add_u32 v{vPa}, s3, v11
    s_add_u32 s3, s{s_t}, {PROWS}
    s_min_u32 s3, s3, {N}
    s_lshl_b32 s3, s3, 9
    """)
    srd(A, sA, pWS, "s3", off=WS_P)
    A(f"""
    s_waitcnt vmcnt(8)
    s_barrier
    """)
    stamp(A, 2)

    def pstore(mt):
        A(f"s_mov_b32 s3, {mt*8192}\nbuffer_store_dwordx4 {vr(vPO+4*mt,4)}, v{vPa}, {S(sA)}, s3 offen {SC}")

    def xrd(s):
        if s:
            A(f"v_xor_b32 v4, {s << 6:#x}, v15")
        for mt in range(4):
            A(f"ds_read_b128 {vr(vXP + 16*mt + 4*s, 4)}, v{4 if s else 15} offset:{mt*4096}")
    gemm_part(A, None, 4, vXP, vm=[6, 4, 2, 0], xrd=xrd)
    stamp(A, 18)
    f0load()
    xdma(L_XQ, s_nb0)
    small()
    if "w1bfirst" in OPT:
        wdma(128 * 512)
    gemm_pack(A, 4, lambda mt: pstore(mt) if mt in EARLY else None)
    stamp(A, 3)
    if "w1bfirst" not in OPT:
        wdma(128 * 512)
    bigcheck(32)
    A(f"s_waitcnt vmcnt({8 + len(EARLY)})")
    A("M_join:")
    stamp(A, 4)
    A(f"""
    s_mov_b32 s{s_x+2}, {QS - 512}
    v_lshlrev_b32 v8, 16, v{vWEr}
    v_and_b32 v9, 0xffff0000, v{vWEr}
    v_mul_f32 v8, v12, v8
    v_mul_f32 v9, v12, v9
    v_cvt_pk_bf16_f32 v10, v8, v9
    v_lshrrev_b32 v4, 7, v0          ; f
    v_lshlrev_b32 v5, 16, v10
    v_and_b32 v6, 0xffff0000, v10
    v_sub_f32 v8, v8, v5
    v_sub_f32 v9, v9, v6
    v_cvt_pk_bf16_f32 v11, v8, v9
    v_lshlrev_b32 v5, 2, v0
    v_mad_u32_u24 v5, v4, s{s_x+2}, v5
    v_add_u32 v5, {L_WE}, v5
    ds_write_b32 v5, v10
    ds_write_b32 v5, v11 offset:{4*QS}
    """)
    for x in range(4):
        A(f"v_lshlrev_b32 v{vB1+4+2*x}, 16, v{vB1+x}\nv_and_b32 v{vB1+5+2*x}, 0xffff0000, v{vB1+x}")
    A(f"""
    v_and_b32 v8, 15, v{L}               ; n
    v_lshrrev_b32 v9, 4, v{L}            ; q
    v_bfe_u32 v4, v8, 1, 2
    v_xor_b32 v4, v4, v9
    v_lshlrev_b32 v4, 4, v4
    v_lshl_add_u32 v{vSr}, v8, 6, v4
    v_add_u32 v4, s{s_nb0}, v8
    v_lshlrev_b32 v4, 8, v4
    v_lshl_add_u32 v4, v9, 3, v4
    s_lshl_b32 s3, s{s_w}, 5
    v_add_u32 v{vOa}, s3, v4
    v_and_b32 v8, 31, v{L}
    v_lshrrev_b32 v9, 5, v{L}
    v_lshlrev_b32 v9, 1, v9
    v_bfe_u32 v4, v8, 1, 2
    v_xor_b32 v4, v4, v9
    v_lshlrev_b32 v4, 4, v4
    v_lshl_add_u32 v4, v8, 6, v4
    v_add_u32 v{vSa}, s{s_ring}, v4
    v_xor_b32 v{vSb}, 16, v{vSa}
    """)
    A(f"""
    s_cmp_lg_u32 s{s_w}, 0
    s_cbranch_scc1 M_w1d
    """)
    f0wait("a")
    rpoll("a", WS_RB, 2)
    A("M_w1d:")
    stamp(A, 5)
    A(f"""
    v_add_u32 v15, {L_XQ}, v{vXr}
    s_lshl_b32 s{s_x}, s2, 13
    s_add_u32 s{s_x}, s{s_x}, {WS_SLOT}
    v_lshlrev_b32 v1, 4, v0
    s_waitcnt lgkmcnt(0)
    s_barrier
    buffer_load_dwordx4 v[4:7], v1, {S(sWS)}, s{s_x} offen {SC}
    """)
    if "nosb" not in OPT:
        A("s_barrier")
    for mt in range(4):
        if mt not in EARLY:
            pstore(mt)
    NL = 4 - len(EARLY)
    A(f"""
    s_cmp_lg_u32 s{s_big}, 0
    s_cbranch_scc1 M_pbig
    M_pbigr:
    """)
    stamp(A, 6)
    for s in range(4):
        if s:
            A(f"v_xor_b32 v8, {s << 6:#x}, v15")
        for mt in range(3):
            A(f"ds_read_b128 {vr(vXF + 16*mt + 4*s, 4)}, v{8 if s else 15} offset:{mt*4096}")
    A(f"""
    s_cmp_ge_u32 s2, {NCH}
    s_cbranch_scc1 M_tk1a
    s_waitcnt vmcnt({1 + NL + EPF}) lgkmcnt(0)
    s_branch M_tk1
    M_tk1a:
    s_waitcnt vmcnt({5 if "w1bfirst" in OPT else 1 + NL}) lgkmcnt(0)
    M_tk1:
    """)
    gemm_part(A, vB1 + 4, 3, vXF)
    A(f"""
    v_and_b32 v8, 15, v{L}           ; n
    v_lshrrev_b32 v9, 4, v{L}        ; q
    v_lshlrev_b32 v9, 4, v9
    v_mul_u32_u24 v8, {QS}, v8
    s_lshl_b32 s3, s{s_w}, 6
    s_add_u32 s3, s3, {L_Q}
    v_add3_u32 v{vQa}, v8, v9, s3
    """)
    gemm_pack(A, 3, lambda mt: None, vPO=vQO)
    bigcheck(24)
    stamp(A, 7)
    A(f"s_waitcnt vmcnt({NL})\nM_recs:")
    stamp(A, 8)
    vD4, vRk, vEo, vEv, vBs, vTa = 16, 20, 24, 28, 36, 40
    A(f"s_mov_b32 s{s_x}, 0xfff00000\nv_mov_b32 v1, 1")
    for j in range(4):
        A(f"v_cmp_gt_u32 s[{sM+2*j}:{sM+2*j+1}], s{s_x}, v{4+j}")
    OO = [2, 10, 172]

    def bias_term(A):
        A(f"""
        v_and_b32 v8, 15, v{L}
        v_lshlrev_b32 v9, 2, v8
        ds_bpermute_b32 v32, v9, v{vDeg}
        ds_bpermute_b32 v33, v9, v{vDeg} offset:64
        ds_bpermute_b32 v34, v9, v{vDeg} offset:128
        v_lshlrev_b32 v36, 16, v{vB2}
        v_and_b32 v37, 0xffff0000, v{vB2}
        v_lshlrev_b32 v38, 16, v{vB2+1}
        v_and_b32 v39, 0xffff0000, v{vB2+1}
        s_lshl_b32 s3, s{s_nb1}, 8
        """)
        srd(A, sA, pOUT, "s3")
        A("s_waitcnt lgkmcnt(0)")
        for mt in range(3):
            A(f"v_cvt_f32_u32 v{32+mt}, v{32+mt}")
        for mt in range(3):
            for i in (0, 2):
                A(f"v_pk_mul_f32 {vr(OO[mt]+i,2)}, {vr(36+i,2)}, {vr(32+(mt & 2),2)} op_sel:[0,{mt & 1}] op_sel_hi:[1,{mt & 1}]")

    def egather():
        for j in range(4):
            A(f"""
            s_mov_b64 exec, s[{sM+2*j}:{sM+2*j+1}]
            buffer_load_dwordx2 {vr(vEv+2*j,2)}, v{vEo+j}, {S(sE)}, 0 offen
            """)
        A("s_mov_b64 exec, -1")

    for j in range(4):
        A(f"""
        v_lshrrev_b32 v{vEo+j}, 20, v{4+j}
        v_lshl_add_u32 v{vEo+j}, v{vEo+j}, 3, v{vChunk8}
        """)
    for j in range(4):
        A(f"""
        s_mov_b64 exec, s[{sM+2*j}:{sM+2*j+1}]
        s_cbranch_execz M_r1_{j}
        v_lshrrev_b32 v{vD4+j}, 12, v{4+j}
        v_subrev_u32 v{vD4+j}, s{s_nb4}, v{vD4+j}
        v_and_b32 v{vD4+j}, 0xfc, v{vD4+j}
        v_add_u32 v8, {L_CNT}, v{vD4+j}
        ds_add_rtn_u32 v{vRk+j}, v8, v1
        v_and_b32 v{4+j}, 0x3fff, v{4+j}
        M_r1_{j}:
        """)
        if j == 2:
            A(f"""
            s_mov_b64 exec, -1
            v_cmp_eq_u32 vcc, -2, v7
            s_and_b64 exec, exec, vcc
            s_cbranch_execz M_nomark
            v_mov_b32 v8, {L_CNT + 63*4}
            v_mov_b32 v9, 0x10000
            ds_add_u32 v8, v9
            M_nomark:
            """)
    A(f"""
    s_mov_b64 exec, -1
    s_mov_b32 s{s_alt}, 0
    s_mov_b32 s{s_sw}, 0
    v_lshlrev_b32 v9, 3, v{L}
    v_add_u32 v{vaAgg}, {L_AGG}, v9
    v_lshlrev_b32 v11, 2, v{L}
    v_add_u32 v11, 32, v11
    s_waitcnt vmcnt(0) lgkmcnt(0)
    s_barrier
    """)
    stamp(A, 21)
    A(f"""
    ds_read_b32 v8, v{vaCnt}
    v_mov_b32 v57, 0
    s_cmp_lg_u32 s{s_w}, 1
    s_cbranch_scc1 M_tk0
    s_cmp_lg_u32 s{s_slow}, 0
    s_cbranch_scc1 M_tk0
    s_and_b32 s3, s2, 15
    s_lshl_b32 s3, s3, 7
    v_mov_b32 v57, 1
    s_mov_b64 exec, 1
    buffer_atomic_add v57, off, {S(sWS)}, s3 sc0 sc1
    s_mov_b64 exec, -1
    M_tk0:
    s_cmp_lg_u32 s{s_slow}, 0
    s_cbranch_scc1 M_noq
    """)
    for mt in range(3):
        A(f"ds_write_b128 v{vQa}, {vr(vQO+4*mt,4)} offset:{mt*16*QS}")
    A("M_noq:")
    for r in range(16):
        A(f"v_mov_b32 v{vACC+r}, 0")
    A(f"""
    s_waitcnt lgkmcnt(3)
    s_cmp_eq_u32 s{s_slow}, 0
    s_cbranch_scc1 M_noq2
    s_waitcnt lgkmcnt(0)
    M_noq2:
    v_add_u32 v9, 3, v8
    v_and_b32 v9, -4, v9
    v_mov_b32 v10, v9
    v_mov_b32 v{vH}, 0
    v_mov_b32 v{vH+1}, 0
    v_add_u32_dpp v10, v10, v10 row_shr:1 row_mask:0xf bank_mask:0xf bound_ctrl:0
    v_mov_b32 v{vH+2}, 0
    v_mov_b32 v{vH+3}, 0
    v_add_u32_dpp v10, v10, v10 row_shr:2 row_mask:0xf bank_mask:0xf bound_ctrl:0
    v_mov_b32 v{vAgg}, 0
    v_mov_b32 v{vAgg+1}, 0
    v_add_u32_dpp v10, v10, v10 row_shr:4 row_mask:0xf bank_mask:0xf bound_ctrl:0
    s_nop 1
    v_add_u32_dpp v10, v10, v10 row_shr:8 row_mask:0xf bank_mask:0xf bound_ctrl:0
    s_nop 1
    v_add_u32_dpp v10, v10, v10 row_bcast:15 row_mask:0xa bank_mask:0xf
    s_nop 1
    v_add_u32_dpp v10, v10, v10 row_bcast:31 row_mask:0xc bank_mask:0xf
    s_nop 0
    v_sub_u32 v{vBase}, v10, v9
    v_readlane_b32 s{s_tot}, v10, 63
    s_cmp_lg_u32 s{s_w}, 1
    s_cbranch_scc1 M_derive
    s_waitcnt vmcnt(0)
    v_readfirstlane_b32 s3, v57
    s_cmp_lg_u32 s3, 15
    s_cbranch_scc1 M_derive
    """)
    if "srel" in OPT:
        A(f"s_mov_b32 s{s_one}, 1")
        for i in range(16):
            A(f"s_atomic_add s{s_one}, s[{pWS}:{pWS+1}], {WS_RP + 128*i}")
    else:
        A(f"""
        v_lshlrev_b32 v12, 7, v{L}
        v_mov_b32 v13, 1
        s_mov_b32 s3, {WS_RP}
        s_mov_b64 exec, 0xffff
        buffer_atomic_add v13, v12, {S(sWS)}, s3 offen sc1
        s_mov_b64 exec, -1
        """)
    A(f"""
    M_derive:
    """)
    for j in range(4):
        A(f"ds_bpermute_b32 v{vBs+j}, v{vD4+j}, v{vBase}")
    A(f"""
    ds_bpermute_b32 v12, v11, v{vBase}
    s_cmp_gt_u32 s{s_tot}, {CAP_T*32}
    s_cbranch_scc1 M_goslow
    v_readlane_b32 s{s_T0p}, v{vBase}, 32
    s_add_u32 s{s_T}, s{s_tot}, 31
    s_lshr_b32 s{s_T}, s{s_T}, 5
    v_add3_u32 v13, v{vBase}, v9, 31
    v_and_b32 v13, -32, v13                ; end of the tile that holds node i's last slot
    s_waitcnt lgkmcnt(0)
    v_cmp_gt_u32 vcc, v13, v12
    v_cmp_ne_u32 s[{s_x}:{s_x+1}], s{s_tot}, v12
    s_andn2_b32 s{s_x+1}, vcc_lo, s{s_alt}
    s_and_b32 s{s_x}, s{s_x}, s{s_x+1}
    s_cbranch_scc1 M_align
    """)
    stamp(A, 22)
    A(f"""
    v_mov_b32 v1, 0x3f80
    """)
    for j in range(4):
        A(f"""
        s_mov_b64 exec, s[{sM+2*j}:{sM+2*j+1}]
        s_cbranch_execz M_r2_{j}
        v_add_u32 v{vRk+j}, v{vRk+j}, v{vBs+j}
        v_lshlrev_b32 v9, 2, v{vRk+j}
        v_add_u32 v9, {L_LIST}, v9
        ds_write_b32 v9, v{4+j}
        v_and_b32 v9, 0x80, v{vD4+j}
        v_add_u32 v9, v9, v{vD4+j}
        v_bfe_u32 v10, v{vRk+j}, 2, 2
        v_add_lshl_u32 v9, v9, v10, 1
        v_lshrrev_b32 v10, 4, v{vRk+j}
        v_lshl_add_u32 v9, v10, 8, v9
        v_add_u32 v9, {L_AGG}, v9
        ds_write_b16 v9, v1
        v_lshrrev_b32 v9, 3, v{vRk+j}
        v_and_b32 v10, 31, v{vRk+j}
        v_and_b32 v9, -4, v9
        v_cmp_eq_u32 vcc, 0, v10
        v_add_u32 v{vTa+j}, {L_N0}, v9
        s_and_b64 exec, exec, vcc
        ds_write_b32 v{vTa+j}, v{vD4+j}
        M_r2_{j}:
        """)
    if "elate" in OPT:
        A("s_mov_b64 exec, -1")
    else:
        egather()
    A(f"""
    s_cmp_lt_u32 s{s_T0p}, s{s_tot}
    s_cselect_b32 s{s_x}, 5, 31
    s_cselect_b32 s{s_x+1}, 1, 0x7fffffff
    s_lshr_b32 s{s_T0p}, s{s_T0p}, s{s_x}
    s_add_u32 s{s_T0p}, s{s_T0p}, s{s_x+1}
    v_add_u32 v{vDeg}, v{vDeg}, v8
    s_mul_i32 s{s_pri}, s{s_T}, {PRIO_NUM}
    s_lshr_b32 s{s_pri}, s{s_pri}, 5
    s_cmp_lt_u32 s{s_w}, 4
    s_cselect_b32 s{s_pri}, 0x7fffffff, s{s_pri}
    s_sub_u32 s{s_next}, s{s_T}, 1
    s_min_i32 s{s_next}, s{s_next}, s{s_T0p}
    s_min_i32 s{s_next}, s{s_next}, s{s_pri}
    v_mov_b32 v1, 0x3f80
    """)
    A(f"v_mov_b32 v56, {L_N0}")
    stamp(A, 23)
    A(f"""
    v_mov_b32 v{vAgg+2}, 0
    v_mov_b32 v{vAgg+3}, 0
    s_waitcnt lgkmcnt(0)
    s_barrier
    """)
    stamp(A, 9)
    PSC = "sc1" if "psc1" in OPT else ("nt" if "pnt" in OPT else ("sc0 sc1" if "psc01" in OPT else ""))

    def dma(t, jj):
        r = vOff + 2 * t + jj if t < CAP_T else vDum
        fl = "nt" if t >= NT0 else PSC
        return f"buffer_load_dwordx4 v{r}, {S(sP)}, 0 offen offset:{(t & 1)*2048 + jj*1024} {fl} lds"

    def m0set(t):
        return f"s_mov_b32 m0, s{s_ring if (t % 4) < 2 else s_ringh}"

    def offs(lo, hi, after=None, A=A):
        for t0 in range(lo, hi, 8):
            ts = range(t0, min(t0 + 8, hi))
            for t in ts:
                A(f"ds_read_b64 {vr(vOff+2*t,2)}, v{vaList} offset:{t*128}")
            for i, t in enumerate(ts):
                A(f"s_waitcnt lgkmcnt({len(ts)-1-i})")
                for jj in range(2):
                    A(f"v_lshl_add_u32 v{vOff+2*t+jj}, v{vOff+2*t+jj}, 9, v{vK0 + 2*(t & 1) + jj}")
                if after:
                    after(t)

    for j in range(4):
        A(f"ds_read_b32 v{vBs+j}, v{vTa+j}")
    for g in range(7):
        A(f"ds_read_b128 {vr(vBa+4*g,4)}, v56 offset:{16*g}")
    offs(0, 6)
    A(f"""
    s_mov_b32 s{s_f0}, 16
    s_cmp_lg_u32 s{s_w}, 0
    s_cbranch_scc1 M_nolook
    s_and_b32 s3, s2, 15
    s_lshl_b32 s3, s3, 7
    s_add_u32 s3, s3, {WS_RP}
    s_mov_b32 s{s_f0}, 0
    s_atomic_add s{s_f0}, s[{pWS}:{pWS+1}], s3 glc
    M_nolook:
    """)
    stamp(A, 19)
    A("s_waitcnt vmcnt(0)")
    stamp(A, 20)
    A("v_mov_b32 v59, 0")
    for j in range(4):
        A(f"""
        s_mov_b64 exec, s[{sM+2*j}:{sM+2*j+1}]
        s_cbranch_execz M_r3_{j}
        v_lshlrev_b32 v8, 4, v{vRk+j}
        v_add_u32 v8, {L_AQE}, v8
        ds_write2_b64 v8, {vr(vEv+2*j,2)}, {vr(vEv+2*j,2)} offset0:0 offset1:1
        v_sub_u32 v9, v{vD4+j}, v{vBs+j}
        v_lshrrev_b32 v9, 1, v9
        v_add_u32 v9, v9, v8
        ds_write_b16 v9, v1 offset:{L_AQH - L_AQE}
        v_and_b32 v8, 0x7fff7fff, v{vEv+2*j}
        v_and_b32 v9, 0x7fff7fff, v{vEv+2*j+1}
        v_pk_max_u16 v8, v8, v9
        v_pk_max_u16 v59, v59, v8
        M_r3_{j}:
        """)
    A("s_mov_b64 exec, -1")
    if "nodefer" in OPT:
        A("s_waitcnt lgkmcnt(0)")
        offs(6, CAP_T)
        for t in range(CAP_T):
            A(f"v_mad_u32_u24 v{vBa+t}, v{vBa+t}, v{vBmul}, v{vaB}")
    A(f"""
    v_lshlrev_b32 v8, 16, v59
    v_and_b32 v59, 0xffff0000, v59
    v_max_u32 v59, v59, v8
    {m0set(0)}
    v_mov_b32 v9, {L_MX}
    v_max_u32_dpp v59, v59, v59 row_shr:1 row_mask:0xf bank_mask:0xf bound_ctrl:0
    s_nop 1
    v_max_u32_dpp v59, v59, v59 row_shr:2 row_mask:0xf bank_mask:0xf bound_ctrl:0
    s_nop 1
    v_max_u32_dpp v59, v59, v59 row_shr:4 row_mask:0xf bank_mask:0xf bound_ctrl:0
    s_nop 1
    v_max_u32_dpp v59, v59, v59 row_shr:8 row_mask:0xf bank_mask:0xf bound_ctrl:0
    s_waitcnt lgkmcnt(0)
    s_and_b32 s3, s{s_f0}, 0xffff
    s_cmp_eq_u32 s3, 16
    s_cbranch_scc1 M_w2
    """)
    rpoll("b", WS_RP, 16, keep=s_f0)
    A(f"""
    M_w2:
    s_cmp_lt_u32 s{s_f0}, 0x10000
    s_cbranch_scc1 M_w3
    v_mov_b32 v59, 0x7f800000
    M_w3:
    s_mov_b32 exec_lo, 0x80008000
    s_mov_b32 exec_hi, 0x80008000
    ds_max_u32 v9, v59
    s_mov_b64 exec, -1
    s_waitcnt lgkmcnt(0)
    s_barrier
    """)
    stamp(A, 10)
    A(f"""
    s_cmp_eq_u32 s{s_T}, 0
    s_cbranch_scc1 M_empty
    {dma(0, 0)}
    {dma(0, 1)}
    """)
    stamp(A, 11)

    def bread(t):
        r = vBa + min(t, CAP_T - 1)
        return [f"ds_read_b64_tr_b16 {vr(vBq,2)}, v{r}", f"ds_read_b64_tr_b16 {vr(vBq+2,2)}, v{r} offset:{4*QS}"]

    def w2load(s):
        return f"buffer_load_dwordx4 {vr(vW2+4*s,4)}, v{vW2a}, {S(sWS)}, s{s_w2 + (s >> 2)} offen offset:{(s & 3)*1024} sc1"

    A(f"v_mov_b32 v9, {L_MX}\nds_read_b32 v59, v9")
    for t in range(6, 16):
        A(f"ds_read_b64 {vr(vOff+2*t,2)}, v{vaList} offset:{t*128}")
    for t in range(CAP_T):
        A(f"v_mad_u32_u24 v{vBa+t}, v{vBa+t}, v{vBmul}, v{vaB}")
    A("\n".join(bread(0)))
    A(f"""
    ds_read_b128 {vr(vAqe,4)}, v{vaAqe}
    s_barrier
    {dma(1, 0)}
    {dma(1, 1)}
    {m0set(2)}
    s_waitcnt lgkmcnt(3)
    """)
    for t in range(16, CAP_T):
        A(f"ds_read_b64 {vr(vOff+2*t,2)}, v{vaList} offset:{t*128}")

    def offadd(lo, hi):
        for t in range(lo, hi):
            for jj in range(2):
                A(f"v_lshl_add_u32 v{vOff+2*t+jj}, v{vOff+2*t+jj}, 9, v{vK0 + 2*(t & 1) + jj}")
    offadd(6, 16)
    A("s_waitcnt lgkmcnt(0)")
    offadd(16, CAP_T)
    A(f"""
    s_cmp_lt_u32 s{s_w}, 4
    s_cbranch_scc1 M_nopri
    s_setprio 1
    M_nopri:
    v_lshlrev_b32 v8, 16, v{vBq}
    v_and_b32 v9, 0xffff0000, v{vBq}
    v_add_f32 v8, |v8|, |v9|
    v_lshlrev_b32 v9, 16, v{vBq+1}
    v_add_f32 v8, v8, |v9|
    v_and_b32 v9, 0xffff0000, v{vBq+1}
    v_add_f32 v8, v8, |v9|
    v_mul_f32 v8, v8, v59
    v_cmp_nge_f32 vcc, {f32(BND_E / 1.01):#x}, v8
    s_or_b32 s3, s{s_big}, s{s_slow}
    s_or_b32 s{s_K}, s3, vcc_lo
    s_cmp_eq_u32 s{s_K}, 0
    s_mov_b32 s{s_K}, {f32(-math.log(2.0) * 2.0 ** -CEXP):#x}
    s_cselect_b32 s3, 1.0, {f32(2.0**-CEXP):#x}
    s_cselect_b32 s{s_K}, {f32(-math.log(2.0)):#x}, s{s_K}
    v_mov_b32 v{vC}, s3
    v_mov_b32 v{vC+1}, s3
    """)
    mfma32(A, vU[0], vAqe, vBq, None)
    A("\n".join(bread(1)))
    A(f"""
    ds_read_b128 {vr(vAqe,4)}, v{vaAqe} offset:512
    s_barrier
    {dma(2, 0)}
    {dma(2, 1)}
    s_waitcnt vmcnt(4)
    ds_read_b128 {vr(vPf0,4)}, v{vaP0}
    ds_read_b128 {vr(vPf1,4)}, v{vaP1}
    s_waitcnt lgkmcnt(1)
    """)
    mfma32(A, vU[0], vPf0, vSel0, vU[0])
    A("s_waitcnt lgkmcnt(0)")
    mfma32(A, vU[0], vPf1, vSel1, vU[0])
    A(f"s_cmp_eq_u32 s3, 1.0\ns_nop 9\ns_cbranch_scc0 M_safe")
    stamp(A, 12)

    def half2(U, par, fast):
        if fast:
            rc = [f"v_rcp_f32 v{vT+i}, v{vT+i}" for i in range(4)]
            rest = [f"v_pk_mul_f32 {vr(U+i,2)}, {vr(U+i,2)}, {vr(vT+i,2)}" for i in (0, 2)]
        else:
            rc = [f"v_rcp_f32 v{vT+i}, v{vT+i}" for i in (0, 1, 2, 3, 8, 9, 10, 11)]
            rest = [f"v_pk_mul_f32 {vr(U+i,2)}, {vr(U+i,2)}, {vr(vT+i,2)}" for i in (0, 2)]
            rest += [f"v_pk_fma_f32 {vr(U+i,2)}, {vr(U+8+i,2)}, {vr(vT+8+i,2)}, {vr(U+i,2)}" for i in (0, 2)]
        rest += [f"v_cvt_pk_bf16_f32 v{vH+2*par+i//2}, v{U+i}, v{U+i+1}" for i in (0, 2)]
        return rc, rest

    def second_half(B, U, par, fast, aggread):
        rc, rest = half2(U, par, fast)
        if par == 0:
            mfma32(B, vACC, vH, vAgg, vACC)
        B("\n".join(rc + ([aggread] if aggread else []) + rest))

    vmq = ["d"] * (2 * (D + 1))

    def vm_need(t):
        seen = 0
        for i, k in enumerate(vmq):
            if k == "d":
                seen += 1
                if seen == 2 * (t + 1):
                    return len(vmq) - 1 - i

    ool = Asm()

    def emit_loop(A, md, fast):
        del vmq[2 * (D + 1):]
        A(".p2align 3")
        for t in range(CAP_T):
            U, Un = vU[t & 1], vU[(t + 1) & 1]
            tn = t + 1 + D
            s2 = ((t + 2) % D) * 2048
            ex = [f"v_exp_f32 v{vT+i}, v{U+i}" for i in range(16)]
            if "itst" in OPT:
                A(f"s_memtime s[100:101]")
            late_vm = t < 3
            FIRST = t == 0
            if not FIRST:
                A(f"s_waitcnt lgkmcnt(0)" if late_vm else f"s_waitcnt vmcnt({vm_need(t+2)}) lgkmcnt(0)")
            if "itst" in OPT:
                A(f"s_waitcnt lgkmcnt(0)\nv_writelane_b32 v{vSt}, s100, {16+t}")
            if FIRST:
                if "d34early" in OPT:
                    A("\n".join(ex[0:4] + [dma(3, 0), dma(3, 1), m0set(D)] + ex[4:10] + [dma(D, 0), dma(D, 1)] + ex[10:16]))
                else:
                    A("\n".join(ex + [dma(3, 0), dma(3, 1), m0set(D)]))
            else:
                mfma32(A, Un, vAqe, vBq, None)
                A("\n".join(ex[0:4]))
                mfma32(A, Un, vPf0, vSel0, Un)
                A("\n".join(ex[4:8]))
                mfma32(A, Un, vPf1, vSel1, Un)
                A("\n".join(ex[8:16]))
            def P(op, d, a, b, c=None, cl=""):
                return [f"v_pk_{op}_f32 {vr(d+i,2)}, {vr(a+i,2)}, {vr(b if b == vC else b+i,2)}"
                        + (f", {vr(c if c == vC else c+i,2)}" if c is not None else "") + cl for i in (0, 2)]
            if fast:
                pk = P("fma", U+4, U+4, vT, U+4) + P("add", vT+4, vT+4, vC) + P("fma", U+12, U+12, vT+8, U+12) + P("add", vT+12, vT+12, vC)
                pk += P("fma", U, U, vT+4, U+4) + P("fma", vT, vT, vT+4, vT+4)
                pk += P("fma", U+8, U+8, vT+12, U+12) + P("fma", vT+8, vT+8, vT+12, vT+12)
                pk += P("mul", U+8, U+8, vT) + P("fma", U, U, vT+8, U+8) + P("mul", vT, vT, vT+8)
                P_VM, P_LATE, P_F, P_CMP = 10, 13, 15, 18
            else:
                pk = []
                for g in (0, 4, 8, 12):
                    pk += P("fma", vT+g, vT+g, vC, vC, " clamp")
                for g in (0, 8):
                    pk += P("mul", U+g, U+g, vT+g+4) + P("fma", U+g, U+g+4, vT+g, U+g) + P("mul", vT+g, vT+g, vT+g+4)
                P_VM, P_LATE, P_F, P_CMP = 9, 12, 14, 16
            b0, b1 = bread(t + 2)
            g_ds = ([m0set(tn)] if tn % 2 == 0 else []) + [f"ds_read_b128 {vr(vAqe,4)}, v{vaAqe} offset:{(t+2)*512}", b0, b1]
            if t & 1:
                g_ds.append(f"ds_read2st64_b64 {vr(vAgg,4)}, v{vaAgg} offset0:{t-1} offset1:{t}")
            g_p = [f"ds_read_b128 {vr(vPf0,4)}, v{vaP0} offset:{s2}", f"ds_read_b128 {vr(vPf1,4)}, v{vaP1} offset:{s2}"]
            g_vm = [dma(tn, 0), dma(tn, 1)]
            if FIRST:
                groups = {P_F: [f"s_waitcnt vmcnt({vm_need(1) - (0 if 'd34early' in OPT else 2)})", f"ds_read_b128 {vr(vPf0,4)}, v{vaP0} offset:2048",
                               f"ds_read_b128 {vr(vPf1,4)}, v{vaP1} offset:2048"] + ([] if "d34early" in OPT else [dma(D, 0), dma(D, 1)])}
                tail0 = g_ds + g_vm + [f"s_waitcnt vmcnt({vm_need(2) + 2})"] + g_p
            elif late_vm:
                groups = {2: g_ds, P_LATE: [f"s_waitcnt vmcnt({vm_need(t+2)})"] + g_p + g_vm}
            else:
                groups = {2: g_ds + g_p, P_VM: g_vm}
            vmq.extend(["d", "d"])
            if W2T0 <= t < W2T0 + 8:
                g_vm.append(w2load(t - W2T0))
                vmq.append("w")
            groups[P_CMP] = [f"s_cmp_le_i32 s{s_next}, {t}"]
            for i, x in enumerate(pk):
                A(x)
                if FIRST and i == 0 and "it0" in OPT:
                    stamp(A, 44)
                if FIRST and i == P_F:
                    if "it0" in OPT:
                        stamp(A, 45)
                    bias_term(A)
                    if "it0" in OPT:
                        stamp(A, 46)
                if FIRST and i == P_F + 1 and "it0" in OPT:
                    stamp(A, 47)
                for y in groups.get(i, []):
                    if not ("nodma" in OPT and " lds" in y):
                        A(y)
            A(f"s_cbranch_scc1 M_ev{md}{t}\nM_evr{md}{t}:")
            if FIRST:
                rc, rest = half2(U, 0, fast)
                k = len(rc) // 2
                A("s_waitcnt lgkmcnt(2)")
                mfma32(A, Un, vAqe, vBq, None)
                A("\n".join(rc[0:k]) + "\ns_waitcnt lgkmcnt(0)")
                mfma32(A, Un, vPf0, vSel0, Un)
                A("\n".join(rc[k:]))
                mfma32(A, Un, vPf1, vSel1, Un)
                if "it0" in OPT:
                    stamp(A, 48)
                A("\n".join(tail0))
                if "it0" in OPT:
                    stamp(A, 49)
                A("\n".join(rest))
            else:
                second_half(A, U, t & 1, fast, None)
            ool(f"""
            M_ev{md}{t}:
            s_movk_i32 s{s_t}, {t}
            s_call_b64 s[{s_ret}:{s_ret+1}], M_rare
            s_cbranch_scc1 M_tail{md}{t & 1}
            s_branch M_evr{md}{t}
            """)

    emit_loop(A, "f", True)
    A("s_branch M_fin")
    def emit_tails(A, md, fast):
        for p in range(2):
            A(f"""
            M_tail{md}{p}:
            s_lshl_b32 s3, s{s_t}, 9
            v_add_u32 v8, s3, v{vaAgg}
            """)
            second_half(A, vU[p], p, fast, None if p else f"ds_read_b64 {vr(vAgg,2)}, v8")
            if p == 0:
                A(f"v_mov_b32 v{vAgg+2}, 0\nv_mov_b32 v{vAgg+3}, 0")
            if p == 0 or not fast:
                A("s_branch M_fin")
    emit_tails(A, "f", True)
    A(f"""
    M_fin:
    s_mov_b32 s{s_t}, s{s_T}
    s_cmp_eq_u32 s{s_T0p}, s{s_T}
    s_cbranch_scc0 M_fin2
    s_call_b64 s[{s_ret}:{s_ret+1}], M_rare
    M_fin2:
    s_waitcnt lgkmcnt(0)
    """)
    mfma32(A, vACC, vH, vAgg, vACC)
    stamp(A, 13)
    A(f"""
    s_cmp_lg_u32 s{s_sw}, 0
    s_nop 11
    s_cbranch_scc1 M_fin_hi
    """)
    for r in range(0, 16, 2):
        A(f"v_pk_add_f32 {vr(vS0+r,2)}, {vr(vS0+r,2)}, {vr(vACC+r,2)}")
    A("s_branch M_bend\nM_fin_hi:")
    for r in range(0, 16, 2):
        A(f"v_pk_add_f32 {vr(vS1+r,2)}, {vr(vS1+r,2)}, {vr(vACC+r,2)}")
    K = -math.log(2.0) * 2.0 ** -CEXP
    A(f"""
    M_bend:
    s_setprio 0
    s_cmp_lg_u32 s{s_slow}, 0
    s_cbranch_scc1 M_next
    M_epi:
    s_cmp_gt_u32 s{s_T}, {W2T0 + 8}
    s_cbranch_scc1 M_epi2
    """)
    for s_ in range(8):
        A(w2load(s_))
    A(f"""
    M_epi2:
    v_mov_b32 v{vC}, s{s_K}
    v_mov_b32 v{vC+1}, s{s_K}
    """)
    for Sx, o in ((vS0, 16), (vS1, 24)):
        for r in range(0, 16, 2):
            A(f"v_pk_mul_f32 {vr(Sx+r,2)}, {vr(Sx+r,2)}, {vr(vC,2)}")
        for r in range(0, 16, 2):
            A(f"v_cvt_pk_bf16_f32 v{o+r//2}, v{Sx+r}, v{Sx+r+1}")
        if o == 16:
            A(f"s_waitcnt vmcnt(0)\nds_write_b128 v{vSa}, v[16:19]\nds_write_b128 v{vSb}, v[20:23]")
    A(f"""
    ds_write_b128 v{vSa}, v[24:27] offset:2048
    ds_write_b128 v{vSb}, v[28:31] offset:2048
    s_mov_b32 s{s_x}, 4096
    s_mov_b32 s{s_x+1}, 8192
    s_waitcnt lgkmcnt(0)
    s_barrier
    """)
    stamp(A, 14)
    SFR = 48
    order = [(s, mt) for s in range(8) for mt in range(3)]
    RS = D * 2048
    AHEAD = 12
    for k in range(AHEAD):
        s, mt = order[k]
        A(f"ds_read_b128 {vr(SFR+4*k,4)}, v{vSr} offset:{s*RS+mt*1024}")
    for k in range(24):
        s, mt = order[k]
        A(f"s_waitcnt lgkmcnt({min(AHEAD - 1, 23 - k)})")
        mfma16(A, OO[mt], vW2 + 4 * s, SFR + 4 * k, OO[mt])
        if k + AHEAD < 24:
            s2, mt2 = order[k + AHEAD]
            A(f"ds_read_b128 {vr(SFR+4*(k+AHEAD),4)}, v{vSr} offset:{s2*RS+mt2*1024}")
    A("s_nop 5")
    for mt in range(3):
        A(f"""
        v_cvt_pk_bf16_f32 v{16+2*mt}, v{OO[mt]}, v{OO[mt]+1}
        v_cvt_pk_bf16_f32 v{17+2*mt}, v{OO[mt]+2}, v{OO[mt]+3}
        buffer_store_dwordx2 {vr(16+2*mt,2)}, v{vOa}, {S(sA)}, {["0", f"s{s_x}", f"s{s_x+1}"][mt]} offen
        """)
    if (SPIN is not None and SPIN[0] == 15) or ENC is not None:
        A("s_waitcnt vmcnt(0)")
        stamp(A, 15)
    if STAMPS:
        A("s_waitcnt vmcnt(0)")
        stamp(A, 15)
        srd(A, sA, pWS, 0x80000, off=WS_ST)
        A(f"""
        s_lshl_b32 s3, s2, 3
        s_add_u32 s3, s3, s{s_w}
        s_lshl_b32 s3, s3, 8
        v_lshl_add_u32 v1, v{L}, 2, s3
        buffer_store_dword v{vSt}, v1, {S(sA)}, 0 offen
        """)
    A("M_end:\ns_endpgm")

    A(f"""
    M_rare:
    s_cmp_eq_u32 s{s_T0p}, s{s_t}
    s_cbranch_scc0 M_rare2
    s_lshl_b32 s3, s{s_t}, 9
    v_add_u32 v8, s3, v{vaAgg}
    v_add_u32 v{vaAgg}, 512, v{vaAgg}
    s_mov_b32 s{s_sw}, 1
    s_mov_b32 s{s_T0p}, 0x7fffffff
    s_bitcmp1_b32 s{s_t}, 0
    s_waitcnt lgkmcnt(0)
    s_cbranch_scc1 M_swo
    """)
    for odd in (0, 1):
        hi, other = (vAgg, vAgg + 2) if odd else (vAgg + 2, vAgg)
        if odd:
            A(f"M_swo:\nv_mov_b32 v{other}, 0\nv_mov_b32 v{other+1}, 0\ns_nop 1")
        mfma32(A, vACC, vH, vAgg, vACC)
        A(f"""
        v_mov_b32 v{other}, 0
        v_mov_b32 v{other+1}, 0
        ds_read_b64 {vr(hi,2)}, v8
        s_nop 8
        """)
        for r in range(0, 16, 2):
            A(f"v_pk_add_f32 {vr(vS0+r,2)}, {vr(vS0+r,2)}, {vr(vACC+r,2)}")
        A("s_waitcnt lgkmcnt(0)")
        mfma32(A, vACC, vH, vAgg, None)
        A(f"v_mov_b32 v{hi}, 0\nv_mov_b32 v{hi+1}, 0")
        if odd:
            A(f"ds_read_b64 {vr(other,2)}, v8 offset:512")
        if not odd:
            A("s_branch M_rare2")
    A(f"""
    M_rare2:
    s_cmp_le_i32 s{s_pri}, s{s_t}
    s_cbranch_scc0 M_rare3
    s_setprio 0
    s_mov_b32 s{s_pri}, 0x7fffffff
    M_rare3:
    s_sub_u32 s3, s{s_T}, 1
    s_min_i32 s{s_next}, s3, s{s_T0p}
    s_min_i32 s{s_next}, s{s_next}, s{s_pri}
    s_cmp_le_i32 s3, s{s_t}
    s_setpc_b64 s[{s_ret}:{s_ret+1}]
    """)

    A(f"""
    M_pbig:
    v_lshlrev_b32 v8, 7, v{L}
    v_mov_b32 v9, 0x10000
    s_mov_b32 s3, {WS_RP}
    s_mov_b64 exec, 0xffff
    buffer_atomic_add v9, v8, {S(sWS)}, s3 offen sc1
    s_mov_b64 exec, -1
    s_branch M_pbigr
    """)
    A(f"M_empty:\ns_mov_b32 s{s_K}, {f32(-math.log(2.0) * 2.0 ** -CEXP):#x}")
    bias_term(A)
    A("s_branch M_bend")
    A(f"""
    M_align:
    s_mov_b32 s{s_alt}, -1
    s_mov_b32 s{s_x+2}, 0
    v_mov_b32 v13, v{vBase}
    """)
    for G in range(5):
        A(f"""
        v_readlane_b32 s{s_x}, v{vBase}, {8*G}
        v_readlane_b32 s{s_x+1}, v{vBase}, {8*G+8}
        s_nop 1
        s_sub_u32 s{s_x+3}, s{s_x+2}, s{s_x}
        v_cmp_le_u32 vcc, {8*G}, v{L}
        v_add_u32 v10, s{s_x+3}, v{vBase}
        s_sub_u32 s{s_x+1}, s{s_x+1}, s{s_x}
        s_add_u32 s{s_x+2}, s{s_x+2}, s{s_x+1}
        v_cndmask_b32 v13, v13, v10, vcc
        """)
        if G < 4:
            A(f"s_add_u32 s{s_x+2}, s{s_x+2}, 31\ns_and_b32 s{s_x+2}, s{s_x+2}, -32")
    A(f"""
    s_mov_b32 s{s_tot}, s{s_x+2}
    v_mov_b32 v{vBase}, v13
    s_nop 1
    s_branch M_derive
    """)
    A(f"""
    M_goslow:
    s_mov_b32 s{s_slow}, 1
    s_mov_b32 s{s_batch}, 0
    s_branch M_load
    M_next:
    s_add_u32 s{s_batch}, s{s_batch}, 512
    s_cmp_ge_u32 s{s_batch}, {E}
    s_cbranch_scc1 M_epi
    M_load:
    """)
    srd(A, sA, pDST, E * 4)
    srd(A, sB, pSRC, E * 4)
    A(f"""
    v_add_u32 v8, s{s_batch}, v0
    v_lshlrev_b32 v9, 2, v8
    s_waitcnt vmcnt(0) lgkmcnt(0)
    buffer_load_dword v10, v9, {S(sA)}, 0 offen
    buffer_load_dword v11, v9, {S(sB)}, 0 offen
    v_lshlrev_b32 v{vChunk8}, 3, v8
    v_mov_b32 v5, -1
    v_mov_b32 v6, -1
    v_mov_b32 v7, -1
    s_mov_b32 s{s_x+2}, {E}
    s_waitcnt vmcnt(0)
    v_subrev_u32 v12, s{s_nb0}, v10
    v_cmp_gt_u32 vcc, s{s_nn}, v12
    v_cmp_gt_u32 s[{s_x}:{s_x+1}], s{s_x+2}, v8
    v_and_b32 v10, 63, v10
    v_lshl_or_b32 v11, v10, 14, v11
    s_and_b64 vcc, vcc, s[{s_x}:{s_x+1}]
    s_nop 1
    v_cndmask_b32 v4, v5, v11, vcc
    s_barrier
    """)
    zerofill()
    A("s_waitcnt lgkmcnt(0)\ns_barrier\ns_branch M_recs")
    B2 = Asm()
    B2("M_safe:")
    emit_loop(B2, "s", False)
    B2("s_branch M_fin")
    emit_tails(B2, "s", False)
    A.l += B2.l
    A.l += ool.l


def build():
    out = f"""; Fused edge-featured MPNN layer, one workgroup per bucket of 39/40 destination nodes.
; @launch grid=(256,1,1) block=(512,1,1) lds={LDS_BYTES}
.amdgcn_target "amdgcn-amd-amdhsa--gfx950"
.text
.globl {KN}
.p2align 8
.type {KN},@function
"""
    A = Asm()
    kernel(A)
    out += A.text()
    out += f""".section .rodata,"a"
.p2align 6
.amdhsa_kernel {KN}
  .amdhsa_next_free_vgpr {NV}
  .amdhsa_next_free_sgpr 102
  .amdhsa_accum_offset {(NV + 3) // 4 * 4}
  .amdhsa_group_segment_fixed_size 0
  .amdhsa_kernarg_size 88
  .amdhsa_user_sgpr_count 2
  .amdhsa_user_sgpr_kernarg_segment_ptr 1
  .amdhsa_system_sgpr_workgroup_id_x 1
.end_amdhsa_kernel
"""
    return out


if __name__ == "__main__":
    for a in list(sys.argv):
        if a.startswith("-o"):
            OPT.update(a[2:].split(","))
            sys.argv.remove(a)
    for a in list(sys.argv):
        if a.startswith("-spin"):
            i, us = a[5:].split(":")
            SPIN = (int(i), float(us))
            sys.argv.remove(a)
    for a in list(sys.argv):
        if a.startswith("-wsb"):
            WS_BASE = int(a[4:]) << 20
            sys.argv.remove(a)
    for a in list(sys.argv):
        if a.startswith("-enc"):
            ENC = int(a[4:])
            sys.argv.remove(a)
    for a in list(sys.argv):
        if a.startswith("-pri"):
            PRIO_NUM = int(a[4:])
            sys.argv.remove(a)
    for a in list(sys.argv):
        if a.startswith("-nt"):
            NT0 = int(a[3:])
            sys.argv.remove(a)
    for a in list(sys.argv):
        if a.startswith("-early"):
            EARLY = tuple(int(c) for c in a[6:])
            sys.argv.remove(a)
    if "--stamps" in sys.argv:
        STAMPS = True
        sys.argv.remove("--stamps")
    path = sys.argv[1] if len(sys.argv) > 1 else f"cdna_kernels/{NAME}.s"
    open(path, "w").write(build())
    print("wrote", path, "lds", LDS_BYTES)
```

```python
import sys, struct, math

NAME = "gather_scatter__edge_featured_mpnn_mpnn__graph"
KN = NAME + "_kernel"
N, E = 10000, 160000

WS_CNT = 0
WS_RB = 16 * 128
WS_RP = 32 * 128
WS_W2F = 0x2000
WS_SLOT = 0x12000
WS_P = 0x213000
TABB = N * 512
WS_END = WS_P + TABB
WS_ST = 0x1000000

WS_BASE = 0
NCH = 64
CHE = E // NCH
PROWS = 53
LOG2E = 1.4426950408889634
CEXP = 48
STAMPS = False
OPT = set()
PRIO_NUM = 21
NT0 = 99
NSHORT = 3
W2T0 = 8


def f32(x):
    return struct.unpack("<I", struct.pack("<f", x))[0]


class Asm:
    def __init__(self):
        self.l = []

    def __call__(self, s):
        for x in s.split("\n"):
            x = x.strip()
            if x:
                self.l.append(("" if x.endswith(":") else "    ") + x)

    def text(self):
        import re
        for x in self.l:
            m = re.search(r"offset:(\d+)", x)
            if m:
                lim = 4096 if x.strip().startswith("buffer_") else 65536
                assert int(m.group(1)) < lim, x
        return "\n".join(self.l) + "\n"


def vr(a, n=1):
    return f"v{a}" if n == 1 else f"v[{a}:{a+n-1}]"


def srd(A, d, base, size, off=None):
    if off is None:
        A(f"s_mov_b32 s{d}, s{base}\ns_mov_b32 s{d+1}, s{base+1}")
    else:
        A(f"s_add_u32 s{d}, s{base}, {off}\ns_addc_u32 s{d+1}, s{base+1}, 0")
    A(f"s_mov_b32 s{d+2}, {size}\ns_mov_b32 s{d+3}, 0x00020000")


def S(d):
    return f"s[{d}:{d+3}]"


D = 4
CAP_T = 26
QS = 592
L_RING = 0
L_AQE = 8 * D * 2048
L_AQH = L_AQE + CAP_T * 512
L_AGG = L_AQH + CAP_T * 512
L_LIST = L_AGG + (CAP_T + 2) * 512
L_CNT = L_LIST + 4096
L_N0 = L_CNT + 256
L_MX = L_N0 + 248
L_WE = L_N0 + 256
L_Q = L_WE + 8 * QS
LDS_BYTES = (L_Q + 255) // 256 * 256 + 32768
ZERO_BYTES = L_LIST - L_AQE
L_XP = (L_Q + 255) // 256 * 256
L_XQ = L_XP + 16384
L_BT = L_AQE
L_BC = L_BT + 32768
assert L_BC + 2048 <= L_LIST and LDS_BYTES <= 163840 and 48 * QS <= 32768
DUMMY = 0x400000

pX, pE, pSRC, pDST, pW1, pB1, pW2, pB2, pOUT, pDBG, pWS = 4, 6, 8, 10, 12, 14, 16, 18, 20, 22, 24
s_w2 = 26
sA, sB, sC, sD, sWS, sP, sE = 28, 32, 36, 40, 44, 48, 52
(s_w, s_nb0, s_nb1, s_nn, s_T, s_T0p, s_t, s_next, s_slow, s_batch, s_ring, s_sw, s_tot,
 s_nb4, s_ringh, s_spin, s_pri, s_alt, s_xw) = range(56, 75)
s_f0 = 85
s_one = 84
s_big = 83
s_K = 82
BND_PQ, BND_E = 4.0, 22.0
s_x = 76
sM = 86
s_ret = 94
sG = 96

vU = [16, 32]
vT = 48
vH = 64
vACC = 68
vS0 = 84
vS1 = 100
vPf0, vPf1, vAqe, vAgg, vBq, vSel0, vSel1 = 116, 120, 124, 128, 132, 136, 140
vBa = 144
vOff = 176
vW2 = 176
(vC, _c1, vB2, _b1, vK0, vK1, vK2, vK3, vaAqe, vaAgg, vaList, vaP0, vaP1, vaB, vBmul, vBase, vDeg,
 vChunk8, vLane, vDum, vSt, vW2a, vaCnt) = range(228, 251)
vSa, vSb, vSr, vOa = 252, 253, 254, 255
NV = 256
vXF = 176
vXP = 160
vWF = 16
vPA = 48
vPO = 148
vQO = 164
vPa = 144
EARLY = (0, 1)
vXa = 145
vXr = 147
vB1 = 116
vWEr = 128
vF0 = 129
vPc = 130
vQa = 131


def mfma32(A, d, a, b, c):
    cs = "0" if c is None else vr(c, 16)
    A(f"v_mfma_f32_32x32x16_bf16 {vr(d,16)}, {vr(a,4)}, {vr(b,4)}, {cs}")


def mfma16(A, d, a, b, c):
    cs = "0" if c is None else vr(c, 4)
    A(f"v_mfma_f32_16x16x32_bf16 {vr(d,4)}, {vr(a,4)}, {vr(b,4)}, {cs}")


SPIN = None


ENC = None


def stamp(A, i):
    if ENC is not None:
        if i == 0:
            A("s_memrealtime s[100:101]\ns_waitcnt lgkmcnt(0)\ns_mov_b32 s75, s100\ns_nop 0")
        if i == ENC:
            A("s_waitcnt lgkmcnt(0)\ns_memrealtime s[100:101]\ns_waitcnt lgkmcnt(0)\ns_sub_u32 s101, s100, s75")
            A(f"v_writelane_b32 v{vSt}, s101, 0")
        if i == 15:
            u = len(A.l)
            A(f"v_readlane_b32 s3, v{vSt}, 0\ns_nop 3\ns_lshl_b32 s3, s3, 2\ns_add_u32 s3, s3, 6000")
            A(f"M_spin{u}:\ns_memrealtime s[100:101]\ns_waitcnt lgkmcnt(0)\ns_sub_u32 s100, s100, s75\ns_cmp_lt_u32 s100, s3\ns_cbranch_scc1 M_spin{u}")
    if SPIN is not None:
        if i == 0:
            A("s_memrealtime s[100:101]\ns_waitcnt lgkmcnt(0)\ns_mov_b32 s75, s100")
        elif i == SPIN[0]:
            u = len(A.l)
            A(f"M_spin{u}:\ns_memrealtime s[100:101]\ns_waitcnt lgkmcnt(0)\ns_sub_u32 s100, s100, s75\ns_cmp_lt_u32 s100, {int(SPIN[1]*100)}\ns_cbranch_scc1 M_spin{u}")
    if STAMPS:
        ins = "s_memtime" if "cyc" in OPT else "s_memrealtime"
        A(f"s_waitcnt lgkmcnt(0)\n{ins} s[100:101]\ns_waitcnt lgkmcnt(0)\nv_writelane_b32 v{vSt}, s100, {i}")


def gemm_part(A, init, nmt, xf, vm=None, xrd=None):
    def rd(s):
        for ct in range(2):
            for x in range(2):
                A(f"ds_read_b64_tr_b16 {vr(vWF + 8*s + 4*ct + 2*x, 2)}, v14 offset:{s*2048 + x*256 + ct*8}")
    if vm is None:
        for s in range(4):
            rd(s)
    else:
        xrd(0)
        A(f"s_waitcnt vmcnt({vm[0]})")
        rd(0)
        xrd(1)
    for s in range(4):
        if vm is None:
            A(f"s_waitcnt lgkmcnt({12 - 4*s})")
        else:
            A(f"s_waitcnt lgkmcnt({nmt if s < 3 else 0})")
        k = 0
        for mt in range(nmt):
            for ct in range(2):
                d = vPA + 8 * mt + 4 * ct
                c = d if s else (None if init is None else init + 4 * ct)
                mfma16(A, d, vWF + 8 * s + 4 * ct, xf + 16 * mt + 4 * s, c)
                k += 1
                if vm is not None and k == 2 and s < 3:
                    A(f"s_waitcnt vmcnt({vm[s+1]})")
                    rd(s + 1)
                    if s < 2:
                        xrd(s + 2)


def gemm_pack(A, nmt, store, vPO=vPO):
    A("s_nop 4")
    for mt in range(nmt):
        for r in range(0, 8, 2):
            a = vPA + 8 * mt + r
            A(f"v_pk_mul_f32 {vr(a,2)}, {vr(a,2)}, v[12:13]")
        for r in range(0, 8, 2):
            a = vPA + 8 * mt + r
            A(f"v_cvt_pk_bf16_f32 v{vPO + 4*mt + r//2}, v{a}, v{a+1}")
        store(mt)


def kernel(A):
    L = vLane
    SC = "sc0 sc1"
    A(f"{KN}:")
    A(f"""
    s_cmp_ge_u32 s2, 256
    s_cbranch_scc1 M_end
    s_load_dwordx16 s[4:19], s[0:1], 0
    s_load_dwordx4 s[20:23], s[0:1], 64
    s_load_dwordx2 s[24:25], s[0:1], 80
    """)
    if STAMPS or ENC is not None:
        A(f"v_mov_b32 v{vSt}, 0")
    stamp(A, 0)
    A(f"""
    v_lshrrev_b32 v2, 6, v0
    v_and_b32 v{L}, 63, v0
    v_readfirstlane_b32 s{s_w}, v2
    s_mul_i32 s{s_nb0}, s2, 160069
    s_add_u32 s{s_nb1}, s{s_nb0}, {160069 + 4049}
    s_add_u32 s{s_nb0}, s{s_nb0}, 4049
    s_lshr_b32 s{s_nb0}, s{s_nb0}, 12
    v_lshrrev_b32 v7, 4, v{L}
    v_and_b32 v8, 15, v{L}
    v_xor_b32 v8, v8, v7
    s_lshl_b32 s{s_ring}, s{s_w}, 13
    s_and_b32 s3, s{s_w}, 1
    s_lshl_b32 s3, s3, 3
    v_xor_b32 v8, s3, v8
    v_lshlrev_b32 v8, 4, v8
    v_lshl_add_u32 v8, v7, 8, v8
    s_lshl_b32 s{s_xw}, s{s_w}, 11
    v_add_u32 v{vXa}, s{s_xw}, v8
    v_xor_b32 v{vXa+1}, 64, v{vXa}
    v_lshrrev_b32 v10, 2, v{L}
    v_and_b32 v11, 3, v{L}
    v_lshlrev_b32 v11, 4, v11
    v_lshl_add_u32 v10, v10, 9, v11
    s_lshl_b32 s3, s{s_w}, 6
    v_add_u32 v10, s3, v10
    v_lshlrev_b32 v2, 2, v0
    s_waitcnt lgkmcnt(0)
    s_add_u32 s{pWS}, s{pWS}, {WS_BASE}
    s_addc_u32 s{pWS+1}, s{pWS+1}, 0
    s_cmp_ge_u32 s2, {NCH}
    s_cbranch_scc1 M_pwg
    """)

    def wdma(base):
        for ii in range(8):
            A(f"""
            s_add_u32 m0, s{s_ring}, {ii*1024}
            s_mov_b32 s{s_x+1}, {base + ii*8192}
            buffer_load_dwordx4 v10, {S(sB)}, s{s_x+1} offen lds
            """)

    def xdma(ldsbase, rowreg):
        A(f"""
        s_add_u32 m0, s{s_xw}, {ldsbase}
        s_lshl_b32 s3, s{rowreg}, 8
        buffer_load_dwordx4 v{vXa}, {S(sD)}, s3 offen lds
        buffer_load_dwordx4 v{vXa+1}, {S(sD)}, s3 offen offset:1024 lds
        """)

    def gaddr():
        A(f"""
        v_lshrrev_b32 v3, 4, v{L}        ; q
        v_and_b32 v4, 15, v{L}           ; n
        v_xor_b32 v5, v3, v4
        v_lshlrev_b32 v5, 4, v5
        v_lshl_add_u32 v{vXr}, v4, 8, v5
        v_bfe_u32 v5, v{L}, 2, 2         ; r
        v_lshl_add_u32 v6, v3, 3, v5     ; 8q + r
        v_lshlrev_b32 v6, 6, v6
        v_and_b32 v7, 3, v{L}            ; c
        v_lshl_add_u32 v6, v7, 4, v6
        v_add_u32 v14, s{s_ring}, v6
        v_mov_b32 v12, {f32(-LOG2E):#x}
        v_mov_b32 v13, v12
        """)

    def consts():
        srd(A, sP, pWS, TABB + 4096, off=WS_P - 4096)
        srd(A, sE, pE, E * 8)
        A(f"""
        s_lshr_b32 s{s_nb1}, s{s_nb1}, 12
        s_min_u32 s{s_nb1}, s{s_nb1}, {N}
        s_sub_u32 s{s_nn}, s{s_nb1}, s{s_nb0}
        s_lshl_b32 s{s_nb4}, s{s_nb0}, 2
        s_add_u32 s{s_ringh}, s{s_ring}, 4096
        s_mov_b32 s{s_slow}, 0
        s_mov_b32 s{s_big}, 0
        s_lshl_b32 s{s_w2}, s{s_w}, 13
        s_add_u32 s{s_w2}, s{s_w2}, {WS_W2F}
        s_add_u32 s{s_w2+1}, s{s_w2}, 4096
        v_lshrrev_b32 v3, 4, v{L}        ; q
        v_bfe_u32 v5, v{L}, 2, 2         ; r
        v_and_b32 v7, 3, v{L}            ; c
        v_xor_b32 v9, v7, v3
        v_lshlrev_b32 v9, 4, v9
        s_lshl_b32 s3, s{s_w}, 6
        s_add_u32 s{s_x}, s3, 1024
        v_add_u32 v{vK3}, s{s_x}, v9
        v_add_u32 v{vK2}, 1024, v{vK3}
        v_add_u32 v{vK1}, 2048, v{vK3}
        v_add_u32 v{vK0}, 3072, v{vK3}
        v_lshrrev_b32 v1, 5, v{L}        ; h
        v_mul_u32_u24 v5, {QS}, v5
        v_and_b32 v3, 1, v3
        v_lshl_add_u32 v5, v3, 5, v5
        v_lshl_add_u32 v5, v7, 3, v5
        s_add_u32 s3, s3, {L_WE}
        v_add_u32 v5, s3, v5
        v_mul_u32_u24 v6, {8*QS}, v1
        v_add_u32 v{vaB}, v5, v6
        v_mul_u32_u24 v{vBmul}, {QS//4}, v1
        v_and_b32 v3, 31, v{L}           ; m
        ; row m = 8j + 4h' + i holds member j of quad 4h' + i: slot in tile sigma(m) = j + 4i + 16h'
        v_lshrrev_b32 v9, 3, v3          ; j
        v_and_b32 v8, 3, v3              ; i
        v_lshl_add_u32 v9, v8, 2, v9
        v_and_b32 v8, 4, v3
        v_lshl_add_u32 v9, v8, 2, v9
        v_lshlrev_b32 v9, 4, v9
        v_mul_u32_u24 v8, {L_AQH - L_AQE}, v1
        v_add_u32 v9, v9, v8
        v_add_u32 v{vaAqe}, {L_AQE}, v9
        v_lshrrev_b32 v9, 2, v{L}        ; r
        v_and_b32 v8, 3, v9
        v_lshlrev_b32 v8, 2, v8
        v_lshrrev_b32 v11, 3, v9
        v_lshl_add_u32 v8, v11, 1, v8
        v_and_b32 v11, 4, v9
        v_lshl_add_u32 v8, v11, 2, v8
        v_lshlrev_b32 v8, 2, v8
        v_add_u32 v{vaList}, {L_LIST}, v8
        v_and_b32 v8, 7, v3              ; 4h' + i
        v_and_b32 v9, 8, v3
        v_lshl_add_u32 v8, v9, 1, v8
        v_lshrrev_b32 v9, 4, v3
        v_lshl_add_u32 v8, v9, 3, v8
        v_bfe_u32 v9, v8, 2, 2
        v_xor_b32 v9, v9, v1
        v_lshlrev_b32 v9, 4, v9
        v_lshl_add_u32 v9, v8, 6, v9
        v_add_u32 v{vaP0}, s{s_ring}, v9
        v_xor_b32 v{vaP1}, 32, v{vaP0}
        v_and_b32 v9, 1, v3
        v_lshlrev_b32 v9, 4, v9
        v_mov_b32 v8, 0x3f80
        v_lshlrev_b32 v9, v9, v8
        v_lshrrev_b32 v8, 1, v3
        v_lshlrev_b32 v11, 2, v1
        v_sub_u32 v8, v8, v11
        """)
        for x in range(4):
            A(f"v_cmp_eq_u32 s[{s_x}:{s_x+1}], {x}, v8\nv_cmp_eq_u32 vcc, {8+x}, v8\ns_nop 0")
            A(f"v_cndmask_b32 v{vSel0+x}, 0, v9, s[{s_x}:{s_x+1}]\nv_cndmask_b32 v{vSel1+x}, 0, v9, vcc")
        A(f"""
        v_mov_b32 v{vC}, {f32(2.0**-CEXP):#x}
        v_mov_b32 v{vC+1}, {f32(2.0**-CEXP):#x}
        v_mov_b32 v{vDeg}, 0
        v_mov_b32 v{vDum}, 0x80000000
        v_lshrrev_b32 v9, 3, v0
        v_mul_u32_u24 v{vChunk8}, {CHE*8}, v9
        v_lshlrev_b32 v{vW2a}, 4, v{L}
        v_lshlrev_b32 v9, 2, v{L}
        v_add_u32 v{vaCnt}, {L_CNT}, v9
        """)
        for r in range(16):
            A(f"v_mov_b32 v{vS0+r}, 0\nv_mov_b32 v{vS1+r}, 0")

    def bigcheck(n):
        A(f"v_max3_f32 v8, |v{vPA}|, |v{vPA+1}|, |v{vPA+2}|")
        for r in range(3, n - 1, 2):
            A(f"v_max3_f32 v8, |v{vPA+r}|, |v{vPA+r+1}|, v8")
        A(f"""
        v_max_f32 v8, |v{vPA+n-1}|, v8
        v_cmp_nge_f32 vcc, {f32(BND_PQ):#x}, v8
        s_or_b32 s3, vcc_lo, vcc_hi
        s_or_b32 s{s_big}, s{s_big}, s3
        """)

    def zerofill():
        A(f"""
        v_mov_b32 v40, 0
        v_mov_b32 v41, 0
        v_mov_b32 v42, 0
        v_mov_b32 v43, 0
        v_mov_b32 v44, {DUMMY}
        v_mov_b32 v45, {DUMMY}
        v_lshlrev_b32 v1, 3, v0
        v_add_u32 v1, {L_LIST}, v1
        ds_write_b64 v1, v[44:45]
        ds_write_b32 v{vaCnt}, v40
        ds_write_b32 v{vaCnt}, v40 offset:256
        v_lshlrev_b32 v1, 4, v0
        v_add_u32 v1, {L_AQE}, v1
        """)
        nz = ZERO_BYTES // 8192
        rem = ZERO_BYTES - nz * 8192
        for q in range(nz):
            A(f"ds_write_b128 v1, v[40:43] offset:{q*8192}")
        if rem:
            A(f"""
            v_cmp_gt_u32 vcc, {rem//16}, v0
            s_and_saveexec_b64 s[{s_x}:{s_x+1}], vcc
            ds_write_b128 v1, v[40:43] offset:{nz*8192}
            s_mov_b64 exec, s[{s_x}:{s_x+1}]
            """)

    def small():
        srd(A, sC, pB1, 512)
        A(f"""
        v_lshrrev_b32 v3, 4, v{L}
        v_lshlrev_b32 v4, 4, v3
        s_lshl_b32 s3, s{s_w}, 6
        buffer_load_dwordx4 {vr(vB1,4)}, v4, {S(sC)}, s3 offen
        v_lshlrev_b32 v5, 2, v0
        s_mov_b32 s3, {256*512}
        buffer_load_dword v{vWEr}, v5, {S(sB)}, s3 offen
        v_lshlrev_b32 v4, 3, v3
        s_mov_b32 s{sC}, s{pB2}
        s_mov_b32 s{sC+1}, s{pB2+1}
        s_mov_b32 s{sC+2}, 256
        s_lshl_b32 s3, s{s_w}, 5
        buffer_load_dwordx2 {vr(vB2,2)}, v4, {S(sC)}, s3 offen
        """)

    def eprefetch():
        A(f"""
        s_mul_i32 s3, s2, {E*8//256}
        v_lshlrev_b32 v3, 4, v0
        buffer_load_dwordx4 v[224:227], v3, {S(sE)}, s3 offen
        """)

    def f0load():
        A(f"buffer_load_dword v{vF0}, off, {S(sG)}, 0 offset:128 sc1")

    def spoll(tag, base, offreg, want, keep=None):
        A(f"""
        s_mov_b32 s{s_spin}, 0x40000
        M_sp{tag}:
        s_mov_b32 s{s_x+1}, 0
        s_atomic_add s{s_x+1}, s[{base}:{base+1}], {offreg} glc
        s_sub_u32 s{s_spin}, s{s_spin}, 1
        s_cbranch_scc1 M_spd{tag}
        s_waitcnt lgkmcnt(0)
        {f"s_mov_b32 s{keep}, s{s_x+1}" if keep else ""}
        {f"s_and_b32 s{s_x+1}, s{s_x+1}, 0xffff" if keep else ""}
        s_cmp_lg_u32 s{s_x+1}, {want}
        s_cbranch_scc1 M_sp{tag}
        M_spd{tag}:
        s_waitcnt lgkmcnt(0)
        """)

    def f0wait(tag):
        A(f"""
        v_readfirstlane_b32 s3, v{vF0}
        s_cmp_lg_u32 s3, 0
        s_cbranch_scc1 M_pfd{tag}
        """)
        spoll("f" + tag, pDBG, 128, 1)
        A(f"M_pfd{tag}:")

    def release(base):
        A(f"""
        v_lshlrev_b32 v8, 7, v{L}
        v_mov_b32 v9, 1
        s_mov_b32 s3, {base}
        s_mov_b64 exec, 0xffff
        buffer_atomic_add v9, v8, {S(sWS)}, s3 offen sc1
        s_mov_b64 exec, -1
        """)

    def rpoll(tag, base, want, keep=None):
        A(f"s_and_b32 s3, s2, 15\ns_lshl_b32 s3, s3, 7\ns_add_u32 s3, s3, {base}")
        spoll(tag, pWS, "s3", want, keep)

    srd(A, sWS, pWS, WS_END)
    A(f"""
    v_lshlrev_b32 v3, 7, v0
    s_cmp_eq_u32 s2, 0
    s_cselect_b32 s3, 48, 0
    v_cmp_gt_u32 vcc, s3, v0
    v_mov_b32 v4, 0x40000000
    v_mov_b32 v8, 0
    v_cndmask_b32 v3, v4, v3, vcc
    s_mul_i32 s3, s2, {CHE*4}
    buffer_store_dword v8, v3, {S(sWS)}, 0 offen {SC}
    """)
    srd(A, sC, pDST, CHE * 4, off="s3")
    srd(A, sD, pSRC, CHE * 4, off="s3")
    A(f"s_mov_b32 s{s_x+1}, 4096\ns_mov_b32 s{s_x+2}, 8192")
    vD, vS = 164, 169
    so = ["0", "0", f"s{s_x+1}", f"s{s_x+1}", f"s{s_x+2}"]
    for k in range(5):
        A(f"buffer_load_dword v{vD+k}, v2, {S(sC)}, {so[k]} offen offset:{(k & 1)*2048}")
    for k in range(5):
        A(f"buffer_load_dword v{vS+k}, v2, {S(sD)}, {so[k]} offen offset:{(k & 1)*2048}")
    srd(A, sC, pW2, 256 * 256)
    srd(A, sB, pW1, 260 * 512)
    A(f"""
    v_lshlrev_b32 v3, 4, v0
    v_add_u32 v15, {L_BT}, v3
    v_add_u32 v2, {L_BC}, v2
    v_mov_b32 v4, -1
    v_mov_b32 v5, -1
    v_mov_b32 v6, -1
    v_mov_b32 v7, -1
    """)
    for q in range(4):
        A(f"ds_write_b128 v15, v[4:7] offset:{q*8192}")
    A(f"""
    ds_write_b32 v2, v8
    v_mov_b32 v9, 1
    """)
    srd(A, sD, pX, N * 256)
    srd(A, sG, pDBG, 256)
    stamp(A, 1)
    A(f"""
    s_waitcnt lgkmcnt(0)
    s_barrier
    s_waitcnt vmcnt(5)
    """)
    vb, va, vk = 16, 21, 26
    for k in range(5):
        A(f"v_mul_u32_u24 v{vb+k}, 1677, v{vD+k}")
        A(f"v_lshrrev_b32 v{vb+k}, 16, v{vb+k}")
        A(f"v_lshlrev_b32 v{va+k}, 2, v{vb+k}")
        A(f"v_add_u32 v{va+k}, {L_BC}, v{va+k}")
        if k == 4:
            A(f"v_cmp_gt_u32 vcc, {CHE - 2048}, v0\ns_and_saveexec_b64 s[{s_x+2}:{s_x+3}], vcc")
        A(f"ds_add_rtn_u32 v{vk+k}, v{va+k}, v9")
    A(f"""
    s_mov_b64 s[{s_x+4}:{s_x+5}], exec
    s_or_b32 s3, s2, s{s_w}
    s_cbranch_scc1 M_nf0
    s_mov_b64 exec, 1
    buffer_store_dword v9, off, {S(sG)}, 0 offset:128 {SC}
    M_nf0:
    s_mov_b64 exec, -1
    s_lshl_b32 s3, s2, 8
    v_add_u32 v3, s3, v0
    v_bfe_u32 v4, v3, 8, 3           ; s
    v_lshlrev_b32 v4, 5, v4
    v_bfe_u32 v5, v3, 6, 1           ; ab
    v_lshl_add_u32 v4, v5, 4, v4
    v_bfe_u32 v5, v3, 1, 1           ; e>>2
    v_lshl_add_u32 v4, v5, 3, v4
    v_bfe_u32 v5, v3, 7, 1           ; h
    v_lshl_add_u32 v4, v5, 2, v4
    v_and_b32 v5, 1, v3
    v_lshl_add_u32 v4, v5, 1, v4     ; hidden
    v_lshlrev_b32 v4, 8, v4
    v_lshrrev_b32 v5, 11, v3         ; wo
    v_lshl_add_u32 v4, v5, 5, v4
    v_bfe_u32 v5, v3, 2, 4           ; m
    v_lshl_add_u32 v4, v5, 1, v4
    v_lshrrev_b32 v5, 8, v0
    v_lshl_or_b32 v4, v5, 30, v4
    v_lshlrev_b32 v3, 2, v3
    v_lshl_or_b32 v176, v5, 30, v3
    buffer_load_ushort v174, v4, {S(sC)}, 0 offen
    buffer_load_ushort v175, v4, {S(sC)}, 0 offen offset:256
    """)
    xdma(L_XQ, s_nb0)
    small()
    A("s_waitcnt vmcnt(7)")
    for k in range(5):
        A(f"""
        v_and_b32 v{vD+k}, 63, v{vD+k}
        v_lshl_or_b32 v{vS+k}, v{vD+k}, 14, v{vS+k}
        v_add_u32 v{vD+k}, {512*k}, v0
        v_lshl_or_b32 v{vS+k}, v{vD+k}, 20, v{vS+k}
        v_lshlrev_b32 v{va+k}, 7, v{vb+k}
        v_add_u32 v{va+k}, {L_BT}, v{va+k}
        """)
    for k in range(5):
        if k == 4:
            A(f"s_mov_b64 exec, s[{s_x+4}:{s_x+5}]")
        A(f"""
        s_waitcnt lgkmcnt({4-k})
        v_add_u32 v4, v{vk+k}, v{vb+k}
        v_and_b32 v4, 7, v4
        v_lshrrev_b32 v5, 3, v{vk+k}
        v_lshl_add_u32 v4, v4, 2, v5
        v_lshl_add_u32 v{va+k}, v4, 2, v{va+k}
        v_cmp_gt_u32 vcc, 32, v{vk+k}
        s_and_saveexec_b64 s[{s_x+6}:{s_x+7}], vcc
        ds_write_b32 v{va+k}, v{vS+k}
        s_mov_b64 exec, s[{s_x+6}:{s_x+7}]
        """)
    A(f"""
    s_mov_b64 exec, -1
    v_lshrrev_b32 v4, 3, v0
    v_lshlrev_b32 v5, 2, v4
    v_add_u32 v5, {L_BC}, v5
    v_and_b32 v6, 7, v0
    v_lshlrev_b32 v7, 13, v4
    v_lshl_add_u32 v7, v6, 4, v7
    s_lshl_b32 s3, s2, 7
    s_add_u32 s3, s3, {WS_SLOT}
    v_add_u32 v7, s3, v7
    v_cmp_eq_u32 s[{s_x+2}:{s_x+3}], 7, v6
    v_mov_b32 v8, -2
    s_mov_b32 s{s_x+4}, 0
    s_mov_b32 s{s_x+5}, {64*8192}
    s_mov_b32 s{s_x+6}, {128*8192}
    s_mov_b32 s{s_x+7}, {192*8192}
    s_waitcnt lgkmcnt(0)
    s_barrier
    """)
    stamp(A, 2)
    for q in range(4):
        A(f"ds_read_b128 {vr(16+4*q,4)}, v15 offset:{q*8192}")
        A(f"ds_read_b32 v{32+q}, v5 offset:{q*256}")
    A(f"s_mov_b32 s3, {WS_W2F}")
    for q in range(4):
        A(f"""
        s_waitcnt lgkmcnt({6-2*q})
        v_cmp_lt_u32 vcc, 32, v{32+q}
        s_and_b64 vcc, vcc, s[{s_x+2}:{s_x+3}]
        s_nop 1
        v_cndmask_b32 v{19+4*q}, v{19+4*q}, v8, vcc
        buffer_store_dwordx4 {vr(16+4*q,4)}, v7, {S(sWS)}, s{s_x+4+q} offen {SC}
        """)
    A(f"s_waitcnt vmcnt(9)\nv_lshl_or_b32 v174, v175, 16, v174\nbuffer_store_dword v174, v176, {S(sWS)}, s3 offen {SC}")
    stamp(A, 3)
    f0load()
    if "clate" not in OPT:
        gaddr()
        consts()
    A(f"""
    s_waitcnt vmcnt(0)
    s_barrier
    s_cmp_lg_u32 s{s_w}, 0
    s_cbranch_scc1 M_nlast2
    """)
    stamp(A, 16)
    if "direct" not in OPT:
        A(f"""
        s_and_b32 s3, s2, 1
        s_lshl_b32 s3, s3, 6
        s_mov_b32 s{s_x}, 1
        s_atomic_add s{s_x}, s[{pDBG}:{pDBG+1}], s3 glc
        """)
    f0wait("b")
    if "direct" not in OPT:
        A(f"""
        s_waitcnt lgkmcnt(0)
        s_and_b32 s3, s{s_x}, {NCH//2 - 1}
        s_cmp_lg_u32 s3, {NCH//2 - 1}
        s_cbranch_scc1 M_nlast
        """)
    if "bvrel" not in OPT or "direct" in OPT:
        A(f"s_mov_b32 s{s_one}, 1")
        for i in range(16):
            A(f"s_atomic_add s{s_one}, s[{pWS}:{pWS+1}], {WS_RB + 128*i}")
    else:
        release(WS_RB)
    A("M_nlast:")
    stamp(A, 17)
    A("M_nlast2:")
    if "clate" in OPT:
        gaddr()
        consts()
    srd(A, sA, pWS, 0)
    A(f"v_mov_b32 v{vPa}, 0")
    wdma(128 * 512)
    EPF = 3 if "epf" in OPT else 0
    if EPF:
        A(f"s_mul_i32 s3, s2, {CHE*8}")
        srd(A, sC, pE, CHE * 8, off="s3")
        A(f"v_lshlrev_b32 v3, 4, v0\ns_mov_b32 s3, 16384\ns_mov_b32 s{s_x+2}, 8192")
        A(f"buffer_load_dwordx4 v[224:227], v3, {S(sC)}, 0 offen")
        A(f"buffer_load_dwordx4 v[224:227], v3, {S(sC)}, s{s_x+2} offen")
        A(f"buffer_load_dwordx4 v[224:227], v3, {S(sC)}, s3 offen")
    zerofill()
    A("s_branch M_join")
    A("M_pwg:")
    srd(A, sD, pX, N * 256)
    srd(A, sB, pW1, 260 * 512)
    A(f"s_sub_u32 s{s_t}, s2, {NCH}\ns_mul_i32 s{s_t}, s{s_t}, {PROWS}")
    xdma(L_XP, s_t)
    A(f"""
    s_and_b32 s3, s2, -8
    s_add_u32 s3, s3, s{s_w}
    s_and_b32 s3, s3, 127
    s_lshl_b32 s3, s3, 10
    v_lshlrev_b32 v3, 4, v{L}
    buffer_load_dwordx4 v[16:19], v3, {S(sB)}, s3 offen
    """)
    srd(A, sWS, pWS, WS_END)
    srd(A, sG, pDBG, 256)
    consts()
    zerofill()
    wdma(0)
    stamp(A, 1)
    gaddr()
    A(f"""
    v_add_u32 v15, {L_XP}, v{vXr}
    v_add_u32 v11, s{s_t}, v4
    v_lshlrev_b32 v11, 9, v11
    v_lshl_add_u32 v11, v3, 4, v11
    s_lshl_b32 s3, s{s_w}, 6
    v_add_u32 v{vPa}, s3, v11
    s_add_u32 s3, s{s_t}, {PROWS}
    s_min_u32 s3, s3, {N}
    s_lshl_b32 s3, s3, 9
    """)
    srd(A, sA, pWS, "s3", off=WS_P)
    A(f"""
    s_waitcnt vmcnt(8)
    s_barrier
    """)
    stamp(A, 2)

    def pstore(mt):
        A(f"s_mov_b32 s3, {mt*8192}\nbuffer_store_dwordx4 {vr(vPO+4*mt,4)}, v{vPa}, {S(sA)}, s3 offen {SC}")

    def xrd(s):
        if s:
            A(f"v_xor_b32 v4, {s << 6:#x}, v15")
        for mt in range(4):
            A(f"ds_read_b128 {vr(vXP + 16*mt + 4*s, 4)}, v{4 if s else 15} offset:{mt*4096}")
    gemm_part(A, None, 4, vXP, vm=[6, 4, 2, 0], xrd=xrd)
    stamp(A, 18)
    f0load()
    xdma(L_XQ, s_nb0)
    small()
    if "w1bfirst" in OPT:
        wdma(128 * 512)
    gemm_pack(A, 4, lambda mt: pstore(mt) if mt in EARLY else None)
    stamp(A, 3)
    if "w1bfirst" not in OPT:
        wdma(128 * 512)
    bigcheck(32)
    A(f"s_waitcnt vmcnt({8 + len(EARLY)})")
    A("M_join:")
    stamp(A, 4)
    A(f"""
    s_mov_b32 s{s_x+2}, {QS - 512}
    v_lshlrev_b32 v8, 16, v{vWEr}
    v_and_b32 v9, 0xffff0000, v{vWEr}
    v_mul_f32 v8, v12, v8
    v_mul_f32 v9, v12, v9
    v_cvt_pk_bf16_f32 v10, v8, v9
    v_lshrrev_b32 v4, 7, v0          ; f
    v_lshlrev_b32 v5, 16, v10
    v_and_b32 v6, 0xffff0000, v10
    v_sub_f32 v8, v8, v5
    v_sub_f32 v9, v9, v6
    v_cvt_pk_bf16_f32 v11, v8, v9
    v_lshlrev_b32 v5, 2, v0
    v_mad_u32_u24 v5, v4, s{s_x+2}, v5
    v_add_u32 v5, {L_WE}, v5
    ds_write_b32 v5, v10
    ds_write_b32 v5, v11 offset:{4*QS}
    """)
    for x in range(4):
        A(f"v_lshlrev_b32 v{vB1+4+2*x}, 16, v{vB1+x}\nv_and_b32 v{vB1+5+2*x}, 0xffff0000, v{vB1+x}")
    A(f"""
    v_and_b32 v8, 15, v{L}               ; n
    v_lshrrev_b32 v9, 4, v{L}            ; q
    v_bfe_u32 v4, v8, 1, 2
    v_xor_b32 v4, v4, v9
    v_lshlrev_b32 v4, 4, v4
    v_lshl_add_u32 v{vSr}, v8, 6, v4
    v_add_u32 v4, s{s_nb0}, v8
    v_lshlrev_b32 v4, 8, v4
    v_lshl_add_u32 v4, v9, 3, v4
    s_lshl_b32 s3, s{s_w}, 5
    v_add_u32 v{vOa}, s3, v4
    v_and_b32 v8, 31, v{L}
    v_lshrrev_b32 v9, 5, v{L}
    v_lshlrev_b32 v9, 1, v9
    v_bfe_u32 v4, v8, 1, 2
    v_xor_b32 v4, v4, v9
    v_lshlrev_b32 v4, 4, v4
    v_lshl_add_u32 v4, v8, 6, v4
    v_add_u32 v{vSa}, s{s_ring}, v4
    v_xor_b32 v{vSb}, 16, v{vSa}
    """)
    A(f"""
    s_cmp_lg_u32 s{s_w}, 0
    s_cbranch_scc1 M_w1d
    """)
    f0wait("a")
    rpoll("a", WS_RB, NCH if "direct" in OPT else 2)
    A("M_w1d:")
    stamp(A, 5)
    A(f"""
    v_add_u32 v15, {L_XQ}, v{vXr}
    s_lshl_b32 s{s_x}, s2, 13
    s_add_u32 s{s_x}, s{s_x}, {WS_SLOT}
    v_lshlrev_b32 v1, 4, v0
    s_waitcnt lgkmcnt(0)
    s_barrier
    buffer_load_dwordx4 v[4:7], v1, {S(sWS)}, s{s_x} offen {SC}
    """)
    if "nosb" not in OPT:
        A("s_barrier")
    for mt in range(4):
        if mt not in EARLY:
            pstore(mt)
    NL = 4 - len(EARLY)
    A(f"""
    s_cmp_lg_u32 s{s_big}, 0
    s_cbranch_scc1 M_pbig
    M_pbigr:
    """)
    stamp(A, 6)
    for s in range(4):
        if s:
            A(f"v_xor_b32 v8, {s << 6:#x}, v15")
        for mt in range(3):
            A(f"ds_read_b128 {vr(vXF + 16*mt + 4*s, 4)}, v{8 if s else 15} offset:{mt*4096}")
    A(f"""
    s_cmp_ge_u32 s2, {NCH}
    s_cbranch_scc1 M_tk1a
    s_waitcnt vmcnt({1 + NL + EPF}) lgkmcnt(0)
    s_branch M_tk1
    M_tk1a:
    s_waitcnt vmcnt({5 if "w1bfirst" in OPT else 1 + NL}) lgkmcnt(0)
    M_tk1:
    """)
    gemm_part(A, vB1 + 4, 3, vXF)
    A(f"""
    v_and_b32 v8, 15, v{L}           ; n
    v_lshrrev_b32 v9, 4, v{L}        ; q
    v_lshlrev_b32 v9, 4, v9
    v_mul_u32_u24 v8, {QS}, v8
    s_lshl_b32 s3, s{s_w}, 6
    s_add_u32 s3, s3, {L_Q}
    v_add3_u32 v{vQa}, v8, v9, s3
    """)
    gemm_pack(A, 3, lambda mt: None, vPO=vQO)
    bigcheck(24)
    stamp(A, 7)
    A(f"s_waitcnt vmcnt({NL})\nM_recs:")
    stamp(A, 8)
    vD4, vRk, vEo, vEv, vBs, vTa = 16, 20, 24, 28, 36, 40
    A(f"s_mov_b32 s{s_x}, 0xfff00000\nv_mov_b32 v1, 1")
    for j in range(4):
        A(f"v_cmp_gt_u32 s[{sM+2*j}:{sM+2*j+1}], s{s_x}, v{4+j}")
    OO = [2, 10, 172]

    def bias_term(A):
        A(f"""
        v_and_b32 v8, 15, v{L}
        v_lshlrev_b32 v9, 2, v8
        ds_bpermute_b32 v6, v9, v{vDeg}
        ds_bpermute_b32 v7, v9, v{vDeg} offset:64
        ds_bpermute_b32 v14, v9, v{vDeg} offset:128
        v_lshlrev_b32 v116, 16, v{vB2}
        v_and_b32 v117, 0xffff0000, v{vB2}
        v_lshlrev_b32 v118, 16, v{vB2+1}
        v_and_b32 v119, 0xffff0000, v{vB2+1}
        s_lshl_b32 s3, s{s_nb1}, 8
        """)
        srd(A, sA, pOUT, "s3")
        A("s_waitcnt lgkmcnt(0)")
        for r in (6, 7, 14):
            A(f"v_cvt_f32_u32 v{r}, v{r}")
        for mt in range(3):
            for i in (0, 2):
                A(f"v_pk_mul_f32 {vr(OO[mt]+i,2)}, {vr(116+i,2)}, {vr(14 if mt == 2 else 6,2)} op_sel:[0,{mt & 1}] op_sel_hi:[1,{mt & 1}]")

    def egather():
        for j in range(4):
            A(f"""
            s_mov_b64 exec, s[{sM+2*j}:{sM+2*j+1}]
            buffer_load_dwordx2 {vr(vEv+2*j,2)}, v{vEo+j}, {S(sE)}, 0 offen
            """)
        A("s_mov_b64 exec, -1")

    for j in range(4):
        A(f"""
        v_lshrrev_b32 v{vEo+j}, 20, v{4+j}
        v_lshl_add_u32 v{vEo+j}, v{vEo+j}, 3, v{vChunk8}
        """)
    for j in range(4):
        A(f"""
        s_mov_b64 exec, s[{sM+2*j}:{sM+2*j+1}]
        s_cbranch_execz M_r1_{j}
        v_lshrrev_b32 v{vD4+j}, 12, v{4+j}
        v_subrev_u32 v{vD4+j}, s{s_nb4}, v{vD4+j}
        v_and_b32 v{vD4+j}, 0xfc, v{vD4+j}
        v_add_u32 v8, {L_CNT}, v{vD4+j}
        ds_add_rtn_u32 v{vRk+j}, v8, v1
        v_and_b32 v{4+j}, 0x3fff, v{4+j}
        M_r1_{j}:
        """)
        if j == 2:
            A(f"""
            s_mov_b64 exec, -1
            v_cmp_eq_u32 vcc, -2, v7
            s_and_b64 exec, exec, vcc
            s_cbranch_execz M_nomark
            v_mov_b32 v8, {L_CNT + 63*4}
            v_mov_b32 v9, 0x10000
            ds_add_u32 v8, v9
            M_nomark:
            """)
    A(f"""
    s_mov_b64 exec, -1
    s_mov_b32 s{s_alt}, 0
    s_mov_b32 s{s_sw}, 0
    v_lshlrev_b32 v9, 3, v{L}
    v_add_u32 v{vaAgg}, {L_AGG}, v9
    v_lshlrev_b32 v11, 2, v{L}
    v_add_u32 v11, 32, v11
    s_waitcnt vmcnt(0) lgkmcnt(0)
    s_barrier
    """)
    stamp(A, 21)
    A(f"""
    ds_read_b32 v8, v{vaCnt}
    v_mov_b32 v57, 0
    s_cmp_lg_u32 s{s_w}, 1
    s_cbranch_scc1 M_tk0
    s_cmp_lg_u32 s{s_slow}, 0
    s_cbranch_scc1 M_tk0
    s_and_b32 s3, s2, 15
    s_lshl_b32 s3, s3, 7
    v_mov_b32 v57, 1
    s_mov_b64 exec, 1
    buffer_atomic_add v57, off, {S(sWS)}, s3 sc0 sc1
    s_mov_b64 exec, -1
    M_tk0:
    s_cmp_lg_u32 s{s_slow}, 0
    s_cbranch_scc1 M_noq
    """)
    for mt in range(3):
        A(f"ds_write_b128 v{vQa}, {vr(vQO+4*mt,4)} offset:{mt*16*QS}")
    A("M_noq:")
    for r in range(16):
        A(f"v_mov_b32 v{vACC+r}, 0")
    A(f"""
    s_waitcnt lgkmcnt(3)
    s_cmp_eq_u32 s{s_slow}, 0
    s_cbranch_scc1 M_noq2
    s_waitcnt lgkmcnt(0)
    M_noq2:
    v_add_u32 v9, 3, v8
    v_and_b32 v9, -4, v9
    v_mov_b32 v10, v9
    v_mov_b32 v{vH}, 0
    v_mov_b32 v{vH+1}, 0
    v_add_u32_dpp v10, v10, v10 row_shr:1 row_mask:0xf bank_mask:0xf bound_ctrl:0
    v_mov_b32 v{vH+2}, 0
    v_mov_b32 v{vH+3}, 0
    v_add_u32_dpp v10, v10, v10 row_shr:2 row_mask:0xf bank_mask:0xf bound_ctrl:0
    v_mov_b32 v{vAgg}, 0
    v_mov_b32 v{vAgg+1}, 0
    v_add_u32_dpp v10, v10, v10 row_shr:4 row_mask:0xf bank_mask:0xf bound_ctrl:0
    s_nop 1
    v_add_u32_dpp v10, v10, v10 row_shr:8 row_mask:0xf bank_mask:0xf bound_ctrl:0
    s_nop 1
    v_add_u32_dpp v10, v10, v10 row_bcast:15 row_mask:0xa bank_mask:0xf
    s_nop 1
    v_add_u32_dpp v10, v10, v10 row_bcast:31 row_mask:0xc bank_mask:0xf
    s_nop 0
    v_sub_u32 v{vBase}, v10, v9
    v_readlane_b32 s{s_tot}, v10, 63
    s_cmp_lg_u32 s{s_w}, 1
    s_cbranch_scc1 M_derive
    s_waitcnt vmcnt(0)
    v_readfirstlane_b32 s3, v57
    s_cmp_lg_u32 s3, 15
    s_cbranch_scc1 M_derive
    """)
    if "vrel" not in OPT:
        A(f"s_mov_b32 s{s_one}, 1")
        for i in range(16):
            A(f"s_atomic_add s{s_one}, s[{pWS}:{pWS+1}], {WS_RP + 128*i}")
    else:
        A(f"""
        v_lshlrev_b32 v12, 7, v{L}
        v_mov_b32 v13, 1
        s_mov_b32 s3, {WS_RP}
        s_mov_b64 exec, 0xffff
        buffer_atomic_add v13, v12, {S(sWS)}, s3 offen sc1
        s_mov_b64 exec, -1
        """)
    A(f"""
    M_derive:
    """)
    for j in range(4):
        A(f"ds_bpermute_b32 v{vBs+j}, v{vD4+j}, v{vBase}")
    A(f"""
    ds_bpermute_b32 v12, v11, v{vBase}
    s_cmp_gt_u32 s{s_tot}, {CAP_T*32}
    s_cbranch_scc1 M_goslow
    v_readlane_b32 s{s_T0p}, v{vBase}, 32
    s_add_u32 s{s_T}, s{s_tot}, 31
    s_lshr_b32 s{s_T}, s{s_T}, 5
    v_add3_u32 v13, v{vBase}, v9, 31
    v_and_b32 v13, -32, v13                ; end of the tile that holds node i's last slot
    s_waitcnt lgkmcnt(0)
    v_cmp_gt_u32 vcc, v13, v12
    v_cmp_ne_u32 s[{s_x}:{s_x+1}], s{s_tot}, v12
    s_andn2_b32 s{s_x+1}, vcc_lo, s{s_alt}
    s_and_b32 s{s_x}, s{s_x}, s{s_x+1}
    s_cbranch_scc1 M_align
    """)
    stamp(A, 22)
    A(f"""
    v_mov_b32 v1, 0x3f80
    """)
    for j in range(4):
        A(f"""
        s_mov_b64 exec, s[{sM+2*j}:{sM+2*j+1}]
        s_cbranch_execz M_r2_{j}
        v_add_u32 v{vRk+j}, v{vRk+j}, v{vBs+j}
        v_lshlrev_b32 v9, 2, v{vRk+j}
        v_add_u32 v9, {L_LIST}, v9
        ds_write_b32 v9, v{4+j}
        v_and_b32 v9, 0x80, v{vD4+j}
        v_add_u32 v9, v9, v{vD4+j}
        v_bfe_u32 v10, v{vRk+j}, 2, 2
        v_add_lshl_u32 v9, v9, v10, 1
        v_lshrrev_b32 v10, 4, v{vRk+j}
        v_lshl_add_u32 v9, v10, 8, v9
        v_add_u32 v9, {L_AGG}, v9
        ds_write_b16 v9, v1
        v_lshrrev_b32 v9, 3, v{vRk+j}
        v_and_b32 v10, 31, v{vRk+j}
        v_and_b32 v9, -4, v9
        v_cmp_eq_u32 vcc, 0, v10
        v_add_u32 v{vTa+j}, {L_N0}, v9
        s_and_b64 exec, exec, vcc
        ds_write_b32 v{vTa+j}, v{vD4+j}
        M_r2_{j}:
        """)
    if "elate" in OPT:
        A("s_mov_b64 exec, -1")
    else:
        egather()
    A(f"""
    s_cmp_lt_u32 s{s_T0p}, s{s_tot}
    s_cselect_b32 s{s_x}, 5, 31
    s_cselect_b32 s{s_x+1}, 1, 0x7fffffff
    s_lshr_b32 s{s_T0p}, s{s_T0p}, s{s_x}
    s_add_u32 s{s_T0p}, s{s_T0p}, s{s_x+1}
    v_add_u32 v{vDeg}, v{vDeg}, v8
    s_mul_i32 s{s_pri}, s{s_T}, {PRIO_NUM}
    s_lshr_b32 s{s_pri}, s{s_pri}, 5
    s_cmp_lt_u32 s{s_w}, 4
    s_cselect_b32 s{s_pri}, 0x7fffffff, s{s_pri}
    s_sub_u32 s{s_next}, s{s_T}, 1
    s_min_i32 s{s_next}, s{s_next}, s{s_T0p}
    s_min_i32 s{s_next}, s{s_next}, s{s_pri}
    v_mov_b32 v1, 0x3f80
    """)
    A(f"v_mov_b32 v56, {L_N0}")
    stamp(A, 23)
    A(f"""
    v_mov_b32 v{vAgg+2}, 0
    v_mov_b32 v{vAgg+3}, 0
    s_waitcnt lgkmcnt(0)
    s_barrier
    """)
    stamp(A, 9)
    PSC = "sc1" if "psc1" in OPT else ("nt" if "pnt" in OPT else ("sc0 sc1" if "psc01" in OPT else ""))

    def dma(t, jj):
        r = vOff + 2 * t + jj if t < CAP_T else vDum
        fl = "nt" if t >= NT0 else PSC
        return f"buffer_load_dwordx4 v{r}, {S(sP)}, 0 offen offset:{(t & 1)*2048 + jj*1024} {fl} lds"

    def m0set(t):
        return f"s_mov_b32 m0, s{s_ring if (t % 4) < 2 else s_ringh}"

    def offs(lo, hi, after=None, A=A):
        for t0 in range(lo, hi, 8):
            ts = range(t0, min(t0 + 8, hi))
            for t in ts:
                A(f"ds_read_b64 {vr(vOff+2*t,2)}, v{vaList} offset:{t*128}")
            for i, t in enumerate(ts):
                A(f"s_waitcnt lgkmcnt({len(ts)-1-i})")
                for jj in range(2):
                    A(f"v_lshl_add_u32 v{vOff+2*t+jj}, v{vOff+2*t+jj}, 9, v{vK0 + 2*(t & 1) + jj}")
                if after:
                    after(t)

    for j in range(4):
        A(f"ds_read_b32 v{vBs+j}, v{vTa+j}")
    for g in range(7):
        A(f"ds_read_b128 {vr(vBa+4*g,4)}, v56 offset:{16*g}")
    offs(0, 6)
    A(f"""
    s_mov_b32 s{s_f0}, 16
    s_cmp_lg_u32 s{s_w}, 0
    s_cbranch_scc1 M_nolook
    s_and_b32 s3, s2, 15
    s_lshl_b32 s3, s3, 7
    s_add_u32 s3, s3, {WS_RP}
    s_mov_b32 s{s_f0}, 0
    s_atomic_add s{s_f0}, s[{pWS}:{pWS+1}], s3 glc
    M_nolook:
    """)
    stamp(A, 19)
    A("s_waitcnt vmcnt(0)")
    stamp(A, 20)
    A("v_mov_b32 v59, 0")
    for j in range(4):
        A(f"""
        s_mov_b64 exec, s[{sM+2*j}:{sM+2*j+1}]
        s_cbranch_execz M_r3_{j}
        v_lshlrev_b32 v8, 4, v{vRk+j}
        v_add_u32 v8, {L_AQE}, v8
        ds_write2_b64 v8, {vr(vEv+2*j,2)}, {vr(vEv+2*j,2)} offset0:0 offset1:1
        v_sub_u32 v9, v{vD4+j}, v{vBs+j}
        v_lshrrev_b32 v9, 1, v9
        v_add_u32 v9, v9, v8
        ds_write_b16 v9, v1 offset:{L_AQH - L_AQE}
        v_and_b32 v8, 0x7fff7fff, v{vEv+2*j}
        v_and_b32 v9, 0x7fff7fff, v{vEv+2*j+1}
        v_pk_max_u16 v8, v8, v9
        v_pk_max_u16 v59, v59, v8
        M_r3_{j}:
        """)
    A("s_mov_b64 exec, -1")
    if "nodefer" in OPT:
        A("s_waitcnt lgkmcnt(0)")
        offs(6, CAP_T)
        for t in range(CAP_T):
            A(f"v_mad_u32_u24 v{vBa+t}, v{vBa+t}, v{vBmul}, v{vaB}")
    A(f"""
    v_lshlrev_b32 v8, 16, v59
    v_and_b32 v59, 0xffff0000, v59
    v_max_u32 v59, v59, v8
    {m0set(0)}
    v_mov_b32 v9, {L_MX}
    v_max_u32_dpp v59, v59, v59 row_shr:1 row_mask:0xf bank_mask:0xf bound_ctrl:0
    s_nop 1
    v_max_u32_dpp v59, v59, v59 row_shr:2 row_mask:0xf bank_mask:0xf bound_ctrl:0
    s_nop 1
    v_max_u32_dpp v59, v59, v59 row_shr:4 row_mask:0xf bank_mask:0xf bound_ctrl:0
    s_nop 1
    v_max_u32_dpp v59, v59, v59 row_shr:8 row_mask:0xf bank_mask:0xf bound_ctrl:0
    s_waitcnt lgkmcnt(0)
    s_and_b32 s3, s{s_f0}, 0xffff
    s_cmp_eq_u32 s3, 16
    s_cbranch_scc1 M_w2
    """)
    rpoll("b", WS_RP, 16, keep=s_f0)
    A(f"""
    M_w2:
    s_cmp_lt_u32 s{s_f0}, 0x10000
    s_cbranch_scc1 M_w3
    v_mov_b32 v59, 0x7f800000
    M_w3:
    s_mov_b32 exec_lo, 0x80008000
    s_mov_b32 exec_hi, 0x80008000
    ds_max_u32 v9, v59
    s_mov_b64 exec, -1
    s_waitcnt lgkmcnt(0)
    s_barrier
    """)
    stamp(A, 10)
    A(f"""
    s_cmp_eq_u32 s{s_T}, 0
    s_cbranch_scc1 M_empty
    {dma(0, 0)}
    {dma(0, 1)}
    """)
    stamp(A, 11)

    def bread(t):
        r = vBa + min(t, CAP_T - 1)
        return [f"ds_read_b64_tr_b16 {vr(vBq,2)}, v{r}", f"ds_read_b64_tr_b16 {vr(vBq+2,2)}, v{r} offset:{4*QS}"]

    def w2load(s):
        return f"buffer_load_dwordx4 {vr(vW2+4*s,4)}, v{vW2a}, {S(sWS)}, s{s_w2 + (s >> 2)} offen offset:{(s & 3)*1024} sc1"

    A(f"v_mov_b32 v9, {L_MX}\nds_read_b32 v59, v9")
    for t in range(6, 16):
        A(f"ds_read_b64 {vr(vOff+2*t,2)}, v{vaList} offset:{t*128}")
    for t in range(CAP_T):
        A(f"v_mad_u32_u24 v{vBa+t}, v{vBa+t}, v{vBmul}, v{vaB}")
    A("\n".join(bread(0)))
    A(f"""
    ds_read_b128 {vr(vAqe,4)}, v{vaAqe}
    s_barrier
    {dma(1, 0)}
    {dma(1, 1)}
    {m0set(2)}
    s_waitcnt lgkmcnt(3)
    """)
    for t in range(16, CAP_T):
        A(f"ds_read_b64 {vr(vOff+2*t,2)}, v{vaList} offset:{t*128}")

    def offadd(lo, hi):
        for t in range(lo, hi):
            for jj in range(2):
                A(f"v_lshl_add_u32 v{vOff+2*t+jj}, v{vOff+2*t+jj}, 9, v{vK0 + 2*(t & 1) + jj}")
    offadd(6, 16)
    A("s_waitcnt lgkmcnt(0)")
    offadd(16, CAP_T)
    A(f"""
    s_cmp_lt_u32 s{s_w}, 4
    s_cbranch_scc1 M_nopri
    s_setprio 1
    M_nopri:
    v_lshlrev_b32 v8, 16, v{vBq}
    v_and_b32 v9, 0xffff0000, v{vBq}
    v_add_f32 v8, |v8|, |v9|
    v_lshlrev_b32 v9, 16, v{vBq+1}
    v_add_f32 v8, v8, |v9|
    v_and_b32 v9, 0xffff0000, v{vBq+1}
    v_add_f32 v8, v8, |v9|
    v_mul_f32 v8, v8, v59
    v_cmp_nge_f32 vcc, {f32(BND_E / 1.01):#x}, v8
    s_or_b32 s3, s{s_big}, s{s_slow}
    s_or_b32 s{s_K}, s3, vcc_lo
    s_cmp_eq_u32 s{s_K}, 0
    s_mov_b32 s{s_K}, {f32(-math.log(2.0) * 2.0 ** -CEXP):#x}
    s_cselect_b32 s3, 1.0, {f32(2.0**-CEXP):#x}
    s_cselect_b32 s{s_K}, {f32(-math.log(2.0)):#x}, s{s_K}
    v_mov_b32 v{vC}, s3
    v_mov_b32 v{vC+1}, s3
    """)
    mfma32(A, vU[0], vAqe, vBq, None)
    A("\n".join(bread(1)))
    A(f"""
    ds_read_b128 {vr(vAqe,4)}, v{vaAqe} offset:512
    s_barrier
    {dma(2, 0)}
    {dma(2, 1)}
    s_waitcnt vmcnt(4)
    ds_read_b128 {vr(vPf0,4)}, v{vaP0}
    ds_read_b128 {vr(vPf1,4)}, v{vaP1}
    s_waitcnt lgkmcnt(1)
    """)
    mfma32(A, vU[0], vPf0, vSel0, vU[0])
    A("s_waitcnt lgkmcnt(0)")
    mfma32(A, vU[0], vPf1, vSel1, vU[0])
    A(f"s_cmp_eq_u32 s3, 1.0\ns_nop 9\ns_cbranch_scc0 M_safe")
    stamp(A, 12)

    def half2(U, par, fast):
        if fast:
            rc = [f"v_rcp_f32 v{vT+i}, v{vT+i}" for i in range(4)]
            rest = [f"v_pk_mul_f32 {vr(U+i,2)}, {vr(U+i,2)}, {vr(vT+i,2)}" for i in (0, 2)]
        else:
            rc = [f"v_rcp_f32 v{vT+i}, v{vT+i}" for i in (0, 1, 2, 3, 8, 9, 10, 11)]
            rest = [f"v_pk_mul_f32 {vr(U+i,2)}, {vr(U+i,2)}, {vr(vT+i,2)}" for i in (0, 2)]
            rest += [f"v_pk_fma_f32 {vr(U+i,2)}, {vr(U+8+i,2)}, {vr(vT+8+i,2)}, {vr(U+i,2)}" for i in (0, 2)]
        rest += [f"v_cvt_pk_bf16_f32 v{vH+2*par+i//2}, v{U+i}, v{U+i+1}" for i in (0, 2)]
        return rc, rest

    def second_half(B, U, par, fast, aggread):
        rc, rest = half2(U, par, fast)
        if par == 0:
            mfma32(B, vACC, vH, vAgg, vACC)
        B("\n".join(rc + ([aggread] if aggread else []) + rest))

    vmq = ["d"] * (2 * (D + 1))

    def vm_need(t):
        seen = 0
        for i, k in enumerate(vmq):
            if k == "d":
                seen += 1
                if seen == 2 * (t + 1):
                    return len(vmq) - 1 - i

    ool = Asm()

    def emit_loop(A, md, fast):
        del vmq[2 * (D + 1):]
        A(".p2align 3")
        for t in range(CAP_T):
            U, Un = vU[t & 1], vU[(t + 1) & 1]
            tn = t + 1 + D
            s2 = ((t + 2) % D) * 2048
            ex = [f"v_exp_f32 v{vT+i}, v{U+i}" for i in range(16)]
            if "itst" in OPT:
                A(f"s_memtime s[100:101]")
            late_vm = t < NSHORT + 2
            FIRST = t == 0
            SHORT = t < NSHORT
            A(f"s_waitcnt lgkmcnt(0)" if late_vm else f"s_waitcnt vmcnt({vm_need(t+2)}) lgkmcnt(0)")
            if "itst" in OPT:
                A(f"s_waitcnt lgkmcnt(0)\nv_writelane_b32 v{vSt}, s100, {16+t}")
            def P(op, d, a, b, c=None, cl=""):
                return [f"v_pk_{op}_f32 {vr(d+i,2)}, {vr(a+i,2)}, {vr(b if b == vC else b+i,2)}"
                        + (f", {vr(c if c == vC else c+i,2)}" if c is not None else "") + cl for i in (0, 2)]
            if fast:
                pk = P("fma", U+4, U+4, vT, U+4) + P("add", vT+4, vT+4, vC) + P("fma", U+12, U+12, vT+8, U+12) + P("add", vT+12, vT+12, vC)
                pk += P("fma", U, U, vT+4, U+4) + P("fma", vT, vT, vT+4, vT+4)
                pk += P("fma", U+8, U+8, vT+12, U+12) + P("fma", vT+8, vT+8, vT+12, vT+12)
                pk += P("mul", U+8, U+8, vT) + P("fma", U, U, vT+8, U+8) + P("mul", vT, vT, vT+8)
                P_VM, P_LATE, P_F, P_CMP = 10, 13, 15, 18
            else:
                pk = []
                for g in (0, 4, 8, 12):
                    pk += P("fma", vT+g, vT+g, vC, vC, " clamp")
                for g in (0, 8):
                    pk += P("mul", U+g, U+g, vT+g+4) + P("fma", U+g, U+g+4, vT+g, U+g) + P("mul", vT+g, vT+g, vT+g+4)
                P_VM, P_LATE, P_F, P_CMP = 9, 12, 14, 16
            b0, b1 = bread(t + 2)
            g_ds = ([m0set(tn)] if tn % 2 == 0 else []) + [f"ds_read_b128 {vr(vAqe,4)}, v{vaAqe} offset:{(t+2)*512}", b0, b1]
            if t & 1:
                g_ds.append(f"ds_read2st64_b64 {vr(vAgg,4)}, v{vaAgg} offset0:{t-1} offset1:{t}")
            g_p = [f"ds_read_b128 {vr(vPf0,4)}, v{vaP0} offset:{s2}", f"ds_read_b128 {vr(vPf1,4)}, v{vaP1} offset:{s2}"]
            g_vm = [dma(tn, 0), dma(tn, 1)]
            s1 = ((t + 1) % D) * 2048
            mid = []
            if SHORT:
                groups = {P_F: [f"s_waitcnt vmcnt({vm_need(t+1) - (2 if FIRST else 0)})",
                                f"ds_read_b128 {vr(vPf0,4)}, v{vaP0} offset:{s1}", f"ds_read_b128 {vr(vPf1,4)}, v{vaP1} offset:{s1}"]
                          + ([dma(D, 0), dma(D, 1)] if FIRST else [])}
                tail0 = g_vm + ([f"s_waitcnt vmcnt({vm_need(t+2) + 2})"] + g_p if t == NSHORT - 1 else [])
                mid = g_ds
            elif late_vm:
                groups = {P_LATE: [f"s_waitcnt vmcnt({vm_need(t+2)})"] + g_p + g_vm}
                mid = g_ds
            else:
                groups = {6: g_vm}
                mid = g_ds + g_p
            mfma32(A, Un, vAqe, vBq, None)
            if SHORT:
                A("\n".join(ex[0:13] + mid + ex[13:16] + ([dma(3, 0), dma(3, 1), m0set(D)] if FIRST else [])))
            else:
                A("\n".join(ex[0:4]))
                mfma32(A, Un, vPf0, vSel0, Un)
                A("\n".join(ex[4:8]))
                mfma32(A, Un, vPf1, vSel1, Un)
                A("\n".join(ex[8:13] + mid + ex[13:16]))
            vmq.extend(["d", "d"])
            if W2T0 <= t < W2T0 + 8:
                g_vm.append(w2load(t - W2T0))
                vmq.append("w")
            groups[P_CMP] = [f"s_cmp_le_i32 s{s_next}, {t}"]
            for i, x in enumerate(pk):
                A(x)
                if FIRST and i == 0 and "it0" in OPT:
                    stamp(A, 44)
                if FIRST and i == P_F:
                    if "it0" in OPT:
                        stamp(A, 45)
                    bias_term(A)
                    if "it0" in OPT:
                        stamp(A, 46)
                if FIRST and i == P_F + 1 and "it0" in OPT:
                    stamp(A, 47)
                for y in groups.get(i, []):
                    if not ("nodma" in OPT and " lds" in y):
                        A(y)
            A(f"s_cbranch_scc1 M_ev{md}{t}\nM_evr{md}{t}:")
            if SHORT:
                rc, rest = half2(U, t & 1, fast)
                k = len(rc) // 2
                if t and not t & 1:
                    mfma32(A, vACC, vH, vAgg, vACC)
                A("\n".join(rc[0:k]) + "\ns_waitcnt lgkmcnt(0)")
                mfma32(A, Un, vPf0, vSel0, Un)
                A("\n".join(rc[k:]))
                mfma32(A, Un, vPf1, vSel1, Un)
                A("\n".join(tail0 + rest + ["s_nop 3"]))
            else:
                second_half(A, U, t & 1, fast, None)
            ool(f"""
            M_ev{md}{t}:
            s_movk_i32 s{s_t}, {t}
            s_call_b64 s[{s_ret}:{s_ret+1}], M_rare
            s_cbranch_scc1 M_tail{md}{t & 1}
            s_branch M_evr{md}{t}
            """)

    emit_loop(A, "f", True)
    A("s_branch M_fin")
    def emit_tails(A, md, fast):
        for p in range(2):
            A(f"""
            M_tail{md}{p}:
            s_lshl_b32 s3, s{s_t}, 9
            v_add_u32 v8, s3, v{vaAgg}
            """)
            second_half(A, vU[p], p, fast, None if p else f"ds_read_b64 {vr(vAgg,2)}, v8")
            if p == 0:
                A(f"v_mov_b32 v{vAgg+2}, 0\nv_mov_b32 v{vAgg+3}, 0")
            if p == 0 or not fast:
                A("s_branch M_fin")
    emit_tails(A, "f", True)
    A(f"""
    M_fin:
    s_mov_b32 s{s_t}, s{s_T}
    s_cmp_eq_u32 s{s_T0p}, s{s_T}
    s_cbranch_scc0 M_fin2
    s_call_b64 s[{s_ret}:{s_ret+1}], M_rare
    M_fin2:
    s_waitcnt lgkmcnt(0)
    """)
    mfma32(A, vACC, vH, vAgg, vACC)
    stamp(A, 13)
    A(f"""
    s_cmp_lg_u32 s{s_sw}, 0
    s_nop 11
    s_cbranch_scc1 M_fin_hi
    """)
    for r in range(0, 16, 2):
        A(f"v_pk_add_f32 {vr(vS0+r,2)}, {vr(vS0+r,2)}, {vr(vACC+r,2)}")
    A("s_branch M_bend\nM_fin_hi:")
    for r in range(0, 16, 2):
        A(f"v_pk_add_f32 {vr(vS1+r,2)}, {vr(vS1+r,2)}, {vr(vACC+r,2)}")
    K = -math.log(2.0) * 2.0 ** -CEXP
    A(f"""
    M_bend:
    s_setprio 0
    s_cmp_lg_u32 s{s_slow}, 0
    s_cbranch_scc1 M_next
    M_epi:
    s_cmp_gt_u32 s{s_T}, {W2T0 + 8}
    s_cbranch_scc1 M_epi2
    """)
    for s_ in range(8):
        A(w2load(s_))
    A(f"""
    M_epi2:
    v_mov_b32 v{vC}, s{s_K}
    v_mov_b32 v{vC+1}, s{s_K}
    """)
    for Sx, o in ((vS0, 16), (vS1, 24)):
        for r in range(0, 16, 2):
            A(f"v_pk_mul_f32 {vr(Sx+r,2)}, {vr(Sx+r,2)}, {vr(vC,2)}")
        for r in range(0, 16, 2):
            A(f"v_cvt_pk_bf16_f32 v{o+r//2}, v{Sx+r}, v{Sx+r+1}")
        if o == 16:
            A(f"s_waitcnt vmcnt(0)\nds_write_b128 v{vSa}, v[16:19]\nds_write_b128 v{vSb}, v[20:23]")
    A(f"""
    ds_write_b128 v{vSa}, v[24:27] offset:2048
    ds_write_b128 v{vSb}, v[28:31] offset:2048
    s_mov_b32 s{s_x}, 4096
    s_mov_b32 s{s_x+1}, 8192
    s_waitcnt lgkmcnt(0)
    s_barrier
    """)
    stamp(A, 14)
    SFR = 48
    order = [(s, mt) for s in range(8) for mt in range(3)]
    RS = D * 2048
    AHEAD = 12
    for k in range(AHEAD):
        s, mt = order[k]
        A(f"ds_read_b128 {vr(SFR+4*k,4)}, v{vSr} offset:{s*RS+mt*1024}")
    for k in range(24):
        s, mt = order[k]
        A(f"s_waitcnt lgkmcnt({min(AHEAD - 1, 23 - k)})")
        mfma16(A, OO[mt], vW2 + 4 * s, SFR + 4 * k, OO[mt])
        if k + AHEAD < 24:
            s2, mt2 = order[k + AHEAD]
            A(f"ds_read_b128 {vr(SFR+4*(k+AHEAD),4)}, v{vSr} offset:{s2*RS+mt2*1024}")
    A("s_nop 5")
    for mt in range(3):
        A(f"""
        v_cvt_pk_bf16_f32 v{16+2*mt}, v{OO[mt]}, v{OO[mt]+1}
        v_cvt_pk_bf16_f32 v{17+2*mt}, v{OO[mt]+2}, v{OO[mt]+3}
        buffer_store_dwordx2 {vr(16+2*mt,2)}, v{vOa}, {S(sA)}, {["0", f"s{s_x}", f"s{s_x+1}"][mt]} offen {"sc1" if "outsc" in OPT else ("nt" if "outnt" in OPT else "")}
        """)
    if (SPIN is not None and SPIN[0] == 15) or ENC is not None:
        A("s_waitcnt vmcnt(0)")
        stamp(A, 15)
    if STAMPS:
        A("s_waitcnt vmcnt(0)")
        stamp(A, 15)
        srd(A, sA, pWS, 0x80000, off=WS_ST)
        A(f"""
        s_lshl_b32 s3, s2, 3
        s_add_u32 s3, s3, s{s_w}
        s_lshl_b32 s3, s3, 8
        v_lshl_add_u32 v1, v{L}, 2, s3
        buffer_store_dword v{vSt}, v1, {S(sA)}, 0 offen
        """)
    A("M_end:\ns_endpgm")

    A(f"""
    M_rare:
    s_cmp_eq_u32 s{s_T0p}, s{s_t}
    s_cbranch_scc0 M_rare2
    s_lshl_b32 s3, s{s_t}, 9
    v_add_u32 v8, s3, v{vaAgg}
    v_add_u32 v{vaAgg}, 512, v{vaAgg}
    s_mov_b32 s{s_sw}, 1
    s_mov_b32 s{s_T0p}, 0x7fffffff
    s_bitcmp1_b32 s{s_t}, 0
    s_waitcnt lgkmcnt(0)
    s_cbranch_scc1 M_swo
    """)
    for odd in (0, 1):
        hi, other = (vAgg, vAgg + 2) if odd else (vAgg + 2, vAgg)
        if odd:
            A(f"M_swo:\nv_mov_b32 v{other}, 0\nv_mov_b32 v{other+1}, 0\ns_nop 1")
        mfma32(A, vACC, vH, vAgg, vACC)
        A(f"""
        v_mov_b32 v{other}, 0
        v_mov_b32 v{other+1}, 0
        ds_read_b64 {vr(hi,2)}, v8
        s_nop 8
        """)
        for r in range(0, 16, 2):
            A(f"v_pk_add_f32 {vr(vS0+r,2)}, {vr(vS0+r,2)}, {vr(vACC+r,2)}")
        A("s_waitcnt lgkmcnt(0)")
        mfma32(A, vACC, vH, vAgg, None)
        A(f"v_mov_b32 v{hi}, 0\nv_mov_b32 v{hi+1}, 0")
        if odd:
            A(f"ds_read_b64 {vr(other,2)}, v8 offset:512")
        if not odd:
            A("s_branch M_rare2")
    A(f"""
    M_rare2:
    s_cmp_le_i32 s{s_pri}, s{s_t}
    s_cbranch_scc0 M_rare3
    s_setprio 0
    s_mov_b32 s{s_pri}, 0x7fffffff
    M_rare3:
    s_sub_u32 s3, s{s_T}, 1
    s_min_i32 s{s_next}, s3, s{s_T0p}
    s_min_i32 s{s_next}, s{s_next}, s{s_pri}
    s_cmp_le_i32 s3, s{s_t}
    s_setpc_b64 s[{s_ret}:{s_ret+1}]
    """)

    A(f"""
    M_pbig:
    v_lshlrev_b32 v8, 7, v{L}
    v_mov_b32 v9, 0x10000
    s_mov_b32 s3, {WS_RP}
    s_mov_b64 exec, 0xffff
    buffer_atomic_add v9, v8, {S(sWS)}, s3 offen sc1
    s_mov_b64 exec, -1
    s_branch M_pbigr
    """)
    A(f"M_empty:\ns_mov_b32 s{s_K}, {f32(-math.log(2.0) * 2.0 ** -CEXP):#x}")
    bias_term(A)
    A("s_branch M_bend")
    A(f"""
    M_align:
    s_mov_b32 s{s_alt}, -1
    s_mov_b32 s{s_x+2}, 0
    v_mov_b32 v13, v{vBase}
    """)
    for G in range(5):
        A(f"""
        v_readlane_b32 s{s_x}, v{vBase}, {8*G}
        v_readlane_b32 s{s_x+1}, v{vBase}, {8*G+8}
        s_nop 1
        s_sub_u32 s{s_x+3}, s{s_x+2}, s{s_x}
        v_cmp_le_u32 vcc, {8*G}, v{L}
        v_add_u32 v10, s{s_x+3}, v{vBase}
        s_sub_u32 s{s_x+1}, s{s_x+1}, s{s_x}
        s_add_u32 s{s_x+2}, s{s_x+2}, s{s_x+1}
        v_cndmask_b32 v13, v13, v10, vcc
        """)
        if G < 4:
            A(f"s_add_u32 s{s_x+2}, s{s_x+2}, 31\ns_and_b32 s{s_x+2}, s{s_x+2}, -32")
    A(f"""
    s_mov_b32 s{s_tot}, s{s_x+2}
    v_mov_b32 v{vBase}, v13
    s_nop 1
    s_branch M_derive
    """)
    A(f"""
    M_goslow:
    s_mov_b32 s{s_slow}, 1
    s_mov_b32 s{s_batch}, 0
    s_branch M_load
    M_next:
    s_add_u32 s{s_batch}, s{s_batch}, 512
    s_cmp_ge_u32 s{s_batch}, {E}
    s_cbranch_scc1 M_epi
    M_load:
    """)
    srd(A, sA, pDST, E * 4)
    srd(A, sB, pSRC, E * 4)
    A(f"""
    v_add_u32 v8, s{s_batch}, v0
    v_lshlrev_b32 v9, 2, v8
    s_waitcnt vmcnt(0) lgkmcnt(0)
    buffer_load_dword v10, v9, {S(sA)}, 0 offen
    buffer_load_dword v11, v9, {S(sB)}, 0 offen
    v_lshlrev_b32 v{vChunk8}, 3, v8
    v_mov_b32 v5, -1
    v_mov_b32 v6, -1
    v_mov_b32 v7, -1
    s_mov_b32 s{s_x+2}, {E}
    s_waitcnt vmcnt(0)
    v_subrev_u32 v12, s{s_nb0}, v10
    v_cmp_gt_u32 vcc, s{s_nn}, v12
    v_cmp_gt_u32 s[{s_x}:{s_x+1}], s{s_x+2}, v8
    v_and_b32 v10, 63, v10
    v_lshl_or_b32 v11, v10, 14, v11
    s_and_b64 vcc, vcc, s[{s_x}:{s_x+1}]
    s_nop 1
    v_cndmask_b32 v4, v5, v11, vcc
    s_barrier
    """)
    zerofill()
    A("s_waitcnt lgkmcnt(0)\ns_barrier\ns_branch M_recs")
    B2 = Asm()
    B2("M_safe:")
    emit_loop(B2, "s", False)
    B2("s_branch M_fin")
    emit_tails(B2, "s", False)
    A.l += B2.l
    A.l += ool.l


def build():
    out = f"""; Fused edge-featured MPNN layer, one workgroup per bucket of 39/40 destination nodes.
; @launch grid=(256,1,1) block=(512,1,1) lds={LDS_BYTES}
.amdgcn_target "amdgcn-amd-amdhsa--gfx950"
.text
.globl {KN}
.p2align 8
.type {KN},@function
"""
    A = Asm()
    kernel(A)
    out += A.text()
    out += f""".section .rodata,"a"
.p2align 6
.amdhsa_kernel {KN}
  .amdhsa_next_free_vgpr {NV}
  .amdhsa_next_free_sgpr 102
  .amdhsa_accum_offset {(NV + 3) // 4 * 4}
  .amdhsa_group_segment_fixed_size 0
  .amdhsa_kernarg_size 88
  .amdhsa_user_sgpr_count 2
  .amdhsa_user_sgpr_kernarg_segment_ptr 1
  .amdhsa_system_sgpr_workgroup_id_x 1
.end_amdhsa_kernel
"""
    return out


if __name__ == "__main__":
    for a in list(sys.argv):
        if a.startswith("-o"):
            OPT.update(a[2:].split(","))
            sys.argv.remove(a)
    for a in list(sys.argv):
        if a.startswith("-spin"):
            i, us = a[5:].split(":")
            SPIN = (int(i), float(us))
            sys.argv.remove(a)
    for a in list(sys.argv):
        if a.startswith("-wsb"):
            WS_BASE = int(a[4:]) << 20
            sys.argv.remove(a)
    for a in list(sys.argv):
        if a.startswith("-enc"):
            ENC = int(a[4:])
            sys.argv.remove(a)
    for a in list(sys.argv):
        if a.startswith("-pri"):
            PRIO_NUM = int(a[4:])
            sys.argv.remove(a)
    for a in list(sys.argv):
        if a.startswith("-nt"):
            NT0 = int(a[3:])
            sys.argv.remove(a)
    for a in list(sys.argv):
        if a.startswith("-early"):
            EARLY = tuple(int(c) for c in a[6:])
            sys.argv.remove(a)
    for a in list(sys.argv):
        if a.startswith("-ns"):
            NSHORT = int(a[3:])
            sys.argv.remove(a)
    for a in list(sys.argv):
        if a.startswith("-w2t"):
            W2T0 = int(a[4:])
            sys.argv.remove(a)
    if "--stamps" in sys.argv:
        STAMPS = True
        sys.argv.remove("--stamps")
    path = sys.argv[1] if len(sys.argv) > 1 else f"cdna_kernels/{NAME}.s"
    open(path, "w").write(build())
    print("wrote", path, "lds", LDS_BYTES)
```

```python
import sys, struct, math

NAME = "gather_scatter__edge_featured_mpnn_mpnn__graph"
KN = NAME + "_kernel"
N, E = 10000, 160000

WS_CNT = 0
WS_RB = 16 * 128
WS_RP = 32 * 128
WS_W2F = 0x2000
WS_SLOT = 0x12000
WS_P = 0x213000
TABB = N * 512
WS_END = WS_P + TABB
WS_ST = 0x1000000

WS_BASE = 0
NCH = 64
CHE = E // NCH
PROWS = 53
LOG2E = 1.4426950408889634
CEXP = 48
STAMPS = False
OPT = set()
PRIO_NUM = 21
NT0 = 99
NSHORT = 3
W2T0 = 8


def f32(x):
    return struct.unpack("<I", struct.pack("<f", x))[0]


class Asm:
    def __init__(self):
        self.l = []

    def __call__(self, s):
        for x in s.split("\n"):
            x = x.strip()
            if x:
                self.l.append(("" if x.endswith(":") else "    ") + x)

    def text(self):
        import re
        for x in self.l:
            m = re.search(r"offset:(\d+)", x)
            if m:
                lim = 4096 if x.strip().startswith("buffer_") else 65536
                assert int(m.group(1)) < lim, x
        return "\n".join(self.l) + "\n"


def vr(a, n=1):
    return f"v{a}" if n == 1 else f"v[{a}:{a+n-1}]"


def srd(A, d, base, size, off=None):
    if off is None:
        A(f"s_mov_b32 s{d}, s{base}\ns_mov_b32 s{d+1}, s{base+1}")
    else:
        A(f"s_add_u32 s{d}, s{base}, {off}\ns_addc_u32 s{d+1}, s{base+1}, 0")
    A(f"s_mov_b32 s{d+2}, {size}\ns_mov_b32 s{d+3}, 0x00020000")


def S(d):
    return f"s[{d}:{d+3}]"


D = 4
CAP_T = 26
QS = 592
L_RING = 0
L_AQE = 8 * D * 2048
L_AQH = L_AQE + CAP_T * 512
L_AGG = L_AQH + CAP_T * 512
L_LIST = L_AGG + (CAP_T + 2) * 512
L_CNT = L_LIST + 4096
L_N0 = L_CNT + 256
L_MX = L_N0 + 248
L_WE = L_N0 + 256
L_Q = L_WE + 8 * QS
LDS_BYTES = (L_Q + 255) // 256 * 256 + 32768
ZERO_BYTES = L_LIST - L_AQE
L_XP = (L_Q + 255) // 256 * 256
L_XQ = L_XP + 16384
L_BT = L_AQE
L_BC = L_BT + 32768
assert L_BC + 2048 <= L_LIST and LDS_BYTES <= 163840 and 48 * QS <= 32768
DUMMY = 0x400000
SLOWB = 448
assert SLOWB + 3 * 40 + 4 * 63 <= CAP_T * 32

pX, pE, pSRC, pDST, pW1, pB1, pW2, pB2, pOUT, pDBG, pWS = 4, 6, 8, 10, 12, 14, 16, 18, 20, 22, 24
s_w2 = 26
sA, sB, sC, sD, sWS, sP, sE = 28, 32, 36, 40, 44, 48, 52
(s_w, s_nb0, s_nb1, s_nn, s_T, s_T0p, s_t, s_next, s_slow, s_batch, s_ring, s_sw, s_tot,
 s_nb4, s_ringh, s_spin, s_pri, s_alt, s_xw) = range(56, 75)
s_f0 = 85
s_one = 84
s_big = 83
s_K = 82
BND_PQ, BND_E = 4.0, 22.0
s_x = 76
sM = 86
s_ret = 94
sG = 96

vU = [16, 32]
vT = 48
vH = 64
vACC = 68
vS0 = 84
vS1 = 100
vPf0, vPf1, vAqe, vAgg, vBq, vSel0, vSel1 = 116, 120, 124, 128, 132, 136, 140
vBa = 144
vOff = 176
vW2 = 176
(vC, _c1, vB2, _b1, vK0, vK1, vK2, vK3, vaAqe, vaAgg, vaList, vaP0, vaP1, vaB, vBmul, vBase, vDeg,
 vChunk8, vLane, vDum, vSt, vW2a, vaCnt) = range(228, 251)
vSa, vSb, vSr, vOa = 252, 253, 254, 255
NV = 256
vXF = 176
vXP = 160
vWF = 16
vPA = 48
vPO = 148
vQO = 164
vPa = 144
EARLY = (0, 1)
vXa = 145
vXr = 147
vB1 = 116
vWEr = 128
vF0 = 129
vPc = 130
vQa = 131


def mfma32(A, d, a, b, c):
    cs = "0" if c is None else vr(c, 16)
    A(f"v_mfma_f32_32x32x16_bf16 {vr(d,16)}, {vr(a,4)}, {vr(b,4)}, {cs}")


def mfma16(A, d, a, b, c):
    cs = "0" if c is None else vr(c, 4)
    A(f"v_mfma_f32_16x16x32_bf16 {vr(d,4)}, {vr(a,4)}, {vr(b,4)}, {cs}")


SPIN = None


ENC = None


def stamp(A, i):
    if ENC is not None:
        if i == 0:
            A("s_memrealtime s[100:101]\ns_waitcnt lgkmcnt(0)\ns_mov_b32 s75, s100\ns_nop 0")
        if i == ENC:
            A("s_waitcnt lgkmcnt(0)\ns_memrealtime s[100:101]\ns_waitcnt lgkmcnt(0)\ns_sub_u32 s101, s100, s75")
            A(f"v_writelane_b32 v{vSt}, s101, 0")
        if i == 15:
            u = len(A.l)
            A(f"v_readlane_b32 s3, v{vSt}, 0\ns_nop 3\ns_lshl_b32 s3, s3, 2\ns_add_u32 s3, s3, 6000")
            A(f"M_spin{u}:\ns_memrealtime s[100:101]\ns_waitcnt lgkmcnt(0)\ns_sub_u32 s100, s100, s75\ns_cmp_lt_u32 s100, s3\ns_cbranch_scc1 M_spin{u}")
    if SPIN is not None:
        if i == 0:
            A("s_memrealtime s[100:101]\ns_waitcnt lgkmcnt(0)\ns_mov_b32 s75, s100")
        elif i == SPIN[0]:
            u = len(A.l)
            A(f"M_spin{u}:\ns_memrealtime s[100:101]\ns_waitcnt lgkmcnt(0)\ns_sub_u32 s100, s100, s75\ns_cmp_lt_u32 s100, {int(SPIN[1]*100)}\ns_cbranch_scc1 M_spin{u}")
    if STAMPS:
        ins = "s_memtime" if "cyc" in OPT else "s_memrealtime"
        A(f"s_waitcnt lgkmcnt(0)\n{ins} s[100:101]\ns_waitcnt lgkmcnt(0)\nv_writelane_b32 v{vSt}, s100, {i}")


def gemm_part(A, init, nmt, xf, vm=None, xrd=None):
    def rd(s):
        for ct in range(2):
            for x in range(2):
                A(f"ds_read_b64_tr_b16 {vr(vWF + 8*s + 4*ct + 2*x, 2)}, v14 offset:{s*2048 + x*256 + ct*8}")
    if vm is None:
        for s in range(4):
            rd(s)
    else:
        xrd(0)
        A(f"s_waitcnt vmcnt({vm[0]})")
        rd(0)
        xrd(1)
    for s in range(4):
        if vm is None:
            A(f"s_waitcnt lgkmcnt({12 - 4*s})")
        else:
            A(f"s_waitcnt lgkmcnt({nmt if s < 3 else 0})")
        k = 0
        for mt in range(nmt):
            for ct in range(2):
                d = vPA + 8 * mt + 4 * ct
                c = d if s else (None if init is None else init + 4 * ct)
                mfma16(A, d, vWF + 8 * s + 4 * ct, xf + 16 * mt + 4 * s, c)
                k += 1
                if vm is not None and k == 2 and s < 3:
                    A(f"s_waitcnt vmcnt({vm[s+1]})")
                    rd(s + 1)
                    if s < 2:
                        xrd(s + 2)


def gemm_pack(A, nmt, store, vPO=vPO):
    A("s_nop 4")
    for mt in range(nmt):
        for r in range(0, 8, 2):
            a = vPA + 8 * mt + r
            A(f"v_pk_mul_f32 {vr(a,2)}, {vr(a,2)}, v[12:13]")
        for r in range(0, 8, 2):
            a = vPA + 8 * mt + r
            A(f"v_cvt_pk_bf16_f32 v{vPO + 4*mt + r//2}, v{a}, v{a+1}")
        store(mt)


def kernel(A):
    L = vLane
    SC = "sc0 sc1"
    A(f"{KN}:")
    A(f"""
    s_cmp_ge_u32 s2, 256
    s_cbranch_scc1 M_end
    s_load_dwordx16 s[4:19], s[0:1], 0
    s_load_dwordx4 s[20:23], s[0:1], 64
    s_load_dwordx2 s[24:25], s[0:1], 80
    """)
    if STAMPS or ENC is not None:
        A(f"v_mov_b32 v{vSt}, 0")
    stamp(A, 0)
    A(f"""
    v_lshrrev_b32 v2, 6, v0
    v_and_b32 v{L}, 63, v0
    v_readfirstlane_b32 s{s_w}, v2
    s_mul_i32 s{s_nb0}, s2, 160069
    s_add_u32 s{s_nb1}, s{s_nb0}, {160069 + 4049}
    s_add_u32 s{s_nb0}, s{s_nb0}, 4049
    s_lshr_b32 s{s_nb0}, s{s_nb0}, 12
    v_lshrrev_b32 v7, 4, v{L}
    v_and_b32 v8, 15, v{L}
    v_xor_b32 v8, v8, v7
    s_lshl_b32 s{s_ring}, s{s_w}, 13
    s_and_b32 s3, s{s_w}, 1
    s_lshl_b32 s3, s3, 3
    v_xor_b32 v8, s3, v8
    v_lshlrev_b32 v8, 4, v8
    v_lshl_add_u32 v8, v7, 8, v8
    s_lshl_b32 s{s_xw}, s{s_w}, 11
    v_add_u32 v{vXa}, s{s_xw}, v8
    v_xor_b32 v{vXa+1}, 64, v{vXa}
    v_lshrrev_b32 v10, 2, v{L}
    v_and_b32 v11, 3, v{L}
    v_lshlrev_b32 v11, 4, v11
    v_lshl_add_u32 v10, v10, 9, v11
    s_lshl_b32 s3, s{s_w}, 6
    v_add_u32 v10, s3, v10
    v_lshlrev_b32 v2, 2, v0
    s_waitcnt lgkmcnt(0)
    s_add_u32 s{pWS}, s{pWS}, {WS_BASE}
    s_addc_u32 s{pWS+1}, s{pWS+1}, 0
    s_cmp_ge_u32 s2, {NCH}
    s_cbranch_scc1 M_pwg
    """)

    def wdma(base):
        for ii in range(8):
            A(f"""
            s_add_u32 m0, s{s_ring}, {ii*1024}
            s_mov_b32 s{s_x+1}, {base + ii*8192}
            buffer_load_dwordx4 v10, {S(sB)}, s{s_x+1} offen lds
            """)

    def xdma(ldsbase, rowreg):
        A(f"""
        s_add_u32 m0, s{s_xw}, {ldsbase}
        s_lshl_b32 s3, s{rowreg}, 8
        buffer_load_dwordx4 v{vXa}, {S(sD)}, s3 offen lds
        buffer_load_dwordx4 v{vXa+1}, {S(sD)}, s3 offen offset:1024 lds
        """)

    def gaddr():
        A(f"""
        v_lshrrev_b32 v3, 4, v{L}        ; q
        v_and_b32 v4, 15, v{L}           ; n
        v_xor_b32 v5, v3, v4
        v_lshlrev_b32 v5, 4, v5
        v_lshl_add_u32 v{vXr}, v4, 8, v5
        v_bfe_u32 v5, v{L}, 2, 2         ; r
        v_lshl_add_u32 v6, v3, 3, v5     ; 8q + r
        v_lshlrev_b32 v6, 6, v6
        v_and_b32 v7, 3, v{L}            ; c
        v_lshl_add_u32 v6, v7, 4, v6
        v_add_u32 v14, s{s_ring}, v6
        v_mov_b32 v12, {f32(-LOG2E):#x}
        v_mov_b32 v13, v12
        """)

    def consts():
        srd(A, sP, pWS, TABB + 4096, off=WS_P - 4096)
        srd(A, sE, pE, E * 8)
        A(f"""
        s_lshr_b32 s{s_nb1}, s{s_nb1}, 12
        s_min_u32 s{s_nb1}, s{s_nb1}, {N}
        s_sub_u32 s{s_nn}, s{s_nb1}, s{s_nb0}
        s_lshl_b32 s{s_nb4}, s{s_nb0}, 2
        s_add_u32 s{s_ringh}, s{s_ring}, 4096
        s_mov_b32 s{s_slow}, 0
        s_mov_b32 s{s_big}, 0
        s_lshl_b32 s{s_w2}, s{s_w}, 13
        s_add_u32 s{s_w2}, s{s_w2}, {WS_W2F}
        s_add_u32 s{s_w2+1}, s{s_w2}, 4096
        v_lshrrev_b32 v3, 4, v{L}        ; q
        v_bfe_u32 v5, v{L}, 2, 2         ; r
        v_and_b32 v7, 3, v{L}            ; c
        v_xor_b32 v9, v7, v3
        v_lshlrev_b32 v9, 4, v9
        s_lshl_b32 s3, s{s_w}, 6
        s_add_u32 s{s_x}, s3, 1024
        v_add_u32 v{vK3}, s{s_x}, v9
        v_add_u32 v{vK2}, 1024, v{vK3}
        v_add_u32 v{vK1}, 2048, v{vK3}
        v_add_u32 v{vK0}, 3072, v{vK3}
        v_lshrrev_b32 v1, 5, v{L}        ; h
        v_mul_u32_u24 v5, {QS}, v5
        v_and_b32 v3, 1, v3
        v_lshl_add_u32 v5, v3, 5, v5
        v_lshl_add_u32 v5, v7, 3, v5
        s_add_u32 s3, s3, {L_WE}
        v_add_u32 v5, s3, v5
        v_mul_u32_u24 v6, {8*QS}, v1
        v_add_u32 v{vaB}, v5, v6
        v_mul_u32_u24 v{vBmul}, {QS//4}, v1
        v_and_b32 v3, 31, v{L}           ; m
        ; row m = 8j + 4h' + i holds member j of quad 4h' + i: slot in tile sigma(m) = j + 4i + 16h'
        v_lshrrev_b32 v9, 3, v3          ; j
        v_and_b32 v8, 3, v3              ; i
        v_lshl_add_u32 v9, v8, 2, v9
        v_and_b32 v8, 4, v3
        v_lshl_add_u32 v9, v8, 2, v9
        v_lshlrev_b32 v9, 4, v9
        v_mul_u32_u24 v8, {L_AQH - L_AQE}, v1
        v_add_u32 v9, v9, v8
        v_add_u32 v{vaAqe}, {L_AQE}, v9
        v_lshrrev_b32 v9, 2, v{L}        ; r
        v_and_b32 v8, 3, v9
        v_lshlrev_b32 v8, 2, v8
        v_lshrrev_b32 v11, 3, v9
        v_lshl_add_u32 v8, v11, 1, v8
        v_and_b32 v11, 4, v9
        v_lshl_add_u32 v8, v11, 2, v8
        v_lshlrev_b32 v8, 2, v8
        v_add_u32 v{vaList}, {L_LIST}, v8
        v_and_b32 v8, 7, v3              ; 4h' + i
        v_and_b32 v9, 8, v3
        v_lshl_add_u32 v8, v9, 1, v8
        v_lshrrev_b32 v9, 4, v3
        v_lshl_add_u32 v8, v9, 3, v8
        v_bfe_u32 v9, v8, 2, 2
        v_xor_b32 v9, v9, v1
        v_lshlrev_b32 v9, 4, v9
        v_lshl_add_u32 v9, v8, 6, v9
        v_add_u32 v{vaP0}, s{s_ring}, v9
        v_xor_b32 v{vaP1}, 32, v{vaP0}
        v_and_b32 v9, 1, v3
        v_lshlrev_b32 v9, 4, v9
        v_mov_b32 v8, 0x3f80
        v_lshlrev_b32 v9, v9, v8
        v_lshrrev_b32 v8, 1, v3
        v_lshlrev_b32 v11, 2, v1
        v_sub_u32 v8, v8, v11
        """)
        for x in range(4):
            A(f"v_cmp_eq_u32 s[{s_x}:{s_x+1}], {x}, v8\nv_cmp_eq_u32 vcc, {8+x}, v8\ns_nop 0")
            A(f"v_cndmask_b32 v{vSel0+x}, 0, v9, s[{s_x}:{s_x+1}]\nv_cndmask_b32 v{vSel1+x}, 0, v9, vcc")
        A(f"""
        v_mov_b32 v{vC}, {f32(2.0**-CEXP):#x}
        v_mov_b32 v{vC+1}, {f32(2.0**-CEXP):#x}
        v_mov_b32 v{vDeg}, 0
        v_mov_b32 v{vDum}, 0x80000000
        v_lshrrev_b32 v9, 3, v0
        v_mul_u32_u24 v{vChunk8}, {CHE*8}, v9
        v_lshlrev_b32 v{vW2a}, 4, v{L}
        v_lshlrev_b32 v9, 2, v{L}
        v_add_u32 v{vaCnt}, {L_CNT}, v9
        """)
        for r in range(16):
            A(f"v_mov_b32 v{vS0+r}, 0\nv_mov_b32 v{vS1+r}, 0")

    def bigcheck(n):
        A(f"v_max3_f32 v8, |v{vPA}|, |v{vPA+1}|, |v{vPA+2}|")
        for r in range(3, n - 1, 2):
            A(f"v_max3_f32 v8, |v{vPA+r}|, |v{vPA+r+1}|, v8")
        A(f"""
        v_max_f32 v8, |v{vPA+n-1}|, v8
        v_cmp_nge_f32 vcc, {f32(BND_PQ):#x}, v8
        s_or_b32 s3, vcc_lo, vcc_hi
        s_or_b32 s{s_big}, s{s_big}, s3
        """)

    def zerofill():
        A(f"""
        v_mov_b32 v40, 0
        v_mov_b32 v41, 0
        v_mov_b32 v42, 0
        v_mov_b32 v43, 0
        v_mov_b32 v44, {DUMMY}
        v_mov_b32 v45, {DUMMY}
        v_lshlrev_b32 v1, 3, v0
        v_add_u32 v1, {L_LIST}, v1
        ds_write_b64 v1, v[44:45]
        ds_write_b32 v{vaCnt}, v40
        ds_write_b32 v{vaCnt}, v40 offset:256
        v_lshlrev_b32 v1, 4, v0
        v_add_u32 v1, {L_AQE}, v1
        """)
        nz = ZERO_BYTES // 8192
        rem = ZERO_BYTES - nz * 8192
        for q in range(nz):
            A(f"ds_write_b128 v1, v[40:43] offset:{q*8192}")
        if rem:
            A(f"""
            v_cmp_gt_u32 vcc, {rem//16}, v0
            s_and_saveexec_b64 s[{s_x}:{s_x+1}], vcc
            ds_write_b128 v1, v[40:43] offset:{nz*8192}
            s_mov_b64 exec, s[{s_x}:{s_x+1}]
            """)

    def small():
        srd(A, sC, pB1, 512)
        A(f"""
        v_lshrrev_b32 v3, 4, v{L}
        v_lshlrev_b32 v4, 4, v3
        s_lshl_b32 s3, s{s_w}, 6
        buffer_load_dwordx4 {vr(vB1,4)}, v4, {S(sC)}, s3 offen
        v_lshlrev_b32 v5, 2, v0
        s_mov_b32 s3, {256*512}
        buffer_load_dword v{vWEr}, v5, {S(sB)}, s3 offen
        v_lshlrev_b32 v4, 3, v3
        s_mov_b32 s{sC}, s{pB2}
        s_mov_b32 s{sC+1}, s{pB2+1}
        s_mov_b32 s{sC+2}, 256
        s_lshl_b32 s3, s{s_w}, 5
        buffer_load_dwordx2 {vr(vB2,2)}, v4, {S(sC)}, s3 offen
        """)

    def eprefetch():
        A(f"""
        s_mul_i32 s3, s2, {E*8//256}
        v_lshlrev_b32 v3, 4, v0
        buffer_load_dwordx4 v[224:227], v3, {S(sE)}, s3 offen
        """)

    def f0load():
        A(f"buffer_load_dword v{vF0}, off, {S(sG)}, 0 offset:128 sc1")

    def spoll(tag, base, offreg, want, keep=None):
        A(f"""
        s_mov_b32 s{s_spin}, 0x40000
        M_sp{tag}:
        s_mov_b32 s{s_x+1}, 0
        s_atomic_add s{s_x+1}, s[{base}:{base+1}], {offreg} glc
        s_sub_u32 s{s_spin}, s{s_spin}, 1
        s_cbranch_scc1 M_spd{tag}
        s_waitcnt lgkmcnt(0)
        {f"s_mov_b32 s{keep}, s{s_x+1}" if keep else ""}
        {f"s_and_b32 s{s_x+1}, s{s_x+1}, 0xffff" if keep else ""}
        s_cmp_lg_u32 s{s_x+1}, {want}
        s_cbranch_scc1 M_sp{tag}
        M_spd{tag}:
        s_waitcnt lgkmcnt(0)
        """)

    def f0wait(tag):
        A(f"""
        v_readfirstlane_b32 s3, v{vF0}
        s_cmp_lg_u32 s3, 0
        s_cbranch_scc1 M_pfd{tag}
        """)
        spoll("f" + tag, pDBG, 128, 1)
        A(f"M_pfd{tag}:")

    def release(base):
        A(f"""
        v_lshlrev_b32 v8, 7, v{L}
        v_mov_b32 v9, 1
        s_mov_b32 s3, {base}
        s_mov_b64 exec, 0xffff
        buffer_atomic_add v9, v8, {S(sWS)}, s3 offen sc1
        s_mov_b64 exec, -1
        """)

    def rpoll(tag, base, want, keep=None):
        A(f"s_and_b32 s3, s2, 15\ns_lshl_b32 s3, s3, 7\ns_add_u32 s3, s3, {base}")
        spoll(tag, pWS, "s3", want, keep)

    srd(A, sWS, pWS, WS_END)
    A(f"""
    v_lshlrev_b32 v3, 7, v0
    s_cmp_eq_u32 s2, 0
    s_cselect_b32 s3, 48, 0
    v_cmp_gt_u32 vcc, s3, v0
    v_mov_b32 v4, 0x40000000
    v_mov_b32 v8, 0
    v_cndmask_b32 v3, v4, v3, vcc
    s_mul_i32 s3, s2, {CHE*4}
    buffer_store_dword v8, v3, {S(sWS)}, 0 offen {SC}
    """)
    srd(A, sC, pDST, CHE * 4, off="s3")
    srd(A, sD, pSRC, CHE * 4, off="s3")
    A(f"s_mov_b32 s{s_x+1}, 4096\ns_mov_b32 s{s_x+2}, 8192")
    vD, vS = 164, 169
    so = ["0", "0", f"s{s_x+1}", f"s{s_x+1}", f"s{s_x+2}"]
    for k in range(5):
        A(f"buffer_load_dword v{vD+k}, v2, {S(sC)}, {so[k]} offen offset:{(k & 1)*2048}")
    for k in range(5):
        A(f"buffer_load_dword v{vS+k}, v2, {S(sD)}, {so[k]} offen offset:{(k & 1)*2048}")
    srd(A, sC, pW2, 256 * 256)
    srd(A, sB, pW1, 260 * 512)
    A(f"""
    v_lshlrev_b32 v3, 4, v0
    v_add_u32 v15, {L_BT}, v3
    v_add_u32 v2, {L_BC}, v2
    v_mov_b32 v4, -1
    v_mov_b32 v5, -1
    v_mov_b32 v6, -1
    v_mov_b32 v7, -1
    """)
    for q in range(4):
        A(f"ds_write_b128 v15, v[4:7] offset:{q*8192}")
    A(f"""
    ds_write_b32 v2, v8
    v_mov_b32 v9, 1
    """)
    srd(A, sD, pX, N * 256)
    srd(A, sG, pDBG, 256)
    stamp(A, 1)
    A(f"""
    s_waitcnt lgkmcnt(0)
    s_barrier
    s_waitcnt vmcnt(5)
    """)
    vb, va, vk = 16, 21, 26
    for k in range(5):
        A(f"v_mul_u32_u24 v{vb+k}, 1677, v{vD+k}")
        A(f"v_lshrrev_b32 v{vb+k}, 16, v{vb+k}")
        A(f"v_lshlrev_b32 v{va+k}, 2, v{vb+k}")
        A(f"v_add_u32 v{va+k}, {L_BC}, v{va+k}")
        if k == 4:
            A(f"v_cmp_gt_u32 vcc, {CHE - 2048}, v0\ns_and_saveexec_b64 s[{s_x+2}:{s_x+3}], vcc")
        A(f"ds_add_rtn_u32 v{vk+k}, v{va+k}, v9")
    A(f"""
    s_mov_b64 s[{s_x+4}:{s_x+5}], exec
    s_or_b32 s3, s2, s{s_w}
    s_cbranch_scc1 M_nf0
    s_mov_b64 exec, 1
    buffer_store_dword v9, off, {S(sG)}, 0 offset:128 {SC}
    M_nf0:
    s_mov_b64 exec, -1
    s_lshl_b32 s3, s2, 8
    v_add_u32 v3, s3, v0
    v_bfe_u32 v4, v3, 8, 3           ; s
    v_lshlrev_b32 v4, 5, v4
    v_bfe_u32 v5, v3, 6, 1           ; ab
    v_lshl_add_u32 v4, v5, 4, v4
    v_bfe_u32 v5, v3, 1, 1           ; e>>2
    v_lshl_add_u32 v4, v5, 3, v4
    v_bfe_u32 v5, v3, 7, 1           ; h
    v_lshl_add_u32 v4, v5, 2, v4
    v_and_b32 v5, 1, v3
    v_lshl_add_u32 v4, v5, 1, v4     ; hidden
    v_lshlrev_b32 v4, 8, v4
    v_lshrrev_b32 v5, 11, v3         ; wo
    v_lshl_add_u32 v4, v5, 5, v4
    v_bfe_u32 v5, v3, 2, 4           ; m
    v_lshl_add_u32 v4, v5, 1, v4
    v_lshrrev_b32 v5, 8, v0
    v_lshl_or_b32 v4, v5, 30, v4
    v_lshlrev_b32 v3, 2, v3
    v_lshl_or_b32 v176, v5, 30, v3
    buffer_load_ushort v174, v4, {S(sC)}, 0 offen
    buffer_load_ushort v175, v4, {S(sC)}, 0 offen offset:256
    """)
    xdma(L_XQ, s_nb0)
    small()
    A("s_waitcnt vmcnt(7)")
    for k in range(5):
        A(f"""
        v_and_b32 v{vD+k}, 63, v{vD+k}
        v_lshl_or_b32 v{vS+k}, v{vD+k}, 14, v{vS+k}
        v_add_u32 v{vD+k}, {512*k}, v0
        v_lshl_or_b32 v{vS+k}, v{vD+k}, 20, v{vS+k}
        v_lshlrev_b32 v{va+k}, 7, v{vb+k}
        v_add_u32 v{va+k}, {L_BT}, v{va+k}
        """)
    for k in range(5):
        if k == 4:
            A(f"s_mov_b64 exec, s[{s_x+4}:{s_x+5}]")
        A(f"""
        s_waitcnt lgkmcnt({4-k})
        v_add_u32 v4, v{vk+k}, v{vb+k}
        v_and_b32 v4, 7, v4
        v_lshrrev_b32 v5, 3, v{vk+k}
        v_lshl_add_u32 v4, v4, 2, v5
        v_lshl_add_u32 v{va+k}, v4, 2, v{va+k}
        v_cmp_gt_u32 vcc, 32, v{vk+k}
        s_and_saveexec_b64 s[{s_x+6}:{s_x+7}], vcc
        ds_write_b32 v{va+k}, v{vS+k}
        s_mov_b64 exec, s[{s_x+6}:{s_x+7}]
        """)
    A(f"""
    s_mov_b64 exec, -1
    v_lshrrev_b32 v4, 3, v0
    v_lshlrev_b32 v5, 2, v4
    v_add_u32 v5, {L_BC}, v5
    v_and_b32 v6, 7, v0
    v_lshlrev_b32 v7, 13, v4
    v_lshl_add_u32 v7, v6, 4, v7
    s_lshl_b32 s3, s2, 7
    s_add_u32 s3, s3, {WS_SLOT}
    v_add_u32 v7, s3, v7
    v_cmp_eq_u32 s[{s_x+2}:{s_x+3}], 7, v6
    v_mov_b32 v8, -2
    s_mov_b32 s{s_x+4}, 0
    s_mov_b32 s{s_x+5}, {64*8192}
    s_mov_b32 s{s_x+6}, {128*8192}
    s_mov_b32 s{s_x+7}, {192*8192}
    s_waitcnt lgkmcnt(0)
    s_barrier
    """)
    stamp(A, 2)
    for q in range(4):
        A(f"ds_read_b128 {vr(16+4*q,4)}, v15 offset:{q*8192}")
        A(f"ds_read_b32 v{32+q}, v5 offset:{q*256}")
    A(f"s_mov_b32 s3, {WS_W2F}")
    for q in range(4):
        A(f"""
        s_waitcnt lgkmcnt({6-2*q})
        v_cmp_lt_u32 vcc, 32, v{32+q}
        s_and_b64 vcc, vcc, s[{s_x+2}:{s_x+3}]
        s_nop 1
        v_cndmask_b32 v{19+4*q}, v{19+4*q}, v8, vcc
        buffer_store_dwordx4 {vr(16+4*q,4)}, v7, {S(sWS)}, s{s_x+4+q} offen {SC}
        """)
    A(f"s_waitcnt vmcnt(9)\nv_lshl_or_b32 v174, v175, 16, v174\nbuffer_store_dword v174, v176, {S(sWS)}, s3 offen {SC}")
    stamp(A, 3)
    f0load()
    if "clate" not in OPT:
        gaddr()
        consts()
    A(f"""
    s_waitcnt vmcnt(0)
    s_barrier
    s_cmp_lg_u32 s{s_w}, 0
    s_cbranch_scc1 M_nlast2
    """)
    stamp(A, 16)
    if "direct" not in OPT:
        A(f"""
        s_and_b32 s3, s2, 1
        s_lshl_b32 s3, s3, 6
        s_mov_b32 s{s_x}, 1
        s_atomic_add s{s_x}, s[{pDBG}:{pDBG+1}], s3 glc
        """)
    f0wait("b")
    if "direct" not in OPT:
        A(f"""
        s_waitcnt lgkmcnt(0)
        s_and_b32 s3, s{s_x}, {NCH//2 - 1}
        s_cmp_lg_u32 s3, {NCH//2 - 1}
        s_cbranch_scc1 M_nlast
        """)
    if "bvrel" not in OPT or "direct" in OPT:
        A(f"s_mov_b32 s{s_one}, 1")
        for i in range(16):
            A(f"s_atomic_add s{s_one}, s[{pWS}:{pWS+1}], {WS_RB + 128*i}")
    else:
        release(WS_RB)
    A("M_nlast:")
    stamp(A, 17)
    A("M_nlast2:")
    if "clate" in OPT:
        gaddr()
        consts()
    srd(A, sA, pWS, 0)
    A(f"v_mov_b32 v{vPa}, 0")
    wdma(128 * 512)
    CPF = 1 if "cpf" in OPT else 0
    if CPF:
        A(f"""
        s_getpc_b64 s[{s_x+2}:{s_x+3}]
        s_and_b32 s3, s2, -8
        s_add_u32 s3, s3, s{s_w}
        s_mul_i32 s3, s3, CPF_STEP
        s_add_u32 s{s_x+2}, s{s_x+2}, s3
        s_addc_u32 s{s_x+3}, s{s_x+3}, 0
        v_lshlrev_b32 v4, 3, v{L}
        v_mov_b32 v5, s{s_x+3}
        v_add_co_u32 v4, vcc, s{s_x+2}, v4
        s_nop 1
        v_addc_co_u32 v5, vcc, 0, v5, vcc
        global_load_dwordx2 v[224:225], v[4:5], off
        M_cpf0:
        """)
    EPF = CPF + (3 if "epf" in OPT else 0)
    if "epf" in OPT:
        A(f"s_mul_i32 s3, s2, {CHE*8}")
        srd(A, sC, pE, CHE * 8, off="s3")
        A(f"v_lshlrev_b32 v3, 4, v0\ns_mov_b32 s3, 16384\ns_mov_b32 s{s_x+2}, 8192")
        A(f"buffer_load_dwordx4 v[224:227], v3, {S(sC)}, 0 offen")
        A(f"buffer_load_dwordx4 v[224:227], v3, {S(sC)}, s{s_x+2} offen")
        A(f"buffer_load_dwordx4 v[224:227], v3, {S(sC)}, s3 offen")
    zerofill()
    A("s_branch M_join")
    A("M_pwg:")
    srd(A, sD, pX, N * 256)
    srd(A, sB, pW1, 260 * 512)
    A(f"s_sub_u32 s{s_t}, s2, {NCH}\ns_mul_i32 s{s_t}, s{s_t}, {PROWS}")
    xdma(L_XP, s_t)
    A(f"""
    s_and_b32 s3, s2, -8
    s_add_u32 s3, s3, s{s_w}
    s_and_b32 s3, s3, 127
    s_lshl_b32 s3, s3, 10
    v_lshlrev_b32 v3, 4, v{L}
    buffer_load_dwordx4 v[16:19], v3, {S(sB)}, s3 offen
    """)
    srd(A, sWS, pWS, WS_END)
    srd(A, sG, pDBG, 256)
    consts()
    zerofill()
    wdma(0)
    stamp(A, 1)
    gaddr()
    A(f"""
    v_add_u32 v15, {L_XP}, v{vXr}
    v_add_u32 v11, s{s_t}, v4
    v_lshlrev_b32 v11, 9, v11
    v_lshl_add_u32 v11, v3, 4, v11
    s_lshl_b32 s3, s{s_w}, 6
    v_add_u32 v{vPa}, s3, v11
    s_add_u32 s3, s{s_t}, {PROWS}
    s_min_u32 s3, s3, {N}
    s_lshl_b32 s3, s3, 9
    """)
    srd(A, sA, pWS, "s3", off=WS_P)
    A(f"""
    s_waitcnt vmcnt(8)
    s_barrier
    """)
    stamp(A, 2)

    def pstore(mt):
        A(f"s_mov_b32 s3, {mt*8192}\nbuffer_store_dwordx4 {vr(vPO+4*mt,4)}, v{vPa}, {S(sA)}, s3 offen {SC}")

    def xrd(s):
        if s:
            A(f"v_xor_b32 v4, {s << 6:#x}, v15")
        for mt in range(4):
            A(f"ds_read_b128 {vr(vXP + 16*mt + 4*s, 4)}, v{4 if s else 15} offset:{mt*4096}")
    gemm_part(A, None, 4, vXP, vm=[6, 4, 2, 0], xrd=xrd)
    stamp(A, 18)
    f0load()
    xdma(L_XQ, s_nb0)
    small()
    if "w1bfirst" in OPT:
        wdma(128 * 512)
    gemm_pack(A, 4, lambda mt: pstore(mt) if mt in EARLY else None)
    stamp(A, 3)
    if "w1bfirst" not in OPT:
        wdma(128 * 512)
    bigcheck(32)
    A(f"s_waitcnt vmcnt({8 + len(EARLY)})")
    A("M_join:")
    stamp(A, 4)
    A(f"""
    s_mov_b32 s{s_x+2}, {QS - 512}
    v_lshlrev_b32 v8, 16, v{vWEr}
    v_and_b32 v9, 0xffff0000, v{vWEr}
    v_mul_f32 v8, v12, v8
    v_mul_f32 v9, v12, v9
    v_cvt_pk_bf16_f32 v10, v8, v9
    v_lshrrev_b32 v4, 7, v0          ; f
    v_lshlrev_b32 v5, 16, v10
    v_and_b32 v6, 0xffff0000, v10
    v_sub_f32 v8, v8, v5
    v_sub_f32 v9, v9, v6
    v_cvt_pk_bf16_f32 v11, v8, v9
    v_lshlrev_b32 v5, 2, v0
    v_mad_u32_u24 v5, v4, s{s_x+2}, v5
    v_add_u32 v5, {L_WE}, v5
    ds_write_b32 v5, v10
    ds_write_b32 v5, v11 offset:{4*QS}
    """)
    for x in range(4):
        A(f"v_lshlrev_b32 v{vB1+4+2*x}, 16, v{vB1+x}\nv_and_b32 v{vB1+5+2*x}, 0xffff0000, v{vB1+x}")
    A(f"""
    v_and_b32 v8, 15, v{L}               ; n
    v_lshrrev_b32 v9, 4, v{L}            ; q
    v_bfe_u32 v4, v8, 1, 2
    v_xor_b32 v4, v4, v9
    v_lshlrev_b32 v4, 4, v4
    v_lshl_add_u32 v{vSr}, v8, 6, v4
    v_add_u32 v4, s{s_nb0}, v8
    v_lshlrev_b32 v4, 8, v4
    v_lshl_add_u32 v4, v9, 3, v4
    s_lshl_b32 s3, s{s_w}, 5
    v_add_u32 v{vOa}, s3, v4
    v_and_b32 v8, 31, v{L}
    v_lshrrev_b32 v9, 5, v{L}
    v_lshlrev_b32 v9, 1, v9
    v_bfe_u32 v4, v8, 1, 2
    v_xor_b32 v4, v4, v9
    v_lshlrev_b32 v4, 4, v4
    v_lshl_add_u32 v4, v8, 6, v4
    v_add_u32 v{vSa}, s{s_ring}, v4
    v_xor_b32 v{vSb}, 16, v{vSa}
    """)
    A(f"""
    s_cmp_lg_u32 s{s_w}, 0
    s_cbranch_scc1 M_w1d
    """)
    f0wait("a")
    rpoll("a", WS_RB, NCH if "direct" in OPT else 2)
    A("M_w1d:")
    stamp(A, 5)
    A(f"""
    v_add_u32 v15, {L_XQ}, v{vXr}
    s_lshl_b32 s{s_x}, s2, 13
    s_add_u32 s{s_x}, s{s_x}, {WS_SLOT}
    v_lshlrev_b32 v1, 4, v0
    s_waitcnt lgkmcnt(0)
    s_barrier
    buffer_load_dwordx4 v[4:7], v1, {S(sWS)}, s{s_x} offen {SC}
    """)
    if "nosb" not in OPT:
        A("s_barrier")
    for mt in range(4):
        if mt not in EARLY:
            pstore(mt)
    NL = 4 - len(EARLY)
    A(f"""
    s_cmp_lg_u32 s{s_big}, 0
    s_cbranch_scc1 M_pbig
    M_pbigr:
    """)
    stamp(A, 6)
    for s in range(4):
        if s:
            A(f"v_xor_b32 v8, {s << 6:#x}, v15")
        for mt in range(3):
            A(f"ds_read_b128 {vr(vXF + 16*mt + 4*s, 4)}, v{8 if s else 15} offset:{mt*4096}")
    A(f"""
    s_cmp_ge_u32 s2, {NCH}
    s_cbranch_scc1 M_tk1a
    s_waitcnt vmcnt({1 + NL + EPF}) lgkmcnt(0)
    s_branch M_tk1
    M_tk1a:
    s_waitcnt vmcnt({5 if "w1bfirst" in OPT else 1 + NL}) lgkmcnt(0)
    M_tk1:
    """)
    gemm_part(A, vB1 + 4, 3, vXF)
    A(f"""
    v_and_b32 v8, 15, v{L}           ; n
    v_lshrrev_b32 v9, 4, v{L}        ; q
    v_lshlrev_b32 v9, 4, v9
    v_mul_u32_u24 v8, {QS}, v8
    s_lshl_b32 s3, s{s_w}, 6
    s_add_u32 s3, s3, {L_Q}
    v_add3_u32 v{vQa}, v8, v9, s3
    """)
    gemm_pack(A, 3, lambda mt: None, vPO=vQO)
    bigcheck(24)
    stamp(A, 7)
    A(f"s_waitcnt vmcnt({NL})\nM_recs:")
    stamp(A, 8)
    vD4, vRk, vEo, vEv, vBs, vTa = 16, 20, 24, 28, 36, 40
    A(f"s_mov_b32 s{s_x}, 0xfff00000\nv_mov_b32 v1, 1")
    for j in range(4):
        A(f"v_cmp_gt_u32 s[{sM+2*j}:{sM+2*j+1}], s{s_x}, v{4+j}")
    OO = [2, 10, 172]

    def bias_term(A):
        A(f"""
        v_and_b32 v8, 15, v{L}
        v_lshlrev_b32 v9, 2, v8
        ds_bpermute_b32 v6, v9, v{vDeg}
        ds_bpermute_b32 v7, v9, v{vDeg} offset:64
        ds_bpermute_b32 v14, v9, v{vDeg} offset:128
        v_lshlrev_b32 v116, 16, v{vB2}
        v_and_b32 v117, 0xffff0000, v{vB2}
        v_lshlrev_b32 v118, 16, v{vB2+1}
        v_and_b32 v119, 0xffff0000, v{vB2+1}
        s_lshl_b32 s3, s{s_nb1}, 8
        """)
        srd(A, sA, pOUT, "s3")
        A("s_waitcnt lgkmcnt(0)")
        for r in (6, 7, 14):
            A(f"v_cvt_f32_u32 v{r}, v{r}")
        for mt in range(3):
            for i in (0, 2):
                A(f"v_pk_mul_f32 {vr(OO[mt]+i,2)}, {vr(116+i,2)}, {vr(14 if mt == 2 else 6,2)} op_sel:[0,{mt & 1}] op_sel_hi:[1,{mt & 1}]")

    def egather():
        for j in range(4):
            A(f"""
            s_mov_b64 exec, s[{sM+2*j}:{sM+2*j+1}]
            buffer_load_dwordx2 {vr(vEv+2*j,2)}, v{vEo+j}, {S(sE)}, 0 offen
            """)
        A("s_mov_b64 exec, -1")

    for j in range(4):
        A(f"""
        v_lshrrev_b32 v{vEo+j}, 20, v{4+j}
        v_lshl_add_u32 v{vEo+j}, v{vEo+j}, 3, v{vChunk8}
        """)
    for j in range(4):
        A(f"""
        s_mov_b64 exec, s[{sM+2*j}:{sM+2*j+1}]
        s_cbranch_execz M_r1_{j}
        v_lshrrev_b32 v{vD4+j}, 12, v{4+j}
        v_subrev_u32 v{vD4+j}, s{s_nb4}, v{vD4+j}
        v_and_b32 v{vD4+j}, 0xfc, v{vD4+j}
        v_add_u32 v8, {L_CNT}, v{vD4+j}
        ds_add_rtn_u32 v{vRk+j}, v8, v1
        v_and_b32 v{4+j}, 0x3fff, v{4+j}
        M_r1_{j}:
        """)
        if j == 2:
            A(f"""
            s_mov_b64 exec, -1
            v_cmp_eq_u32 vcc, -2, v7
            s_and_b64 exec, exec, vcc
            s_cbranch_execz M_nomark
            v_mov_b32 v8, {L_CNT + 63*4}
            v_mov_b32 v9, 0x10000
            ds_add_u32 v8, v9
            M_nomark:
            """)
    A(f"""
    s_mov_b64 exec, -1
    s_mov_b32 s{s_alt}, 0
    s_mov_b32 s{s_sw}, 0
    v_lshlrev_b32 v9, 3, v{L}
    v_add_u32 v{vaAgg}, {L_AGG}, v9
    v_lshlrev_b32 v11, 2, v{L}
    v_add_u32 v11, 32, v11
    s_waitcnt vmcnt(0) lgkmcnt(0)
    s_barrier
    """)
    stamp(A, 21)
    A(f"""
    ds_read_b32 v8, v{vaCnt}
    v_mov_b32 v57, 0
    s_cmp_lg_u32 s{s_w}, 1
    s_cbranch_scc1 M_tk0
    s_cmp_lg_u32 s{s_slow}, 0
    s_cbranch_scc1 M_tk0
    s_and_b32 s3, s2, 15
    s_lshl_b32 s3, s3, 7
    v_mov_b32 v57, 1
    s_mov_b64 exec, 1
    buffer_atomic_add v57, off, {S(sWS)}, s3 sc0 sc1
    s_mov_b64 exec, -1
    M_tk0:
    s_cmp_lg_u32 s{s_slow}, 0
    s_cbranch_scc1 M_noq
    """)
    for mt in range(3):
        A(f"ds_write_b128 v{vQa}, {vr(vQO+4*mt,4)} offset:{mt*16*QS}")
    A("M_noq:")
    for r in range(16):
        A(f"v_mov_b32 v{vACC+r}, 0")
    A(f"""
    s_waitcnt lgkmcnt(3)
    s_cmp_eq_u32 s{s_slow}, 0
    s_cbranch_scc1 M_noq2
    s_waitcnt lgkmcnt(0)
    M_noq2:
    v_add_u32 v9, 3, v8
    v_and_b32 v9, -4, v9
    v_mov_b32 v10, v9
    v_mov_b32 v{vH}, 0
    v_mov_b32 v{vH+1}, 0
    v_add_u32_dpp v10, v10, v10 row_shr:1 row_mask:0xf bank_mask:0xf bound_ctrl:0
    v_mov_b32 v{vH+2}, 0
    v_mov_b32 v{vH+3}, 0
    v_add_u32_dpp v10, v10, v10 row_shr:2 row_mask:0xf bank_mask:0xf bound_ctrl:0
    v_mov_b32 v{vAgg}, 0
    v_mov_b32 v{vAgg+1}, 0
    v_add_u32_dpp v10, v10, v10 row_shr:4 row_mask:0xf bank_mask:0xf bound_ctrl:0
    s_nop 1
    v_add_u32_dpp v10, v10, v10 row_shr:8 row_mask:0xf bank_mask:0xf bound_ctrl:0
    s_nop 1
    v_add_u32_dpp v10, v10, v10 row_bcast:15 row_mask:0xa bank_mask:0xf
    s_nop 1
    v_add_u32_dpp v10, v10, v10 row_bcast:31 row_mask:0xc bank_mask:0xf
    s_nop 0
    v_sub_u32 v{vBase}, v10, v9
    v_readlane_b32 s{s_tot}, v10, 63
    s_cmp_lg_u32 s{s_w}, 1
    s_cbranch_scc1 M_derive
    s_waitcnt vmcnt(0)
    v_readfirstlane_b32 s3, v57
    s_cmp_lg_u32 s3, 15
    s_cbranch_scc1 M_derive
    """)
    if "vrel" not in OPT:
        A(f"s_mov_b32 s{s_one}, 1")
        for i in range(16):
            A(f"s_atomic_add s{s_one}, s[{pWS}:{pWS+1}], {WS_RP + 128*i}")
    else:
        A(f"""
        v_lshlrev_b32 v12, 7, v{L}
        v_mov_b32 v13, 1
        s_mov_b32 s3, {WS_RP}
        s_mov_b64 exec, 0xffff
        buffer_atomic_add v13, v12, {S(sWS)}, s3 offen sc1
        s_mov_b64 exec, -1
        """)
    A(f"""
    M_derive:
    """)
    for j in range(4):
        A(f"ds_bpermute_b32 v{vBs+j}, v{vD4+j}, v{vBase}")
    A(f"""
    ds_bpermute_b32 v12, v11, v{vBase}
    s_cmp_gt_u32 s{s_tot}, {CAP_T*32}
    s_cbranch_scc1 M_goslow
    v_readlane_b32 s{s_T0p}, v{vBase}, 32
    s_add_u32 s{s_T}, s{s_tot}, 31
    s_lshr_b32 s{s_T}, s{s_T}, 5
    v_add3_u32 v13, v{vBase}, v9, 63
    v_and_b32 v13, 0xffffffc0, v13         ; end of the tile pair that holds node i's last slot
    s_waitcnt lgkmcnt(0)
    v_cmp_gt_u32 vcc, v13, v12
    v_cmp_ne_u32 s[{s_x}:{s_x+1}], s{s_tot}, v12
    s_andn2_b32 s{s_x+1}, vcc_lo, s{s_alt}
    s_and_b32 s{s_x}, s{s_x}, s{s_x+1}
    s_cbranch_scc1 M_align
    """)
    stamp(A, 22)
    A(f"""
    v_mov_b32 v1, 0x3f80
    """)
    for j in range(4):
        A(f"""
        s_mov_b64 exec, s[{sM+2*j}:{sM+2*j+1}]
        s_cbranch_execz M_r2_{j}
        v_add_u32 v{vRk+j}, v{vRk+j}, v{vBs+j}
        v_lshlrev_b32 v9, 2, v{vRk+j}
        v_add_u32 v9, {L_LIST}, v9
        ds_write_b32 v9, v{4+j}
        v_and_b32 v9, 0x80, v{vD4+j}
        v_add_u32 v9, v9, v{vD4+j}
        v_bfe_u32 v10, v{vRk+j}, 2, 2
        v_add_lshl_u32 v9, v9, v10, 1
        v_lshrrev_b32 v10, 4, v{vRk+j}
        v_lshl_add_u32 v9, v10, 8, v9
        v_add_u32 v9, {L_AGG}, v9
        ds_write_b16 v9, v1
        v_lshrrev_b32 v9, 4, v{vRk+j}
        v_and_b32 v10, 63, v{vRk+j}
        v_and_b32 v9, -4, v9
        v_cmp_eq_u32 vcc, 0, v10
        v_add_u32 v{vTa+j}, {L_N0}, v9
        s_and_b64 exec, exec, vcc
        ds_write_b32 v{vTa+j}, v{vD4+j}
        M_r2_{j}:
        """)
    if "elate" in OPT:
        A("s_mov_b64 exec, -1")
    else:
        egather()
    A(f"""
    s_cmp_lt_u32 s{s_T0p}, s{s_tot}
    s_cselect_b32 s{s_x}, 5, 31
    s_cselect_b32 s{s_x+1}, 1, 0x7fffffff
    s_lshr_b32 s{s_T0p}, s{s_T0p}, s{s_x}
    s_add_u32 s{s_T0p}, s{s_T0p}, s{s_x+1}
    v_add_u32 v{vDeg}, v{vDeg}, v8
    s_mul_i32 s{s_pri}, s{s_T}, {PRIO_NUM}
    s_lshr_b32 s{s_pri}, s{s_pri}, 5
    s_cmp_lt_u32 s{s_w}, 4
    s_cselect_b32 s{s_pri}, 0x7fffffff, s{s_pri}
    s_sub_u32 s{s_next}, s{s_T}, 1
    s_min_i32 s{s_next}, s{s_next}, s{s_T0p}
    s_min_i32 s{s_next}, s{s_next}, s{s_pri}
    v_mov_b32 v1, 0x3f80
    """)
    A(f"v_mov_b32 v56, {L_N0}")
    stamp(A, 23)
    A(f"""
    v_mov_b32 v{vAgg+2}, 0
    v_mov_b32 v{vAgg+3}, 0
    s_waitcnt lgkmcnt(0)
    s_barrier
    """)
    stamp(A, 9)
    PSC = "sc1" if "psc1" in OPT else ("nt" if "pnt" in OPT else ("sc0 sc1" if "psc01" in OPT else ""))

    def dma(t, jj):
        r = vOff + 2 * t + jj if t < CAP_T else vDum
        fl = "nt" if t >= NT0 else PSC
        return f"buffer_load_dwordx4 v{r}, {S(sP)}, 0 offen offset:{(t & 1)*2048 + jj*1024} {fl} lds"

    def m0set(t):
        return f"s_mov_b32 m0, s{s_ring if (t % 4) < 2 else s_ringh}"

    def offs(lo, hi, after=None, A=A):
        for t0 in range(lo, hi, 8):
            ts = range(t0, min(t0 + 8, hi))
            for t in ts:
                A(f"ds_read_b64 {vr(vOff+2*t,2)}, v{vaList} offset:{t*128}")
            for i, t in enumerate(ts):
                A(f"s_waitcnt lgkmcnt({len(ts)-1-i})")
                for jj in range(2):
                    A(f"v_lshl_add_u32 v{vOff+2*t+jj}, v{vOff+2*t+jj}, 9, v{vK0 + 2*(t & 1) + jj}")
                if after:
                    after(t)

    for j in range(4):
        A(f"ds_read_b32 v{vBs+j}, v{vTa+j}")
    for g in range(4):
        A(f"ds_read_b128 {vr(vBa+4*g,4)}, v56 offset:{16*g}")
    offs(0, 6)
    A(f"""
    s_mov_b32 s{s_f0}, 16
    s_cmp_lg_u32 s{s_w}, 0
    s_cbranch_scc1 M_nolook
    s_and_b32 s3, s2, 15
    s_lshl_b32 s3, s3, 7
    s_add_u32 s3, s3, {WS_RP}
    s_mov_b32 s{s_f0}, 0
    s_atomic_add s{s_f0}, s[{pWS}:{pWS+1}], s3 glc
    M_nolook:
    """)
    stamp(A, 19)
    A("s_waitcnt vmcnt(0)")
    stamp(A, 20)
    A("v_mov_b32 v59, 0")
    for j in range(4):
        A(f"""
        s_mov_b64 exec, s[{sM+2*j}:{sM+2*j+1}]
        s_cbranch_execz M_r3_{j}
        v_lshlrev_b32 v8, 4, v{vRk+j}
        v_add_u32 v8, {L_AQE}, v8
        ds_write2_b64 v8, {vr(vEv+2*j,2)}, {vr(vEv+2*j,2)} offset0:0 offset1:1
        v_sub_u32 v9, v{vD4+j}, v{vBs+j}
        v_lshrrev_b32 v9, 1, v9
        v_add_u32 v9, v9, v8
        ds_write_b16 v9, v1 offset:{L_AQH - L_AQE}
        v_and_b32 v8, 0x7fff7fff, v{vEv+2*j}
        v_and_b32 v9, 0x7fff7fff, v{vEv+2*j+1}
        v_pk_max_u16 v8, v8, v9
        v_pk_max_u16 v59, v59, v8
        M_r3_{j}:
        """)
    A("s_mov_b64 exec, -1")
    if "nodefer" in OPT:
        A("s_waitcnt lgkmcnt(0)")
        offs(6, CAP_T)
        for t in range(CAP_T):
            A(f"v_mad_u32_u24 v{vBa+t}, v{vBa+t}, v{vBmul}, v{vaB}")
    A(f"""
    v_lshlrev_b32 v8, 16, v59
    v_and_b32 v59, 0xffff0000, v59
    v_max_u32 v59, v59, v8
    {m0set(0)}
    v_mov_b32 v9, {L_MX}
    v_max_u32_dpp v59, v59, v59 row_shr:1 row_mask:0xf bank_mask:0xf bound_ctrl:0
    s_nop 1
    v_max_u32_dpp v59, v59, v59 row_shr:2 row_mask:0xf bank_mask:0xf bound_ctrl:0
    s_nop 1
    v_max_u32_dpp v59, v59, v59 row_shr:4 row_mask:0xf bank_mask:0xf bound_ctrl:0
    s_nop 1
    v_max_u32_dpp v59, v59, v59 row_shr:8 row_mask:0xf bank_mask:0xf bound_ctrl:0
    s_waitcnt lgkmcnt(0)
    s_and_b32 s3, s{s_f0}, 0xffff
    s_cmp_eq_u32 s3, 16
    s_cbranch_scc1 M_w2
    """)
    rpoll("b", WS_RP, 16, keep=s_f0)
    A(f"""
    M_w2:
    s_cmp_lt_u32 s{s_f0}, 0x10000
    s_cbranch_scc1 M_w3
    v_mov_b32 v59, 0x7f800000
    M_w3:
    s_mov_b32 exec_lo, 0x80008000
    s_mov_b32 exec_hi, 0x80008000
    ds_max_u32 v9, v59
    s_mov_b64 exec, -1
    s_waitcnt lgkmcnt(0)
    s_barrier
    """)
    stamp(A, 10)
    A(f"""
    s_cmp_eq_u32 s{s_T}, 0
    s_cbranch_scc1 M_empty
    {dma(0, 0)}
    {dma(0, 1)}
    """)
    stamp(A, 11)

    def bread(t):
        r = vBa + min(t, CAP_T - 1) // 2
        if t & 1:
            return []
        return [f"ds_read_b64_tr_b16 {vr(vBq,2)}, v{r}", f"ds_read_b64_tr_b16 {vr(vBq+2,2)}, v{r} offset:{4*QS}"]

    def w2load(s):
        return f"buffer_load_dwordx4 {vr(vW2+4*s,4)}, v{vW2a}, {S(sWS)}, s{s_w2 + (s >> 2)} offen offset:{(s & 3)*1024} sc1"

    A(f"v_mov_b32 v9, {L_MX}\nds_read_b32 v59, v9")
    for t in range(6, 16):
        A(f"ds_read_b64 {vr(vOff+2*t,2)}, v{vaList} offset:{t*128}")
    for t in range(CAP_T // 2):
        A(f"v_mad_u32_u24 v{vBa+t}, v{vBa+t}, v{vBmul}, v{vaB}")
    A("\n".join(bread(0)))
    A(f"""
    ds_read_b128 {vr(vAqe,4)}, v{vaAqe}
    s_barrier
    {dma(1, 0)}
    {dma(1, 1)}
    {m0set(2)}
    s_waitcnt lgkmcnt(3)
    """)
    for t in range(16, CAP_T):
        A(f"ds_read_b64 {vr(vOff+2*t,2)}, v{vaList} offset:{t*128}")

    def offadd(lo, hi):
        for t in range(lo, hi):
            for jj in range(2):
                A(f"v_lshl_add_u32 v{vOff+2*t+jj}, v{vOff+2*t+jj}, 9, v{vK0 + 2*(t & 1) + jj}")
    offadd(6, 16)
    A("s_waitcnt lgkmcnt(0)")
    offadd(16, CAP_T)
    A(f"""
    s_cmp_lt_u32 s{s_w}, 4
    s_cbranch_scc1 M_nopri
    s_setprio 1
    M_nopri:
    v_lshlrev_b32 v8, 16, v{vBq}
    v_and_b32 v9, 0xffff0000, v{vBq}
    v_add_f32 v8, |v8|, |v9|
    v_lshlrev_b32 v9, 16, v{vBq+1}
    v_add_f32 v8, v8, |v9|
    v_and_b32 v9, 0xffff0000, v{vBq+1}
    v_add_f32 v8, v8, |v9|
    v_mul_f32 v8, v8, v59
    v_cmp_nge_f32 vcc, {f32(BND_E / 1.01):#x}, v8
    s_or_b32 s3, s{s_big}, s{s_slow}
    s_or_b32 s{s_K}, s3, vcc_lo
    s_cmp_eq_u32 s{s_K}, 0
    s_mov_b32 s{s_K}, {f32(-math.log(2.0) * 2.0 ** -CEXP):#x}
    s_cselect_b32 s3, 1.0, {f32(2.0**-CEXP):#x}
    s_cselect_b32 s{s_K}, {f32(-math.log(2.0)):#x}, s{s_K}
    v_mov_b32 v{vC}, s3
    v_mov_b32 v{vC+1}, s3
    """)
    mfma32(A, vU[0], vAqe, vBq, None)
    A("\n".join(bread(1)))
    A(f"""
    ds_read_b128 {vr(vAqe,4)}, v{vaAqe} offset:512
    s_barrier
    {dma(2, 0)}
    {dma(2, 1)}
    s_waitcnt vmcnt(4)
    ds_read_b128 {vr(vPf0,4)}, v{vaP0}
    ds_read_b128 {vr(vPf1,4)}, v{vaP1}
    s_waitcnt lgkmcnt(1)
    """)
    mfma32(A, vU[0], vPf0, vSel0, vU[0])
    A("s_waitcnt lgkmcnt(0)")
    mfma32(A, vU[0], vPf1, vSel1, vU[0])
    A(f"s_cmp_eq_u32 s3, 1.0\ns_nop 9\ns_cbranch_scc0 M_safe")
    stamp(A, 12)

    def half2(U, par, fast):
        if fast:
            rc = [f"v_rcp_f32 v{vT+i}, v{vT+i}" for i in range(4)]
            rest = [f"v_pk_mul_f32 {vr(U+i,2)}, {vr(U+i,2)}, {vr(vT+i,2)}" for i in (0, 2)]
        else:
            rc = [f"v_rcp_f32 v{vT+i}, v{vT+i}" for i in (0, 1, 2, 3, 8, 9, 10, 11)]
            rest = [f"v_pk_mul_f32 {vr(U+i,2)}, {vr(U+i,2)}, {vr(vT+i,2)}" for i in (0, 2)]
            rest += [f"v_pk_fma_f32 {vr(U+i,2)}, {vr(U+8+i,2)}, {vr(vT+8+i,2)}, {vr(U+i,2)}" for i in (0, 2)]
        rest += [f"v_cvt_pk_bf16_f32 v{vH+2*par+i//2}, v{U+i}, v{U+i+1}" for i in (0, 2)]
        return rc, rest

    def second_half(B, U, par, fast, aggread):
        rc, rest = half2(U, par, fast)
        if par == 0:
            mfma32(B, vACC, vH, vAgg, vACC)
        B("\n".join(rc + ([aggread] if aggread else []) + rest))

    vmq = ["d"] * (2 * (D + 1))

    def vm_need(t):
        seen = 0
        for i, k in enumerate(vmq):
            if k == "d":
                seen += 1
                if seen == 2 * (t + 1):
                    return len(vmq) - 1 - i

    ool = Asm()

    def emit_loop(A, md, fast):
        del vmq[2 * (D + 1):]
        A(".p2align 3")
        for t in range(CAP_T):
            U, Un = vU[t & 1], vU[(t + 1) & 1]
            tn = t + 1 + D
            s2 = ((t + 2) % D) * 2048
            ex = [f"v_exp_f32 v{vT+i}, v{U+i}" for i in range(16)]
            if "itst" in OPT:
                A(f"s_memtime s[100:101]")
            late_vm = t < NSHORT + 2
            FIRST = t == 0
            SHORT = t < NSHORT
            A(f"s_waitcnt lgkmcnt(0)" if late_vm else f"s_waitcnt vmcnt({vm_need(t+2)}) lgkmcnt(0)")
            if "itst" in OPT:
                A(f"s_waitcnt lgkmcnt(0)\nv_writelane_b32 v{vSt}, s100, {16+t}")
            def P(op, d, a, b, c=None, cl=""):
                return [f"v_pk_{op}_f32 {vr(d+i,2)}, {vr(a+i,2)}, {vr(b if b == vC else b+i,2)}"
                        + (f", {vr(c if c == vC else c+i,2)}" if c is not None else "") + cl for i in (0, 2)]
            if fast:
                pk = P("fma", U+4, U+4, vT, U+4) + P("add", vT+4, vT+4, vC) + P("fma", U+12, U+12, vT+8, U+12) + P("add", vT+12, vT+12, vC)
                pk += P("fma", U, U, vT+4, U+4) + P("fma", vT, vT, vT+4, vT+4)
                pk += P("fma", U+8, U+8, vT+12, U+12) + P("fma", vT+8, vT+8, vT+12, vT+12)
                pk += P("mul", U+8, U+8, vT) + P("fma", U, U, vT+8, U+8) + P("mul", vT, vT, vT+8)
                P_VM, P_LATE, P_F, P_CMP = 10, 13, 15, 18
            else:
                pk = []
                for g in (0, 4, 8, 12):
                    pk += P("fma", vT+g, vT+g, vC, vC, " clamp")
                for g in (0, 8):
                    pk += P("mul", U+g, U+g, vT+g+4) + P("fma", U+g, U+g+4, vT+g, U+g) + P("mul", vT+g, vT+g, vT+g+4)
                P_VM, P_LATE, P_F, P_CMP = 9, 12, 14, 16
            g_ds = ([m0set(tn)] if tn % 2 == 0 else []) + [f"ds_read_b128 {vr(vAqe,4)}, v{vaAqe} offset:{(t+2)*512}"] + bread(t + 2)
            if t & 1:
                g_ds.append(f"ds_read2st64_b64 {vr(vAgg,4)}, v{vaAgg} offset0:{t-1} offset1:{t}")
            g_p = [f"ds_read_b128 {vr(vPf0,4)}, v{vaP0} offset:{s2}", f"ds_read_b128 {vr(vPf1,4)}, v{vaP1} offset:{s2}"]
            g_vm = [dma(tn, 0), dma(tn, 1)]
            s1 = ((t + 1) % D) * 2048
            mid = []
            if SHORT:
                groups = {P_F: [f"s_waitcnt vmcnt({vm_need(t+1) - (2 if FIRST else 0)})",
                                f"ds_read_b128 {vr(vPf0,4)}, v{vaP0} offset:{s1}", f"ds_read_b128 {vr(vPf1,4)}, v{vaP1} offset:{s1}"]
                          + ([dma(D, 0), dma(D, 1)] if FIRST else [])}
                tail0 = g_vm + ([f"s_waitcnt vmcnt({vm_need(t+2) + 2})"] + g_p if t == NSHORT - 1 else [])
                mid = g_ds
            elif late_vm:
                groups = {P_LATE: [f"s_waitcnt vmcnt({vm_need(t+2)})"] + g_p + g_vm}
                mid = g_ds
            else:
                groups = {6: g_vm}
                mid = g_ds + g_p
            mfma32(A, Un, vAqe, vBq, None)
            if SHORT:
                A("\n".join(ex[0:13] + mid + ex[13:16] + ([dma(3, 0), dma(3, 1), m0set(D)] if FIRST else [])))
            else:
                A("\n".join(ex[0:4]))
                mfma32(A, Un, vPf0, vSel0, Un)
                A("\n".join(ex[4:8]))
                mfma32(A, Un, vPf1, vSel1, Un)
                A("\n".join(ex[8:13] + mid + ex[13:16]))
            vmq.extend(["d", "d"])
            if W2T0 <= t < W2T0 + 8:
                g_vm.append(w2load(t - W2T0))
                vmq.append("w")
            groups[P_CMP] = [f"s_cmp_le_i32 s{s_next}, {t}"]
            for i, x in enumerate(pk):
                A(x)
                if FIRST and i == 0 and "it0" in OPT:
                    stamp(A, 44)
                if FIRST and i == P_F:
                    if "it0" in OPT:
                        stamp(A, 45)
                    bias_term(A)
                    if "it0" in OPT:
                        stamp(A, 46)
                if FIRST and i == P_F + 1 and "it0" in OPT:
                    stamp(A, 47)
                for y in groups.get(i, []):
                    if not ("nodma" in OPT and " lds" in y):
                        A(y)
            A(f"s_cbranch_scc1 M_ev{md}{t}\nM_evr{md}{t}:")
            if SHORT:
                rc, rest = half2(U, t & 1, fast)
                k = len(rc) // 2
                if t and not t & 1:
                    mfma32(A, vACC, vH, vAgg, vACC)
                A("\n".join(rc[0:k]) + "\ns_waitcnt lgkmcnt(0)")
                mfma32(A, Un, vPf0, vSel0, Un)
                A("\n".join(rc[k:]))
                mfma32(A, Un, vPf1, vSel1, Un)
                A("\n".join(tail0 + rest + ["s_nop 3"]))
            else:
                second_half(A, U, t & 1, fast, None)
            ool(f"""
            M_ev{md}{t}:
            s_movk_i32 s{s_t}, {t}
            s_call_b64 s[{s_ret}:{s_ret+1}], M_rare
            s_cbranch_scc1 M_tail{md}{t & 1}
            s_branch M_evr{md}{t}
            """)

    emit_loop(A, "f", True)
    A("s_branch M_fin")
    def emit_tails(A, md, fast):
        for p in range(2):
            A(f"""
            M_tail{md}{p}:
            s_lshl_b32 s3, s{s_t}, 9
            v_add_u32 v8, s3, v{vaAgg}
            """)
            second_half(A, vU[p], p, fast, None if p else f"ds_read_b64 {vr(vAgg,2)}, v8")
            if p == 0:
                A(f"v_mov_b32 v{vAgg+2}, 0\nv_mov_b32 v{vAgg+3}, 0")
            if p == 0 or not fast:
                A("s_branch M_fin")
    emit_tails(A, "f", True)
    A(f"""
    M_fin:
    s_mov_b32 s{s_t}, s{s_T}
    s_cmp_eq_u32 s{s_T0p}, s{s_T}
    s_cbranch_scc0 M_fin2
    s_call_b64 s[{s_ret}:{s_ret+1}], M_rare
    M_fin2:
    s_waitcnt lgkmcnt(0)
    """)
    mfma32(A, vACC, vH, vAgg, vACC)
    stamp(A, 13)
    A(f"""
    s_cmp_lg_u32 s{s_sw}, 0
    s_nop 11
    s_cbranch_scc1 M_fin_hi
    """)
    for r in range(0, 16, 2):
        A(f"v_pk_add_f32 {vr(vS0+r,2)}, {vr(vS0+r,2)}, {vr(vACC+r,2)}")
    A("s_branch M_bend\nM_fin_hi:")
    for r in range(0, 16, 2):
        A(f"v_pk_add_f32 {vr(vS1+r,2)}, {vr(vS1+r,2)}, {vr(vACC+r,2)}")
    K = -math.log(2.0) * 2.0 ** -CEXP
    A(f"""
    M_bend:
    s_setprio 0
    s_cmp_lg_u32 s{s_slow}, 0
    s_cbranch_scc1 M_next
    M_epi:
    s_cmp_gt_u32 s{s_T}, {W2T0 + 8}
    s_cbranch_scc1 M_epi2
    """)
    for s_ in range(8):
        A(w2load(s_))
    A(f"""
    M_epi2:
    v_mov_b32 v{vC}, s{s_K}
    v_mov_b32 v{vC+1}, s{s_K}
    """)
    for Sx, o in ((vS0, 16), (vS1, 24)):
        for r in range(0, 16, 2):
            A(f"v_pk_mul_f32 {vr(Sx+r,2)}, {vr(Sx+r,2)}, {vr(vC,2)}")
        for r in range(0, 16, 2):
            A(f"v_cvt_pk_bf16_f32 v{o+r//2}, v{Sx+r}, v{Sx+r+1}")
        if o == 16:
            A(f"s_waitcnt vmcnt(0)\nds_write_b128 v{vSa}, v[16:19]\nds_write_b128 v{vSb}, v[20:23]")
    A(f"""
    ds_write_b128 v{vSa}, v[24:27] offset:2048
    ds_write_b128 v{vSb}, v[28:31] offset:2048
    s_mov_b32 s{s_x}, 4096
    s_mov_b32 s{s_x+1}, 8192
    s_waitcnt lgkmcnt(0)
    s_barrier
    """)
    stamp(A, 14)
    SFR = 48
    order = [(s, mt) for s in range(8) for mt in range(3)]
    RS = D * 2048
    AHEAD = 12
    for k in range(AHEAD):
        s, mt = order[k]
        A(f"ds_read_b128 {vr(SFR+4*k,4)}, v{vSr} offset:{s*RS+mt*1024}")
    for k in range(24):
        s, mt = order[k]
        A(f"s_waitcnt lgkmcnt({min(AHEAD - 1, 23 - k)})")
        mfma16(A, OO[mt], vW2 + 4 * s, SFR + 4 * k, OO[mt])
        if k + AHEAD < 24:
            s2, mt2 = order[k + AHEAD]
            A(f"ds_read_b128 {vr(SFR+4*(k+AHEAD),4)}, v{vSr} offset:{s2*RS+mt2*1024}")
    A("s_nop 5")
    for mt in range(3):
        A(f"""
        v_cvt_pk_bf16_f32 v{16+2*mt}, v{OO[mt]}, v{OO[mt]+1}
        v_cvt_pk_bf16_f32 v{17+2*mt}, v{OO[mt]+2}, v{OO[mt]+3}
        buffer_store_dwordx2 {vr(16+2*mt,2)}, v{vOa}, {S(sA)}, {["0", f"s{s_x}", f"s{s_x+1}"][mt]} offen {"sc1" if "outsc" in OPT else ("nt" if "outnt" in OPT else "")}
        """)
    if (SPIN is not None and SPIN[0] == 15) or ENC is not None:
        A("s_waitcnt vmcnt(0)")
        stamp(A, 15)
    if STAMPS:
        A("s_waitcnt vmcnt(0)")
        stamp(A, 15)
        srd(A, sA, pWS, 0x80000, off=WS_ST)
        A(f"""
        s_lshl_b32 s3, s2, 3
        s_add_u32 s3, s3, s{s_w}
        s_lshl_b32 s3, s3, 8
        v_lshl_add_u32 v1, v{L}, 2, s3
        buffer_store_dword v{vSt}, v1, {S(sA)}, 0 offen
        """)
    A("M_end:\ns_endpgm")

    A(f"""
    M_rare:
    s_cmp_eq_u32 s{s_T0p}, s{s_t}
    s_cbranch_scc0 M_rare2
    s_lshl_b32 s3, s{s_t}, 9
    v_add_u32 v8, s3, v{vaAgg}
    v_add_u32 v{vaAgg}, 512, v{vaAgg}
    s_mov_b32 s{s_sw}, 1
    s_mov_b32 s{s_T0p}, 0x7fffffff
    s_bitcmp1_b32 s{s_t}, 0
    s_waitcnt lgkmcnt(0)
    s_cbranch_scc1 M_swo
    """)
    for odd in (0, 1):
        hi, other = (vAgg, vAgg + 2) if odd else (vAgg + 2, vAgg)
        if odd:
            A(f"M_swo:\nv_mov_b32 v{other}, 0\nv_mov_b32 v{other+1}, 0\ns_nop 1")
        mfma32(A, vACC, vH, vAgg, vACC)
        A(f"""
        v_mov_b32 v{other}, 0
        v_mov_b32 v{other+1}, 0
        ds_read_b64 {vr(hi,2)}, v8
        s_nop 8
        """)
        for r in range(0, 16, 2):
            A(f"v_pk_add_f32 {vr(vS0+r,2)}, {vr(vS0+r,2)}, {vr(vACC+r,2)}")
        A("s_waitcnt lgkmcnt(0)")
        mfma32(A, vACC, vH, vAgg, None)
        A(f"v_mov_b32 v{hi}, 0\nv_mov_b32 v{hi+1}, 0")
        if odd:
            A(f"ds_read_b64 {vr(other,2)}, v8 offset:512")
        if not odd:
            A("s_branch M_rare2")
    A(f"""
    M_rare2:
    s_cmp_le_i32 s{s_pri}, s{s_t}
    s_cbranch_scc0 M_rare3
    s_setprio 0
    s_mov_b32 s{s_pri}, 0x7fffffff
    M_rare3:
    s_sub_u32 s3, s{s_T}, 1
    s_min_i32 s{s_next}, s3, s{s_T0p}
    s_min_i32 s{s_next}, s{s_next}, s{s_pri}
    s_cmp_le_i32 s3, s{s_t}
    s_setpc_b64 s[{s_ret}:{s_ret+1}]
    """)

    A(f"""
    M_pbig:
    v_lshlrev_b32 v8, 7, v{L}
    v_mov_b32 v9, 0x10000
    s_mov_b32 s3, {WS_RP}
    s_mov_b64 exec, 0xffff
    buffer_atomic_add v9, v8, {S(sWS)}, s3 offen sc1
    s_mov_b64 exec, -1
    s_branch M_pbigr
    """)
    A(f"M_empty:\ns_mov_b32 s{s_K}, {f32(-math.log(2.0) * 2.0 ** -CEXP):#x}")
    bias_term(A)
    A("s_branch M_bend")
    A(f"""
    M_align:
    s_mov_b32 s{s_alt}, -1
    s_mov_b32 s{s_x+2}, 0
    v_mov_b32 v13, v{vBase}
    """)
    for G in range(5):
        A(f"""
        v_readlane_b32 s{s_x}, v{vBase}, {8*G}
        v_readlane_b32 s{s_x+1}, v{vBase}, {8*G+8}
        s_nop 1
        s_sub_u32 s{s_x+3}, s{s_x+2}, s{s_x}
        v_cmp_le_u32 vcc, {8*G}, v{L}
        v_add_u32 v10, s{s_x+3}, v{vBase}
        s_sub_u32 s{s_x+1}, s{s_x+1}, s{s_x}
        s_add_u32 s{s_x+2}, s{s_x+2}, s{s_x+1}
        v_cndmask_b32 v13, v13, v10, vcc
        """)
        if G < 4:
            A(f"s_add_u32 s{s_x+2}, s{s_x+2}, 63\ns_and_b32 s{s_x+2}, s{s_x+2}, 0xffffffc0")
    A(f"""
    s_mov_b32 s{s_tot}, s{s_x+2}
    v_mov_b32 v{vBase}, v13
    s_nop 1
    s_branch M_derive
    """)
    A(f"""
    M_goslow:
    s_mov_b32 s{s_slow}, 1
    s_mov_b32 s{s_batch}, 0
    s_branch M_load
    M_next:
    s_add_u32 s{s_batch}, s{s_batch}, {SLOWB}
    s_cmp_ge_u32 s{s_batch}, {E}
    s_cbranch_scc1 M_epi
    M_load:
    """)
    srd(A, sA, pDST, E * 4)
    srd(A, sB, pSRC, E * 4)
    A(f"""
    v_add_u32 v8, s{s_batch}, v0
    v_lshlrev_b32 v9, 2, v8
    s_waitcnt vmcnt(0) lgkmcnt(0)
    buffer_load_dword v10, v9, {S(sA)}, 0 offen
    buffer_load_dword v11, v9, {S(sB)}, 0 offen
    v_lshlrev_b32 v{vChunk8}, 3, v8
    v_mov_b32 v5, -1
    v_mov_b32 v6, -1
    v_mov_b32 v7, -1
    s_add_u32 s{s_x+2}, s{s_batch}, {SLOWB}
    s_min_u32 s{s_x+2}, s{s_x+2}, {E}
    s_waitcnt vmcnt(0)
    v_subrev_u32 v12, s{s_nb0}, v10
    v_cmp_gt_u32 vcc, s{s_nn}, v12
    v_cmp_gt_u32 s[{s_x}:{s_x+1}], s{s_x+2}, v8
    v_and_b32 v10, 63, v10
    v_lshl_or_b32 v11, v10, 14, v11
    s_and_b64 vcc, vcc, s[{s_x}:{s_x+1}]
    s_nop 1
    v_cndmask_b32 v4, v5, v11, vcc
    s_barrier
    """)
    zerofill()
    A("s_waitcnt lgkmcnt(0)\ns_barrier\ns_branch M_recs")
    A.l += [l for l in ool.l]
    ool.l.clear()
    A("M_cpf1:")
    if "cpf" in OPT:
        A.l.append(".set CPF_STEP, ((M_cpf1 - M_cpf0 - 512) / 63) & -4")
    B2 = Asm()
    B2("M_safe:")
    emit_loop(B2, "s", False)
    B2("s_branch M_fin")
    emit_tails(B2, "s", False)
    A.l += B2.l
    A.l += ool.l


def build():
    out = f"""; Fused edge-featured MPNN layer, one workgroup per bucket of 39/40 destination nodes.
; @launch grid=(256,1,1) block=(512,1,1) lds={LDS_BYTES}
.amdgcn_target "amdgcn-amd-amdhsa--gfx950"
.text
.globl {KN}
.p2align 8
.type {KN},@function
"""
    A = Asm()
    kernel(A)
    out += A.text()
    out += f""".section .rodata,"a"
.p2align 6
.amdhsa_kernel {KN}
  .amdhsa_next_free_vgpr {NV}
  .amdhsa_next_free_sgpr 102
  .amdhsa_accum_offset {(NV + 3) // 4 * 4}
  .amdhsa_group_segment_fixed_size 0
  .amdhsa_kernarg_size 88
  .amdhsa_user_sgpr_count 2
  .amdhsa_user_sgpr_kernarg_segment_ptr 1
  .amdhsa_system_sgpr_workgroup_id_x 1
.end_amdhsa_kernel
"""
    return out


if __name__ == "__main__":
    for a in list(sys.argv):
        if a.startswith("-o"):
            OPT.update(a[2:].split(","))
            sys.argv.remove(a)
    for a in list(sys.argv):
        if a.startswith("-spin"):
            i, us = a[5:].split(":")
            SPIN = (int(i), float(us))
            sys.argv.remove(a)
    for a in list(sys.argv):
        if a.startswith("-wsb"):
            WS_BASE = int(a[4:]) << 20
            sys.argv.remove(a)
    for a in list(sys.argv):
        if a.startswith("-enc"):
            ENC = int(a[4:])
            sys.argv.remove(a)
    for a in list(sys.argv):
        if a.startswith("-pri"):
            PRIO_NUM = int(a[4:])
            sys.argv.remove(a)
    for a in list(sys.argv):
        if a.startswith("-nt"):
            NT0 = int(a[3:])
            sys.argv.remove(a)
    for a in list(sys.argv):
        if a.startswith("-early"):
            EARLY = tuple(int(c) for c in a[6:])
            sys.argv.remove(a)
    for a in list(sys.argv):
        if a.startswith("-ns"):
            NSHORT = int(a[3:])
            sys.argv.remove(a)
    for a in list(sys.argv):
        if a.startswith("-w2t"):
            W2T0 = int(a[4:])
            sys.argv.remove(a)
    if "--stamps" in sys.argv:
        STAMPS = True
        sys.argv.remove("--stamps")
    path = sys.argv[1] if len(sys.argv) > 1 else f"cdna_kernels/{NAME}.s"
    open(path, "w").write(build())
    print("wrote", path, "lds", LDS_BYTES)
```

```python
import sys, struct, math

NAME = "gather_scatter__edge_featured_mpnn_mpnn__graph"
KN = NAME + "_kernel"
N, E = 10000, 160000

WS_CNT = 0
WS_RB = 16 * 128
WS_RP = 32 * 128
WS_W2F = 0x2000
WS_SLOT = 0x12000
WS_P = 0x213000
TABB = N * 512
WS_END = WS_P + TABB
WS_ST = 0x1000000

WS_BASE = 0
NCH = 64
CHE = E // NCH
PROWS = 53
LOG2E = 1.4426950408889634
CEXP = 48
STAMPS = False
OPT = set()
PRIO_NUM = 21
NT0 = 99
CPF_STEP = 256
NSHORT = 3
W2T0 = 8


def f32(x):
    return struct.unpack("<I", struct.pack("<f", x))[0]


class Asm:
    def __init__(self):
        self.l = []

    def __call__(self, s):
        for x in s.split("\n"):
            x = x.strip()
            if x:
                self.l.append(("" if x.endswith(":") else "    ") + x)

    def text(self):
        import re
        for x in self.l:
            m = re.search(r"offset:(\d+)", x)
            if m:
                lim = 4096 if x.strip().startswith("buffer_") else 65536
                assert int(m.group(1)) < lim, x
        return "\n".join(self.l) + "\n"


def vr(a, n=1):
    return f"v{a}" if n == 1 else f"v[{a}:{a+n-1}]"


def srd(A, d, base, size, off=None):
    if off is None:
        A(f"s_mov_b32 s{d}, s{base}\ns_mov_b32 s{d+1}, s{base+1}")
    else:
        A(f"s_add_u32 s{d}, s{base}, {off}\ns_addc_u32 s{d+1}, s{base+1}, 0")
    A(f"s_mov_b32 s{d+2}, {size}\ns_mov_b32 s{d+3}, 0x00020000")


def S(d):
    return f"s[{d}:{d+3}]"


D = 4
CAP_T = 26
QS = 592
L_RING = 0
L_AQE = 8 * D * 2048
L_AQH = L_AQE + CAP_T * 512
L_AGG = L_AQH + CAP_T * 512
L_LIST = L_AGG + (CAP_T + 2) * 512
L_CNT = L_LIST + 4096
L_N0 = L_CNT + 256
L_MX = L_N0 + 248
L_WE = L_N0 + 256
L_Q = L_WE + 8 * QS
LDS_BYTES = (L_Q + 255) // 256 * 256 + 32768
ZERO_BYTES = L_LIST - L_AQE
L_XP = (L_Q + 255) // 256 * 256
L_XQ = L_XP + 16384
L_BT = L_AQE
L_BC = L_BT + 32768
assert L_BC + 2048 <= L_LIST and LDS_BYTES <= 163840 and 48 * QS <= 32768
DUMMY = 0x400000
SLOWB = 448
assert SLOWB + 3 * 40 + 4 * 63 <= CAP_T * 32

pX, pE, pSRC, pDST, pW1, pB1, pW2, pB2, pOUT, pDBG, pWS = 4, 6, 8, 10, 12, 14, 16, 18, 20, 22, 24
s_w2 = 26
sA, sB, sC, sD, sWS, sP, sE = 28, 32, 36, 40, 44, 48, 52
(s_w, s_nb0, s_nb1, s_nn, s_T, s_T0p, s_t, s_next, s_slow, s_batch, s_ring, s_sw, s_tot,
 s_nb4, s_ringh, s_spin, s_pri, s_alt, s_xw) = range(56, 75)
s_f0 = 85
s_one = 84
s_big = 83
s_K = 82
BND_PQ, BND_E = 4.0, 22.0
s_x = 76
sM = 86
s_ret = 94
sG = 96

vU = [16, 32]
vT = 48
vH = 64
vACC = 68
vS0 = 84
vS1 = 100
vPf0, vPf1, vAqe, vAgg, vBq, vSel0, vSel1 = 116, 120, 124, 128, 132, 136, 140
vBa = 144
vOff = 176
vW2 = 176
(vC, _c1, vB2, _b1, vK0, vK1, vK2, vK3, vaAqe, vaAgg, vaList, vaP0, vaP1, vaB, vBmul, vBase, vDeg,
 vChunk8, vLane, vDum, vSt, vW2a, vaCnt) = range(228, 251)
vSa, vSb, vSr, vOa = 252, 253, 254, 255
NV = 256
vXF = 176
vXP = 160
vWF = 16
vPA = 48
vPO = 148
vQO = 164
vPa = 144
EARLY = (0, 1)
vXa = 145
vXr = 147
vB1 = 116
vWEr = 128
vF0 = 129
vPc = 130
vQa = 131


def mfma32(A, d, a, b, c):
    cs = "0" if c is None else vr(c, 16)
    A(f"v_mfma_f32_32x32x16_bf16 {vr(d,16)}, {vr(a,4)}, {vr(b,4)}, {cs}")


def mfma16(A, d, a, b, c):
    cs = "0" if c is None else vr(c, 4)
    A(f"v_mfma_f32_16x16x32_bf16 {vr(d,4)}, {vr(a,4)}, {vr(b,4)}, {cs}")


SPIN = None


ENC = None


def stamp(A, i):
    if ENC is not None:
        if i == 0:
            A("s_memrealtime s[100:101]\ns_waitcnt lgkmcnt(0)\ns_mov_b32 s75, s100\ns_nop 0")
        if i == ENC:
            A("s_waitcnt lgkmcnt(0)\ns_memrealtime s[100:101]\ns_waitcnt lgkmcnt(0)\ns_sub_u32 s101, s100, s75")
            A(f"v_writelane_b32 v{vSt}, s101, 0")
        if i == 15:
            u = len(A.l)
            A(f"v_readlane_b32 s3, v{vSt}, 0\ns_nop 3\ns_lshl_b32 s3, s3, 2\ns_add_u32 s3, s3, 6000")
            A(f"M_spin{u}:\ns_memrealtime s[100:101]\ns_waitcnt lgkmcnt(0)\ns_sub_u32 s100, s100, s75\ns_cmp_lt_u32 s100, s3\ns_cbranch_scc1 M_spin{u}")
    if SPIN is not None:
        if i == 0:
            A("s_memrealtime s[100:101]\ns_waitcnt lgkmcnt(0)\ns_mov_b32 s75, s100")
        elif i == SPIN[0]:
            u = len(A.l)
            A(f"M_spin{u}:\ns_memrealtime s[100:101]\ns_waitcnt lgkmcnt(0)\ns_sub_u32 s100, s100, s75\ns_cmp_lt_u32 s100, {int(SPIN[1]*100)}\ns_cbranch_scc1 M_spin{u}")
    if STAMPS:
        ins = "s_memtime" if "cyc" in OPT else "s_memrealtime"
        A(f"s_waitcnt lgkmcnt(0)\n{ins} s[100:101]\ns_waitcnt lgkmcnt(0)\nv_writelane_b32 v{vSt}, s100, {i}")


def gemm_part(A, init, nmt, xf, vm=None, xrd=None):
    def rd(s):
        for ct in range(2):
            for x in range(2):
                A(f"ds_read_b64_tr_b16 {vr(vWF + 8*s + 4*ct + 2*x, 2)}, v14 offset:{s*2048 + x*256 + ct*8}")
    if vm is None:
        for s in range(4):
            rd(s)
    else:
        xrd(0)
        A(f"s_waitcnt vmcnt({vm[0]})")
        rd(0)
        xrd(1)
    for s in range(4):
        if vm is None:
            A(f"s_waitcnt lgkmcnt({12 - 4*s})")
        else:
            A(f"s_waitcnt lgkmcnt({nmt if s < 3 else 0})")
        k = 0
        for mt in range(nmt):
            for ct in range(2):
                d = vPA + 8 * mt + 4 * ct
                c = d if s else (None if init is None else init + 4 * ct)
                mfma16(A, d, vWF + 8 * s + 4 * ct, xf + 16 * mt + 4 * s, c)
                k += 1
                if vm is not None and k == 2 and s < 3:
                    A(f"s_waitcnt vmcnt({vm[s+1]})")
                    rd(s + 1)
                    if s < 2:
                        xrd(s + 2)


def gemm_pack(A, nmt, store, vPO=vPO):
    A("s_nop 4")
    for mt in range(nmt):
        for r in range(0, 8, 2):
            a = vPA + 8 * mt + r
            A(f"v_pk_mul_f32 {vr(a,2)}, {vr(a,2)}, v[12:13]")
        for r in range(0, 8, 2):
            a = vPA + 8 * mt + r
            A(f"v_cvt_pk_bf16_f32 v{vPO + 4*mt + r//2}, v{a}, v{a+1}")
        store(mt)


def kernel(A):
    L = vLane
    SC = "sc0 sc1"
    A(f"{KN}:")
    A(f"""
    s_cmp_ge_u32 s2, 256
    s_cbranch_scc1 M_end
    s_load_dwordx16 s[4:19], s[0:1], 0
    s_load_dwordx4 s[20:23], s[0:1], 64
    s_load_dwordx2 s[24:25], s[0:1], 80
    """)
    if STAMPS or ENC is not None:
        A(f"v_mov_b32 v{vSt}, 0")
    stamp(A, 0)
    A(f"""
    v_lshrrev_b32 v2, 6, v0
    v_and_b32 v{L}, 63, v0
    v_readfirstlane_b32 s{s_w}, v2
    s_mul_i32 s{s_nb0}, s2, 160069
    s_add_u32 s{s_nb1}, s{s_nb0}, {160069 + 4049}
    s_add_u32 s{s_nb0}, s{s_nb0}, 4049
    s_lshr_b32 s{s_nb0}, s{s_nb0}, 12
    v_lshrrev_b32 v7, 4, v{L}
    v_and_b32 v8, 15, v{L}
    v_xor_b32 v8, v8, v7
    s_lshl_b32 s{s_ring}, s{s_w}, 13
    s_and_b32 s3, s{s_w}, 1
    s_lshl_b32 s3, s3, 3
    v_xor_b32 v8, s3, v8
    v_lshlrev_b32 v8, 4, v8
    v_lshl_add_u32 v8, v7, 8, v8
    s_lshl_b32 s{s_xw}, s{s_w}, 11
    v_add_u32 v{vXa}, s{s_xw}, v8
    v_xor_b32 v{vXa+1}, 64, v{vXa}
    v_lshrrev_b32 v10, 2, v{L}
    v_and_b32 v11, 3, v{L}
    v_lshlrev_b32 v11, 4, v11
    v_lshl_add_u32 v10, v10, 9, v11
    s_lshl_b32 s3, s{s_w}, 6
    v_add_u32 v10, s3, v10
    v_lshlrev_b32 v2, 2, v0
    s_waitcnt lgkmcnt(0)
    s_add_u32 s{pWS}, s{pWS}, {WS_BASE}
    s_addc_u32 s{pWS+1}, s{pWS+1}, 0
    s_cmp_ge_u32 s2, {NCH}
    s_cbranch_scc1 M_pwg
    """)

    def wdma(base):
        for ii in range(8):
            A(f"""
            s_add_u32 m0, s{s_ring}, {ii*1024}
            s_mov_b32 s{s_x+1}, {base + ii*8192}
            buffer_load_dwordx4 v10, {S(sB)}, s{s_x+1} offen lds
            """)

    def xdma(ldsbase, rowreg):
        A(f"""
        s_add_u32 m0, s{s_xw}, {ldsbase}
        s_lshl_b32 s3, s{rowreg}, 8
        buffer_load_dwordx4 v{vXa}, {S(sD)}, s3 offen lds
        buffer_load_dwordx4 v{vXa+1}, {S(sD)}, s3 offen offset:1024 lds
        """)

    def gaddr():
        A(f"""
        v_lshrrev_b32 v3, 4, v{L}        ; q
        v_and_b32 v4, 15, v{L}           ; n
        v_xor_b32 v5, v3, v4
        v_lshlrev_b32 v5, 4, v5
        v_lshl_add_u32 v{vXr}, v4, 8, v5
        v_bfe_u32 v5, v{L}, 2, 2         ; r
        v_lshl_add_u32 v6, v3, 3, v5     ; 8q + r
        v_lshlrev_b32 v6, 6, v6
        v_and_b32 v7, 3, v{L}            ; c
        v_lshl_add_u32 v6, v7, 4, v6
        v_add_u32 v14, s{s_ring}, v6
        v_mov_b32 v12, {f32(-LOG2E):#x}
        v_mov_b32 v13, v12
        """)

    def consts():
        srd(A, sP, pWS, TABB + 4096, off=WS_P - 4096)
        srd(A, sE, pE, E * 8)
        A(f"""
        s_lshr_b32 s{s_nb1}, s{s_nb1}, 12
        s_min_u32 s{s_nb1}, s{s_nb1}, {N}
        s_sub_u32 s{s_nn}, s{s_nb1}, s{s_nb0}
        s_lshl_b32 s{s_nb4}, s{s_nb0}, 2
        s_add_u32 s{s_ringh}, s{s_ring}, 4096
        s_mov_b32 s{s_slow}, 0
        s_mov_b32 s{s_big}, 0
        s_lshl_b32 s{s_w2}, s{s_w}, 13
        s_add_u32 s{s_w2}, s{s_w2}, {WS_W2F}
        s_add_u32 s{s_w2+1}, s{s_w2}, 4096
        v_lshrrev_b32 v3, 4, v{L}        ; q
        v_bfe_u32 v5, v{L}, 2, 2         ; r
        v_and_b32 v7, 3, v{L}            ; c
        v_xor_b32 v9, v7, v3
        v_lshlrev_b32 v9, 4, v9
        s_lshl_b32 s3, s{s_w}, 6
        s_add_u32 s{s_x}, s3, 1024
        v_add_u32 v{vK3}, s{s_x}, v9
        v_add_u32 v{vK2}, 1024, v{vK3}
        v_add_u32 v{vK1}, 2048, v{vK3}
        v_add_u32 v{vK0}, 3072, v{vK3}
        v_lshrrev_b32 v1, 5, v{L}        ; h
        v_mul_u32_u24 v5, {QS}, v5
        v_and_b32 v3, 1, v3
        v_lshl_add_u32 v5, v3, 5, v5
        v_lshl_add_u32 v5, v7, 3, v5
        s_add_u32 s3, s3, {L_WE}
        v_add_u32 v5, s3, v5
        v_mul_u32_u24 v6, {8*QS}, v1
        v_add_u32 v{vaB}, v5, v6
        v_mul_u32_u24 v{vBmul}, {QS//4}, v1
        v_and_b32 v3, 31, v{L}           ; m
        ; row m = 8j + 4h' + i holds member j of quad 4h' + i: slot in tile sigma(m) = j + 4i + 16h'
        v_lshrrev_b32 v9, 3, v3          ; j
        v_and_b32 v8, 3, v3              ; i
        v_lshl_add_u32 v9, v8, 2, v9
        v_and_b32 v8, 4, v3
        v_lshl_add_u32 v9, v8, 2, v9
        v_lshlrev_b32 v9, 4, v9
        v_mul_u32_u24 v8, {L_AQH - L_AQE}, v1
        v_add_u32 v9, v9, v8
        v_add_u32 v{vaAqe}, {L_AQE}, v9
        v_lshrrev_b32 v9, 2, v{L}        ; r
        v_and_b32 v8, 3, v9
        v_lshlrev_b32 v8, 2, v8
        v_lshrrev_b32 v11, 3, v9
        v_lshl_add_u32 v8, v11, 1, v8
        v_and_b32 v11, 4, v9
        v_lshl_add_u32 v8, v11, 2, v8
        v_lshlrev_b32 v8, 2, v8
        v_add_u32 v{vaList}, {L_LIST}, v8
        v_and_b32 v8, 7, v3              ; 4h' + i
        v_and_b32 v9, 8, v3
        v_lshl_add_u32 v8, v9, 1, v8
        v_lshrrev_b32 v9, 4, v3
        v_lshl_add_u32 v8, v9, 3, v8
        v_bfe_u32 v9, v8, 2, 2
        v_xor_b32 v9, v9, v1
        v_lshlrev_b32 v9, 4, v9
        v_lshl_add_u32 v9, v8, 6, v9
        v_add_u32 v{vaP0}, s{s_ring}, v9
        v_xor_b32 v{vaP1}, 32, v{vaP0}
        v_and_b32 v9, 1, v3
        v_lshlrev_b32 v9, 4, v9
        v_mov_b32 v8, 0x3f80
        v_lshlrev_b32 v9, v9, v8
        v_lshrrev_b32 v8, 1, v3
        v_lshlrev_b32 v11, 2, v1
        v_sub_u32 v8, v8, v11
        """)
        for x in range(4):
            A(f"v_cmp_eq_u32 s[{s_x}:{s_x+1}], {x}, v8\nv_cmp_eq_u32 vcc, {8+x}, v8\ns_nop 0")
            A(f"v_cndmask_b32 v{vSel0+x}, 0, v9, s[{s_x}:{s_x+1}]\nv_cndmask_b32 v{vSel1+x}, 0, v9, vcc")
        A(f"""
        v_mov_b32 v{vC}, {f32(2.0**-CEXP):#x}
        v_mov_b32 v{vC+1}, {f32(2.0**-CEXP):#x}
        v_mov_b32 v{vDeg}, 0
        v_mov_b32 v{vDum}, 0x80000000
        v_lshrrev_b32 v9, 3, v0
        v_mul_u32_u24 v{vChunk8}, {CHE*8}, v9
        v_lshlrev_b32 v{vW2a}, 4, v{L}
        v_lshlrev_b32 v9, 2, v{L}
        v_add_u32 v{vaCnt}, {L_CNT}, v9
        """)
        for r in range(16):
            A(f"v_mov_b32 v{vS0+r}, 0\nv_mov_b32 v{vS1+r}, 0")

    def bigcheck(n):
        A(f"v_max3_f32 v8, |v{vPA}|, |v{vPA+1}|, |v{vPA+2}|")
        for r in range(3, n - 1, 2):
            A(f"v_max3_f32 v8, |v{vPA+r}|, |v{vPA+r+1}|, v8")
        A(f"""
        v_max_f32 v8, |v{vPA+n-1}|, v8
        v_cmp_nge_f32 vcc, {f32(BND_PQ):#x}, v8
        s_or_b32 s3, vcc_lo, vcc_hi
        s_or_b32 s{s_big}, s{s_big}, s3
        """)

    def zerofill():
        A(f"""
        v_mov_b32 v40, 0
        v_mov_b32 v41, 0
        v_mov_b32 v42, 0
        v_mov_b32 v43, 0
        v_mov_b32 v44, {DUMMY}
        v_mov_b32 v45, {DUMMY}
        v_lshlrev_b32 v1, 3, v0
        v_add_u32 v1, {L_LIST}, v1
        ds_write_b64 v1, v[44:45]
        ds_write_b32 v{vaCnt}, v40
        ds_write_b32 v{vaCnt}, v40 offset:256
        v_lshlrev_b32 v1, 4, v0
        v_add_u32 v1, {L_AQE}, v1
        """)
        nz = ZERO_BYTES // 8192
        rem = ZERO_BYTES - nz * 8192
        for q in range(nz):
            A(f"ds_write_b128 v1, v[40:43] offset:{q*8192}")
        if rem:
            A(f"""
            v_cmp_gt_u32 vcc, {rem//16}, v0
            s_and_saveexec_b64 s[{s_x}:{s_x+1}], vcc
            ds_write_b128 v1, v[40:43] offset:{nz*8192}
            s_mov_b64 exec, s[{s_x}:{s_x+1}]
            """)

    def small():
        srd(A, sC, pB1, 512)
        A(f"""
        v_lshrrev_b32 v3, 4, v{L}
        v_lshlrev_b32 v4, 4, v3
        s_lshl_b32 s3, s{s_w}, 6
        buffer_load_dwordx4 {vr(vB1,4)}, v4, {S(sC)}, s3 offen
        v_lshlrev_b32 v5, 2, v0
        s_mov_b32 s3, {256*512}
        buffer_load_dword v{vWEr}, v5, {S(sB)}, s3 offen
        v_lshlrev_b32 v4, 3, v3
        s_mov_b32 s{sC}, s{pB2}
        s_mov_b32 s{sC+1}, s{pB2+1}
        s_mov_b32 s{sC+2}, 256
        s_lshl_b32 s3, s{s_w}, 5
        buffer_load_dwordx2 {vr(vB2,2)}, v4, {S(sC)}, s3 offen
        """)

    def eprefetch():
        A(f"""
        s_mul_i32 s3, s2, {E*8//256}
        v_lshlrev_b32 v3, 4, v0
        buffer_load_dwordx4 v[224:227], v3, {S(sE)}, s3 offen
        """)

    def f0load():
        A(f"buffer_load_dword v{vF0}, off, {S(sG)}, 0 offset:128 sc1")

    def spoll(tag, base, offreg, want, keep=None):
        A(f"""
        s_mov_b32 s{s_spin}, 0x40000
        M_sp{tag}:
        s_mov_b32 s{s_x+1}, 0
        s_atomic_add s{s_x+1}, s[{base}:{base+1}], {offreg} glc
        s_sub_u32 s{s_spin}, s{s_spin}, 1
        s_cbranch_scc1 M_spd{tag}
        s_waitcnt lgkmcnt(0)
        {f"s_mov_b32 s{keep}, s{s_x+1}" if keep else ""}
        {f"s_and_b32 s{s_x+1}, s{s_x+1}, 0xffff" if keep else ""}
        s_cmp_lg_u32 s{s_x+1}, {want}
        s_cbranch_scc1 M_sp{tag}
        M_spd{tag}:
        s_waitcnt lgkmcnt(0)
        """)

    def f0wait(tag):
        A(f"""
        v_readfirstlane_b32 s3, v{vF0}
        s_cmp_lg_u32 s3, 0
        s_cbranch_scc1 M_pfd{tag}
        """)
        spoll("f" + tag, pDBG, 128, 1)
        A(f"M_pfd{tag}:")

    def release(base):
        A(f"""
        v_lshlrev_b32 v8, 7, v{L}
        v_mov_b32 v9, 1
        s_mov_b32 s3, {base}
        s_mov_b64 exec, 0xffff
        buffer_atomic_add v9, v8, {S(sWS)}, s3 offen sc1
        s_mov_b64 exec, -1
        """)

    def rpoll(tag, base, want, keep=None):
        A(f"s_and_b32 s3, s2, 15\ns_lshl_b32 s3, s3, 7\ns_add_u32 s3, s3, {base}")
        spoll(tag, pWS, "s3", want, keep)

    srd(A, sWS, pWS, WS_END)
    A(f"""
    v_lshlrev_b32 v3, 7, v0
    s_cmp_eq_u32 s2, 0
    s_cselect_b32 s3, 48, 0
    v_cmp_gt_u32 vcc, s3, v0
    v_mov_b32 v4, 0x40000000
    v_mov_b32 v8, 0
    v_cndmask_b32 v3, v4, v3, vcc
    s_mul_i32 s3, s2, {CHE*4}
    buffer_store_dword v8, v3, {S(sWS)}, 0 offen {SC}
    """)
    srd(A, sC, pDST, CHE * 4, off="s3")
    srd(A, sD, pSRC, CHE * 4, off="s3")
    A(f"s_mov_b32 s{s_x+1}, 4096\ns_mov_b32 s{s_x+2}, 8192")
    vD, vS = 164, 169
    so = ["0", "0", f"s{s_x+1}", f"s{s_x+1}", f"s{s_x+2}"]
    for k in range(5):
        A(f"buffer_load_dword v{vD+k}, v2, {S(sC)}, {so[k]} offen offset:{(k & 1)*2048}")
    for k in range(5):
        A(f"buffer_load_dword v{vS+k}, v2, {S(sD)}, {so[k]} offen offset:{(k & 1)*2048}")
    srd(A, sC, pW2, 256 * 256)
    srd(A, sB, pW1, 260 * 512)
    A(f"""
    v_lshlrev_b32 v3, 4, v0
    v_add_u32 v15, {L_BT}, v3
    v_add_u32 v2, {L_BC}, v2
    v_mov_b32 v4, -1
    v_mov_b32 v5, -1
    v_mov_b32 v6, -1
    v_mov_b32 v7, -1
    """)
    for q in range(4):
        A(f"ds_write_b128 v15, v[4:7] offset:{q*8192}")
    A(f"""
    ds_write_b32 v2, v8
    v_mov_b32 v9, 1
    """)
    srd(A, sD, pX, N * 256)
    srd(A, sG, pDBG, 256)
    stamp(A, 1)
    A(f"""
    s_waitcnt lgkmcnt(0)
    s_barrier
    s_waitcnt vmcnt(5)
    """)
    vb, va, vk = 16, 21, 26
    for k in range(5):
        A(f"v_mul_u32_u24 v{vb+k}, 1677, v{vD+k}")
        A(f"v_lshrrev_b32 v{vb+k}, 16, v{vb+k}")
        A(f"v_lshlrev_b32 v{va+k}, 2, v{vb+k}")
        A(f"v_add_u32 v{va+k}, {L_BC}, v{va+k}")
        if k == 4:
            A(f"v_cmp_gt_u32 vcc, {CHE - 2048}, v0\ns_and_saveexec_b64 s[{s_x+2}:{s_x+3}], vcc")
        A(f"ds_add_rtn_u32 v{vk+k}, v{va+k}, v9")
    A(f"""
    s_mov_b64 s[{s_x+4}:{s_x+5}], exec
    s_or_b32 s3, s2, s{s_w}
    s_cbranch_scc1 M_nf0
    s_mov_b64 exec, 1
    buffer_store_dword v9, off, {S(sG)}, 0 offset:128 {SC}
    M_nf0:
    s_mov_b64 exec, -1
    s_lshl_b32 s3, s2, 8
    v_add_u32 v3, s3, v0
    v_bfe_u32 v4, v3, 8, 3           ; s
    v_lshlrev_b32 v4, 5, v4
    v_bfe_u32 v5, v3, 6, 1           ; ab
    v_lshl_add_u32 v4, v5, 4, v4
    v_bfe_u32 v5, v3, 1, 1           ; e>>2
    v_lshl_add_u32 v4, v5, 3, v4
    v_bfe_u32 v5, v3, 7, 1           ; h
    v_lshl_add_u32 v4, v5, 2, v4
    v_and_b32 v5, 1, v3
    v_lshl_add_u32 v4, v5, 1, v4     ; hidden
    v_lshlrev_b32 v4, 8, v4
    v_lshrrev_b32 v5, 11, v3         ; wo
    v_lshl_add_u32 v4, v5, 5, v4
    v_bfe_u32 v5, v3, 2, 4           ; m
    v_lshl_add_u32 v4, v5, 1, v4
    v_lshrrev_b32 v5, 8, v0
    v_lshl_or_b32 v4, v5, 30, v4
    v_lshlrev_b32 v3, 2, v3
    v_lshl_or_b32 v176, v5, 30, v3
    buffer_load_ushort v174, v4, {S(sC)}, 0 offen
    buffer_load_ushort v175, v4, {S(sC)}, 0 offen offset:256
    """)
    xdma(L_XQ, s_nb0)
    small()
    A("s_waitcnt vmcnt(7)")
    for k in range(5):
        A(f"""
        v_and_b32 v{vD+k}, 63, v{vD+k}
        v_lshl_or_b32 v{vS+k}, v{vD+k}, 14, v{vS+k}
        v_add_u32 v{vD+k}, {512*k}, v0
        v_lshl_or_b32 v{vS+k}, v{vD+k}, 20, v{vS+k}
        v_lshlrev_b32 v{va+k}, 7, v{vb+k}
        v_add_u32 v{va+k}, {L_BT}, v{va+k}
        """)
    for k in range(5):
        if k == 4:
            A(f"s_mov_b64 exec, s[{s_x+4}:{s_x+5}]")
        A(f"""
        s_waitcnt lgkmcnt({4-k})
        v_add_u32 v4, v{vk+k}, v{vb+k}
        v_and_b32 v4, 7, v4
        v_lshrrev_b32 v5, 3, v{vk+k}
        v_lshl_add_u32 v4, v4, 2, v5
        v_lshl_add_u32 v{va+k}, v4, 2, v{va+k}
        v_cmp_gt_u32 vcc, 32, v{vk+k}
        s_and_saveexec_b64 s[{s_x+6}:{s_x+7}], vcc
        ds_write_b32 v{va+k}, v{vS+k}
        s_mov_b64 exec, s[{s_x+6}:{s_x+7}]
        """)
    A(f"""
    s_mov_b64 exec, -1
    v_lshrrev_b32 v4, 3, v0
    v_lshlrev_b32 v5, 2, v4
    v_add_u32 v5, {L_BC}, v5
    v_and_b32 v6, 7, v0
    v_lshlrev_b32 v7, 13, v4
    v_lshl_add_u32 v7, v6, 4, v7
    s_lshl_b32 s3, s2, 7
    s_add_u32 s3, s3, {WS_SLOT}
    v_add_u32 v7, s3, v7
    v_cmp_eq_u32 s[{s_x+2}:{s_x+3}], 7, v6
    v_mov_b32 v8, -2
    s_mov_b32 s{s_x+4}, 0
    s_mov_b32 s{s_x+5}, {64*8192}
    s_mov_b32 s{s_x+6}, {128*8192}
    s_mov_b32 s{s_x+7}, {192*8192}
    s_waitcnt lgkmcnt(0)
    s_barrier
    """)
    stamp(A, 2)
    for q in range(4):
        A(f"ds_read_b128 {vr(16+4*q,4)}, v15 offset:{q*8192}")
        A(f"ds_read_b32 v{32+q}, v5 offset:{q*256}")
    A(f"s_mov_b32 s3, {WS_W2F}")
    for q in range(4):
        A(f"""
        s_waitcnt lgkmcnt({6-2*q})
        v_cmp_lt_u32 vcc, 32, v{32+q}
        s_and_b64 vcc, vcc, s[{s_x+2}:{s_x+3}]
        s_nop 1
        v_cndmask_b32 v{19+4*q}, v{19+4*q}, v8, vcc
        buffer_store_dwordx4 {vr(16+4*q,4)}, v7, {S(sWS)}, s{s_x+4+q} offen {SC}
        """)
    A(f"s_waitcnt vmcnt(9)\nv_lshl_or_b32 v174, v175, 16, v174\nbuffer_store_dword v174, v176, {S(sWS)}, s3 offen {SC}")
    stamp(A, 3)
    f0load()
    if "clate" not in OPT:
        gaddr()
        consts()
    A(f"""
    s_waitcnt vmcnt(0)
    s_barrier
    s_cmp_lg_u32 s{s_w}, 0
    s_cbranch_scc1 M_nlast2
    """)
    stamp(A, 16)
    if "direct" not in OPT:
        A(f"""
        s_and_b32 s3, s2, 1
        s_lshl_b32 s3, s3, 6
        s_mov_b32 s{s_x}, 1
        s_atomic_add s{s_x}, s[{pDBG}:{pDBG+1}], s3 glc
        """)
    f0wait("b")
    if "direct" not in OPT:
        A(f"""
        s_waitcnt lgkmcnt(0)
        s_and_b32 s3, s{s_x}, {NCH//2 - 1}
        s_cmp_lg_u32 s3, {NCH//2 - 1}
        s_cbranch_scc1 M_nlast
        """)
    if "bvrel" not in OPT or "direct" in OPT:
        A(f"s_mov_b32 s{s_one}, 1")
        for i in range(16):
            A(f"s_atomic_add s{s_one}, s[{pWS}:{pWS+1}], {WS_RB + 128*i}")
    else:
        release(WS_RB)
    A("M_nlast:")
    stamp(A, 17)
    A("M_nlast2:")
    if "clate" in OPT:
        gaddr()
        consts()
    srd(A, sA, pWS, 0)
    A(f"v_mov_b32 v{vPa}, 0")
    wdma(128 * 512)
    CPF = 1 if "cpf" in OPT else 0
    if CPF:
        A(f"""
        s_getpc_b64 s[{s_x+2}:{s_x+3}]
        s_and_b32 s3, s2, -8
        s_add_u32 s3, s3, s{s_w}
        s_mul_i32 s3, s3, {CPF_STEP}
        s_add_u32 s{s_x+2}, s{s_x+2}, s3
        s_addc_u32 s{s_x+3}, s{s_x+3}, 0
        v_lshlrev_b32 v4, 3, v{L}
        v_mov_b32 v5, s{s_x+3}
        v_add_co_u32 v4, vcc, s{s_x+2}, v4
        s_nop 1
        v_addc_co_u32 v5, vcc, 0, v5, vcc
        global_load_dwordx2 v[224:225], v[4:5], off
        M_cpf0:
        """)
    EPF = CPF + (3 if "epf" in OPT else 0)
    if "epf" in OPT:
        A(f"s_mul_i32 s3, s2, {CHE*8}")
        srd(A, sC, pE, CHE * 8, off="s3")
        A(f"v_lshlrev_b32 v3, 4, v0\ns_mov_b32 s3, 16384\ns_mov_b32 s{s_x+2}, 8192")
        A(f"buffer_load_dwordx4 v[224:227], v3, {S(sC)}, 0 offen")
        A(f"buffer_load_dwordx4 v[224:227], v3, {S(sC)}, s{s_x+2} offen")
        A(f"buffer_load_dwordx4 v[224:227], v3, {S(sC)}, s3 offen")
    zerofill()
    A("s_branch M_join")
    A("M_pwg:")
    srd(A, sD, pX, N * 256)
    srd(A, sB, pW1, 260 * 512)
    A(f"s_sub_u32 s{s_t}, s2, {NCH}\ns_mul_i32 s{s_t}, s{s_t}, {PROWS}")
    xdma(L_XP, s_t)
    A(f"""
    s_and_b32 s3, s2, -8
    s_add_u32 s3, s3, s{s_w}
    s_and_b32 s3, s3, 127
    s_lshl_b32 s3, s3, 10
    v_lshlrev_b32 v3, 4, v{L}
    buffer_load_dwordx4 v[16:19], v3, {S(sB)}, s3 offen
    """)
    srd(A, sWS, pWS, WS_END)
    srd(A, sG, pDBG, 256)
    consts()
    zerofill()
    wdma(0)
    stamp(A, 1)
    gaddr()
    A(f"""
    v_add_u32 v15, {L_XP}, v{vXr}
    v_add_u32 v11, s{s_t}, v4
    v_lshlrev_b32 v11, 9, v11
    v_lshl_add_u32 v11, v3, 4, v11
    s_lshl_b32 s3, s{s_w}, 6
    v_add_u32 v{vPa}, s3, v11
    s_add_u32 s3, s{s_t}, {PROWS}
    s_min_u32 s3, s3, {N}
    s_lshl_b32 s3, s3, 9
    """)
    srd(A, sA, pWS, "s3", off=WS_P)
    A(f"""
    s_waitcnt vmcnt(8)
    s_barrier
    """)
    stamp(A, 2)

    def pstore(mt):
        A(f"s_mov_b32 s3, {mt*8192}\nbuffer_store_dwordx4 {vr(vPO+4*mt,4)}, v{vPa}, {S(sA)}, s3 offen {SC}")

    def xrd(s):
        if s:
            A(f"v_xor_b32 v4, {s << 6:#x}, v15")
        for mt in range(4):
            A(f"ds_read_b128 {vr(vXP + 16*mt + 4*s, 4)}, v{4 if s else 15} offset:{mt*4096}")
    gemm_part(A, None, 4, vXP, vm=[6, 4, 2, 0], xrd=xrd)
    stamp(A, 18)
    f0load()
    xdma(L_XQ, s_nb0)
    small()
    if "w1bfirst" in OPT:
        wdma(128 * 512)
    gemm_pack(A, 4, lambda mt: pstore(mt) if mt in EARLY else None)
    stamp(A, 3)
    if "w1bfirst" not in OPT:
        wdma(128 * 512)
    bigcheck(32)
    A(f"s_waitcnt vmcnt({8 + len(EARLY)})")
    A("M_join:")
    stamp(A, 4)
    A(f"""
    s_mov_b32 s{s_x+2}, {QS - 512}
    v_lshlrev_b32 v8, 16, v{vWEr}
    v_and_b32 v9, 0xffff0000, v{vWEr}
    v_mul_f32 v8, v12, v8
    v_mul_f32 v9, v12, v9
    v_cvt_pk_bf16_f32 v10, v8, v9
    v_lshrrev_b32 v4, 7, v0          ; f
    v_lshlrev_b32 v5, 16, v10
    v_and_b32 v6, 0xffff0000, v10
    v_sub_f32 v8, v8, v5
    v_sub_f32 v9, v9, v6
    v_cvt_pk_bf16_f32 v11, v8, v9
    v_lshlrev_b32 v5, 2, v0
    v_mad_u32_u24 v5, v4, s{s_x+2}, v5
    v_add_u32 v5, {L_WE}, v5
    ds_write_b32 v5, v10
    ds_write_b32 v5, v11 offset:{4*QS}
    """)
    for x in range(4):
        A(f"v_lshlrev_b32 v{vB1+4+2*x}, 16, v{vB1+x}\nv_and_b32 v{vB1+5+2*x}, 0xffff0000, v{vB1+x}")
    A(f"""
    v_and_b32 v8, 15, v{L}               ; n
    v_lshrrev_b32 v9, 4, v{L}            ; q
    v_bfe_u32 v4, v8, 1, 2
    v_xor_b32 v4, v4, v9
    v_lshlrev_b32 v4, 4, v4
    v_lshl_add_u32 v{vSr}, v8, 6, v4
    v_add_u32 v4, s{s_nb0}, v8
    v_lshlrev_b32 v4, 8, v4
    v_lshl_add_u32 v4, v9, 3, v4
    s_lshl_b32 s3, s{s_w}, 5
    v_add_u32 v{vOa}, s3, v4
    v_and_b32 v8, 31, v{L}
    v_lshrrev_b32 v9, 5, v{L}
    v_lshlrev_b32 v9, 1, v9
    v_bfe_u32 v4, v8, 1, 2
    v_xor_b32 v4, v4, v9
    v_lshlrev_b32 v4, 4, v4
    v_lshl_add_u32 v4, v8, 6, v4
    v_add_u32 v{vSa}, s{s_ring}, v4
    v_xor_b32 v{vSb}, 16, v{vSa}
    """)
    A(f"""
    s_cmp_lg_u32 s{s_w}, 0
    s_cbranch_scc1 M_w1d
    """)
    f0wait("a")
    rpoll("a", WS_RB, NCH if "direct" in OPT else 2)
    A("M_w1d:")
    stamp(A, 5)
    A(f"""
    v_add_u32 v15, {L_XQ}, v{vXr}
    s_lshl_b32 s{s_x}, s2, 13
    s_add_u32 s{s_x}, s{s_x}, {WS_SLOT}
    v_lshlrev_b32 v1, 4, v0
    s_waitcnt lgkmcnt(0)
    s_barrier
    buffer_load_dwordx4 v[4:7], v1, {S(sWS)}, s{s_x} offen {SC}
    """)
    if "nosb" not in OPT:
        A("s_barrier")
    for mt in range(4):
        if mt not in EARLY:
            pstore(mt)
    NL = 4 - len(EARLY)
    A(f"""
    s_cmp_lg_u32 s{s_big}, 0
    s_cbranch_scc1 M_pbig
    M_pbigr:
    """)
    stamp(A, 6)
    for s in range(4):
        if s:
            A(f"v_xor_b32 v8, {s << 6:#x}, v15")
        for mt in range(3):
            A(f"ds_read_b128 {vr(vXF + 16*mt + 4*s, 4)}, v{8 if s else 15} offset:{mt*4096}")
    A(f"""
    s_cmp_ge_u32 s2, {NCH}
    s_cbranch_scc1 M_tk1a
    s_waitcnt vmcnt({1 + NL + EPF}) lgkmcnt(0)
    s_branch M_tk1
    M_tk1a:
    s_waitcnt vmcnt({5 if "w1bfirst" in OPT else 1 + NL}) lgkmcnt(0)
    M_tk1:
    """)
    gemm_part(A, vB1 + 4, 3, vXF)
    A(f"""
    v_and_b32 v8, 15, v{L}           ; n
    v_lshrrev_b32 v9, 4, v{L}        ; q
    v_lshlrev_b32 v9, 4, v9
    v_mul_u32_u24 v8, {QS}, v8
    s_lshl_b32 s3, s{s_w}, 6
    s_add_u32 s3, s3, {L_Q}
    v_add3_u32 v{vQa}, v8, v9, s3
    """)
    gemm_pack(A, 3, lambda mt: None, vPO=vQO)
    bigcheck(24)
    stamp(A, 7)
    A(f"s_waitcnt vmcnt({NL})\nM_recs:")
    stamp(A, 8)
    vD4, vRk, vEo, vEv, vBs, vTa = 16, 20, 24, 28, 36, 40
    A(f"s_mov_b32 s{s_x}, 0xfff00000\nv_mov_b32 v1, 1")
    for j in range(4):
        A(f"v_cmp_gt_u32 s[{sM+2*j}:{sM+2*j+1}], s{s_x}, v{4+j}")
    OO = [2, 10, 172]

    def bias_term(A):
        A(f"""
        v_and_b32 v8, 15, v{L}
        v_lshlrev_b32 v9, 2, v8
        ds_bpermute_b32 v6, v9, v{vDeg}
        ds_bpermute_b32 v7, v9, v{vDeg} offset:64
        ds_bpermute_b32 v14, v9, v{vDeg} offset:128
        v_lshlrev_b32 v116, 16, v{vB2}
        v_and_b32 v117, 0xffff0000, v{vB2}
        v_lshlrev_b32 v118, 16, v{vB2+1}
        v_and_b32 v119, 0xffff0000, v{vB2+1}
        s_lshl_b32 s3, s{s_nb1}, 8
        """)
        srd(A, sA, pOUT, "s3")
        A("s_waitcnt lgkmcnt(0)")
        for r in (6, 7, 14):
            A(f"v_cvt_f32_u32 v{r}, v{r}")
        for mt in range(3):
            for i in (0, 2):
                A(f"v_pk_mul_f32 {vr(OO[mt]+i,2)}, {vr(116+i,2)}, {vr(14 if mt == 2 else 6,2)} op_sel:[0,{mt & 1}] op_sel_hi:[1,{mt & 1}]")

    def egather():
        for j in range(4):
            A(f"""
            s_mov_b64 exec, s[{sM+2*j}:{sM+2*j+1}]
            buffer_load_dwordx2 {vr(vEv+2*j,2)}, v{vEo+j}, {S(sE)}, 0 offen
            """)
        A("s_mov_b64 exec, -1")

    for j in range(4):
        A(f"""
        v_lshrrev_b32 v{vEo+j}, 20, v{4+j}
        v_lshl_add_u32 v{vEo+j}, v{vEo+j}, 3, v{vChunk8}
        """)
    for j in range(4):
        A(f"""
        s_mov_b64 exec, s[{sM+2*j}:{sM+2*j+1}]
        s_cbranch_execz M_r1_{j}
        v_lshrrev_b32 v{vD4+j}, 12, v{4+j}
        v_subrev_u32 v{vD4+j}, s{s_nb4}, v{vD4+j}
        v_and_b32 v{vD4+j}, 0xfc, v{vD4+j}
        v_add_u32 v8, {L_CNT}, v{vD4+j}
        ds_add_rtn_u32 v{vRk+j}, v8, v1
        v_and_b32 v{4+j}, 0x3fff, v{4+j}
        M_r1_{j}:
        """)
        if j == 2:
            A(f"""
            s_mov_b64 exec, -1
            v_cmp_eq_u32 vcc, -2, v7
            s_and_b64 exec, exec, vcc
            s_cbranch_execz M_nomark
            v_mov_b32 v8, {L_CNT + 63*4}
            v_mov_b32 v9, 0x10000
            ds_add_u32 v8, v9
            M_nomark:
            """)
    A(f"""
    s_mov_b64 exec, -1
    s_mov_b32 s{s_alt}, 0
    s_mov_b32 s{s_sw}, 0
    v_lshlrev_b32 v9, 3, v{L}
    v_add_u32 v{vaAgg}, {L_AGG}, v9
    v_lshlrev_b32 v11, 2, v{L}
    v_add_u32 v11, 32, v11
    s_waitcnt vmcnt(0) lgkmcnt(0)
    s_barrier
    """)
    stamp(A, 21)
    A(f"""
    ds_read_b32 v8, v{vaCnt}
    v_mov_b32 v57, 0
    s_cmp_lg_u32 s{s_w}, 1
    s_cbranch_scc1 M_tk0
    s_cmp_lg_u32 s{s_slow}, 0
    s_cbranch_scc1 M_tk0
    s_and_b32 s3, s2, 15
    s_lshl_b32 s3, s3, 7
    v_mov_b32 v57, 1
    s_mov_b64 exec, 1
    buffer_atomic_add v57, off, {S(sWS)}, s3 sc0 sc1
    s_mov_b64 exec, -1
    M_tk0:
    s_cmp_lg_u32 s{s_slow}, 0
    s_cbranch_scc1 M_noq
    """)
    for mt in range(3):
        A(f"ds_write_b128 v{vQa}, {vr(vQO+4*mt,4)} offset:{mt*16*QS}")
    A("M_noq:")
    for r in range(16):
        A(f"v_mov_b32 v{vACC+r}, 0")
    A(f"""
    s_waitcnt lgkmcnt(3)
    s_cmp_eq_u32 s{s_slow}, 0
    s_cbranch_scc1 M_noq2
    s_waitcnt lgkmcnt(0)
    M_noq2:
    v_add_u32 v9, 3, v8
    v_and_b32 v9, -4, v9
    v_mov_b32 v10, v9
    v_mov_b32 v{vH}, 0
    v_mov_b32 v{vH+1}, 0
    v_add_u32_dpp v10, v10, v10 row_shr:1 row_mask:0xf bank_mask:0xf bound_ctrl:0
    v_mov_b32 v{vH+2}, 0
    v_mov_b32 v{vH+3}, 0
    v_add_u32_dpp v10, v10, v10 row_shr:2 row_mask:0xf bank_mask:0xf bound_ctrl:0
    v_mov_b32 v{vAgg}, 0
    v_mov_b32 v{vAgg+1}, 0
    v_add_u32_dpp v10, v10, v10 row_shr:4 row_mask:0xf bank_mask:0xf bound_ctrl:0
    s_nop 1
    v_add_u32_dpp v10, v10, v10 row_shr:8 row_mask:0xf bank_mask:0xf bound_ctrl:0
    s_nop 1
    v_add_u32_dpp v10, v10, v10 row_bcast:15 row_mask:0xa bank_mask:0xf
    s_nop 1
    v_add_u32_dpp v10, v10, v10 row_bcast:31 row_mask:0xc bank_mask:0xf
    s_nop 0
    v_sub_u32 v{vBase}, v10, v9
    v_readlane_b32 s{s_tot}, v10, 63
    s_cmp_lg_u32 s{s_w}, 1
    s_cbranch_scc1 M_derive
    s_waitcnt vmcnt(0)
    v_readfirstlane_b32 s3, v57
    s_cmp_lg_u32 s3, 15
    s_cbranch_scc1 M_derive
    """)
    if "vrel" not in OPT:
        A(f"s_mov_b32 s{s_one}, 1")
        for i in range(16):
            A(f"s_atomic_add s{s_one}, s[{pWS}:{pWS+1}], {WS_RP + 128*i}")
    else:
        A(f"""
        v_lshlrev_b32 v12, 7, v{L}
        v_mov_b32 v13, 1
        s_mov_b32 s3, {WS_RP}
        s_mov_b64 exec, 0xffff
        buffer_atomic_add v13, v12, {S(sWS)}, s3 offen sc1
        s_mov_b64 exec, -1
        """)
    A(f"""
    M_derive:
    """)
    for j in range(4):
        A(f"ds_bpermute_b32 v{vBs+j}, v{vD4+j}, v{vBase}")
    A(f"""
    ds_bpermute_b32 v12, v11, v{vBase}
    s_cmp_gt_u32 s{s_tot}, {CAP_T*32}
    s_cbranch_scc1 M_goslow
    v_readlane_b32 s{s_T0p}, v{vBase}, 32
    s_add_u32 s{s_T}, s{s_tot}, 31
    s_lshr_b32 s{s_T}, s{s_T}, 5
    v_add3_u32 v13, v{vBase}, v9, 63
    v_and_b32 v13, 0xffffffc0, v13         ; end of the tile pair that holds node i's last slot
    s_waitcnt lgkmcnt(0)
    v_cmp_gt_u32 vcc, v13, v12
    v_cmp_ne_u32 s[{s_x}:{s_x+1}], s{s_tot}, v12
    s_andn2_b32 s{s_x+1}, vcc_lo, s{s_alt}
    s_and_b32 s{s_x}, s{s_x}, s{s_x+1}
    s_cbranch_scc1 M_align
    """)
    stamp(A, 22)
    A(f"""
    v_mov_b32 v1, 0x3f80
    """)
    for j in range(4):
        A(f"""
        s_mov_b64 exec, s[{sM+2*j}:{sM+2*j+1}]
        s_cbranch_execz M_r2_{j}
        v_add_u32 v{vRk+j}, v{vRk+j}, v{vBs+j}
        v_lshlrev_b32 v9, 2, v{vRk+j}
        v_add_u32 v9, {L_LIST}, v9
        ds_write_b32 v9, v{4+j}
        v_and_b32 v9, 0x80, v{vD4+j}
        v_add_u32 v9, v9, v{vD4+j}
        v_bfe_u32 v10, v{vRk+j}, 2, 2
        v_add_lshl_u32 v9, v9, v10, 1
        v_lshrrev_b32 v10, 4, v{vRk+j}
        v_lshl_add_u32 v9, v10, 8, v9
        v_add_u32 v9, {L_AGG}, v9
        ds_write_b16 v9, v1
        v_lshrrev_b32 v9, 4, v{vRk+j}
        v_and_b32 v10, 63, v{vRk+j}
        v_and_b32 v9, -4, v9
        v_cmp_eq_u32 vcc, 0, v10
        v_add_u32 v{vTa+j}, {L_N0}, v9
        s_and_b64 exec, exec, vcc
        ds_write_b32 v{vTa+j}, v{vD4+j}
        M_r2_{j}:
        """)
    if "elate" in OPT:
        A("s_mov_b64 exec, -1")
    else:
        egather()
    A(f"""
    s_cmp_lt_u32 s{s_T0p}, s{s_tot}
    s_cselect_b32 s{s_x}, 5, 31
    s_cselect_b32 s{s_x+1}, 1, 0x7fffffff
    s_lshr_b32 s{s_T0p}, s{s_T0p}, s{s_x}
    s_add_u32 s{s_T0p}, s{s_T0p}, s{s_x+1}
    v_add_u32 v{vDeg}, v{vDeg}, v8
    s_mul_i32 s{s_pri}, s{s_T}, {PRIO_NUM}
    s_lshr_b32 s{s_pri}, s{s_pri}, 5
    s_cmp_lt_u32 s{s_w}, 4
    s_cselect_b32 s{s_pri}, 0x7fffffff, s{s_pri}
    s_sub_u32 s{s_next}, s{s_T}, 1
    s_min_i32 s{s_next}, s{s_next}, s{s_T0p}
    s_min_i32 s{s_next}, s{s_next}, s{s_pri}
    v_mov_b32 v1, 0x3f80
    """)
    A(f"v_mov_b32 v56, {L_N0}")
    stamp(A, 23)
    A(f"""
    v_mov_b32 v{vAgg+2}, 0
    v_mov_b32 v{vAgg+3}, 0
    s_waitcnt lgkmcnt(0)
    s_barrier
    """)
    stamp(A, 9)
    PSC = "sc1" if "psc1" in OPT else ("nt" if "pnt" in OPT else ("sc0 sc1" if "psc01" in OPT else ""))

    def dma(t, jj):
        r = vOff + 2 * t + jj if t < CAP_T else vDum
        fl = "nt" if t >= NT0 else PSC
        return f"buffer_load_dwordx4 v{r}, {S(sP)}, 0 offen offset:{(t & 1)*2048 + jj*1024} {fl} lds"

    def m0set(t):
        return f"s_mov_b32 m0, s{s_ring if (t % 4) < 2 else s_ringh}"

    def offs(lo, hi, after=None, A=A):
        for t0 in range(lo, hi, 8):
            ts = range(t0, min(t0 + 8, hi))
            for t in ts:
                A(f"ds_read_b64 {vr(vOff+2*t,2)}, v{vaList} offset:{t*128}")
            for i, t in enumerate(ts):
                A(f"s_waitcnt lgkmcnt({len(ts)-1-i})")
                for jj in range(2):
                    A(f"v_lshl_add_u32 v{vOff+2*t+jj}, v{vOff+2*t+jj}, 9, v{vK0 + 2*(t & 1) + jj}")
                if after:
                    after(t)

    for j in range(4):
        A(f"ds_read_b32 v{vBs+j}, v{vTa+j}")
    for g in range(4):
        A(f"ds_read_b128 {vr(vBa+4*g,4)}, v56 offset:{16*g}")
    offs(0, 6)
    A(f"""
    s_mov_b32 s{s_f0}, 16
    s_cmp_lg_u32 s{s_w}, 0
    s_cbranch_scc1 M_nolook
    s_and_b32 s3, s2, 15
    s_lshl_b32 s3, s3, 7
    s_add_u32 s3, s3, {WS_RP}
    s_mov_b32 s{s_f0}, 0
    s_atomic_add s{s_f0}, s[{pWS}:{pWS+1}], s3 glc
    M_nolook:
    """)
    stamp(A, 19)
    A("s_waitcnt vmcnt(0)")
    stamp(A, 20)
    A("v_mov_b32 v59, 0")
    for j in range(4):
        A(f"""
        s_mov_b64 exec, s[{sM+2*j}:{sM+2*j+1}]
        s_cbranch_execz M_r3_{j}
        v_lshlrev_b32 v8, 4, v{vRk+j}
        v_add_u32 v8, {L_AQE}, v8
        ds_write2_b64 v8, {vr(vEv+2*j,2)}, {vr(vEv+2*j,2)} offset0:0 offset1:1
        v_sub_u32 v9, v{vD4+j}, v{vBs+j}
        v_lshrrev_b32 v9, 1, v9
        v_add_u32 v9, v9, v8
        ds_write_b16 v9, v1 offset:{L_AQH - L_AQE}
        v_and_b32 v8, 0x7fff7fff, v{vEv+2*j}
        v_and_b32 v9, 0x7fff7fff, v{vEv+2*j+1}
        v_pk_max_u16 v8, v8, v9
        v_pk_max_u16 v59, v59, v8
        M_r3_{j}:
        """)
    A("s_mov_b64 exec, -1")
    if "nodefer" in OPT:
        A("s_waitcnt lgkmcnt(0)")
        offs(6, CAP_T)
        for t in range(CAP_T):
            A(f"v_mad_u32_u24 v{vBa+t}, v{vBa+t}, v{vBmul}, v{vaB}")
    A(f"""
    v_lshlrev_b32 v8, 16, v59
    v_and_b32 v59, 0xffff0000, v59
    v_max_u32 v59, v59, v8
    {m0set(0)}
    v_mov_b32 v9, {L_MX}
    v_max_u32_dpp v59, v59, v59 row_shr:1 row_mask:0xf bank_mask:0xf bound_ctrl:0
    s_nop 1
    v_max_u32_dpp v59, v59, v59 row_shr:2 row_mask:0xf bank_mask:0xf bound_ctrl:0
    s_nop 1
    v_max_u32_dpp v59, v59, v59 row_shr:4 row_mask:0xf bank_mask:0xf bound_ctrl:0
    s_nop 1
    v_max_u32_dpp v59, v59, v59 row_shr:8 row_mask:0xf bank_mask:0xf bound_ctrl:0
    s_waitcnt lgkmcnt(0)
    s_and_b32 s3, s{s_f0}, 0xffff
    s_cmp_eq_u32 s3, 16
    s_cbranch_scc1 M_w2
    """)
    rpoll("b", WS_RP, 16, keep=s_f0)
    A(f"""
    M_w2:
    s_cmp_lt_u32 s{s_f0}, 0x10000
    s_cbranch_scc1 M_w3
    v_mov_b32 v59, 0x7f800000
    M_w3:
    s_mov_b32 exec_lo, 0x80008000
    s_mov_b32 exec_hi, 0x80008000
    ds_max_u32 v9, v59
    s_mov_b64 exec, -1
    s_waitcnt lgkmcnt(0)
    s_barrier
    """)
    stamp(A, 10)
    A(f"""
    s_cmp_eq_u32 s{s_T}, 0
    s_cbranch_scc1 M_empty
    {dma(0, 0)}
    {dma(0, 1)}
    """)
    stamp(A, 11)

    def bread(t):
        r = vBa + min(t, CAP_T - 1) // 2
        if t & 1:
            return []
        return [f"ds_read_b64_tr_b16 {vr(vBq,2)}, v{r}", f"ds_read_b64_tr_b16 {vr(vBq+2,2)}, v{r} offset:{4*QS}"]

    def w2load(s):
        return f"buffer_load_dwordx4 {vr(vW2+4*s,4)}, v{vW2a}, {S(sWS)}, s{s_w2 + (s >> 2)} offen offset:{(s & 3)*1024} sc1"

    A(f"v_mov_b32 v9, {L_MX}\nds_read_b32 v59, v9")
    for t in range(6, 16):
        A(f"ds_read_b64 {vr(vOff+2*t,2)}, v{vaList} offset:{t*128}")
    for t in range(CAP_T // 2):
        A(f"v_mad_u32_u24 v{vBa+t}, v{vBa+t}, v{vBmul}, v{vaB}")
    A("\n".join(bread(0)))
    A(f"""
    ds_read_b128 {vr(vAqe,4)}, v{vaAqe}
    s_barrier
    {dma(1, 0)}
    {dma(1, 1)}
    {m0set(2)}
    s_waitcnt lgkmcnt(3)
    """)
    for t in range(16, CAP_T):
        A(f"ds_read_b64 {vr(vOff+2*t,2)}, v{vaList} offset:{t*128}")

    def offadd(lo, hi):
        for t in range(lo, hi):
            for jj in range(2):
                A(f"v_lshl_add_u32 v{vOff+2*t+jj}, v{vOff+2*t+jj}, 9, v{vK0 + 2*(t & 1) + jj}")
    offadd(6, 16)
    A("s_waitcnt lgkmcnt(0)")
    offadd(16, CAP_T)
    A(f"""
    s_cmp_lt_u32 s{s_w}, 4
    s_cbranch_scc1 M_nopri
    s_setprio 1
    M_nopri:
    v_lshlrev_b32 v8, 16, v{vBq}
    v_and_b32 v9, 0xffff0000, v{vBq}
    v_add_f32 v8, |v8|, |v9|
    v_lshlrev_b32 v9, 16, v{vBq+1}
    v_add_f32 v8, v8, |v9|
    v_and_b32 v9, 0xffff0000, v{vBq+1}
    v_add_f32 v8, v8, |v9|
    v_mul_f32 v8, v8, v59
    v_cmp_nge_f32 vcc, {f32(BND_E / 1.01):#x}, v8
    s_or_b32 s3, s{s_big}, s{s_slow}
    s_or_b32 s{s_K}, s3, vcc_lo
    s_cmp_eq_u32 s{s_K}, 0
    s_mov_b32 s{s_K}, {f32(-math.log(2.0) * 2.0 ** -CEXP):#x}
    s_cselect_b32 s3, 1.0, {f32(2.0**-CEXP):#x}
    s_cselect_b32 s{s_K}, {f32(-math.log(2.0)):#x}, s{s_K}
    v_mov_b32 v{vC}, s3
    v_mov_b32 v{vC+1}, s3
    """)
    mfma32(A, vU[0], vAqe, vBq, None)
    A("\n".join(bread(1)))
    A(f"""
    ds_read_b128 {vr(vAqe,4)}, v{vaAqe} offset:512
    s_barrier
    {dma(2, 0)}
    {dma(2, 1)}
    s_waitcnt vmcnt(4)
    ds_read_b128 {vr(vPf0,4)}, v{vaP0}
    ds_read_b128 {vr(vPf1,4)}, v{vaP1}
    s_waitcnt lgkmcnt(1)
    """)
    mfma32(A, vU[0], vPf0, vSel0, vU[0])
    A("s_waitcnt lgkmcnt(0)")
    mfma32(A, vU[0], vPf1, vSel1, vU[0])
    A(f"s_cmp_eq_u32 s3, 1.0\ns_nop 9\ns_cbranch_scc0 M_safe")
    stamp(A, 12)

    def half2(U, par, fast):
        if fast:
            rc = [f"v_rcp_f32 v{vT+i}, v{vT+i}" for i in range(4)]
            rest = [f"v_pk_mul_f32 {vr(U+i,2)}, {vr(U+i,2)}, {vr(vT+i,2)}" for i in (0, 2)]
        else:
            rc = [f"v_rcp_f32 v{vT+i}, v{vT+i}" for i in (0, 1, 2, 3, 8, 9, 10, 11)]
            rest = [f"v_pk_mul_f32 {vr(U+i,2)}, {vr(U+i,2)}, {vr(vT+i,2)}" for i in (0, 2)]
            rest += [f"v_pk_fma_f32 {vr(U+i,2)}, {vr(U+8+i,2)}, {vr(vT+8+i,2)}, {vr(U+i,2)}" for i in (0, 2)]
        rest += [f"v_cvt_pk_bf16_f32 v{vH+2*par+i//2}, v{U+i}, v{U+i+1}" for i in (0, 2)]
        return rc, rest

    def second_half(B, U, par, fast, aggread):
        rc, rest = half2(U, par, fast)
        if par == 0:
            mfma32(B, vACC, vH, vAgg, vACC)
        B("\n".join(rc + ([aggread] if aggread else []) + rest))

    vmq = ["d"] * (2 * (D + 1))

    def vm_need(t):
        seen = 0
        for i, k in enumerate(vmq):
            if k == "d":
                seen += 1
                if seen == 2 * (t + 1):
                    return len(vmq) - 1 - i

    ool = Asm()

    def emit_loop(A, md, fast):
        del vmq[2 * (D + 1):]
        A(".p2align 3")
        for t in range(CAP_T):
            U, Un = vU[t & 1], vU[(t + 1) & 1]
            tn = t + 1 + D
            s2 = ((t + 2) % D) * 2048
            ex = [f"v_exp_f32 v{vT+i}, v{U+i}" for i in range(16)]
            if "itst" in OPT:
                A(f"s_memtime s[100:101]")
            late_vm = t < NSHORT + 2
            FIRST = t == 0
            SHORT = t < NSHORT
            A(f"s_waitcnt lgkmcnt(0)" if late_vm else f"s_waitcnt vmcnt({vm_need(t+2)}) lgkmcnt(0)")
            if "itst" in OPT:
                A(f"s_waitcnt lgkmcnt(0)\nv_writelane_b32 v{vSt}, s100, {16+t}")
            def P(op, d, a, b, c=None, cl=""):
                return [f"v_pk_{op}_f32 {vr(d+i,2)}, {vr(a+i,2)}, {vr(b if b == vC else b+i,2)}"
                        + (f", {vr(c if c == vC else c+i,2)}" if c is not None else "") + cl for i in (0, 2)]
            if fast:
                pk = P("fma", U+4, U+4, vT, U+4) + P("add", vT+4, vT+4, vC) + P("fma", U+12, U+12, vT+8, U+12) + P("add", vT+12, vT+12, vC)
                pk += P("fma", U, U, vT+4, U+4) + P("fma", vT, vT, vT+4, vT+4)
                pk += P("fma", U+8, U+8, vT+12, U+12) + P("fma", vT+8, vT+8, vT+12, vT+12)
                pk += P("mul", U+8, U+8, vT) + P("fma", U, U, vT+8, U+8) + P("mul", vT, vT, vT+8)
                P_VM, P_LATE, P_F, P_CMP = 10, 13, 15, 18
            else:
                pk = []
                for g in (0, 4, 8, 12):
                    pk += P("fma", vT+g, vT+g, vC, vC, " clamp")
                for g in (0, 8):
                    pk += P("mul", U+g, U+g, vT+g+4) + P("fma", U+g, U+g+4, vT+g, U+g) + P("mul", vT+g, vT+g, vT+g+4)
                P_VM, P_LATE, P_F, P_CMP = 9, 12, 14, 16
            g_ds = ([m0set(tn)] if tn % 2 == 0 else []) + [f"ds_read_b128 {vr(vAqe,4)}, v{vaAqe} offset:{(t+2)*512}"] + bread(t + 2)
            if t & 1:
                g_ds.append(f"ds_read2st64_b64 {vr(vAgg,4)}, v{vaAgg} offset0:{t-1} offset1:{t}")
            g_p = [f"ds_read_b128 {vr(vPf0,4)}, v{vaP0} offset:{s2}", f"ds_read_b128 {vr(vPf1,4)}, v{vaP1} offset:{s2}"]
            g_vm = [dma(tn, 0), dma(tn, 1)]
            s1 = ((t + 1) % D) * 2048
            mid = []
            if SHORT:
                groups = {P_F: [f"s_waitcnt vmcnt({vm_need(t+1) - (2 if FIRST else 0)})",
                                f"ds_read_b128 {vr(vPf0,4)}, v{vaP0} offset:{s1}", f"ds_read_b128 {vr(vPf1,4)}, v{vaP1} offset:{s1}"]
                          + ([dma(D, 0), dma(D, 1)] if FIRST else [])}
                tail0 = g_vm + ([f"s_waitcnt vmcnt({vm_need(t+2) + 2})"] + g_p if t == NSHORT - 1 else [])
                mid = g_ds
            elif late_vm:
                groups = {P_LATE: [f"s_waitcnt vmcnt({vm_need(t+2)})"] + g_p + g_vm}
                mid = g_ds
            else:
                groups = {6: g_vm}
                mid = g_ds + g_p
            mfma32(A, Un, vAqe, vBq, None)
            if SHORT:
                A("\n".join(ex[0:13] + mid + ex[13:16] + ([dma(3, 0), dma(3, 1), m0set(D)] if FIRST else [])))
            else:
                A("\n".join(ex[0:4]))
                mfma32(A, Un, vPf0, vSel0, Un)
                A("\n".join(ex[4:8]))
                mfma32(A, Un, vPf1, vSel1, Un)
                A("\n".join(ex[8:13] + mid + ex[13:16]))
            vmq.extend(["d", "d"])
            if W2T0 <= t < W2T0 + 8:
                g_vm.append(w2load(t - W2T0))
                vmq.append("w")
            groups[P_CMP] = [f"s_cmp_le_i32 s{s_next}, {t}"]
            for i, x in enumerate(pk):
                A(x)
                if FIRST and i == 0 and "it0" in OPT:
                    stamp(A, 44)
                if FIRST and i == P_F:
                    if "it0" in OPT:
                        stamp(A, 45)
                    bias_term(A)
                    if "it0" in OPT:
                        stamp(A, 46)
                if FIRST and i == P_F + 1 and "it0" in OPT:
                    stamp(A, 47)
                for y in groups.get(i, []):
                    if not ("nodma" in OPT and " lds" in y):
                        A(y)
            A(f"s_cbranch_scc1 M_ev{md}{t}\nM_evr{md}{t}:")
            if SHORT:
                rc, rest = half2(U, t & 1, fast)
                k = len(rc) // 2
                if t and not t & 1:
                    mfma32(A, vACC, vH, vAgg, vACC)
                A("\n".join(rc[0:k]) + "\ns_waitcnt lgkmcnt(0)")
                mfma32(A, Un, vPf0, vSel0, Un)
                A("\n".join(rc[k:]))
                mfma32(A, Un, vPf1, vSel1, Un)
                A("\n".join(tail0 + rest + ["s_nop 3"]))
            else:
                second_half(A, U, t & 1, fast, None)
            ool(f"""
            M_ev{md}{t}:
            s_movk_i32 s{s_t}, {t}
            s_call_b64 s[{s_ret}:{s_ret+1}], M_rare
            s_cbranch_scc1 M_tail{md}{t & 1}
            s_branch M_evr{md}{t}
            """)

    emit_loop(A, "f", True)
    A("s_branch M_fin")
    def emit_tails(A, md, fast):
        for p in range(2):
            A(f"""
            M_tail{md}{p}:
            s_lshl_b32 s3, s{s_t}, 9
            v_add_u32 v8, s3, v{vaAgg}
            """)
            second_half(A, vU[p], p, fast, None if p else f"ds_read_b64 {vr(vAgg,2)}, v8")
            if p == 0:
                A(f"v_mov_b32 v{vAgg+2}, 0\nv_mov_b32 v{vAgg+3}, 0")
            if p == 0 or not fast:
                A("s_branch M_fin")
    emit_tails(A, "f", True)
    A(f"""
    M_fin:
    s_mov_b32 s{s_t}, s{s_T}
    s_cmp_eq_u32 s{s_T0p}, s{s_T}
    s_cbranch_scc0 M_fin2
    s_call_b64 s[{s_ret}:{s_ret+1}], M_rare
    M_fin2:
    s_waitcnt lgkmcnt(0)
    """)
    mfma32(A, vACC, vH, vAgg, vACC)
    stamp(A, 13)
    A(f"""
    s_cmp_lg_u32 s{s_sw}, 0
    s_nop 11
    s_cbranch_scc1 M_fin_hi
    """)
    for r in range(0, 16, 2):
        A(f"v_pk_add_f32 {vr(vS0+r,2)}, {vr(vS0+r,2)}, {vr(vACC+r,2)}")
    A("s_branch M_bend\nM_fin_hi:")
    for r in range(0, 16, 2):
        A(f"v_pk_add_f32 {vr(vS1+r,2)}, {vr(vS1+r,2)}, {vr(vACC+r,2)}")
    K = -math.log(2.0) * 2.0 ** -CEXP
    A(f"""
    M_bend:
    s_setprio 0
    s_cmp_lg_u32 s{s_slow}, 0
    s_cbranch_scc1 M_next
    M_epi:
    s_cmp_gt_u32 s{s_T}, {W2T0 + 8}
    s_cbranch_scc1 M_epi2
    """)
    for s_ in range(8):
        A(w2load(s_))
    A(f"""
    M_epi2:
    v_mov_b32 v{vC}, s{s_K}
    v_mov_b32 v{vC+1}, s{s_K}
    """)
    for Sx, o in ((vS0, 16), (vS1, 24)):
        for r in range(0, 16, 2):
            A(f"v_pk_mul_f32 {vr(Sx+r,2)}, {vr(Sx+r,2)}, {vr(vC,2)}")
        for r in range(0, 16, 2):
            A(f"v_cvt_pk_bf16_f32 v{o+r//2}, v{Sx+r}, v{Sx+r+1}")
        if o == 16:
            A(f"s_waitcnt vmcnt(0)\nds_write_b128 v{vSa}, v[16:19]\nds_write_b128 v{vSb}, v[20:23]")
    A(f"""
    ds_write_b128 v{vSa}, v[24:27] offset:2048
    ds_write_b128 v{vSb}, v[28:31] offset:2048
    s_mov_b32 s{s_x}, 4096
    s_mov_b32 s{s_x+1}, 8192
    s_waitcnt lgkmcnt(0)
    s_barrier
    """)
    stamp(A, 14)
    SFR = 48
    order = [(s, mt) for s in range(8) for mt in range(3)]
    RS = D * 2048
    AHEAD = 12
    for k in range(AHEAD):
        s, mt = order[k]
        A(f"ds_read_b128 {vr(SFR+4*k,4)}, v{vSr} offset:{s*RS+mt*1024}")
    for k in range(24):
        s, mt = order[k]
        A(f"s_waitcnt lgkmcnt({min(AHEAD - 1, 23 - k)})")
        mfma16(A, OO[mt], vW2 + 4 * s, SFR + 4 * k, OO[mt])
        if k + AHEAD < 24:
            s2, mt2 = order[k + AHEAD]
            A(f"ds_read_b128 {vr(SFR+4*(k+AHEAD),4)}, v{vSr} offset:{s2*RS+mt2*1024}")
    A("s_nop 5")
    for mt in range(3):
        A(f"""
        v_cvt_pk_bf16_f32 v{16+2*mt}, v{OO[mt]}, v{OO[mt]+1}
        v_cvt_pk_bf16_f32 v{17+2*mt}, v{OO[mt]+2}, v{OO[mt]+3}
        buffer_store_dwordx2 {vr(16+2*mt,2)}, v{vOa}, {S(sA)}, {["0", f"s{s_x}", f"s{s_x+1}"][mt]} offen {"sc1" if "outsc" in OPT else ("nt" if "outnt" in OPT else "")}
        """)
    if (SPIN is not None and SPIN[0] == 15) or ENC is not None:
        A("s_waitcnt vmcnt(0)")
        stamp(A, 15)
    if STAMPS:
        A("s_waitcnt vmcnt(0)")
        stamp(A, 15)
        srd(A, sA, pWS, 0x80000, off=WS_ST)
        A(f"""
        s_lshl_b32 s3, s2, 3
        s_add_u32 s3, s3, s{s_w}
        s_lshl_b32 s3, s3, 8
        v_lshl_add_u32 v1, v{L}, 2, s3
        buffer_store_dword v{vSt}, v1, {S(sA)}, 0 offen
        """)
    A("M_end:\ns_endpgm")

    A(f"""
    M_rare:
    s_cmp_eq_u32 s{s_T0p}, s{s_t}
    s_cbranch_scc0 M_rare2
    s_lshl_b32 s3, s{s_t}, 9
    v_add_u32 v8, s3, v{vaAgg}
    v_add_u32 v{vaAgg}, 512, v{vaAgg}
    s_mov_b32 s{s_sw}, 1
    s_mov_b32 s{s_T0p}, 0x7fffffff
    s_bitcmp1_b32 s{s_t}, 0
    s_waitcnt lgkmcnt(0)
    s_cbranch_scc1 M_swo
    """)
    for odd in (0, 1):
        hi, other = (vAgg, vAgg + 2) if odd else (vAgg + 2, vAgg)
        if odd:
            A(f"M_swo:\nv_mov_b32 v{other}, 0\nv_mov_b32 v{other+1}, 0\ns_nop 1")
        mfma32(A, vACC, vH, vAgg, vACC)
        A(f"""
        v_mov_b32 v{other}, 0
        v_mov_b32 v{other+1}, 0
        ds_read_b64 {vr(hi,2)}, v8
        s_nop 8
        """)
        for r in range(0, 16, 2):
            A(f"v_pk_add_f32 {vr(vS0+r,2)}, {vr(vS0+r,2)}, {vr(vACC+r,2)}")
        A("s_waitcnt lgkmcnt(0)")
        mfma32(A, vACC, vH, vAgg, None)
        A(f"v_mov_b32 v{hi}, 0\nv_mov_b32 v{hi+1}, 0")
        if odd:
            A(f"ds_read_b64 {vr(other,2)}, v8 offset:512")
        if not odd:
            A("s_branch M_rare2")
    A(f"""
    M_rare2:
    s_cmp_le_i32 s{s_pri}, s{s_t}
    s_cbranch_scc0 M_rare3
    s_setprio 0
    s_mov_b32 s{s_pri}, 0x7fffffff
    M_rare3:
    s_sub_u32 s3, s{s_T}, 1
    s_min_i32 s{s_next}, s3, s{s_T0p}
    s_min_i32 s{s_next}, s{s_next}, s{s_pri}
    s_cmp_le_i32 s3, s{s_t}
    s_setpc_b64 s[{s_ret}:{s_ret+1}]
    """)

    A(f"""
    M_pbig:
    v_lshlrev_b32 v8, 7, v{L}
    v_mov_b32 v9, 0x10000
    s_mov_b32 s3, {WS_RP}
    s_mov_b64 exec, 0xffff
    buffer_atomic_add v9, v8, {S(sWS)}, s3 offen sc1
    s_mov_b64 exec, -1
    s_branch M_pbigr
    """)
    A(f"M_empty:\ns_mov_b32 s{s_K}, {f32(-math.log(2.0) * 2.0 ** -CEXP):#x}")
    bias_term(A)
    A("s_branch M_bend")
    A(f"""
    M_align:
    s_mov_b32 s{s_alt}, -1
    s_mov_b32 s{s_x+2}, 0
    v_mov_b32 v13, v{vBase}
    """)
    for G in range(5):
        A(f"""
        v_readlane_b32 s{s_x}, v{vBase}, {8*G}
        v_readlane_b32 s{s_x+1}, v{vBase}, {8*G+8}
        s_nop 1
        s_sub_u32 s{s_x+3}, s{s_x+2}, s{s_x}
        v_cmp_le_u32 vcc, {8*G}, v{L}
        v_add_u32 v10, s{s_x+3}, v{vBase}
        s_sub_u32 s{s_x+1}, s{s_x+1}, s{s_x}
        s_add_u32 s{s_x+2}, s{s_x+2}, s{s_x+1}
        v_cndmask_b32 v13, v13, v10, vcc
        """)
        if G < 4:
            A(f"s_add_u32 s{s_x+2}, s{s_x+2}, 63\ns_and_b32 s{s_x+2}, s{s_x+2}, 0xffffffc0")
    A(f"""
    s_mov_b32 s{s_tot}, s{s_x+2}
    v_mov_b32 v{vBase}, v13
    s_nop 1
    s_branch M_derive
    """)
    A(f"""
    M_goslow:
    s_mov_b32 s{s_slow}, 1
    s_mov_b32 s{s_batch}, 0
    s_branch M_load
    M_next:
    s_add_u32 s{s_batch}, s{s_batch}, {SLOWB}
    s_cmp_ge_u32 s{s_batch}, {E}
    s_cbranch_scc1 M_epi
    M_load:
    """)
    srd(A, sA, pDST, E * 4)
    srd(A, sB, pSRC, E * 4)
    A(f"""
    v_add_u32 v8, s{s_batch}, v0
    v_lshlrev_b32 v9, 2, v8
    s_waitcnt vmcnt(0) lgkmcnt(0)
    buffer_load_dword v10, v9, {S(sA)}, 0 offen
    buffer_load_dword v11, v9, {S(sB)}, 0 offen
    v_lshlrev_b32 v{vChunk8}, 3, v8
    v_mov_b32 v5, -1
    v_mov_b32 v6, -1
    v_mov_b32 v7, -1
    s_add_u32 s{s_x+2}, s{s_batch}, {SLOWB}
    s_min_u32 s{s_x+2}, s{s_x+2}, {E}
    s_waitcnt vmcnt(0)
    v_subrev_u32 v12, s{s_nb0}, v10
    v_cmp_gt_u32 vcc, s{s_nn}, v12
    v_cmp_gt_u32 s[{s_x}:{s_x+1}], s{s_x+2}, v8
    v_and_b32 v10, 63, v10
    v_lshl_or_b32 v11, v10, 14, v11
    s_and_b64 vcc, vcc, s[{s_x}:{s_x+1}]
    s_nop 1
    v_cndmask_b32 v4, v5, v11, vcc
    s_barrier
    """)
    zerofill()
    A("s_waitcnt lgkmcnt(0)\ns_barrier\ns_branch M_recs")
    A.l += [l for l in ool.l]
    ool.l.clear()
    A("M_cpf1:")
    B2 = Asm()
    B2("M_safe:")
    emit_loop(B2, "s", False)
    B2("s_branch M_fin")
    emit_tails(B2, "s", False)
    A.l += B2.l
    A.l += ool.l


def build():
    out = f"""; Fused edge-featured MPNN layer, one workgroup per bucket of 39/40 destination nodes.
; @launch grid=(256,1,1) block=(512,1,1) lds={LDS_BYTES}
.amdgcn_target "amdgcn-amd-amdhsa--gfx950"
.text
.globl {KN}
.p2align 8
.type {KN},@function
"""
    A = Asm()
    kernel(A)
    out += A.text()
    out += f""".section .rodata,"a"
.p2align 6
.amdhsa_kernel {KN}
  .amdhsa_next_free_vgpr {NV}
  .amdhsa_next_free_sgpr 102
  .amdhsa_accum_offset {(NV + 3) // 4 * 4}
  .amdhsa_group_segment_fixed_size 0
  .amdhsa_kernarg_size 88
  .amdhsa_user_sgpr_count 2
  .amdhsa_user_sgpr_kernarg_segment_ptr 1
  .amdhsa_system_sgpr_workgroup_id_x 1
.end_amdhsa_kernel
"""
    return out


if __name__ == "__main__":
    for a in list(sys.argv):
        if a.startswith("-o"):
            OPT.update(a[2:].split(","))
            sys.argv.remove(a)
    for a in list(sys.argv):
        if a.startswith("-spin"):
            i, us = a[5:].split(":")
            SPIN = (int(i), float(us))
            sys.argv.remove(a)
    for a in list(sys.argv):
        if a.startswith("-wsb"):
            WS_BASE = int(a[4:]) << 20
            sys.argv.remove(a)
    for a in list(sys.argv):
        if a.startswith("-enc"):
            ENC = int(a[4:])
            sys.argv.remove(a)
    for a in list(sys.argv):
        if a.startswith("-pri"):
            PRIO_NUM = int(a[4:])
            sys.argv.remove(a)
    for a in list(sys.argv):
        if a.startswith("-nt"):
            NT0 = int(a[3:])
            sys.argv.remove(a)
    for a in list(sys.argv):
        if a.startswith("-early"):
            EARLY = tuple(int(c) for c in a[6:])
            sys.argv.remove(a)
    for a in list(sys.argv):
        if a.startswith("-ns"):
            NSHORT = int(a[3:])
            sys.argv.remove(a)
    for a in list(sys.argv):
        if a.startswith("-w2t"):
            W2T0 = int(a[4:])
            sys.argv.remove(a)
    if "--stamps" in sys.argv:
        STAMPS = True
        sys.argv.remove("--stamps")
    path = sys.argv[1] if len(sys.argv) > 1 else f"cdna_kernels/{NAME}.s"
    if "cpf" in OPT:
        import subprocess
        open("_p.s", "w").write(build())
        subprocess.check_call(["clang", "-x", "assembler", "-target", "amdgcn-amd-amdhsa", "-mcpu=gfx950", "-c", "_p.s", "-o", "_p.o"])
        nm = {l.split()[-1]: int(l.split()[1], 16) for l in subprocess.check_output(["llvm-readelf", "-s", "_p.o"], text=True).splitlines() if "M_cpf" in l}
        CPF_STEP = ((nm["M_cpf1"] - nm["M_cpf0"] - 512) // 63) & -4
        print("code prefetch step", CPF_STEP)
        assert 65 <= CPF_STEP <= 512
    open(path, "w").write(build())
    print("wrote", path, "lds", LDS_BYTES)
```

```python
import sys, struct, math

NAME = "gather_scatter__edge_featured_mpnn_mpnn__graph"
KN = NAME + "_kernel"
N, E = 10000, 160000

WS_CNT = 0
WS_RB = 16 * 128
WS_RP = 32 * 128
WS_W2F = 0x2000
WS_SLOT = 0x12000
WS_P = 0x213000
TABB = N * 512
WS_END = WS_P + TABB
WS_ST = 0x1000000

WS_BASE = 0
NCH = 64
CHE = E // NCH
PROWS = 53
LOG2E = 1.4426950408889634
CEXP = 48
STAMPS = False
OPT = set()
PRIO_NUM = 21
NT0 = 99
SLP = 0
CPF_STEP = 256
NSHORT = 3
W2T0 = 8


def f32(x):
    return struct.unpack("<I", struct.pack("<f", x))[0]


class Asm:
    def __init__(self):
        self.l = []

    def __call__(self, s):
        for x in s.split("\n"):
            x = x.strip()
            if x:
                self.l.append(("" if x.endswith(":") else "    ") + x)

    def text(self):
        import re
        for x in self.l:
            m = re.search(r"offset:(\d+)", x)
            if m:
                lim = 4096 if x.strip().startswith("buffer_") else 65536
                assert int(m.group(1)) < lim, x
        return "\n".join(self.l) + "\n"


def vr(a, n=1):
    return f"v{a}" if n == 1 else f"v[{a}:{a+n-1}]"


def srd(A, d, base, size, off=None):
    if off is None:
        A(f"s_mov_b32 s{d}, s{base}\ns_mov_b32 s{d+1}, s{base+1}")
    else:
        A(f"s_add_u32 s{d}, s{base}, {off}\ns_addc_u32 s{d+1}, s{base+1}, 0")
    A(f"s_mov_b32 s{d+2}, {size}\ns_mov_b32 s{d+3}, 0x00020000")


def S(d):
    return f"s[{d}:{d+3}]"


D = 4
CAP_T = 26
QS = 592
L_RING = 0
L_AQE = 8 * D * 2048
L_AQH = L_AQE + CAP_T * 512
L_AGG = L_AQH + CAP_T * 512
L_LIST = L_AGG + (CAP_T + 2) * 512
L_CNT = L_LIST + 4096
L_N0 = L_CNT + 256
L_MX = L_N0 + 248
L_WE = L_N0 + 256
L_Q = L_WE + 8 * QS
LDS_BYTES = (L_Q + 255) // 256 * 256 + 32768
ZERO_BYTES = L_LIST - L_AQE
L_XP = (L_Q + 255) // 256 * 256
L_XQ = L_XP + 16384
L_BT = L_AQE
L_BC = L_BT + 32768
assert L_BC + 2048 <= L_LIST and LDS_BYTES <= 163840 and 48 * QS <= 32768
DUMMY = 0x400000
SLOWB = 448
assert SLOWB + 3 * 40 + 4 * 63 <= CAP_T * 32

pX, pE, pSRC, pDST, pW1, pB1, pW2, pB2, pOUT, pDBG, pWS = 4, 6, 8, 10, 12, 14, 16, 18, 20, 22, 24
s_w2 = 26
sA, sB, sC, sD, sWS, sP, sE = 28, 32, 36, 40, 44, 48, 52
(s_w, s_nb0, s_nb1, s_nn, s_T, s_T0p, s_t, s_next, s_slow, s_batch, s_ring, s_sw, s_tot,
 s_nb4, s_ringh, s_spin, s_pri, s_alt, s_xw) = range(56, 75)
s_f0 = 85
s_one = 84
s_big = 83
s_K = 82
BND_PQ, BND_E = 4.0, 22.0
s_x = 76
sM = 86
s_ret = 94
sG = 96

vU = [16, 32]
vT = 48
vH = 64
vACC = 68
vS0 = 84
vS1 = 100
vPf0, vPf1, vAqe, vAgg, vBq, vSel0, vSel1 = 116, 120, 124, 128, 132, 136, 140
vBa = 144
vOff = 176
vW2 = 176
(vC, _c1, vB2, _b1, vK0, vK1, vK2, vK3, vaAqe, vaAgg, vaList, vaP0, vaP1, vaB, vBmul, vBase, vDeg,
 vChunk8, vLane, vDum, vSt, vW2a, vaCnt) = range(228, 251)
vSa, vSb, vSr, vOa = 252, 253, 254, 255
NV = 256
vXF = 176
vXP = 160
vWF = 16
vPA = 48
vPO = 148
vQO = 164
vPa = 144
EARLY = (0, 1)
vXa = 145
vXr = 147
vB1 = 116
vWEr = 128
vF0 = 129
vPc = 130
vQa = 131


def mfma32(A, d, a, b, c):
    cs = "0" if c is None else vr(c, 16)
    A(f"v_mfma_f32_32x32x16_bf16 {vr(d,16)}, {vr(a,4)}, {vr(b,4)}, {cs}")


def mfma16(A, d, a, b, c):
    cs = "0" if c is None else vr(c, 4)
    A(f"v_mfma_f32_16x16x32_bf16 {vr(d,4)}, {vr(a,4)}, {vr(b,4)}, {cs}")


SPIN = None


ENC = None


def stamp(A, i):
    if ENC is not None:
        if i == 0:
            A("s_memrealtime s[100:101]\ns_waitcnt lgkmcnt(0)\ns_mov_b32 s75, s100\ns_nop 0")
        if i == ENC:
            A("s_waitcnt lgkmcnt(0)\ns_memrealtime s[100:101]\ns_waitcnt lgkmcnt(0)\ns_sub_u32 s101, s100, s75")
            A(f"v_writelane_b32 v{vSt}, s101, 0")
        if i == 15:
            u = len(A.l)
            A(f"v_readlane_b32 s3, v{vSt}, 0\ns_nop 3\ns_lshl_b32 s3, s3, 2\ns_add_u32 s3, s3, 6000")
            A(f"M_spin{u}:\ns_memrealtime s[100:101]\ns_waitcnt lgkmcnt(0)\ns_sub_u32 s100, s100, s75\ns_cmp_lt_u32 s100, s3\ns_cbranch_scc1 M_spin{u}")
    if SPIN is not None:
        if i == 0:
            A("s_memrealtime s[100:101]\ns_waitcnt lgkmcnt(0)\ns_mov_b32 s75, s100")
        elif i == SPIN[0]:
            u = len(A.l)
            A(f"M_spin{u}:\ns_memrealtime s[100:101]\ns_waitcnt lgkmcnt(0)\ns_sub_u32 s100, s100, s75\ns_cmp_lt_u32 s100, {int(SPIN[1]*100)}\ns_cbranch_scc1 M_spin{u}")
    if STAMPS:
        ins = "s_memtime" if "cyc" in OPT else "s_memrealtime"
        A(f"s_waitcnt lgkmcnt(0)\n{ins} s[100:101]\ns_waitcnt lgkmcnt(0)\nv_writelane_b32 v{vSt}, s100, {i}")


def gemm_part(A, init, nmt, xf, vm=None, xrd=None):
    def rd(s):
        for ct in range(2):
            for x in range(2):
                A(f"ds_read_b64_tr_b16 {vr(vWF + 8*s + 4*ct + 2*x, 2)}, v14 offset:{s*2048 + x*256 + ct*8}")
    if vm is None:
        for s in range(4):
            rd(s)
    else:
        xrd(0)
        A(f"s_waitcnt vmcnt({vm[0]})")
        rd(0)
        xrd(1)
    for s in range(4):
        if vm is None:
            A(f"s_waitcnt lgkmcnt({12 - 4*s})")
        else:
            A(f"s_waitcnt lgkmcnt({nmt if s < 3 else 0})")
        k = 0
        for mt in range(nmt):
            for ct in range(2):
                d = vPA + 8 * mt + 4 * ct
                c = d if s else (None if init is None else init + 4 * ct)
                mfma16(A, d, vWF + 8 * s + 4 * ct, xf + 16 * mt + 4 * s, c)
                k += 1
                if vm is not None and k == 2 and s < 3:
                    A(f"s_waitcnt vmcnt({vm[s+1]})")
                    rd(s + 1)
                    if s < 2:
                        xrd(s + 2)


def gemm_pack(A, nmt, store, vPO=vPO):
    A("s_nop 4")
    for mt in range(nmt):
        for r in range(0, 8, 2):
            a = vPA + 8 * mt + r
            A(f"v_pk_mul_f32 {vr(a,2)}, {vr(a,2)}, v[12:13]")
        for r in range(0, 8, 2):
            a = vPA + 8 * mt + r
            A(f"v_cvt_pk_bf16_f32 v{vPO + 4*mt + r//2}, v{a}, v{a+1}")
        store(mt)


def kernel(A):
    L = vLane
    SC = "sc0 sc1"
    A(f"{KN}:")
    A(f"""
    s_cmp_ge_u32 s2, 256
    s_cbranch_scc1 M_end
    s_load_dwordx16 s[4:19], s[0:1], 0
    s_load_dwordx4 s[20:23], s[0:1], 64
    s_load_dwordx2 s[24:25], s[0:1], 80
    """)
    if STAMPS or ENC is not None:
        A(f"v_mov_b32 v{vSt}, 0")
    stamp(A, 0)
    A(f"""
    v_lshrrev_b32 v2, 6, v0
    v_and_b32 v{L}, 63, v0
    v_readfirstlane_b32 s{s_w}, v2
    s_mul_i32 s{s_nb0}, s2, 160069
    s_add_u32 s{s_nb1}, s{s_nb0}, {160069 + 4049}
    s_add_u32 s{s_nb0}, s{s_nb0}, 4049
    s_lshr_b32 s{s_nb0}, s{s_nb0}, 12
    v_lshrrev_b32 v7, 4, v{L}
    v_and_b32 v8, 15, v{L}
    v_xor_b32 v8, v8, v7
    s_lshl_b32 s{s_ring}, s{s_w}, 13
    s_and_b32 s3, s{s_w}, 1
    s_lshl_b32 s3, s3, 3
    v_xor_b32 v8, s3, v8
    v_lshlrev_b32 v8, 4, v8
    v_lshl_add_u32 v8, v7, 8, v8
    s_lshl_b32 s{s_xw}, s{s_w}, 11
    v_add_u32 v{vXa}, s{s_xw}, v8
    v_xor_b32 v{vXa+1}, 64, v{vXa}
    v_lshrrev_b32 v10, 2, v{L}
    v_and_b32 v11, 3, v{L}
    v_lshlrev_b32 v11, 4, v11
    v_lshl_add_u32 v10, v10, 9, v11
    s_lshl_b32 s3, s{s_w}, 6
    v_add_u32 v10, s3, v10
    v_lshlrev_b32 v2, 2, v0
    s_waitcnt lgkmcnt(0)
    s_cmp_ge_u32 s2, {NCH}
    s_cbranch_scc1 M_pwg
    """)

    def wdma(base):
        for ii in range(8):
            A(f"""
            s_add_u32 m0, s{s_ring}, {ii*1024}
            s_mov_b32 s{s_x+1}, {base + ii*8192}
            buffer_load_dwordx4 v10, {S(sB)}, s{s_x+1} offen lds
            """)

    def xdma(ldsbase, rowreg):
        A(f"""
        s_add_u32 m0, s{s_xw}, {ldsbase}
        s_lshl_b32 s3, s{rowreg}, 8
        buffer_load_dwordx4 v{vXa}, {S(sD)}, s3 offen lds
        buffer_load_dwordx4 v{vXa+1}, {S(sD)}, s3 offen offset:1024 lds
        """)

    def gaddr():
        A(f"""
        v_lshrrev_b32 v3, 4, v{L}        ; q
        v_and_b32 v4, 15, v{L}           ; n
        v_xor_b32 v5, v3, v4
        v_lshlrev_b32 v5, 4, v5
        v_lshl_add_u32 v{vXr}, v4, 8, v5
        v_bfe_u32 v5, v{L}, 2, 2         ; r
        v_lshl_add_u32 v6, v3, 3, v5     ; 8q + r
        v_lshlrev_b32 v6, 6, v6
        v_and_b32 v7, 3, v{L}            ; c
        v_lshl_add_u32 v6, v7, 4, v6
        v_add_u32 v14, s{s_ring}, v6
        v_mov_b32 v12, {f32(-LOG2E):#x}
        v_mov_b32 v13, v12
        """)

    def consts():
        srd(A, sP, pWS, TABB + 4096, off=WS_P - 4096)
        srd(A, sE, pE, E * 8)
        A(f"""
        s_lshr_b32 s{s_nb1}, s{s_nb1}, 12
        s_min_u32 s{s_nb1}, s{s_nb1}, {N}
        s_sub_u32 s{s_nn}, s{s_nb1}, s{s_nb0}
        s_lshl_b32 s{s_nb4}, s{s_nb0}, 2
        s_add_u32 s{s_ringh}, s{s_ring}, 4096
        s_mov_b32 s{s_slow}, 0
        s_mov_b32 s{s_big}, 0
        s_lshl_b32 s{s_w2}, s{s_w}, 13
        s_add_u32 s{s_w2}, s{s_w2}, {WS_W2F}
        s_add_u32 s{s_w2+1}, s{s_w2}, 4096
        v_lshrrev_b32 v3, 4, v{L}        ; q
        v_bfe_u32 v5, v{L}, 2, 2         ; r
        v_and_b32 v7, 3, v{L}            ; c
        v_xor_b32 v9, v7, v3
        v_lshlrev_b32 v9, 4, v9
        s_lshl_b32 s3, s{s_w}, 6
        s_add_u32 s{s_x}, s3, 1024
        v_add_u32 v{vK3}, s{s_x}, v9
        v_add_u32 v{vK2}, 1024, v{vK3}
        v_add_u32 v{vK1}, 2048, v{vK3}
        v_add_u32 v{vK0}, 3072, v{vK3}
        v_lshrrev_b32 v1, 5, v{L}        ; h
        v_mul_u32_u24 v5, {QS}, v5
        v_and_b32 v3, 1, v3
        v_lshl_add_u32 v5, v3, 5, v5
        v_lshl_add_u32 v5, v7, 3, v5
        s_add_u32 s3, s3, {L_WE}
        v_add_u32 v5, s3, v5
        v_mul_u32_u24 v6, {8*QS}, v1
        v_add_u32 v{vaB}, v5, v6
        v_mul_u32_u24 v{vBmul}, {QS//4}, v1
        v_and_b32 v3, 31, v{L}           ; m
        ; row m = 8j + 4h' + i holds member j of quad 4h' + i: slot in tile sigma(m) = j + 4i + 16h'
        v_lshrrev_b32 v9, 3, v3          ; j
        v_and_b32 v8, 3, v3              ; i
        v_lshl_add_u32 v9, v8, 2, v9
        v_and_b32 v8, 4, v3
        v_lshl_add_u32 v9, v8, 2, v9
        v_lshlrev_b32 v9, 4, v9
        v_mul_u32_u24 v8, {L_AQH - L_AQE}, v1
        v_add_u32 v9, v9, v8
        v_add_u32 v{vaAqe}, {L_AQE}, v9
        v_lshrrev_b32 v9, 2, v{L}        ; r
        v_and_b32 v8, 3, v9
        v_lshlrev_b32 v8, 2, v8
        v_lshrrev_b32 v11, 3, v9
        v_lshl_add_u32 v8, v11, 1, v8
        v_and_b32 v11, 4, v9
        v_lshl_add_u32 v8, v11, 2, v8
        v_lshlrev_b32 v8, 2, v8
        v_add_u32 v{vaList}, {L_LIST}, v8
        v_and_b32 v8, 7, v3              ; 4h' + i
        v_and_b32 v9, 8, v3
        v_lshl_add_u32 v8, v9, 1, v8
        v_lshrrev_b32 v9, 4, v3
        v_lshl_add_u32 v8, v9, 3, v8
        v_bfe_u32 v9, v8, 2, 2
        v_xor_b32 v9, v9, v1
        v_lshlrev_b32 v9, 4, v9
        v_lshl_add_u32 v9, v8, 6, v9
        v_add_u32 v{vaP0}, s{s_ring}, v9
        v_xor_b32 v{vaP1}, 32, v{vaP0}
        v_and_b32 v9, 1, v3
        v_lshlrev_b32 v9, 4, v9
        v_mov_b32 v8, 0x3f80
        v_lshlrev_b32 v9, v9, v8
        v_lshrrev_b32 v8, 1, v3
        v_lshlrev_b32 v11, 2, v1
        v_sub_u32 v8, v8, v11
        """)
        for x in range(4):
            A(f"v_cmp_eq_u32 s[{s_x}:{s_x+1}], {x}, v8\nv_cmp_eq_u32 vcc, {8+x}, v8\ns_nop 0")
            A(f"v_cndmask_b32 v{vSel0+x}, 0, v9, s[{s_x}:{s_x+1}]\nv_cndmask_b32 v{vSel1+x}, 0, v9, vcc")
        A(f"""
        v_mov_b32 v{vC}, {f32(2.0**-CEXP):#x}
        v_mov_b32 v{vC+1}, {f32(2.0**-CEXP):#x}
        v_mov_b32 v{vDeg}, 0
        v_mov_b32 v{vDum}, 0x80000000
        v_lshrrev_b32 v9, 3, v0
        v_mul_u32_u24 v{vChunk8}, {CHE*8}, v9
        v_lshlrev_b32 v{vW2a}, 4, v{L}
        v_lshlrev_b32 v9, 2, v{L}
        v_add_u32 v{vaCnt}, {L_CNT}, v9
        """)
        for r in range(16):
            A(f"v_mov_b32 v{vS0+r}, 0\nv_mov_b32 v{vS1+r}, 0")

    def bigcheck(n):
        A(f"v_max3_f32 v8, |v{vPA}|, |v{vPA+1}|, |v{vPA+2}|")
        for r in range(3, n - 1, 2):
            A(f"v_max3_f32 v8, |v{vPA+r}|, |v{vPA+r+1}|, v8")
        A(f"""
        v_max_f32 v8, |v{vPA+n-1}|, v8
        v_cmp_nge_f32 vcc, {f32(BND_PQ):#x}, v8
        s_or_b32 s3, vcc_lo, vcc_hi
        s_or_b32 s{s_big}, s{s_big}, s3
        """)

    def zerofill():
        A(f"""
        v_mov_b32 v40, 0
        v_mov_b32 v41, 0
        v_mov_b32 v42, 0
        v_mov_b32 v43, 0
        v_mov_b32 v44, {DUMMY}
        v_mov_b32 v45, {DUMMY}
        v_lshlrev_b32 v1, 3, v0
        v_add_u32 v1, {L_LIST}, v1
        ds_write_b64 v1, v[44:45]
        ds_write_b32 v{vaCnt}, v40
        ds_write_b32 v{vaCnt}, v40 offset:256
        v_lshlrev_b32 v1, 4, v0
        v_add_u32 v1, {L_AQE}, v1
        """)
        nz = ZERO_BYTES // 8192
        rem = ZERO_BYTES - nz * 8192
        for q in range(nz):
            A(f"ds_write_b128 v1, v[40:43] offset:{q*8192}")
        if rem:
            A(f"""
            v_cmp_gt_u32 vcc, {rem//16}, v0
            s_and_saveexec_b64 s[{s_x}:{s_x+1}], vcc
            ds_write_b128 v1, v[40:43] offset:{nz*8192}
            s_mov_b64 exec, s[{s_x}:{s_x+1}]
            """)

    def small():
        srd(A, sC, pB1, 512)
        A(f"""
        v_lshrrev_b32 v3, 4, v{L}
        v_lshlrev_b32 v4, 4, v3
        s_lshl_b32 s3, s{s_w}, 6
        buffer_load_dwordx4 {vr(vB1,4)}, v4, {S(sC)}, s3 offen
        v_lshlrev_b32 v5, 2, v0
        s_mov_b32 s3, {256*512}
        buffer_load_dword v{vWEr}, v5, {S(sB)}, s3 offen
        v_lshlrev_b32 v4, 3, v3
        s_mov_b32 s{sC}, s{pB2}
        s_mov_b32 s{sC+1}, s{pB2+1}
        s_mov_b32 s{sC+2}, 256
        s_lshl_b32 s3, s{s_w}, 5
        buffer_load_dwordx2 {vr(vB2,2)}, v4, {S(sC)}, s3 offen
        """)

    def eprefetch():
        A(f"""
        s_mul_i32 s3, s2, {E*8//256}
        v_lshlrev_b32 v3, 4, v0
        buffer_load_dwordx4 v[224:227], v3, {S(sE)}, s3 offen
        """)

    def f0load():
        A(f"buffer_load_dword v{vF0}, off, {S(sG)}, 0 offset:128 sc1")

    def spoll(tag, base, offreg, want, keep=None):
        A(f"""
        s_mov_b32 s{s_spin}, 0x40000
        M_sp{tag}:
        s_mov_b32 s{s_x+1}, 0
        s_atomic_add s{s_x+1}, s[{base}:{base+1}], {offreg} glc
        s_sub_u32 s{s_spin}, s{s_spin}, 1
        s_cbranch_scc1 M_spd{tag}
        s_waitcnt lgkmcnt(0)
        {f"s_mov_b32 s{keep}, s{s_x+1}" if keep else ""}
        {f"s_and_b32 s{s_x+1}, s{s_x+1}, 0xffff" if keep else ""}
        s_cmp_lg_u32 s{s_x+1}, {want}
        {f"s_cbranch_scc0 M_spd{tag}" if SLP else ""}
        {f"s_sleep {SLP}" if SLP else ""}
        s_cbranch_scc1 M_sp{tag}
        M_spd{tag}:
        s_waitcnt lgkmcnt(0)
        """)

    def f0wait(tag):
        A(f"""
        v_readfirstlane_b32 s3, v{vF0}
        s_cmp_lg_u32 s3, 0
        s_cbranch_scc1 M_pfd{tag}
        """)
        spoll("f" + tag, pDBG, 128, 1)
        A(f"M_pfd{tag}:")

    def release(base):
        A(f"""
        v_lshlrev_b32 v8, 7, v{L}
        v_mov_b32 v9, 1
        s_mov_b32 s3, {base}
        s_mov_b64 exec, 0xffff
        buffer_atomic_add v9, v8, {S(sWS)}, s3 offen sc1
        s_mov_b64 exec, -1
        """)

    def rpoll(tag, base, want, keep=None):
        A(f"s_and_b32 s3, s2, 15\ns_lshl_b32 s3, s3, 7\ns_add_u32 s3, s3, {base}")
        spoll(tag, pWS, "s3", want, keep)

    srd(A, sWS, pWS, WS_END)
    A(f"""
    v_lshlrev_b32 v3, 7, v0
    s_cmp_eq_u32 s2, 0
    s_cselect_b32 s3, 48, 0
    v_cmp_gt_u32 vcc, s3, v0
    v_mov_b32 v4, 0x40000000
    v_mov_b32 v8, 0
    v_cndmask_b32 v3, v4, v3, vcc
    s_mul_i32 s3, s2, {CHE*4}
    buffer_store_dword v8, v3, {S(sWS)}, 0 offen {SC}
    """)
    srd(A, sC, pDST, CHE * 4, off="s3")
    srd(A, sD, pSRC, CHE * 4, off="s3")
    A(f"s_mov_b32 s{s_x+1}, 4096\ns_mov_b32 s{s_x+2}, 8192")
    vD, vS = 164, 169
    so = ["0", "0", f"s{s_x+1}", f"s{s_x+1}", f"s{s_x+2}"]
    for k in range(5):
        A(f"buffer_load_dword v{vD+k}, v2, {S(sC)}, {so[k]} offen offset:{(k & 1)*2048}")
    for k in range(5):
        A(f"buffer_load_dword v{vS+k}, v2, {S(sD)}, {so[k]} offen offset:{(k & 1)*2048}")
    srd(A, sC, pW2, 256 * 256)
    srd(A, sB, pW1, 260 * 512)
    A(f"""
    v_lshlrev_b32 v3, 4, v0
    v_add_u32 v15, {L_BT}, v3
    v_add_u32 v2, {L_BC}, v2
    v_mov_b32 v4, -1
    v_mov_b32 v5, -1
    v_mov_b32 v6, -1
    v_mov_b32 v7, -1
    """)
    for q in range(4):
        A(f"ds_write_b128 v15, v[4:7] offset:{q*8192}")
    A(f"""
    ds_write_b32 v2, v8
    v_mov_b32 v9, 1
    """)
    srd(A, sD, pX, N * 256)
    srd(A, sG, pDBG, 256)
    stamp(A, 1)
    A(f"""
    s_waitcnt lgkmcnt(0)
    s_barrier
    s_waitcnt vmcnt(5)
    """)
    vb, va, vk = 16, 21, 26
    for k in range(5):
        A(f"v_mul_u32_u24 v{vb+k}, 1677, v{vD+k}")
        A(f"v_lshrrev_b32 v{vb+k}, 16, v{vb+k}")
        A(f"v_lshlrev_b32 v{va+k}, 2, v{vb+k}")
        A(f"v_add_u32 v{va+k}, {L_BC}, v{va+k}")
        if k == 4:
            A(f"v_cmp_gt_u32 vcc, {CHE - 2048}, v0\ns_and_saveexec_b64 s[{s_x+2}:{s_x+3}], vcc")
        A(f"ds_add_rtn_u32 v{vk+k}, v{va+k}, v9")
    A(f"""
    s_mov_b64 s[{s_x+4}:{s_x+5}], exec
    s_or_b32 s3, s2, s{s_w}
    s_cbranch_scc1 M_nf0
    s_mov_b64 exec, 1
    buffer_store_dword v9, off, {S(sG)}, 0 offset:128 {SC}
    M_nf0:
    s_mov_b64 exec, -1
    s_lshl_b32 s3, s2, 8
    v_add_u32 v3, s3, v0
    v_bfe_u32 v4, v3, 8, 3           ; s
    v_lshlrev_b32 v4, 5, v4
    v_bfe_u32 v5, v3, 6, 1           ; ab
    v_lshl_add_u32 v4, v5, 4, v4
    v_bfe_u32 v5, v3, 1, 1           ; e>>2
    v_lshl_add_u32 v4, v5, 3, v4
    v_bfe_u32 v5, v3, 7, 1           ; h
    v_lshl_add_u32 v4, v5, 2, v4
    v_and_b32 v5, 1, v3
    v_lshl_add_u32 v4, v5, 1, v4     ; hidden
    v_lshlrev_b32 v4, 8, v4
    v_lshrrev_b32 v5, 11, v3         ; wo
    v_lshl_add_u32 v4, v5, 5, v4
    v_bfe_u32 v5, v3, 2, 4           ; m
    v_lshl_add_u32 v4, v5, 1, v4
    v_lshrrev_b32 v5, 8, v0
    v_lshl_or_b32 v4, v5, 30, v4
    v_lshlrev_b32 v3, 2, v3
    v_lshl_or_b32 v176, v5, 30, v3
    buffer_load_ushort v174, v4, {S(sC)}, 0 offen
    buffer_load_ushort v175, v4, {S(sC)}, 0 offen offset:256
    """)
    xdma(L_XQ, s_nb0)
    small()
    A("s_waitcnt vmcnt(7)")
    for k in range(5):
        A(f"""
        v_and_b32 v{vD+k}, 63, v{vD+k}
        v_lshl_or_b32 v{vS+k}, v{vD+k}, 14, v{vS+k}
        v_add_u32 v{vD+k}, {512*k}, v0
        v_lshl_or_b32 v{vS+k}, v{vD+k}, 20, v{vS+k}
        v_lshlrev_b32 v{va+k}, 7, v{vb+k}
        v_add_u32 v{va+k}, {L_BT}, v{va+k}
        """)
    for k in range(5):
        if k == 4:
            A(f"s_mov_b64 exec, s[{s_x+4}:{s_x+5}]")
        A(f"""
        s_waitcnt lgkmcnt({4-k})
        v_add_u32 v4, v{vk+k}, v{vb+k}
        v_and_b32 v4, 7, v4
        v_lshrrev_b32 v5, 3, v{vk+k}
        v_lshl_add_u32 v4, v4, 2, v5
        v_lshl_add_u32 v{va+k}, v4, 2, v{va+k}
        v_cmp_gt_u32 vcc, 32, v{vk+k}
        s_and_saveexec_b64 s[{s_x+6}:{s_x+7}], vcc
        ds_write_b32 v{va+k}, v{vS+k}
        s_mov_b64 exec, s[{s_x+6}:{s_x+7}]
        """)
    A(f"""
    s_mov_b64 exec, -1
    v_lshrrev_b32 v4, 3, v0
    v_lshlrev_b32 v5, 2, v4
    v_add_u32 v5, {L_BC}, v5
    v_and_b32 v6, 7, v0
    v_lshlrev_b32 v7, 13, v4
    v_lshl_add_u32 v7, v6, 4, v7
    s_lshl_b32 s3, s2, 7
    s_add_u32 s3, s3, {WS_SLOT}
    v_add_u32 v7, s3, v7
    v_cmp_eq_u32 s[{s_x+2}:{s_x+3}], 7, v6
    v_mov_b32 v8, -2
    s_mov_b32 s{s_x+4}, 0
    s_mov_b32 s{s_x+5}, {64*8192}
    s_mov_b32 s{s_x+6}, {128*8192}
    s_mov_b32 s{s_x+7}, {192*8192}
    s_waitcnt lgkmcnt(0)
    s_barrier
    """)
    stamp(A, 2)
    for q in range(4):
        A(f"ds_read_b128 {vr(16+4*q,4)}, v15 offset:{q*8192}")
        A(f"ds_read_b32 v{32+q}, v5 offset:{q*256}")
    A(f"s_mov_b32 s3, {WS_W2F}")
    for q in range(4):
        A(f"""
        s_waitcnt lgkmcnt({6-2*q})
        v_cmp_lt_u32 vcc, 32, v{32+q}
        s_and_b64 vcc, vcc, s[{s_x+2}:{s_x+3}]
        s_nop 1
        v_cndmask_b32 v{19+4*q}, v{19+4*q}, v8, vcc
        buffer_store_dwordx4 {vr(16+4*q,4)}, v7, {S(sWS)}, s{s_x+4+q} offen {SC}
        """)
    A(f"s_waitcnt vmcnt(9)\nv_lshl_or_b32 v174, v175, 16, v174\nbuffer_store_dword v174, v176, {S(sWS)}, s3 offen {SC}")
    stamp(A, 3)
    f0load()
    if "clate" not in OPT:
        gaddr()
        consts()
    A(f"""
    s_waitcnt vmcnt(0)
    s_barrier
    s_cmp_lg_u32 s{s_w}, 0
    s_cbranch_scc1 M_nlast2
    """)
    stamp(A, 16)
    if "direct" not in OPT:
        A(f"""
        s_and_b32 s3, s2, 1
        s_lshl_b32 s3, s3, 6
        s_mov_b32 s{s_x}, 1
        s_atomic_add s{s_x}, s[{pDBG}:{pDBG+1}], s3 glc
        """)
    f0wait("b")
    if "direct" not in OPT:
        A(f"""
        s_waitcnt lgkmcnt(0)
        s_and_b32 s3, s{s_x}, {NCH//2 - 1}
        s_cmp_lg_u32 s3, {NCH//2 - 1}
        s_cbranch_scc1 M_nlast
        """)
    if "bvrel" not in OPT or "direct" in OPT:
        A(f"s_mov_b32 s{s_one}, 1")
        for i in range(16):
            A(f"s_atomic_add s{s_one}, s[{pWS}:{pWS+1}], {WS_RB + 128*i}")
    else:
        release(WS_RB)
    A("M_nlast:")
    stamp(A, 17)
    A("M_nlast2:")
    if "clate" in OPT:
        gaddr()
        consts()
    srd(A, sA, pWS, 0)
    A(f"v_mov_b32 v{vPa}, 0")
    wdma(128 * 512)
    CPF = 1 if "cpf" in OPT else 0
    if CPF:
        A(f"""
        s_getpc_b64 s[{s_x+2}:{s_x+3}]
        s_and_b32 s3, s2, -8
        s_add_u32 s3, s3, s{s_w}
        s_mul_i32 s3, s3, {CPF_STEP}
        s_add_u32 s{s_x+2}, s{s_x+2}, s3
        s_addc_u32 s{s_x+3}, s{s_x+3}, 0
        v_lshlrev_b32 v4, 3, v{L}
        v_mov_b32 v5, s{s_x+3}
        v_add_co_u32 v4, vcc, s{s_x+2}, v4
        s_nop 1
        v_addc_co_u32 v5, vcc, 0, v5, vcc
        global_load_dwordx2 v[224:225], v[4:5], off
        M_cpf0:
        """)
    EPF = CPF + (3 if "epf" in OPT else 0)
    if "epf" in OPT:
        A(f"s_mul_i32 s3, s2, {CHE*8}")
        srd(A, sC, pE, CHE * 8, off="s3")
        A(f"v_lshlrev_b32 v3, 4, v0\ns_mov_b32 s3, 16384\ns_mov_b32 s{s_x+2}, 8192")
        A(f"buffer_load_dwordx4 v[224:227], v3, {S(sC)}, 0 offen")
        A(f"buffer_load_dwordx4 v[224:227], v3, {S(sC)}, s{s_x+2} offen")
        A(f"buffer_load_dwordx4 v[224:227], v3, {S(sC)}, s3 offen")
    zerofill()
    A("s_branch M_join")
    A("M_pwg:")
    srd(A, sD, pX, N * 256)
    srd(A, sB, pW1, 260 * 512)
    A(f"s_sub_u32 s{s_t}, s2, {NCH}\ns_mul_i32 s{s_t}, s{s_t}, {PROWS}")
    xdma(L_XP, s_t)
    A(f"""
    s_and_b32 s3, s2, -8
    s_add_u32 s3, s3, s{s_w}
    s_and_b32 s3, s3, 127
    s_lshl_b32 s3, s3, 10
    v_lshlrev_b32 v3, 4, v{L}
    buffer_load_dwordx4 v[16:19], v3, {S(sB)}, s3 offen
    """)
    srd(A, sWS, pWS, WS_END)
    srd(A, sG, pDBG, 256)
    consts()
    zerofill()
    wdma(0)
    stamp(A, 1)
    gaddr()
    A(f"""
    v_add_u32 v15, {L_XP}, v{vXr}
    v_add_u32 v11, s{s_t}, v4
    v_lshlrev_b32 v11, 9, v11
    v_lshl_add_u32 v11, v3, 4, v11
    s_lshl_b32 s3, s{s_w}, 6
    v_add_u32 v{vPa}, s3, v11
    s_add_u32 s3, s{s_t}, {PROWS}
    s_min_u32 s3, s3, {N}
    s_lshl_b32 s3, s3, 9
    """)
    srd(A, sA, pWS, "s3", off=WS_P)
    A(f"""
    s_waitcnt vmcnt(8)
    s_barrier
    """)
    stamp(A, 2)

    def pstore(mt):
        A(f"s_mov_b32 s3, {mt*8192}\nbuffer_store_dwordx4 {vr(vPO+4*mt,4)}, v{vPa}, {S(sA)}, s3 offen {SC}")

    def xrd(s):
        if s:
            A(f"v_xor_b32 v4, {s << 6:#x}, v15")
        for mt in range(4):
            A(f"ds_read_b128 {vr(vXP + 16*mt + 4*s, 4)}, v{4 if s else 15} offset:{mt*4096}")
    gemm_part(A, None, 4, vXP, vm=[6, 4, 2, 0], xrd=xrd)
    stamp(A, 18)
    f0load()
    xdma(L_XQ, s_nb0)
    small()
    if "w1bfirst" in OPT:
        wdma(128 * 512)
    gemm_pack(A, 4, lambda mt: pstore(mt) if mt in EARLY else None)
    stamp(A, 3)
    if "w1bfirst" not in OPT:
        wdma(128 * 512)
    bigcheck(32)
    A(f"s_waitcnt vmcnt({8 + len(EARLY)})")
    A("M_join:")
    stamp(A, 4)
    A(f"""
    s_mov_b32 s{s_x+2}, {QS - 512}
    v_lshlrev_b32 v8, 16, v{vWEr}
    v_and_b32 v9, 0xffff0000, v{vWEr}
    v_mul_f32 v8, v12, v8
    v_mul_f32 v9, v12, v9
    v_cvt_pk_bf16_f32 v10, v8, v9
    v_lshrrev_b32 v4, 7, v0          ; f
    v_lshlrev_b32 v5, 16, v10
    v_and_b32 v6, 0xffff0000, v10
    v_sub_f32 v8, v8, v5
    v_sub_f32 v9, v9, v6
    v_cvt_pk_bf16_f32 v11, v8, v9
    v_lshlrev_b32 v5, 2, v0
    v_mad_u32_u24 v5, v4, s{s_x+2}, v5
    v_add_u32 v5, {L_WE}, v5
    ds_write_b32 v5, v10
    ds_write_b32 v5, v11 offset:{4*QS}
    """)
    for x in range(4):
        A(f"v_lshlrev_b32 v{vB1+4+2*x}, 16, v{vB1+x}\nv_and_b32 v{vB1+5+2*x}, 0xffff0000, v{vB1+x}")
    A(f"""
    v_and_b32 v8, 15, v{L}               ; n
    v_lshrrev_b32 v9, 4, v{L}            ; q
    v_bfe_u32 v4, v8, 1, 2
    v_xor_b32 v4, v4, v9
    v_lshlrev_b32 v4, 4, v4
    v_lshl_add_u32 v{vSr}, v8, 6, v4
    v_add_u32 v4, s{s_nb0}, v8
    v_lshlrev_b32 v4, 8, v4
    v_lshl_add_u32 v4, v9, 3, v4
    s_lshl_b32 s3, s{s_w}, 5
    v_add_u32 v{vOa}, s3, v4
    v_and_b32 v8, 31, v{L}
    v_lshrrev_b32 v9, 5, v{L}
    v_lshlrev_b32 v9, 1, v9
    v_bfe_u32 v4, v8, 1, 2
    v_xor_b32 v4, v4, v9
    v_lshlrev_b32 v4, 4, v4
    v_lshl_add_u32 v4, v8, 6, v4
    v_add_u32 v{vSa}, s{s_ring}, v4
    v_xor_b32 v{vSb}, 16, v{vSa}
    """)
    A(f"""
    s_cmp_lg_u32 s{s_w}, 0
    s_cbranch_scc1 M_w1d
    """)
    f0wait("a")
    rpoll("a", WS_RB, NCH if "direct" in OPT else 2)
    A("M_w1d:")
    stamp(A, 5)
    A(f"""
    v_add_u32 v15, {L_XQ}, v{vXr}
    s_lshl_b32 s{s_x}, s2, 13
    s_add_u32 s{s_x}, s{s_x}, {WS_SLOT}
    v_lshlrev_b32 v1, 4, v0
    s_waitcnt lgkmcnt(0)
    s_barrier
    buffer_load_dwordx4 v[4:7], v1, {S(sWS)}, s{s_x} offen {SC}
    """)
    if "nosb" not in OPT:
        A("s_barrier")
    for mt in range(4):
        if mt not in EARLY:
            pstore(mt)
    NL = 4 - len(EARLY)
    A(f"""
    s_cmp_lg_u32 s{s_big}, 0
    s_cbranch_scc1 M_pbig
    M_pbigr:
    """)
    stamp(A, 6)
    for s in range(4):
        if s:
            A(f"v_xor_b32 v8, {s << 6:#x}, v15")
        for mt in range(3):
            A(f"ds_read_b128 {vr(vXF + 16*mt + 4*s, 4)}, v{8 if s else 15} offset:{mt*4096}")
    A(f"""
    s_cmp_ge_u32 s2, {NCH}
    s_cbranch_scc1 M_tk1a
    s_waitcnt vmcnt({1 + NL + EPF}) lgkmcnt(0)
    s_branch M_tk1
    M_tk1a:
    s_waitcnt vmcnt({5 if "w1bfirst" in OPT else 1 + NL}) lgkmcnt(0)
    M_tk1:
    """)
    gemm_part(A, vB1 + 4, 3, vXF)
    A(f"""
    v_and_b32 v8, 15, v{L}           ; n
    v_lshrrev_b32 v9, 4, v{L}        ; q
    v_lshlrev_b32 v9, 4, v9
    v_mul_u32_u24 v8, {QS}, v8
    s_lshl_b32 s3, s{s_w}, 6
    s_add_u32 s3, s3, {L_Q}
    v_add3_u32 v{vQa}, v8, v9, s3
    """)
    gemm_pack(A, 3, lambda mt: None, vPO=vQO)
    bigcheck(24)
    stamp(A, 7)
    A(f"s_waitcnt vmcnt({NL})\nM_recs:")
    stamp(A, 8)
    vD4, vRk, vEo, vEv, vBs, vTa = 16, 20, 24, 28, 36, 40
    A(f"s_mov_b32 s{s_x}, 0xfff00000\nv_mov_b32 v1, 1")
    for j in range(4):
        A(f"v_cmp_gt_u32 s[{sM+2*j}:{sM+2*j+1}], s{s_x}, v{4+j}")
    OO = [2, 10, 172]

    def bias_term(A):
        A(f"""
        v_and_b32 v8, 15, v{L}
        v_lshlrev_b32 v9, 2, v8
        ds_bpermute_b32 v6, v9, v{vDeg}
        ds_bpermute_b32 v7, v9, v{vDeg} offset:64
        ds_bpermute_b32 v14, v9, v{vDeg} offset:128
        v_lshlrev_b32 v116, 16, v{vB2}
        v_and_b32 v117, 0xffff0000, v{vB2}
        v_lshlrev_b32 v118, 16, v{vB2+1}
        v_and_b32 v119, 0xffff0000, v{vB2+1}
        s_lshl_b32 s3, s{s_nb1}, 8
        """)
        srd(A, sA, pOUT, "s3")
        A("s_waitcnt lgkmcnt(0)")
        for r in (6, 7, 14):
            A(f"v_cvt_f32_u32 v{r}, v{r}")
        for mt in range(3):
            for i in (0, 2):
                A(f"v_pk_mul_f32 {vr(OO[mt]+i,2)}, {vr(116+i,2)}, {vr(14 if mt == 2 else 6,2)} op_sel:[0,{mt & 1}] op_sel_hi:[1,{mt & 1}]")

    def egather():
        for j in range(4):
            A(f"""
            s_mov_b64 exec, s[{sM+2*j}:{sM+2*j+1}]
            buffer_load_dwordx2 {vr(vEv+2*j,2)}, v{vEo+j}, {S(sE)}, 0 offen
            """)
        A("s_mov_b64 exec, -1")

    for j in range(4):
        A(f"""
        v_lshrrev_b32 v{vEo+j}, 20, v{4+j}
        v_lshl_add_u32 v{vEo+j}, v{vEo+j}, 3, v{vChunk8}
        """)
    for j in range(4):
        A(f"""
        s_mov_b64 exec, s[{sM+2*j}:{sM+2*j+1}]
        s_cbranch_execz M_r1_{j}
        v_lshrrev_b32 v{vD4+j}, 12, v{4+j}
        v_subrev_u32 v{vD4+j}, s{s_nb4}, v{vD4+j}
        v_and_b32 v{vD4+j}, 0xfc, v{vD4+j}
        v_add_u32 v8, {L_CNT}, v{vD4+j}
        ds_add_rtn_u32 v{vRk+j}, v8, v1
        v_and_b32 v{4+j}, 0x3fff, v{4+j}
        M_r1_{j}:
        """)
        if j == 2:
            A(f"""
            s_mov_b64 exec, -1
            v_cmp_eq_u32 vcc, -2, v7
            s_and_b64 exec, exec, vcc
            s_cbranch_execz M_nomark
            v_mov_b32 v8, {L_CNT + 63*4}
            v_mov_b32 v9, 0x10000
            ds_add_u32 v8, v9
            M_nomark:
            """)
    A(f"""
    s_mov_b64 exec, -1
    s_mov_b32 s{s_alt}, 0
    s_mov_b32 s{s_sw}, 0
    v_lshlrev_b32 v9, 3, v{L}
    v_add_u32 v{vaAgg}, {L_AGG}, v9
    v_lshlrev_b32 v11, 2, v{L}
    v_add_u32 v11, 32, v11
    s_waitcnt vmcnt(0) lgkmcnt(0)
    s_barrier
    """)
    stamp(A, 21)
    A(f"""
    ds_read_b32 v8, v{vaCnt}
    v_mov_b32 v57, 0
    s_cmp_lg_u32 s{s_w}, 1
    s_cbranch_scc1 M_tk0
    s_cmp_lg_u32 s{s_slow}, 0
    s_cbranch_scc1 M_tk0
    s_and_b32 s3, s2, 15
    s_lshl_b32 s3, s3, 7
    v_mov_b32 v57, 1
    s_mov_b64 exec, 1
    buffer_atomic_add v57, off, {S(sWS)}, s3 sc0 sc1
    s_mov_b64 exec, -1
    M_tk0:
    s_cmp_lg_u32 s{s_slow}, 0
    s_cbranch_scc1 M_noq
    """)
    for mt in range(3):
        A(f"ds_write_b128 v{vQa}, {vr(vQO+4*mt,4)} offset:{mt*16*QS}")
    A("M_noq:")
    for r in range(16):
        A(f"v_mov_b32 v{vACC+r}, 0")
    A(f"""
    s_waitcnt lgkmcnt(3)
    s_cmp_eq_u32 s{s_slow}, 0
    s_cbranch_scc1 M_noq2
    s_waitcnt lgkmcnt(0)
    M_noq2:
    v_add_u32 v9, 3, v8
    v_and_b32 v9, -4, v9
    v_mov_b32 v10, v9
    v_mov_b32 v{vH}, 0
    v_mov_b32 v{vH+1}, 0
    v_add_u32_dpp v10, v10, v10 row_shr:1 row_mask:0xf bank_mask:0xf bound_ctrl:0
    v_mov_b32 v{vH+2}, 0
    v_mov_b32 v{vH+3}, 0
    v_add_u32_dpp v10, v10, v10 row_shr:2 row_mask:0xf bank_mask:0xf bound_ctrl:0
    v_mov_b32 v{vAgg}, 0
    v_mov_b32 v{vAgg+1}, 0
    v_add_u32_dpp v10, v10, v10 row_shr:4 row_mask:0xf bank_mask:0xf bound_ctrl:0
    s_nop 1
    v_add_u32_dpp v10, v10, v10 row_shr:8 row_mask:0xf bank_mask:0xf bound_ctrl:0
    s_nop 1
    v_add_u32_dpp v10, v10, v10 row_bcast:15 row_mask:0xa bank_mask:0xf
    s_nop 1
    v_add_u32_dpp v10, v10, v10 row_bcast:31 row_mask:0xc bank_mask:0xf
    s_nop 0
    v_sub_u32 v{vBase}, v10, v9
    v_readlane_b32 s{s_tot}, v10, 63
    s_cmp_lg_u32 s{s_w}, 1
    s_cbranch_scc1 M_derive
    s_waitcnt vmcnt(0)
    v_readfirstlane_b32 s3, v57
    s_cmp_lg_u32 s3, 15
    s_cbranch_scc1 M_derive
    """)
    if "vrel" not in OPT:
        A(f"s_mov_b32 s{s_one}, 1")
        for i in range(16):
            A(f"s_atomic_add s{s_one}, s[{pWS}:{pWS+1}], {WS_RP + 128*i}")
    else:
        A(f"""
        v_lshlrev_b32 v12, 7, v{L}
        v_mov_b32 v13, 1
        s_mov_b32 s3, {WS_RP}
        s_mov_b64 exec, 0xffff
        buffer_atomic_add v13, v12, {S(sWS)}, s3 offen sc1
        s_mov_b64 exec, -1
        """)
    A(f"""
    M_derive:
    """)
    for j in range(4):
        A(f"ds_bpermute_b32 v{vBs+j}, v{vD4+j}, v{vBase}")
    A(f"""
    ds_bpermute_b32 v12, v11, v{vBase}
    s_cmp_gt_u32 s{s_tot}, {CAP_T*32}
    s_cbranch_scc1 M_goslow
    v_readlane_b32 s{s_T0p}, v{vBase}, 32
    s_add_u32 s{s_T}, s{s_tot}, 31
    s_lshr_b32 s{s_T}, s{s_T}, 5
    v_add3_u32 v13, v{vBase}, v9, 63
    v_and_b32 v13, 0xffffffc0, v13         ; end of the tile pair that holds node i's last slot
    s_waitcnt lgkmcnt(0)
    v_cmp_gt_u32 vcc, v13, v12
    v_cmp_ne_u32 s[{s_x}:{s_x+1}], s{s_tot}, v12
    s_andn2_b32 s{s_x+1}, vcc_lo, s{s_alt}
    s_and_b32 s{s_x}, s{s_x}, s{s_x+1}
    s_cbranch_scc1 M_align
    """)
    stamp(A, 22)
    A(f"""
    v_mov_b32 v1, 0x3f80
    """)
    for j in range(4):
        A(f"""
        s_mov_b64 exec, s[{sM+2*j}:{sM+2*j+1}]
        s_cbranch_execz M_r2_{j}
        v_add_u32 v{vRk+j}, v{vRk+j}, v{vBs+j}
        v_lshlrev_b32 v9, 2, v{vRk+j}
        v_add_u32 v9, {L_LIST}, v9
        ds_write_b32 v9, v{4+j}
        v_and_b32 v9, 0x80, v{vD4+j}
        v_add_u32 v9, v9, v{vD4+j}
        v_bfe_u32 v10, v{vRk+j}, 2, 2
        v_add_lshl_u32 v9, v9, v10, 1
        v_lshrrev_b32 v10, 4, v{vRk+j}
        v_lshl_add_u32 v9, v10, 8, v9
        v_add_u32 v9, {L_AGG}, v9
        ds_write_b16 v9, v1
        v_lshrrev_b32 v9, 4, v{vRk+j}
        v_and_b32 v10, 63, v{vRk+j}
        v_and_b32 v9, -4, v9
        v_cmp_eq_u32 vcc, 0, v10
        v_add_u32 v{vTa+j}, {L_N0}, v9
        s_and_b64 exec, exec, vcc
        ds_write_b32 v{vTa+j}, v{vD4+j}
        M_r2_{j}:
        """)
    if "elate" in OPT:
        A("s_mov_b64 exec, -1")
    else:
        egather()
    A(f"""
    s_cmp_lt_u32 s{s_T0p}, s{s_tot}
    s_cselect_b32 s{s_x}, 5, 31
    s_cselect_b32 s{s_x+1}, 1, 0x7fffffff
    s_lshr_b32 s{s_T0p}, s{s_T0p}, s{s_x}
    s_add_u32 s{s_T0p}, s{s_T0p}, s{s_x+1}
    v_add_u32 v{vDeg}, v{vDeg}, v8
    s_mul_i32 s{s_pri}, s{s_T}, {PRIO_NUM}
    s_lshr_b32 s{s_pri}, s{s_pri}, 5
    s_cmp_lt_u32 s{s_w}, 4
    s_cselect_b32 s{s_pri}, 0x7fffffff, s{s_pri}
    s_sub_u32 s{s_next}, s{s_T}, 1
    s_min_i32 s{s_next}, s{s_next}, s{s_T0p}
    s_min_i32 s{s_next}, s{s_next}, s{s_pri}
    v_mov_b32 v1, 0x3f80
    """)
    A(f"v_mov_b32 v56, {L_N0}")
    stamp(A, 23)
    A(f"""
    v_mov_b32 v{vAgg+2}, 0
    v_mov_b32 v{vAgg+3}, 0
    s_waitcnt lgkmcnt(0)
    s_barrier
    """)
    stamp(A, 9)
    PSC = "sc1" if "psc1" in OPT else ("nt" if "pnt" in OPT else ("sc0 sc1" if "psc01" in OPT else ""))

    def dma(t, jj):
        r = vOff + 2 * t + jj if t < CAP_T else vDum
        fl = "nt" if t >= NT0 else PSC
        return f"buffer_load_dwordx4 v{r}, {S(sP)}, 0 offen offset:{(t & 1)*2048 + jj*1024} {fl} lds"

    def m0set(t):
        return f"s_mov_b32 m0, s{s_ring if (t % 4) < 2 else s_ringh}"

    def offs(lo, hi, after=None, A=A):
        for t0 in range(lo, hi, 8):
            ts = range(t0, min(t0 + 8, hi))
            for t in ts:
                A(f"ds_read_b64 {vr(vOff+2*t,2)}, v{vaList} offset:{t*128}")
            for i, t in enumerate(ts):
                A(f"s_waitcnt lgkmcnt({len(ts)-1-i})")
                for jj in range(2):
                    A(f"v_lshl_add_u32 v{vOff+2*t+jj}, v{vOff+2*t+jj}, 9, v{vK0 + 2*(t & 1) + jj}")
                if after:
                    after(t)

    for j in range(4):
        A(f"ds_read_b32 v{vBs+j}, v{vTa+j}")
    for g in range(4):
        A(f"ds_read_b128 {vr(vBa+4*g,4)}, v56 offset:{16*g}")
    offs(0, 6)
    A(f"""
    s_mov_b32 s{s_f0}, 16
    s_cmp_lg_u32 s{s_w}, 0
    s_cbranch_scc1 M_nolook
    s_and_b32 s3, s2, 15
    s_lshl_b32 s3, s3, 7
    s_add_u32 s3, s3, {WS_RP}
    s_mov_b32 s{s_f0}, 0
    s_atomic_add s{s_f0}, s[{pWS}:{pWS+1}], s3 glc
    M_nolook:
    """)
    stamp(A, 19)
    A("s_waitcnt vmcnt(0)")
    stamp(A, 20)
    A("v_mov_b32 v59, 0")
    for j in range(4):
        A(f"""
        s_mov_b64 exec, s[{sM+2*j}:{sM+2*j+1}]
        s_cbranch_execz M_r3_{j}
        v_lshlrev_b32 v8, 4, v{vRk+j}
        v_add_u32 v8, {L_AQE}, v8
        ds_write2_b64 v8, {vr(vEv+2*j,2)}, {vr(vEv+2*j,2)} offset0:0 offset1:1
        v_sub_u32 v9, v{vD4+j}, v{vBs+j}
        v_lshrrev_b32 v9, 1, v9
        v_add_u32 v9, v9, v8
        ds_write_b16 v9, v1 offset:{L_AQH - L_AQE}
        v_and_b32 v8, 0x7fff7fff, v{vEv+2*j}
        v_and_b32 v9, 0x7fff7fff, v{vEv+2*j+1}
        v_pk_max_u16 v8, v8, v9
        v_pk_max_u16 v59, v59, v8
        M_r3_{j}:
        """)
    A("s_mov_b64 exec, -1")
    if "nodefer" in OPT:
        A("s_waitcnt lgkmcnt(0)")
        offs(6, CAP_T)
        for t in range(CAP_T):
            A(f"v_mad_u32_u24 v{vBa+t}, v{vBa+t}, v{vBmul}, v{vaB}")
    A(f"""
    v_lshlrev_b32 v8, 16, v59
    v_and_b32 v59, 0xffff0000, v59
    v_max_u32 v59, v59, v8
    {m0set(0)}
    v_mov_b32 v9, {L_MX}
    v_max_u32_dpp v59, v59, v59 row_shr:1 row_mask:0xf bank_mask:0xf bound_ctrl:0
    s_nop 1
    v_max_u32_dpp v59, v59, v59 row_shr:2 row_mask:0xf bank_mask:0xf bound_ctrl:0
    s_nop 1
    v_max_u32_dpp v59, v59, v59 row_shr:4 row_mask:0xf bank_mask:0xf bound_ctrl:0
    s_nop 1
    v_max_u32_dpp v59, v59, v59 row_shr:8 row_mask:0xf bank_mask:0xf bound_ctrl:0
    s_waitcnt lgkmcnt(0)
    s_and_b32 s3, s{s_f0}, 0xffff
    s_cmp_eq_u32 s3, 16
    s_cbranch_scc1 M_w2
    """)
    rpoll("b", WS_RP, 16, keep=s_f0)
    A(f"""
    M_w2:
    s_cmp_lt_u32 s{s_f0}, 0x10000
    s_cbranch_scc1 M_w3
    v_mov_b32 v59, 0x7f800000
    M_w3:
    s_mov_b32 exec_lo, 0x80008000
    s_mov_b32 exec_hi, 0x80008000
    ds_max_u32 v9, v59
    s_mov_b64 exec, -1
    s_waitcnt lgkmcnt(0)
    s_barrier
    """)
    stamp(A, 10)
    A(f"""
    s_cmp_eq_u32 s{s_T}, 0
    s_cbranch_scc1 M_empty
    {dma(0, 0)}
    {dma(0, 1)}
    """)
    stamp(A, 11)

    def bread(t):
        r = vBa + min(t, CAP_T - 1) // 2
        if t & 1:
            return []
        return [f"ds_read_b64_tr_b16 {vr(vBq,2)}, v{r}", f"ds_read_b64_tr_b16 {vr(vBq+2,2)}, v{r} offset:{4*QS}"]

    def w2load(s):
        return f"buffer_load_dwordx4 {vr(vW2+4*s,4)}, v{vW2a}, {S(sWS)}, s{s_w2 + (s >> 2)} offen offset:{(s & 3)*1024} sc1"

    A(f"v_mov_b32 v9, {L_MX}\nds_read_b32 v59, v9")
    for t in range(6, 16):
        A(f"ds_read_b64 {vr(vOff+2*t,2)}, v{vaList} offset:{t*128}")
    for t in range(CAP_T // 2):
        A(f"v_mad_u32_u24 v{vBa+t}, v{vBa+t}, v{vBmul}, v{vaB}")
    A("\n".join(bread(0)))
    A(f"""
    ds_read_b128 {vr(vAqe,4)}, v{vaAqe}
    s_barrier
    {dma(1, 0)}
    {dma(1, 1)}
    {m0set(2)}
    s_waitcnt lgkmcnt(3)
    """)
    for t in range(16, CAP_T):
        A(f"ds_read_b64 {vr(vOff+2*t,2)}, v{vaList} offset:{t*128}")

    def offadd(lo, hi):
        for t in range(lo, hi):
            for jj in range(2):
                A(f"v_lshl_add_u32 v{vOff+2*t+jj}, v{vOff+2*t+jj}, 9, v{vK0 + 2*(t & 1) + jj}")
    offadd(6, 16)
    A("s_waitcnt lgkmcnt(0)")
    offadd(16, CAP_T)
    A(f"""
    s_cmp_lt_u32 s{s_w}, 4
    s_cbranch_scc1 M_nopri
    s_setprio 1
    M_nopri:
    v_lshlrev_b32 v8, 16, v{vBq}
    v_and_b32 v9, 0xffff0000, v{vBq}
    v_add_f32 v8, |v8|, |v9|
    v_lshlrev_b32 v9, 16, v{vBq+1}
    v_add_f32 v8, v8, |v9|
    v_and_b32 v9, 0xffff0000, v{vBq+1}
    v_add_f32 v8, v8, |v9|
    v_mul_f32 v8, v8, v59
    v_cmp_nge_f32 vcc, {f32(BND_E / 1.01):#x}, v8
    s_or_b32 s3, s{s_big}, s{s_slow}
    s_or_b32 s{s_K}, s3, vcc_lo
    s_cmp_eq_u32 s{s_K}, 0
    s_mov_b32 s{s_K}, {f32(-math.log(2.0) * 2.0 ** -CEXP):#x}
    s_cselect_b32 s3, 1.0, {f32(2.0**-CEXP):#x}
    s_cselect_b32 s{s_K}, {f32(-math.log(2.0)):#x}, s{s_K}
    v_mov_b32 v{vC}, s3
    v_mov_b32 v{vC+1}, s3
    """)
    mfma32(A, vU[0], vAqe, vBq, None)
    A("\n".join(bread(1)))
    A(f"""
    ds_read_b128 {vr(vAqe,4)}, v{vaAqe} offset:512
    s_barrier
    {dma(2, 0)}
    {dma(2, 1)}
    s_waitcnt vmcnt(4)
    ds_read_b128 {vr(vPf0,4)}, v{vaP0}
    ds_read_b128 {vr(vPf1,4)}, v{vaP1}
    s_waitcnt lgkmcnt(1)
    """)
    mfma32(A, vU[0], vPf0, vSel0, vU[0])
    A("s_waitcnt lgkmcnt(0)")
    mfma32(A, vU[0], vPf1, vSel1, vU[0])
    A(f"s_cmp_eq_u32 s3, 1.0\ns_nop 9\ns_cbranch_scc0 M_safe")
    stamp(A, 12)

    def half2(U, par, fast):
        if fast:
            rc = [f"v_rcp_f32 v{vT+i}, v{vT+i}" for i in range(4)]
            rest = [f"v_pk_mul_f32 {vr(U+i,2)}, {vr(U+i,2)}, {vr(vT+i,2)}" for i in (0, 2)]
        else:
            rc = [f"v_rcp_f32 v{vT+i}, v{vT+i}" for i in (0, 1, 2, 3, 8, 9, 10, 11)]
            rest = [f"v_pk_mul_f32 {vr(U+i,2)}, {vr(U+i,2)}, {vr(vT+i,2)}" for i in (0, 2)]
            rest += [f"v_pk_fma_f32 {vr(U+i,2)}, {vr(U+8+i,2)}, {vr(vT+8+i,2)}, {vr(U+i,2)}" for i in (0, 2)]
        rest += [f"v_cvt_pk_bf16_f32 v{vH+2*par+i//2}, v{U+i}, v{U+i+1}" for i in (0, 2)]
        return rc, rest

    def second_half(B, U, par, fast, aggread):
        rc, rest = half2(U, par, fast)
        if par == 0:
            mfma32(B, vACC, vH, vAgg, vACC)
        B("\n".join(rc + ([aggread] if aggread else []) + rest))

    vmq = ["d"] * (2 * (D + 1))

    def vm_need(t):
        seen = 0
        for i, k in enumerate(vmq):
            if k == "d":
                seen += 1
                if seen == 2 * (t + 1):
                    return len(vmq) - 1 - i

    ool = Asm()

    def emit_loop(A, md, fast):
        del vmq[2 * (D + 1):]
        A(".p2align 3")
        for t in range(CAP_T):
            U, Un = vU[t & 1], vU[(t + 1) & 1]
            tn = t + 1 + D
            s2 = ((t + 2) % D) * 2048
            ex = [f"v_exp_f32 v{vT+i}, v{U+i}" for i in range(16)]
            if "itst" in OPT:
                A(f"s_memtime s[100:101]")
            late_vm = t < NSHORT + 2
            FIRST = t == 0
            SHORT = t < NSHORT
            A(f"s_waitcnt lgkmcnt(0)" if late_vm else f"s_waitcnt vmcnt({vm_need(t+2)}) lgkmcnt(0)")
            if "itst" in OPT:
                A(f"s_waitcnt lgkmcnt(0)\nv_writelane_b32 v{vSt}, s100, {16+t}")
            def P(op, d, a, b, c=None, cl=""):
                return [f"v_pk_{op}_f32 {vr(d+i,2)}, {vr(a+i,2)}, {vr(b if b == vC else b+i,2)}"
                        + (f", {vr(c if c == vC else c+i,2)}" if c is not None else "") + cl for i in (0, 2)]
            if fast:
                pk = P("fma", U+4, U+4, vT, U+4) + P("add", vT+4, vT+4, vC) + P("fma", U+12, U+12, vT+8, U+12) + P("add", vT+12, vT+12, vC)
                pk += P("fma", U, U, vT+4, U+4) + P("fma", vT, vT, vT+4, vT+4)
                pk += P("fma", U+8, U+8, vT+12, U+12) + P("fma", vT+8, vT+8, vT+12, vT+12)
                pk += P("mul", U+8, U+8, vT) + P("fma", U, U, vT+8, U+8) + P("mul", vT, vT, vT+8)
                P_VM, P_LATE, P_F, P_CMP = 10, 13, 15, 18
            else:
                pk = []
                for g in (0, 4, 8, 12):
                    pk += P("fma", vT+g, vT+g, vC, vC, " clamp")
                for g in (0, 8):
                    pk += P("mul", U+g, U+g, vT+g+4) + P("fma", U+g, U+g+4, vT+g, U+g) + P("mul", vT+g, vT+g, vT+g+4)
                P_VM, P_LATE, P_F, P_CMP = 9, 12, 14, 16
            g_ds = ([m0set(tn)] if tn % 2 == 0 else []) + [f"ds_read_b128 {vr(vAqe,4)}, v{vaAqe} offset:{(t+2)*512}"] + bread(t + 2)
            if t & 1:
                g_ds.append(f"ds_read2st64_b64 {vr(vAgg,4)}, v{vaAgg} offset0:{t-1} offset1:{t}")
            g_p = [f"ds_read_b128 {vr(vPf0,4)}, v{vaP0} offset:{s2}", f"ds_read_b128 {vr(vPf1,4)}, v{vaP1} offset:{s2}"]
            g_vm = [dma(tn, 0), dma(tn, 1)]
            s1 = ((t + 1) % D) * 2048
            mid = []
            if SHORT:
                groups = {P_F: [f"s_waitcnt vmcnt({vm_need(t+1) - (2 if FIRST else 0)})",
                                f"ds_read_b128 {vr(vPf0,4)}, v{vaP0} offset:{s1}", f"ds_read_b128 {vr(vPf1,4)}, v{vaP1} offset:{s1}"]
                          + ([dma(D, 0), dma(D, 1)] if FIRST else [])}
                tail0 = g_vm + ([f"s_waitcnt vmcnt({vm_need(t+2) + 2})"] + g_p if t == NSHORT - 1 else [])
                mid = g_ds
            elif late_vm:
                groups = {P_LATE: [f"s_waitcnt vmcnt({vm_need(t+2)})"] + g_p + g_vm}
                mid = g_ds
            else:
                groups = {6: g_vm}
                mid = g_ds + g_p
            mfma32(A, Un, vAqe, vBq, None)
            if SHORT:
                A("\n".join(ex[0:13] + mid + ex[13:16] + ([dma(3, 0), dma(3, 1), m0set(D)] if FIRST else [])))
            else:
                A("\n".join(ex[0:4]))
                mfma32(A, Un, vPf0, vSel0, Un)
                A("\n".join(ex[4:8]))
                mfma32(A, Un, vPf1, vSel1, Un)
                A("\n".join(ex[8:13] + mid + ex[13:16]))
            vmq.extend(["d", "d"])
            if W2T0 <= t < W2T0 + 8:
                g_vm.append(w2load(t - W2T0))
                vmq.append("w")
            groups[P_CMP] = [f"s_cmp_le_i32 s{s_next}, {t}"]
            for i, x in enumerate(pk):
                A(x)
                if FIRST and i == 0 and "it0" in OPT:
                    stamp(A, 44)
                if FIRST and i == P_F:
                    if "it0" in OPT:
                        stamp(A, 45)
                    bias_term(A)
                    if "it0" in OPT:
                        stamp(A, 46)
                if FIRST and i == P_F + 1 and "it0" in OPT:
                    stamp(A, 47)
                for y in groups.get(i, []):
                    if not ("nodma" in OPT and " lds" in y):
                        A(y)
            A(f"s_cbranch_scc1 M_ev{md}{t}\nM_evr{md}{t}:")
            if SHORT:
                rc, rest = half2(U, t & 1, fast)
                k = len(rc) // 2
                if t and not t & 1:
                    mfma32(A, vACC, vH, vAgg, vACC)
                A("\n".join(rc[0:k]) + "\ns_waitcnt lgkmcnt(0)")
                mfma32(A, Un, vPf0, vSel0, Un)
                A("\n".join(rc[k:]))
                mfma32(A, Un, vPf1, vSel1, Un)
                A("\n".join(tail0 + rest + ["s_nop 3"]))
            else:
                second_half(A, U, t & 1, fast, None)
            ool(f"""
            M_ev{md}{t}:
            s_movk_i32 s{s_t}, {t}
            s_call_b64 s[{s_ret}:{s_ret+1}], M_rare
            s_cbranch_scc1 M_tail{md}{t & 1}
            s_branch M_evr{md}{t}
            """)

    emit_loop(A, "f", True)
    A("s_branch M_fin")
    def emit_tails(A, md, fast):
        for p in range(2):
            A(f"""
            M_tail{md}{p}:
            s_lshl_b32 s3, s{s_t}, 9
            v_add_u32 v8, s3, v{vaAgg}
            """)
            second_half(A, vU[p], p, fast, None if p else f"ds_read_b64 {vr(vAgg,2)}, v8")
            if p == 0:
                A(f"v_mov_b32 v{vAgg+2}, 0\nv_mov_b32 v{vAgg+3}, 0")
            if p == 0 or not fast:
                A("s_branch M_fin")
    emit_tails(A, "f", True)
    A(f"""
    M_fin:
    s_mov_b32 s{s_t}, s{s_T}
    s_cmp_eq_u32 s{s_T0p}, s{s_T}
    s_cbranch_scc0 M_fin2
    s_call_b64 s[{s_ret}:{s_ret+1}], M_rare
    M_fin2:
    s_waitcnt lgkmcnt(0)
    """)
    mfma32(A, vACC, vH, vAgg, vACC)
    stamp(A, 13)
    A(f"""
    s_cmp_lg_u32 s{s_sw}, 0
    s_nop 11
    s_cbranch_scc1 M_fin_hi
    """)
    for r in range(0, 16, 2):
        A(f"v_pk_add_f32 {vr(vS0+r,2)}, {vr(vS0+r,2)}, {vr(vACC+r,2)}")
    A("s_branch M_bend\nM_fin_hi:")
    for r in range(0, 16, 2):
        A(f"v_pk_add_f32 {vr(vS1+r,2)}, {vr(vS1+r,2)}, {vr(vACC+r,2)}")
    K = -math.log(2.0) * 2.0 ** -CEXP
    A(f"""
    M_bend:
    s_setprio 0
    s_cmp_lg_u32 s{s_slow}, 0
    s_cbranch_scc1 M_next
    M_epi:
    s_cmp_gt_u32 s{s_T}, {W2T0 + 8}
    s_cbranch_scc1 M_epi2
    """)
    for s_ in range(8):
        A(w2load(s_))
    A(f"""
    M_epi2:
    v_mov_b32 v{vC}, s{s_K}
    v_mov_b32 v{vC+1}, s{s_K}
    """)
    for Sx, o in ((vS0, 16), (vS1, 24)):
        for r in range(0, 16, 2):
            A(f"v_pk_mul_f32 {vr(Sx+r,2)}, {vr(Sx+r,2)}, {vr(vC,2)}")
        for r in range(0, 16, 2):
            A(f"v_cvt_pk_bf16_f32 v{o+r//2}, v{Sx+r}, v{Sx+r+1}")
        if o == 16:
            A(f"s_waitcnt vmcnt(0)\nds_write_b128 v{vSa}, v[16:19]\nds_write_b128 v{vSb}, v[20:23]")
    A(f"""
    ds_write_b128 v{vSa}, v[24:27] offset:2048
    ds_write_b128 v{vSb}, v[28:31] offset:2048
    s_mov_b32 s{s_x}, 4096
    s_mov_b32 s{s_x+1}, 8192
    s_waitcnt lgkmcnt(0)
    s_barrier
    """)
    stamp(A, 14)
    SFR = 48
    order = [(s, mt) for s in range(8) for mt in range(3)]
    RS = D * 2048
    AHEAD = 12
    for k in range(AHEAD):
        s, mt = order[k]
        A(f"ds_read_b128 {vr(SFR+4*k,4)}, v{vSr} offset:{s*RS+mt*1024}")
    for k in range(24):
        s, mt = order[k]
        A(f"s_waitcnt lgkmcnt({min(AHEAD - 1, 23 - k)})")
        mfma16(A, OO[mt], vW2 + 4 * s, SFR + 4 * k, OO[mt])
        if k + AHEAD < 24:
            s2, mt2 = order[k + AHEAD]
            A(f"ds_read_b128 {vr(SFR+4*(k+AHEAD),4)}, v{vSr} offset:{s2*RS+mt2*1024}")
    A("s_nop 5")
    for mt in range(3):
        A(f"""
        v_cvt_pk_bf16_f32 v{16+2*mt}, v{OO[mt]}, v{OO[mt]+1}
        v_cvt_pk_bf16_f32 v{17+2*mt}, v{OO[mt]+2}, v{OO[mt]+3}
        buffer_store_dwordx2 {vr(16+2*mt,2)}, v{vOa}, {S(sA)}, {["0", f"s{s_x}", f"s{s_x+1}"][mt]} offen {"sc1" if "outsc" in OPT else ("nt" if "outnt" in OPT else "")}
        """)
    if (SPIN is not None and SPIN[0] == 15) or ENC is not None:
        A("s_waitcnt vmcnt(0)")
        stamp(A, 15)
    if STAMPS:
        A("s_waitcnt vmcnt(0)")
        stamp(A, 15)
        srd(A, sA, pWS, 0x80000, off=WS_ST)
        A(f"""
        s_lshl_b32 s3, s2, 3
        s_add_u32 s3, s3, s{s_w}
        s_lshl_b32 s3, s3, 8
        v_lshl_add_u32 v1, v{L}, 2, s3
        buffer_store_dword v{vSt}, v1, {S(sA)}, 0 offen
        """)
    A("M_end:\ns_endpgm")

    A(f"""
    M_rare:
    s_cmp_eq_u32 s{s_T0p}, s{s_t}
    s_cbranch_scc0 M_rare2
    s_lshl_b32 s3, s{s_t}, 9
    v_add_u32 v8, s3, v{vaAgg}
    v_add_u32 v{vaAgg}, 512, v{vaAgg}
    s_mov_b32 s{s_sw}, 1
    s_mov_b32 s{s_T0p}, 0x7fffffff
    s_bitcmp1_b32 s{s_t}, 0
    s_waitcnt lgkmcnt(0)
    s_cbranch_scc1 M_swo
    """)
    for odd in (0, 1):
        hi, other = (vAgg, vAgg + 2) if odd else (vAgg + 2, vAgg)
        if odd:
            A(f"M_swo:\nv_mov_b32 v{other}, 0\nv_mov_b32 v{other+1}, 0\ns_nop 1")
        mfma32(A, vACC, vH, vAgg, vACC)
        A(f"""
        v_mov_b32 v{other}, 0
        v_mov_b32 v{other+1}, 0
        ds_read_b64 {vr(hi,2)}, v8
        s_nop 8
        """)
        for r in range(0, 16, 2):
            A(f"v_pk_add_f32 {vr(vS0+r,2)}, {vr(vS0+r,2)}, {vr(vACC+r,2)}")
        A("s_waitcnt lgkmcnt(0)")
        mfma32(A, vACC, vH, vAgg, None)
        A(f"v_mov_b32 v{hi}, 0\nv_mov_b32 v{hi+1}, 0")
        if odd:
            A(f"ds_read_b64 {vr(other,2)}, v8 offset:512")
        if not odd:
            A("s_branch M_rare2")
    A(f"""
    M_rare2:
    s_cmp_le_i32 s{s_pri}, s{s_t}
    s_cbranch_scc0 M_rare3
    s_setprio 0
    s_mov_b32 s{s_pri}, 0x7fffffff
    M_rare3:
    s_sub_u32 s3, s{s_T}, 1
    s_min_i32 s{s_next}, s3, s{s_T0p}
    s_min_i32 s{s_next}, s{s_next}, s{s_pri}
    s_cmp_le_i32 s3, s{s_t}
    s_setpc_b64 s[{s_ret}:{s_ret+1}]
    """)

    A(f"""
    M_pbig:
    v_lshlrev_b32 v8, 7, v{L}
    v_mov_b32 v9, 0x10000
    s_mov_b32 s3, {WS_RP}
    s_mov_b64 exec, 0xffff
    buffer_atomic_add v9, v8, {S(sWS)}, s3 offen sc1
    s_mov_b64 exec, -1
    s_branch M_pbigr
    """)
    A(f"M_empty:\ns_mov_b32 s{s_K}, {f32(-math.log(2.0) * 2.0 ** -CEXP):#x}")
    bias_term(A)
    A("s_branch M_bend")
    A(f"""
    M_align:
    s_mov_b32 s{s_alt}, -1
    s_mov_b32 s{s_x+2}, 0
    v_mov_b32 v13, v{vBase}
    """)
    for G in range(5):
        A(f"""
        v_readlane_b32 s{s_x}, v{vBase}, {8*G}
        v_readlane_b32 s{s_x+1}, v{vBase}, {8*G+8}
        s_nop 1
        s_sub_u32 s{s_x+3}, s{s_x+2}, s{s_x}
        v_cmp_le_u32 vcc, {8*G}, v{L}
        v_add_u32 v10, s{s_x+3}, v{vBase}
        s_sub_u32 s{s_x+1}, s{s_x+1}, s{s_x}
        s_add_u32 s{s_x+2}, s{s_x+2}, s{s_x+1}
        v_cndmask_b32 v13, v13, v10, vcc
        """)
        if G < 4:
            A(f"s_add_u32 s{s_x+2}, s{s_x+2}, 63\ns_and_b32 s{s_x+2}, s{s_x+2}, 0xffffffc0")
    A(f"""
    s_mov_b32 s{s_tot}, s{s_x+2}
    v_mov_b32 v{vBase}, v13
    s_nop 1
    s_branch M_derive
    """)
    A(f"""
    M_goslow:
    s_mov_b32 s{s_slow}, 1
    s_mov_b32 s{s_batch}, 0
    s_branch M_load
    M_next:
    s_add_u32 s{s_batch}, s{s_batch}, {SLOWB}
    s_cmp_ge_u32 s{s_batch}, {E}
    s_cbranch_scc1 M_epi
    M_load:
    """)
    srd(A, sA, pDST, E * 4)
    srd(A, sB, pSRC, E * 4)
    A(f"""
    v_add_u32 v8, s{s_batch}, v0
    v_lshlrev_b32 v9, 2, v8
    s_waitcnt vmcnt(0) lgkmcnt(0)
    buffer_load_dword v10, v9, {S(sA)}, 0 offen
    buffer_load_dword v11, v9, {S(sB)}, 0 offen
    v_lshlrev_b32 v{vChunk8}, 3, v8
    v_mov_b32 v5, -1
    v_mov_b32 v6, -1
    v_mov_b32 v7, -1
    s_add_u32 s{s_x+2}, s{s_batch}, {SLOWB}
    s_min_u32 s{s_x+2}, s{s_x+2}, {E}
    s_waitcnt vmcnt(0)
    v_subrev_u32 v12, s{s_nb0}, v10
    v_cmp_gt_u32 vcc, s{s_nn}, v12
    v_cmp_gt_u32 s[{s_x}:{s_x+1}], s{s_x+2}, v8
    v_and_b32 v10, 63, v10
    v_lshl_or_b32 v11, v10, 14, v11
    s_and_b64 vcc, vcc, s[{s_x}:{s_x+1}]
    s_nop 1
    v_cndmask_b32 v4, v5, v11, vcc
    s_barrier
    """)
    zerofill()
    A("s_waitcnt lgkmcnt(0)\ns_barrier\ns_branch M_recs")
    A.l += [l for l in ool.l]
    ool.l.clear()
    A("M_cpf1:")
    B2 = Asm()
    B2("M_safe:")
    emit_loop(B2, "s", False)
    B2("s_branch M_fin")
    emit_tails(B2, "s", False)
    A.l += B2.l
    A.l += ool.l


def build():
    out = f"""; Fused edge-featured MPNN layer, one workgroup per bucket of 39/40 destination nodes.
; @launch grid=(256,1,1) block=(512,1,1) lds={LDS_BYTES}
.amdgcn_target "amdgcn-amd-amdhsa--gfx950"
.text
.globl {KN}
.p2align 8
.type {KN},@function
"""
    A = Asm()
    kernel(A)
    out += A.text()
    out += f""".section .rodata,"a"
.p2align 6
.amdhsa_kernel {KN}
  .amdhsa_next_free_vgpr {NV}
  .amdhsa_next_free_sgpr 102
  .amdhsa_accum_offset {(NV + 3) // 4 * 4}
  .amdhsa_group_segment_fixed_size 0
  .amdhsa_kernarg_size 88
  .amdhsa_user_sgpr_count 2
  .amdhsa_user_sgpr_kernarg_segment_ptr 1
  .amdhsa_system_sgpr_workgroup_id_x 1
.end_amdhsa_kernel
"""
    return out


if __name__ == "__main__":
    for a in list(sys.argv):
        if a.startswith("-o"):
            OPT.update(a[2:].split(","))
            sys.argv.remove(a)
    for a in list(sys.argv):
        if a.startswith("-spin"):
            i, us = a[5:].split(":")
            SPIN = (int(i), float(us))
            sys.argv.remove(a)
    for a in list(sys.argv):
        if a.startswith("-wsb"):
            WS_BASE = int(a[4:]) << 20
            sys.argv.remove(a)
    for a in list(sys.argv):
        if a.startswith("-enc"):
            ENC = int(a[4:])
            sys.argv.remove(a)
    for a in list(sys.argv):
        if a.startswith("-pri"):
            PRIO_NUM = int(a[4:])
            sys.argv.remove(a)
    for a in list(sys.argv):
        if a.startswith("-nt"):
            NT0 = int(a[3:])
            sys.argv.remove(a)
    for a in list(sys.argv):
        if a.startswith("-early"):
            EARLY = tuple(int(c) for c in a[6:])
            sys.argv.remove(a)
    for a in list(sys.argv):
        if a.startswith("-ns"):
            NSHORT = int(a[3:])
            sys.argv.remove(a)
    for a in list(sys.argv):
        if a.startswith("-w2t"):
            W2T0 = int(a[4:])
            sys.argv.remove(a)
    for a in list(sys.argv):
        if a.startswith("-slp"):
            SLP = int(a[4:])
            sys.argv.remove(a)
    if "--stamps" in sys.argv:
        STAMPS = True
        sys.argv.remove("--stamps")
    path = sys.argv[1] if len(sys.argv) > 1 else f"cdna_kernels/{NAME}.s"
    if "cpf" in OPT:
        import subprocess
        open("_p.s", "w").write(build())
        subprocess.check_call(["clang", "-x", "assembler", "-target", "amdgcn-amd-amdhsa", "-mcpu=gfx950", "-c", "_p.s", "-o", "_p.o"])
        nm = {l.split()[-1]: int(l.split()[1], 16) for l in subprocess.check_output(["llvm-readelf", "-s", "_p.o"], text=True).splitlines() if "M_cpf" in l}
        CPF_STEP = ((nm["M_cpf1"] - nm["M_cpf0"] - 512) // 63) & -4
        print("code prefetch step", CPF_STEP)
        assert 65 <= CPF_STEP <= 512
    open(path, "w").write(build())
    print("wrote", path, "lds", LDS_BYTES)
```
